```python
import torch

def _softmax(x, axis=-1):
    return torch.softmax(x, dim=axis)
def _gelu(x):
    return torch.nn.functional.gelu(x, approximate="tanh")
def _silu(x):
    return torch.nn.functional.silu(x)
def _sigmoid(x):
    return torch.sigmoid(x)
def _layernorm(x, axis=-1, eps=1e-5):
    m = x.mean(dim=axis, keepdim=True)
    v = x.var(dim=axis, keepdim=True, unbiased=False)
    return (x - m) / torch.sqrt(v + eps)
def _scatter_add(tgt, idx, src, axis=0):
    return tgt.clone().index_add_(axis, idx, src)
def _segment_sum(src, seg, n):
    out = torch.zeros((n,) + src.shape[1:], dtype=src.dtype)
    return out.index_add_(0, seg, src)
def _pad(x, pw):
    flat = tuple(v for pair in reversed(pw) for v in pair)
    return torch.nn.functional.pad(x, flat)

kernel_name = 'gated_mix__sliding_local_dilated__dense_activation_relu__prompt'

def setup_inputs():

    _w = (lambda a: (lambda t: t.to(torch.bfloat16) if t.is_floating_point() else t)(torch.as_tensor(a)))
    def _A_setup():
        B, S, D = 1, 2048, 512
        return {
            "x": _w((lambda *s: torch.randn(*s, dtype=torch.bfloat16) * 0.05)(B, S, D)),
            "wqkv": _w((lambda *s: torch.randn(*s, dtype=torch.bfloat16) * 1.6)(D, 3 * D)),
            "wo": _w((lambda *s: torch.randn(*s, dtype=torch.bfloat16) * 0.05)(D, D)),
        }
    _A_in = _A_setup()

    def _B_setup():
        B, S, D, Dff = 1, 2048, 512, 1792
        return {
            "x": _w((lambda *s: torch.randn(*s, dtype=torch.bfloat16) * 0.05)(B, S, D)),
            "w1": _w((lambda *s: torch.randn(*s, dtype=torch.bfloat16) * 0.2)(D, Dff)),
            "w2": _w((lambda *s: torch.randn(*s, dtype=torch.bfloat16) * 0.2)(Dff, D)),
        }
    _B_in = _B_setup()

    return {
        "A_x": _A_in["x"],
        "A_wqkv": _A_in["wqkv"],
        "A_wo": _A_in["wo"],
        "B_x": _B_in["x"],
        "B_w1": _B_in["w1"],
        "B_w2": _B_in["w2"],
        "gate_w": _w((lambda *s: torch.randn(*s, dtype=torch.bfloat16) * 0.05)(512) * 16.0),
    }

def reference(A_x, A_wqkv, A_wo, B_x, B_w1, B_w2, gate_w):
    def _A_ref(x, wqkv, wo):
        B, S, D = x.shape
        H = 32; Dh = D // H
        W, dil = 8, 2
        qkv = (lambda x, *d: x.permute(*d))((x @ wqkv).reshape(B, S, 3, H, Dh), 2, 0, 3, 1, 4)
        q, k, v = qkv[0], qkv[1], qkv[2]
        scale = Dh ** -0.5
        pos = torch.arange(S)
        off = torch.arange(W) * dil
        idx = pos[:, None] - off[None, :]
        mask = idx >= 0
        idx_c = torch.where(mask, idx, 0).reshape(-1)
        kg = k[:, :, idx_c, :].reshape(B, H, S, W, Dh)
        vg = v[:, :, idx_c, :].reshape(B, H, S, W, Dh)
        logits = torch.einsum("bhsd,bhswd->bhsw", q, kg) * scale
        logits = torch.where(mask[None, None, :, :], logits, -1e9)
        attn = _softmax(logits, axis=-1)
        o = torch.einsum("bhsw,bhswd->bhsd", attn, vg)
        return (lambda x, *d: x.permute(*d))(o, 0, 2, 1, 3).reshape(B, S, D) @ wo

    def _B_ref(x, w1, w2):
        h = torch.einsum("bsd,df->bsf", x, w1)
        zero = torch.zeros_like(h)
        h = torch.maximum(h, zero)
        return torch.einsum("bsf,fd->bsd", h, w2)

    x = A_x
    g = _sigmoid((x * gate_w).sum(-1, keepdims=True))
    a = _A_ref(x, A_wqkv, A_wo)
    b = _B_ref(x, B_w1, B_w2)
    return g * a + (1 - g) * b
```

```python
import re

class Asm:
    def __init__(self):
        self.lines = []
    def e(self, s):
        for l in s.split("\n"):
            l = l.strip()
            if l: self.lines.append(l)
    def __call__(self, s): self.e(s)
    def label(self, n): self.lines.append(n + ":")
    def nop(self, n):
        while n > 0:
            k = min(n, 16); self.e(f"s_nop {k-1}"); n -= k
    def text(self): return "\n".join(self.lines) + "\n"

def vr(a, n=1): return f"v{a}" if n == 1 else f"v[{a}:{a+n-1}]"
def ar(a, n=1): return f"a{a}" if n == 1 else f"a[{a}:{a+n-1}]"
def sr(a, n=1): return f"s{a}" if n == 1 else f"s[{a}:{a+n-1}]"

_reg = re.compile(r"^(-|abs\()?([vsa])(?:(\d+)|\[(\d+):(\d+)\])\)?$")
def regs(op):
    op = op.strip()
    if op in ("vcc",): return {("s", 106), ("s", 107)}
    if op == "vcc_lo": return {("s", 106)}
    if op == "vcc_hi": return {("s", 107)}
    if op == "exec": return {("s", 126), ("s", 127)}
    if op == "m0": return {("s", 124)}
    m = _reg.match(op)
    if not m: return set()
    k = m.group(2)
    if m.group(3) is not None: return {(k, int(m.group(3)))}
    return {(k, i) for i in range(int(m.group(4)), int(m.group(5)) + 1)}

TRANS = ("v_exp_", "v_log_", "v_rcp_", "v_rsq_", "v_sqrt_", "v_sin_", "v_cos_")
def passes(op):
    if "32x32x16" in op or "32x32x8" in op: return 8
    if "16x16x32" in op or "16x16x16" in op: return 4
    if "4x4x4" in op: return 2
    raise ValueError(op)

class I:
    def __init__(self, line):
        self.line = line
        body = line.split(";")[0].strip()
        parts = body.split(None, 1)
        self.op = parts[0]
        rest = parts[1] if len(parts) > 1 else ""
        ops = []; cur = ""; d = 0
        for ch in rest:
            if ch in "[(": d += 1
            if ch in "])": d -= 1
            if ch == "," and d == 0: ops.append(cur.strip()); cur = ""
            else: cur += ch
        if cur.strip(): ops.append(cur.strip())
        self.mods = ""
        if ops:
            sp = ops[-1].split(None, 1)
            if len(sp) > 1: ops[-1] = sp[0]; self.mods = sp[1]
        self.ops = ops
        op = self.op
        self.w = set(); self.r = set()
        self.kind = "other"
        self.ws = 1
        R = [regs(o) for o in ops]
        if op == "s_nop": self.ws = int(ops[0], 0) + 1; self.kind = "nop"
        elif op.startswith("v_mfma"):
            self.kind = "mfma"; self.w = R[0]; self.A = R[1]; self.B = R[2]; self.C = R[3]; self.r = R[1] | R[2] | R[3]; self.p = passes(op)
        elif op.startswith("v_"):
            self.kind = "valu"
            if op.startswith("v_cmp"):
                self.w = R[0]; self.r = set().union(*R[1:])
            elif ("permlane" in op and "swap" in op) or op.startswith("v_swap"):
                self.w = R[0] | R[1]; self.r = R[0] | R[1]
            elif op.startswith(("v_add_co", "v_sub_co", "v_addc_co", "v_subb_co", "v_subrev_co")):
                self.w = R[0] | R[1]; self.r = set().union(*R[2:])
            else:
                self.w = R[0]; self.r = set().union(*R[1:]) if len(R) > 1 else set()
                if op.startswith(("v_fmac", "v_dot2c", "v_pk_fmac", "v_writelane")) or "_dpp" in op: self.r |= R[0]
                if op.startswith("v_cndmask") and len(ops) == 3: self.r |= regs("vcc")
        elif op.startswith("ds_"):
            self.kind = "ds"
            if op.startswith(("ds_read", "ds_bpermute", "ds_permute", "ds_swizzle")) or "_rtn_" in op: self.w = R[0]; self.r = set().union(*R[1:])
            else: self.r = set().union(*R)
        elif op.startswith(("buffer_", "global_")):
            self.kind = "vmem"
            lds = " lds" in (" " + self.mods) or "_lds_" in op
            self.lds = lds
            if op.startswith(("buffer_wbl2", "buffer_inv")): pass
            elif "load" in op and not lds: self.w = R[0]; self.r = set().union(*R[1:])
            elif "atomic" in op and "sc0" in self.mods:
                self.w = R[0]; self.r = set().union(*R[0:])
            else: self.r = set().union(*R)
            if lds: self.r |= regs("m0")
            self.wide_data = set()
            if "store" in op and ("x4" in op or "x3" in op):
                self.wide_data = R[0] if op.startswith("buffer_") else R[1]
        elif op.startswith("s_"):
            self.kind = "salu"
            if op.startswith("s_cbranch_vcc"): self.r = regs("vcc")
            elif op.startswith(("s_cmp", "s_cbranch", "s_branch", "s_waitcnt", "s_barrier", "s_endpgm", "s_setprio", "s_sleep", "s_bitcmp", "s_setpc")):
                self.r = set().union(*R) if R else set()
            else:
                self.w = R[0] if R else set(); self.r = set().union(*R[1:]) if len(R) > 1 else set()
                if "saveexec" in op: self.w |= regs("exec")
            if op.startswith(("s_load", "s_memtime", "s_memrealtime", "s_buffer_load")): self.kind = "smem"

def vg(s): return {x for x in s if x[0] in "va"}
def sg(s): return {x for x in s if x[0] == "s"}

def need(p, c):
    n = 0
    tab = {2: 0, 4: 1, 8: 2}
    if p.kind == "valu":
        isdl = p.op.startswith("v_dot")
        if c.kind == "mfma" and vg(p.w) & c.r: n = max(n, 3 if isdl else 2)
        if c.kind == "vmem" and sg(p.w) & c.r: n = max(n, 5)
        if c.kind == "valu" and sg(p.w) & c.r:
            n = max(n, 4 if c.op.startswith(("v_readlane", "v_writelane")) else 2)
        if c.kind in ("salu", "smem") and sg(p.w) & c.r: n = max(n, 1)
        if c.kind == "valu" and vg(p.w) & c.r:
            if "permlane" in c.op or "_dpp" in c.op: n = max(n, 2)
            if c.op.startswith(("v_readlane", "v_readfirstlane")): n = max(n, 1)
            if p.op.startswith(TRANS) and not c.op.startswith(TRANS): n = max(n, 1)
        if p.op.startswith(TRANS) and c.kind in ("mfma",) and vg(p.w) & c.r: n = max(n, 2)
        if isdl and c.op != p.op and vg(p.w) & (c.r | c.w): n = max(n, 3)
        if isdl and c.op == p.op and len(c.ops) >= 3 and vg(p.w) & (regs(c.ops[1]) | regs(c.ops[2])): n = max(n, 3)
    if p.kind == "mfma":
        k = tab[p.p]
        if c.kind == "mfma":
            if p.w & (c.A | c.B): n = max(n, [5, 8, 12][k])
            if p.w & c.C:
                if p.w == c.C and p.p == c.p: n = max(n, [2, 0, 0][k])
                else: n = max(n, [4, 6, 10][k])
            elif p.w & c.w: n = max(n, [4, 6, 10][k])
        elif c.kind in ("valu", "vmem", "ds"):
            if p.w & (c.r | c.w): n = max(n, [5, 8, 12][k])
            if c.kind == "valu" and p.C & c.w: n = max(n, [1, 3, 7][k])
    if p.kind == "salu" and ("s", 124) in p.w and c.kind == "vmem" and getattr(c, "lds", False): n = max(n, 1)
    if p.kind == "vmem" and getattr(p, "wide_data", None):
        if p.wide_data & c.w: n = max(n, 2 if c.kind == "valu" else 1)
    return n

def check(lines, window=24):
    ins = []; labels = {}
    for l in lines:
        b = l.split(";")[0].strip()
        if not b or b.startswith("."): continue
        if b.endswith(":"): labels[b[:-1]] = len(ins); continue
        ins.append(I(b))
    errs = []
    def succ(i):
        x = ins[i]
        if x.op == "s_endpgm": return []
        if x.op == "s_branch": return [labels[x.ops[0]]]
        if x.op.startswith("s_cbranch"): return [i + 1, labels[x.ops[0]]]
        return [i + 1]
    seen = set()
    for i, p in enumerate(ins):
        if p.kind not in ("valu", "mfma", "salu", "vmem"): continue
        stack = [(j, 0) for j in succ(i)]
        vis = set()
        while stack:
            j, d = stack.pop()
            if j >= len(ins) or d >= 20 or (j, d) in vis: continue
            vis.add((j, d))
            c = ins[j]
            n = need(p, c)
            if n > d and (i, j) not in seen:
                seen.add((i, j)); errs.append(f"hazard: need {n} have {d}: [{i}] {p.line}  ->  [{j}] {c.line}")
            for k in succ(j): stack.append((k, d + c.ws))
    return errs
```

```python
import sys, math
from asmlib import *

NAME = "gated_mix__sliding_local_dilated__dense_activation_relu__prompt"
A2_OFF = 0
A2_SIZE = 32 * 72 * 4096
W2_OFF = 0xA00000
W2_SIZE = 8 * 72 * 4096
G_OFF = 0xD00000
WS_USED = 0xD00000 + 8192
STAMP_OFF = 128 << 20
SLOT = 45056
XOFF, WOFF, EOFF = 0, 16384, 40960
SCR = 3 * SLOT
K1_LDS = SCR + 16384
BIG = 0xF149F2CA
LOG2E = 1.4426950408889634

def f32bits(x):
    import struct
    return struct.unpack("<I", struct.pack("<f", x))[0]

def srd(a, d, base, size, add=0):
    if add == 0:
        a(f"s_mov_b32 s{d}, s{base}"); a(f"s_mov_b32 s{d+1}, s{base+1}")
    else:
        a(f"s_add_u32 s{d}, s{base}, {add}"); a(f"s_addc_u32 s{d+1}, s{base+1}, 0")
    a(f"s_mov_b32 s{d+2}, {size}"); a(f"s_mov_b32 s{d+3}, 0x20000")

def csel(a, d, x, y):
    a(f"s_mov_b32 {d}, {y}"); a(f"s_cselect_b32 {d}, {x}, {d}")

def interleave(a, mf, other, start=0, per=1):
    other = list(other)
    for i, m in enumerate(mf):
        a(m)
        if i >= start:
            for _ in range(per):
                if other: a(other.pop(0))
    for o in other: a(o)

def stamp_begin(a, opt):
    if opt.get("stamps"):
        a("s_memrealtime s[90:91]"); a("s_memtime s[92:93]")

def stamp_mid(a, opt, k):
    if opt.get("stamps"):
        a(f"s_memtime s[{94+2*k}:{95+2*k}]")

def stamp_end(a, opt, ws, slot_base, tag):
    if not opt.get("stamps"): return
    a("s_waitcnt vmcnt(0) lgkmcnt(0)")
    a("s_memrealtime s[86:87]"); a("s_memtime s[88:89]")
    a("s_waitcnt lgkmcnt(0)")
    srd(a, 80, ws, 1 << 20, STAMP_OFF + slot_base)
    a("s_lshl_b32 s84, s2, 3"); a("s_add_u32 s84, s84, s3"); a("s_lshl_b32 s84, s84, 6")
    a("s_getreg_b32 s85, hwreg(HW_REG_XCC_ID)")
    for i, s in enumerate((90, 91, 86, 87, 92, 93, 88, 89, 94, 95, 96, 97, 98, 99, 85, 85)):
        a(f"v_mov_b32 v{8+i}, s{s}")
    a("v_mov_b32 v6, s84")
    a("s_mov_b64 exec, 1")
    for q in range(4):
        a(f"buffer_store_dwordx4 v[{8+4*q}:{11+4*q}], v6, s[80:83], 0 offen offset:{16*q}")
    a("s_waitcnt vmcnt(0)")

def gen_k1(a, opt):
    kn = "k1_kernel"
    a(f".globl {kn}"); a(".p2align 8"); a(f".type {kn},@function"); a.label(kn)
    a("s_cmp_ge_u32 s2, 256"); a("s_cbranch_scc1 K1_END")
    a("s_load_dwordx4 s[4:7], s[0:1], 0")
    a("s_load_dwordx2 s[8:9], s[0:1], 16")
    a("s_load_dwordx4 s[12:15], s[0:1], 32")
    a("s_load_dwordx2 s[16:17], s[0:1], 48")
    a("s_load_dwordx2 s[18:19], s[0:1], 72")
    stamp_begin(a, opt)
    a("v_lshrrev_b32 v1, 6, v0"); a("v_and_b32 v0, 63, v0")
    a("v_readfirstlane_b32 s3, v1")
    m = opt.get("k1map", "Z")
    a("s_and_b32 s52, s2, 7"); a("s_lshr_b32 s53, s2, 3")
    if m == "Z":
        a("s_lshr_b32 s20, s52, 1"); a("s_lshl_b32 s20, s20, 2"); a("s_and_b32 s54, s53, 3"); a("s_add_u32 s20, s20, s54")
        a("s_lshr_b32 s54, s53, 2")
        a("s_and_b32 s21, s54, 1")
        a("s_and_b32 s22, s52, 1"); a("s_lshl_b32 s22, s22, 2"); a("s_lshr_b32 s54, s54, 1"); a("s_add_u32 s22, s22, s54")
    elif m == "Y":
        a("s_lshr_b32 s20, s52, 2"); a("s_lshl_b32 s20, s20, 3"); a("s_and_b32 s54, s53, 7"); a("s_add_u32 s20, s20, s54")
        a("s_lshr_b32 s54, s53, 3")
        a("s_and_b32 s21, s54, 1")
        a("s_and_b32 s22, s52, 3"); a("s_lshl_b32 s22, s22, 1"); a("s_lshr_b32 s54, s54, 1"); a("s_add_u32 s22, s22, s54")
    elif m == "X":
        a("s_lshl_b32 s20, s52, 1"); a("s_and_b32 s54, s53, 1"); a("s_add_u32 s20, s20, s54")
        a("s_lshr_b32 s54, s53, 1")
        a("s_and_b32 s21, s54, 1"); a("s_lshr_b32 s22, s54, 1")
    a("s_and_b32 s23, s3, 3")
    a("s_cmp_ge_u32 s3, 4"); a("s_cbranch_scc1 K1_LOADER")
    a("s_cmp_eq_u32 s21, 0"); a("s_cbranch_scc1 K1_ATTN")
    gen_k1_ffn(a, opt)
    gen_k1_attn(a, opt)
    gen_k1_loader(a, opt)
    a.label("K1_END"); a("s_endpgm")

def slot_advance(a):
    return

def k1_mainloop(a, opt, pre, addr_regs, reads, mfmas):
    a("s_mov_b32 s60, 0"); a("s_mov_b32 s62, 0"); a(f"s_mov_b32 s56, {SLOT}"); a(f"s_mov_b32 s57, {(-2*SLOT) & 0xffffffff}")
    a("s_barrier")
    stamp_mid(a, opt, 0)
    for r in reads(0, 0): a(r)
    a(".p2align 3")
    a.label(pre + "_LOOP")
    a("s_waitcnt lgkmcnt(0)")
    a("s_add_u32 s60, s60, 1")
    interleave(a, mfmas(0), reads(1, 1))
    a("s_cmp_eq_u32 s60, 3"); a("s_cselect_b32 s61, s57, s56"); a("s_cselect_b32 s60, 0, s60")
    a("s_add_u32 s62, s62, 1")
    a("s_cmp_eq_u32 s62, 8")
    a("s_waitcnt lgkmcnt(0)")
    a(f"s_cbranch_scc1 {pre}_NOBAR")
    a("s_barrier")
    a.label(pre + "_NOBAR")
    adv = [f"v_add_u32 v{r}, s61, v{r}" for r in addr_regs]
    mf = mfmas(1)
    a(mf[0])
    for x in adv: a(x)
    if len(adv) % 2: a("s_nop 0")
    interleave(a, mf[1:], reads(0, 0))
    a(f"s_cbranch_scc0 {pre}_LOOP")
    a("s_waitcnt lgkmcnt(0)")
    stamp_mid(a, opt, 1)

def gen_k1_ffn(a, opt):
    ACC = 16; FR = 128
    def acc(t, n): return ACC + 4 * (t * 7 + n)
    def xf(s, t): return FR + 44 * s + 4 * t
    def wf(s, n): return FR + 44 * s + 16 + 4 * n
    XA = [2, 3]; WA = [4, 5, 6, 7]; SA = 8
    a("s_lshr_b32 s24, s23, 1")
    a("s_and_b32 s25, s23, 1")
    a("v_and_b32 v10, 15, v0"); a("v_lshrrev_b32 v11, 4, v0")
    a("v_lshrrev_b32 v12, 1, v10"); a("v_xor_b32 v12, v12, v11"); a("v_lshlrev_b32 v12, 4, v12")
    a("v_lshlrev_b32 v13, 7, v10"); a("v_add_u32 v12, v12, v13")
    a("s_lshl_b32 s52, s24, 13"); a(f"v_add_u32 v{XA[0]}, s52, v12"); a(f"v_xor_b32 v{XA[1]}, 64, v{XA[0]}")
    a("v_bfe_u32 v12, v0, 2, 2")
    a("v_lshlrev_b32 v13, 3, v11"); a("v_add_u32 v13, v13, v12")
    a("v_lshrrev_b32 v14, 1, v12"); a("v_and_b32 v15, 1, v11"); a("v_lshlrev_b32 v9, 1, v15"); a("v_or_b32 v14, v14, v9")
    a("v_and_b32 v9, 3, v0"); a("v_lshlrev_b32 v9, 3, v9")
    a("v_lshlrev_b32 v12, 7, v13"); a("v_add_u32 v12, v12, v9")
    for j in range(4):
        a(f"s_mul_i32 s52, s25, 6"); a(f"s_add_u32 s52, s52, {j}")
        a("s_and_b32 s53, s52, 3"); a("s_lshr_b32 s52, s52, 2"); a("s_lshl_b32 s52, s52, 13"); a(f"s_add_u32 s52, s52, {WOFF}")
        a(f"v_xor_b32 v{WA[j]}, s53, v14"); a(f"v_lshlrev_b32 v{WA[j]}, 5, v{WA[j]}"); a(f"v_add_u32 v{WA[j]}, v{WA[j]}, v12"); a(f"v_add_u32 v{WA[j]}, s52, v{WA[j]}")
    a(f"v_xor_b32 v{SA}, s25, v15"); a(f"v_lshlrev_b32 v{SA}, 5, v{SA}"); a(f"v_add_u32 v{SA}, v{SA}, v9")
    a("v_lshlrev_b32 v12, 6, v13"); a(f"v_add_u32 v{SA}, v{SA}, v12"); a(f"v_add_u32 v{SA}, {EOFF}, v{SA}")
    for i in range(112): a(f"v_mov_b32 v{ACC+i}, 0")
    a("s_waitcnt lgkmcnt(0)")
    srd(a, 40, 18, A2_SIZE, A2_OFF)
    a("s_lshl_b32 s52, s20, 1"); a("s_add_u32 s52, s52, s24"); a("s_mul_i32 s52, s52, 72")
    a("s_mul_i32 s53, s22, 7"); a("s_add_u32 s52, s52, s53"); a("s_add_u32 s52, s52, 16")
    a("s_and_b32 s53, s22, 1")
    a("s_mul_i32 s54, s25, 3"); a("s_add_u32 s54, s54, s53"); a("s_add_u32 s54, s54, s52"); a("s_lshl_b32 s64, s54, 12")
    a("s_add_u32 s65, s64, 4096"); a("s_add_u32 s66, s64, 8192")
    a("s_cmp_eq_u32 s53, 0"); a("s_cselect_b32 s54, 6, 0"); a("s_add_u32 s54, s54, s52"); a("s_lshl_b32 s67, s54, 12")
    a("s_lshl_b32 s53, s25, 3"); a("s_add_u32 s67, s67, s53")
    a("v_lshlrev_b32 v9, 4, v0")
    def reads(kk, s):
        r = []
        xs = [f"ds_read_b128 {vr(xf(s,t),4)}, v{XA[kk]} offset:{t*2048}" for t in range(4)]
        ws = []
        for n in range(6):
            for h in range(2):
                ws.append(f"ds_read_b64_tr_b16 {vr(wf(s,n)+2*h,2)}, v{WA[n&3]} offset:{(n>>2)*8192 + kk*4096 + h*512}")
        for h in range(2):
            ws.append(f"ds_read_b64_tr_b16 {vr(wf(s,6)+2*h,2)}, v{SA} offset:{kk*2048 + h*256}")
        return xs + ws
    def mfmas(s):
        return [f"v_mfma_f32_16x16x32_bf16 {vr(acc(t,n),4)}, {vr(wf(s,n),4)}, {vr(xf(s,t),4)}, {vr(acc(t,n),4)}" for n in range(7) for t in range(4)]
    k1_mainloop(a, opt, "K1F", XA + WA + [SA], reads, mfmas)
    a.nop(8)
    st = opt.get("k1st", "")
    T = FR
    q = 0
    for aa in range(3):
        for t in range(4):
            d = T + 4 * (q % 8); q += 1
            for hh in range(2):
                s = acc(t, 2 * aa + hh)
                a(f"v_cvt_pk_bf16_f32 v{d+2*hh}, v{s}, v{s+1}"); a(f"v_cvt_pk_bf16_f32 v{d+2*hh+1}, v{s+2}, v{s+3}")
            for i in range(4): a(f"v_pk_max_i16 v{d+i}, v{d+i}, 0")
            a(f"buffer_store_dwordx4 {vr(d,4)}, v9, s[40:43], s{64+aa} offen offset:{t*1024} {st}")
    for t in range(4):
        d = T + 4 * (q % 8); q += 1
        s = acc(t, 6)
        a(f"v_cvt_pk_bf16_f32 v{d}, v{s}, v{s+1}"); a(f"v_cvt_pk_bf16_f32 v{d+1}, v{s+2}, v{s+3}")
        for i in range(2): a(f"v_pk_max_i16 v{d+i}, v{d+i}, 0")
        a(f"buffer_store_dwordx2 {vr(d,2)}, v9, s[40:43], s67 offen offset:{t*1024} {st}")
    stamp_mid(a, opt, 2)
    stamp_end(a, opt, 18, 0, 0)
    a("s_endpgm")

def gen_k1_attn(a, opt):
    a.label("K1_ATTN")
    ACC = 36; FR = 140
    def Q(t): return ACC + 4 * t
    def K(t): return ACC + 32 + 4 * t
    def V(t): return ACC + 68 + 4 * t
    def xf(s, t): return FR + 48 * s + 4 * t
    def wf(s, p): return FR + 48 * s + 36 + 4 * p
    XA = [2, 3]; WA = 4
    BC, BP, BP0, BP4, MC = 16, 20, 24, 28, 32
    a("v_and_b32 v10, 15, v0"); a("v_lshrrev_b32 v11, 4, v0")
    a("v_lshrrev_b32 v12, 1, v10"); a("v_xor_b32 v12, v12, v11"); a("v_lshlrev_b32 v12, 4, v12")
    a("v_lshlrev_b32 v13, 7, v10"); a(f"v_add_u32 v{XA[0]}, v12, v13"); a(f"v_xor_b32 v{XA[1]}, 64, v{XA[0]}")
    a("v_bfe_u32 v12, v0, 2, 2")
    a("v_lshlrev_b32 v13, 3, v11"); a("v_add_u32 v13, v13, v12")
    a("v_lshrrev_b32 v14, 1, v12"); a("v_and_b32 v15, 1, v11"); a("v_lshlrev_b32 v9, 1, v15"); a("v_or_b32 v14, v14, v9")
    a("v_and_b32 v9, 3, v0"); a("v_lshlrev_b32 v9, 3, v9")
    a("v_lshlrev_b32 v12, 7, v13"); a("v_add_u32 v12, v12, v9")
    a(f"v_xor_b32 v{WA}, s23, v14"); a(f"v_lshlrev_b32 v{WA}, 5, v{WA}"); a(f"v_add_u32 v{WA}, v{WA}, v12"); a(f"v_add_u32 v{WA}, {WOFF}, v{WA}")
    a("v_lshlrev_b32 v12, 2, v11"); a("v_sub_u32 v13, v12, v10")
    a(f"v_mov_b32 v5, 0x{BIG:x}"); a("v_mov_b32 v6, 0")
    a("s_cmp_eq_u32 s20, 0"); a(f"s_cselect_b32 s52, 0x{BIG:x}, 0"); a("v_mov_b32 v7, s52")
    a(f"v_mov_b32 v{MC}, 0"); a(f"v_mov_b32 v{MC+1}, 0")
    for r in range(4):
        a(f"v_add_u32 v14, {r+7}, v13")
        a("v_cmp_gt_u32 vcc, 8, v14"); a.nop(2)
        a(f"v_cndmask_b32 v{BC+r}, v5, v6, vcc")
        a(f"v_mov_b32 v15, {'0xffff' if r % 2 == 0 else '0xffff0000'}")
        a("v_cndmask_b32 v15, v6, v15, vcc")
        a(f"v_or_b32 v{MC+(r>>1)}, v{MC+(r>>1)}, v15")
        a(f"v_add_u32 v14, {r}, v13")
        a("v_cmp_le_i32 vcc, 9, v14"); a.nop(2)
        a(f"v_cndmask_b32 v{BP+r}, v5, v6, vcc")
        a(f"v_cndmask_b32 v{BP0+r}, v5, v7, vcc")
        a("v_cmp_le_i32 vcc, 1, v14")
        a(f"v_add_u32 v15, {r}, v12")
        a("v_cmp_gt_u32 s[52:53], 8, v15"); a.nop(1)
        a("s_and_b64 vcc, vcc, s[52:53]")
        a(f"v_cndmask_b32 v{BP4+r}, v5, v7, vcc")
    for i in range(104): a(f"v_mov_b32 v{ACC+i}, 0")
    a("s_waitcnt lgkmcnt(0)")
    srd(a, 40, 18, A2_SIZE, A2_OFF)
    a("s_mul_i32 s52, s20, 144"); a("s_lshl_b32 s53, s22, 1"); a("s_add_u32 s52, s52, s53"); a("s_lshr_b32 s53, s23, 1"); a("s_add_u32 s52, s52, s53")
    a("s_lshl_b32 s64, s52, 12"); a("s_and_b32 s53, s23, 1"); a("s_lshl_b32 s53, s53, 3"); a("s_add_u32 s64, s64, s53")
    a(f"s_add_u32 s65, s64, {72*4096}")
    a(f"s_mov_b32 s66, 0x{f32bits(0.25*LOG2E):x}")
    a("v_lshlrev_b32 v9, 4, v0")
    def reads(kk, s):
        ws = []
        for p in range(3):
            for h in range(2):
                ws.append(f"ds_read_b64_tr_b16 {vr(wf(s,p)+2*h,2)}, v{WA} offset:{p*8192 + kk*4096 + h*512}")
        xs = [f"ds_read_b128 {vr(xf(s,t),4)}, v{XA[kk]} offset:{t*2048 if t < 8 else EOFF}" for t in range(9)]
        return ws + xs
    def mfmas(s):
        r = []
        for t in range(9):
            if t < 8: r.append(f"v_mfma_f32_16x16x32_bf16 {vr(Q(t),4)}, {vr(wf(s,0),4)}, {vr(xf(s,t),4)}, {vr(Q(t),4)}")
            r.append(f"v_mfma_f32_16x16x32_bf16 {vr(K(t),4)}, {vr(wf(s,1),4)}, {vr(xf(s,t),4)}, {vr(K(t),4)}")
            r.append(f"v_mfma_f32_16x16x32_bf16 {vr(V(t),4)}, {vr(xf(s,t),4)}, {vr(wf(s,2),4)}, {vr(V(t),4)}")
        return r
    k1_mainloop(a, opt, "K1A", XA + [WA], reads, mfmas)
    a.nop(8)
    QB = FR; KB = FR + 16; VB = FR + 34; ONES = FR + 54; PB = FR + 58
    M = FR + 90; TM = FR + 98
    assert TM + 8 <= 256
    def cvt(d, s): a(f"v_cvt_pk_bf16_f32 v{d}, v{s}, v{s+1}"); a(f"v_cvt_pk_bf16_f32 v{d+1}, v{s+2}, v{s+3}")
    for t in range(8): cvt(QB + 2 * t, Q(t))
    for t in range(9): cvt(KB + 2 * t, K(t))
    def vslot(t): return (1 + t) if t < 4 else (2 + t)
    smf = []
    for t in range(8):
        prev = 8 if t in (0, 4) else t - 1
        bp = BP0 if t == 0 else (BP4 if t == 4 else BP)
        smf.append(f"v_mfma_f32_16x16x16_bf16 {vr(Q(t),4)}, {vr(KB+2*t,2)}, {vr(QB+2*t,2)}, {vr(BC,4)}")
        smf.append(f"v_mfma_f32_16x16x16_bf16 {vr(K(t),4)}, {vr(KB+2*prev,2)}, {vr(QB+2*t,2)}, {vr(bp,4)}")
    vc = []
    for t in range(8):
        d = VB + 2 * vslot(t); s = V(t)
        vc += [f"v_cvt_pk_bf16_f32 v{d}, v{s}, v{s+1}", f"v_cvt_pk_bf16_f32 v{d+1}, v{s+2}, v{s+3}"]
    for d in (VB, VB + 10):
        s = V(8)
        vc += [f"v_cvt_pk_bf16_f32 v{d}, v{s}, v{s+1}", f"v_cvt_pk_bf16_f32 v{d+1}, v{s+2}, v{s+3}"]
    vc += [f"v_mov_b32 v{ONES+i}, 0x3f803f80" for i in range(4)]
    a.nop(2)
    interleave(a, smf, vc, per=2)
    a.nop(8)
    for t in range(8):
        for r in range(4): a(f"v_max_f32 v{Q(t)+r}, v{Q(t)+r}, v{K(t)+r}")
    for t in range(8): a(f"v_max3_f32 v{M+t}, v{Q(t)}, v{Q(t)+1}, v{Q(t)+2}")
    for t in range(8): a(f"v_max_f32 v{M+t}, v{M+t}, v{Q(t)+3}")
    for sw in ("v_permlane32_swap_b32", "v_permlane16_swap_b32"):
        for t in range(8): a(f"v_mov_b32 v{TM+t}, v{M+t}")
        a.nop(1)
        for t in range(8): a(f"{sw} v{M+t}, v{TM+t}")
        for t in range(8): a(f"v_max_f32 v{M+t}, v{M+t}, v{TM+t}")
    for t in range(8): a(f"v_mul_f32 v{M+t}, s66, v{M+t}")
    for t in range(8):
        for r in range(4): a(f"v_fma_f32 v{Q(t)+r}, v{Q(t)+r}, s66, -v{M+t}")
    for t in range(8):
        for r in range(4): a(f"v_exp_f32 v{Q(t)+r}, v{Q(t)+r}")
    a.nop(1)
    for t in range(8): cvt(PB + 4 * t + 2, Q(t))
    for t in range(8):
        for h in range(2): a(f"v_bfi_b32 v{PB+4*t+h}, v{MC+h}, 0, v{PB+4*t+2+h}")
        for h in range(2): a(f"v_and_b32 v{PB+4*t+2+h}, v{MC+h}, v{PB+4*t+2+h}")
    a.nop(2)
    for t in range(8):
        a(f"v_mfma_f32_16x16x32_bf16 {vr(K(t),4)}, {vr(ONES,4)}, {vr(PB+4*t,4)}, 0")
        a(f"v_mfma_f32_16x16x32_bf16 {vr(Q(t),4)}, {vr(VB+2*(vslot(t)-1),4)}, {vr(PB+4*t,4)}, 0")
    a.nop(8)
    for t in range(8): a(f"v_rcp_f32 v{M+t}, v{K(t)}")
    a.nop(1)
    st = opt.get("k1st", "")
    for t in range(8):
        for r in range(4): a(f"v_mul_f32 v{Q(t)+r}, v{Q(t)+r}, v{M+t}")
        cvt(QB + 2 * t, Q(t))
        a(f"buffer_store_dwordx2 {vr(QB+2*t,2)}, v9, s[40:43], s{64+(t>>2)} offen offset:{(t&3)*1024} {st}")
    stamp_mid(a, opt, 2)
    stamp_end(a, opt, 18, 0, 0)
    a("s_endpgm")

def gen_k1_loader(a, opt):
    a.label("K1_LOADER")
    VX0, VX1, VW, VE, VL16, VR = 2, 3, 4, 5, 6, 7
    a("v_lshrrev_b32 v10, 3, v0"); a("v_and_b32 v11, 7, v0"); a("v_lshrrev_b32 v12, 4, v0")
    a("s_and_b32 s24, s23, 1"); a("s_lshr_b32 s25, s23, 1")
    a("s_lshl_b32 s52, s20, 7"); a("s_lshl_b32 s53, s24, 6"); a("s_add_u32 s52, s52, s53"); a("s_add_u32 s52, s52, s25"); a("s_lshl_b32 s52, s52, 10")
    a("v_xor_b32 v13, v11, v12"); a("v_lshlrev_b32 v13, 4, v13")
    a("v_lshlrev_b32 v14, 11, v10"); a("v_add_u32 v14, v14, v13")
    a(f"v_add_u32 v{VX0}, s52, v14"); a(f"v_xor_b32 v{VX1}, 64, v{VX0}")
    a("s_cmp_eq_u32 s21, 0")
    csel(a, "s26", 3072, 3584); csel(a, "s27", 1024, 128)
    a("s_mul_i32 s54, s22, 448"); a("s_and_b32 s55, s22, 1"); a("s_lshl_b32 s56, s55, 6"); a("s_add_u32 s56, s56, s54")
    a("s_lshl_b32 s57, s22, 7")
    a("s_cmp_eq_u32 s21, 0"); a("s_cselect_b32 s56, s57, s56")
    a("v_and_b32 v15, 1, v12"); a("v_lshlrev_b32 v15, 1, v15"); a("v_xor_b32 v15, v15, v11"); a("s_lshl_b32 s53, s24, 2"); a("v_xor_b32 v15, s53, v15"); a("v_lshlrev_b32 v15, 4, v15")
    a("s_lshl_b32 s53, s23, 3"); a(f"v_add_u32 v{VW}, s53, v10"); a(f"v_mul_lo_u32 v{VW}, v{VW}, s26"); a(f"v_add_u32 v{VW}, v{VW}, v15"); a(f"v_add_u32 v{VW}, s56, v{VW}")
    a(f"v_lshlrev_b32 v{VL16}, 4, v0")
    a(f"v_lshlrev_b32 v{VR}, 10, v10"); a("v_lshlrev_b32 v15, 4, v11"); a(f"v_add_u32 v{VR}, v{VR}, v15")
    a("s_waitcnt lgkmcnt(0)")
    srd(a, 28, 4, 2048 * 1024)
    a("s_cmp_eq_u32 s21, 0")
    a("s_cselect_b32 s32, s6, s12"); a("s_cselect_b32 s33, s7, s13"); csel(a, "s34", 512*3072, 512*3584); a("s_mov_b32 s35, 0x20000")
    a("s_cselect_b32 s36, s4, s12"); a("s_cselect_b32 s37, s5, s13"); csel(a, "s38", 2048*1024, 512*3584); a("s_mov_b32 s39, 0x20000")
    a("s_cbranch_scc1 K1L_EA")
    a("s_cmp_eq_u32 s55, 0"); a("s_cselect_b32 s53, 384, 0"); a("s_add_u32 s54, s54, s53")
    a("v_lshrrev_b32 v15, 2, v0"); a("s_lshl_b32 s53, s23, 4"); a("v_add_u32 v15, s53, v15"); a(f"v_mul_u32_u24 v{VE}, 3584, v15")
    a("v_lshrrev_b32 v15, 5, v0"); a("v_lshlrev_b32 v15, 1, v15"); a("v_and_b32 v13, 3, v0"); a("v_xor_b32 v15, v15, v13"); a("v_lshlrev_b32 v15, 4, v15")
    a(f"v_add_u32 v{VE}, v{VE}, v15"); a(f"v_add_u32 v{VE}, s54, v{VE}")
    a("s_lshl_b32 s70, s23, 10")
    a(f"s_mov_b32 s71, {64*3584}")
    a("s_branch K1L_ED")
    a.label("K1L_EA")
    a("s_lshl_b32 s52, s20, 7"); a("s_cmp_eq_u32 s20, 0"); a("s_cselect_b32 s53, 0, 16"); a("s_cselect_b32 s38, 0, s38"); a("s_sub_u32 s52, s52, s53")
    a("s_add_u32 s52, s52, 1"); a("s_sub_u32 s52, s52, s24"); a("s_lshl_b32 s52, s52, 10")
    a("s_lshl_b32 s53, s24, 6"); a(f"v_xor_b32 v{VE}, s53, v14"); a(f"v_add_u32 v{VE}, s52, v{VE}")
    a("s_lshl_b32 s70, s24, 10")
    a("s_mov_b32 s71, 128")
    a.label("K1L_ED")
    a(f"s_add_u32 s70, s70, {EOFF}")
    a("s_lshl_b32 s68, s23, 12")
    a("s_lshl_b32 s69, s23, 10"); a(f"s_add_u32 s69, s69, {WOFF}")
    a("s_lshl_b32 s72, s26, 6")
    a("s_lshl_b32 s73, s26, 5")
    rot = opt.get("k1rot", 0)
    if rot == 0: a("s_mov_b32 s74, 0")
    elif rot == 1: a("s_add_u32 s74, s20, s22"); a("s_and_b32 s74, s74, 7")
    elif rot == 2: a("s_lshr_b32 s74, s2, 3"); a("s_and_b32 s52, s2, 7"); a("s_add_u32 s74, s74, s52"); a("s_and_b32 s74, s74, 7")
    ld = opt.get("k1ld", "")
    def stage(s):
        base = (s % 3) * SLOT
        a("s_lshl_b32 s75, s74, 7")
        a("s_mul_i32 s76, s74, s72")
        a("s_mul_i32 s77, s74, s71")
        for m in range(4):
            a(f"s_add_u32 m0, s68, {base + XOFF + m*1024}")
            a(f"s_add_u32 s78, s75, {m*16384}")
            a(f"buffer_load_dwordx4 v{VX0 if m % 2 == 0 else VX1}, s[28:31], s78 offen lds {ld}")
        for jj in range(2):
            for P in range(3):
                a(f"s_add_u32 m0, s69, {base + P*8192 + jj*4096}")
                if P == 0:
                    if jj == 0: a("s_mov_b32 s78, s76")
                    else: a("s_add_u32 s78, s76, s73")
                else: a("s_add_u32 s78, s78, s27")
                a(f"buffer_load_dwordx4 v{VW}, s[32:35], s78 offen lds {ld}")
        a(f"s_add_u32 m0, s70, {base}")
        a("s_add_u32 s74, s74, 1")
        a(f"buffer_load_dwordx4 v{VE}, s[36:39], s77 offen lds {ld}")
        a("s_and_b32 s74, s74, 7")
    for s in range(3): stage(s)
    a("s_lshl_b32 s52, s20, 7"); a("s_and_b32 s53, s22, 3"); a("s_lshl_b32 s53, s53, 5"); a("s_add_u32 s53, s53, s52")
    a("s_lshl_b32 s54, s21, 4"); a("s_add_u32 s53, s53, s54"); a("s_lshl_b32 s54, s23, 2"); a("s_add_u32 s53, s53, s54")
    a("s_lshr_b32 s54, s22, 2"); a("s_add_u32 s53, s53, s54"); a("s_lshl_b32 s53, s53, 10")
    a("s_lshl_b32 s54, s22, 4"); a("s_add_u32 s52, s52, s54"); a("s_lshl_b32 s54, s21, 3"); a("s_add_u32 s52, s52, s54"); a("s_lshl_b32 s54, s23, 1"); a("s_add_u32 s52, s52, s54")
    a("s_lshl_b32 s58, s52, 2"); a(f"s_add_u32 s58, s58, {G_OFF}")
    srd(a, 44, 16, 1024)
    a(f"buffer_load_dwordx4 v[16:19], v{VL16}, s[28:31], s53 offen")
    a(f"buffer_load_dwordx4 v[20:23], v{VL16}, s[28:31], s53 offen offset:2048")
    a(f"buffer_load_dwordx4 v[24:27], v{VL16}, s[44:47], 0 offen")
    a("s_lshl_b32 s52, s23, 8"); a("s_add_u32 s52, s52, s2")
    a("s_lshr_b32 s53, s52, 3"); a("s_and_b32 s54, s52, 7")
    a("s_mul_i32 s59, s54, 72"); a("s_add_u32 s59, s59, s53"); a("s_lshl_b32 s59, s59, 12"); a(f"s_add_u32 s59, s59, {W2_OFF}")
    a("s_cmp_lt_u32 s53, 16")
    a("s_cselect_b32 s48, s8, s14"); a("s_cselect_b32 s49, s9, s15"); csel(a, "s50", 512*1024, 1792*1024); a("s_mov_b32 s51, 0x20000")
    a("s_cselect_b32 s55, 0, 16"); a("s_sub_u32 s53, s53, s55"); a("s_lshl_b32 s53, s53, 15"); a("s_lshl_b32 s54, s54, 7"); a("s_add_u32 s53, s53, s54")
    a("s_cmp_lt_u32 s52, 576"); a("s_cselect_b32 s50, s50, 0"); a("s_cselect_b32 s53, s53, 0"); a("s_cselect_b32 s63, 1, 0")
    for j in range(4):
        a(f"s_add_u32 m0, s68, {SCR + j*1024}")
        a(f"s_add_u32 s78, s53, {j*8192}")
        a(f"buffer_load_dwordx4 v{VR}, s[48:51], s78 offen lds")
    X = 7
    a(f"s_waitcnt vmcnt({22+X})"); a("s_barrier")
    a(f"s_waitcnt vmcnt({11+X})"); a("s_barrier")
    stage(3)
    a(f"s_waitcnt vmcnt({11+X})"); a("s_barrier")
    stage(4)
    for s in (5, 6, 7):
        a("s_waitcnt vmcnt(11)"); a("s_barrier")
        stage(s)
    a("s_waitcnt vmcnt(11)"); a("s_barrier")
    a("s_waitcnt vmcnt(0)"); a("s_barrier")
    srd(a, 40, 18, WS_USED)
    for q in range(4):
        a(f"v_lshlrev_b32 v{28+2*q}, 16, v{24+q}"); a(f"v_and_b32 v{29+2*q}, 0xffff0000, v{24+q}")
    for row in range(2):
        xb = 16 + 4 * row; P = 36 + 8 * row
        for q in range(4):
            a(f"v_lshlrev_b32 v{P+2*q}, 16, v{xb+q}"); a(f"v_and_b32 v{P+2*q+1}, 0xffff0000, v{xb+q}")
        for i in range(8): a(f"v_mul_f32 v{P+i}, v{P+i}, v{28+i}")
        for q in range(4): a(f"v_cvt_pk_bf16_f32 v{xb+q}, v{P+2*q}, v{P+2*q+1}")
        for q in range(4):
            a(f"v_lshlrev_b32 v{P+2*q}, 16, v{xb+q}"); a(f"v_and_b32 v{P+2*q+1}, 0xffff0000, v{xb+q}")
        for i in range(4): a(f"v_add_f32 v{P+i}, v{P+i}, v{P+4+i}")
        for i in range(2): a(f"v_add_f32 v{P+i}, v{P+i}, v{P+2+i}")
        a(f"v_add_f32 v{52+row}, v{P}, v{P+1}")
    for sh in (8, 4, 2, 1):
        a.nop(2)
        for row in range(2): a(f"v_add_f32_dpp v{52+row}, v{52+row}, v{52+row} row_ror:{sh} row_mask:0xf bank_mask:0xf")
    for sw in ("v_permlane32_swap_b32", "v_permlane16_swap_b32"):
        for row in range(2): a(f"v_mov_b32 v{54+row}, v{52+row}")
        a.nop(2)
        for row in range(2): a(f"{sw} v{52+row}, v{54+row}")
        for row in range(2): a(f"v_add_f32 v{52+row}, v{52+row}, v{54+row}")
    a("v_cvt_pk_bf16_f32 v54, v52, v53")
    a("v_lshlrev_b32 v52, 16, v54"); a("v_and_b32 v53, 0xffff0000, v54")
    for row in range(2): a(f"v_mul_f32 v{52+row}, 0x{f32bits(-LOG2E):x}, v{52+row}")
    for row in range(2): a(f"v_exp_f32 v{52+row}, v{52+row}")
    a.nop(1)
    for row in range(2): a(f"v_add_f32 v{52+row}, 1.0, v{52+row}")
    for row in range(2): a(f"v_rcp_f32 v{52+row}, v{52+row}")
    a.nop(1)
    a("v_cvt_pk_bf16_f32 v54, v52, v53")
    a("v_lshlrev_b32 v52, 16, v54"); a("v_and_b32 v53, 0xffff0000, v54")
    a("v_mov_b32 v54, 0")
    st = opt.get("k1st", "")
    a("s_mov_b64 exec, 1")
    a(f"buffer_store_dwordx2 v[52:53], v54, s[40:43], s58 offen {st}")
    a("s_mov_b64 exec, -1")
    a("s_cmp_eq_u32 s63, 0"); a("s_cbranch_scc1 K1L_DONE")
    a("v_lshrrev_b32 v13, 2, v0"); a("v_lshlrev_b32 v13, 7, v13")
    a("v_and_b32 v14, 3, v0"); a("v_lshlrev_b32 v15, 3, v14"); a("v_add_u32 v13, v13, v15")
    a(f"s_add_u32 s52, s68, {SCR}"); a("v_add_u32 v13, s52, v13")
    for nt in range(4):
        for h in range(2):
            a(f"ds_read_b64_tr_b16 v[{60+4*nt+2*h}:{61+4*nt+2*h}], v13 offset:{h*2048 + nt*32}")
    a("v_lshlrev_b32 v14, 10, v14"); a("v_and_b32 v15, 48, v0"); a("v_bfe_u32 v13, v0, 2, 2"); a("v_add_u32 v15, v15, v13"); a("v_lshlrev_b32 v15, 4, v15"); a("v_add_u32 v14, v14, v15")
    a("s_waitcnt lgkmcnt(0)")
    for nt in range(4):
        a(f"buffer_store_dwordx4 v[{60+4*nt}:{63+4*nt}], v14, s[40:43], s59 offen offset:{nt*64} {st}")
    a.label("K1L_DONE")
    stamp_end(a, opt, 18, 0, 0)

def gen_k2(a, opt):
    kn = "k2_kernel"
    D = opt.get("k2d", 5)
    NST = 20
    assert NST % D == 0
    a(f".globl {kn}"); a(".p2align 8"); a(f".type {kn},@function"); a.label(kn)
    a("s_cmp_ge_u32 s2, 256"); a("s_cbranch_scc1 K2_END")
    a("s_load_dwordx2 s[4:5], s[0:1], 56")
    a("s_load_dwordx2 s[18:19], s[0:1], 72")
    stamp_begin(a, opt)
    a("v_lshrrev_b32 v1, 6, v0"); a("v_and_b32 v0, 63, v0")
    a("v_readfirstlane_b32 s3, v1")
    m = opt.get("k2map", "Z")
    a("s_and_b32 s52, s2, 7"); a("s_lshr_b32 s53, s2, 3")
    if m == "Z":
        a("s_lshr_b32 s20, s52, 1"); a("s_lshl_b32 s20, s20, 3"); a("s_and_b32 s54, s53, 7"); a("s_add_u32 s20, s20, s54")
        a("s_and_b32 s21, s52, 1"); a("s_lshl_b32 s21, s21, 2"); a("s_lshr_b32 s54, s53, 3"); a("s_add_u32 s21, s21, s54")
    elif m == "X":
        a("s_lshl_b32 s20, s52, 2"); a("s_and_b32 s54, s53, 3"); a("s_add_u32 s20, s20, s54")
        a("s_lshr_b32 s21, s53, 2")
    a("s_mul_i32 s22, s3, 19"); a("s_sub_u32 s22, s22, 3"); a("s_cmp_eq_u32 s3, 0"); a("s_cselect_b32 s22, 0, s22"); a("s_cselect_b32 s23, 16, 19")
    a("s_cmp_eq_u32 s3, 3"); a("s_cselect_b32 s23, 18, s23"); a("s_lshl_b32 s23, s23, 12")
    a("s_mul_i32 s24, s20, 72"); a("s_add_u32 s24, s24, s22"); a("s_lshl_b32 s24, s24, 12")
    a("s_mul_i32 s25, s21, 72"); a("s_add_u32 s25, s25, s22"); a("s_lshl_b32 s25, s25, 12"); a(f"s_add_u32 s25, s25, {W2_OFF}")
    a("v_lshlrev_b32 v2, 4, v0")
    a("s_lshl_b32 s26, s20, 2"); a("s_add_u32 s26, s26, s3"); a("s_lshl_b32 s26, s26, 6"); a(f"s_add_u32 s26, s26, {G_OFF}")
    a("v_and_b32 v3, 48, v0")
    ACC = 16; FR = 80
    def acc(t, n): return ACC + 4 * (4 * t + n)
    def af(s, t): return FR + 32 * s + 4 * t
    def bf(s, n): return FR + 32 * s + 16 + 4 * n
    assert FR + 32 * D <= 256
    a("s_waitcnt lgkmcnt(0)")
    srd(a, 28, 18, "s23", "s24"); srd(a, 32, 18, "s23", "s25"); srd(a, 36, 18, WS_USED)
    a("buffer_load_dwordx4 v[4:7], v3, s[36:39], s26 offen")
    ld = opt.get("k2ld", "")
    def loads(s, soff):
        r = []
        for t in range(4):
            r.append(f"buffer_load_dwordx4 {vr(af(s,t),4)}, v2, s[28:31], {soff} offen offset:{t*1024} {ld}")
            r.append(f"buffer_load_dwordx4 {vr(bf(s,t),4)}, v2, s[32:35], {soff} offen offset:{t*1024} {ld}")
        return r
    for s in range(D):
        a(f"s_mov_b32 s60, {s*4096}")
        for l in loads(s, "s60"): a(l)
    for i in range(64): a(f"v_mov_b32 v{ACC+i}, 0")
    srd(a, 40, 4, 2048 * 1024)
    a("s_mov_b32 s62, 0")
    a(".p2align 3")
    a.label("K2_LOOP")
    for s in range(D):
        a(f"s_waitcnt vmcnt({8*(D-1)})")
        a("s_add_u32 s60, s60, 4096")
        for t in range(4):
            for n in range(4):
                a(f"v_mfma_f32_16x16x32_bf16 {vr(acc(t,n),4)}, {vr(af(s,t),4)}, {vr(bf(s,n),4)}, {vr(acc(t,n),4)}")
        for l in loads(s, "s60"): a(l)
    a("s_add_u32 s62, s62, 1"); a(f"s_cmp_lt_u32 s62, {NST//D}"); a("s_cbranch_scc1 K2_LOOP")
    stamp_mid(a, opt, 0)
    a("s_lshr_b32 s52, s20, 1"); a("s_lshl_b32 s52, s52, 7"); a("s_lshl_b32 s53, s3, 5"); a("s_add_u32 s52, s52, s53"); a("s_and_b32 s53, s20, 1"); a("s_add_u32 s52, s52, s53")
    a("s_lshl_b32 s52, s52, 10"); a("s_lshl_b32 s53, s21, 7"); a("s_add_u32 s64, s52, s53"); a("s_add_u32 s65, s64, 4096")
    a("v_lshlrev_b32 v8, 9, v3")
    a("v_and_b32 v9, 15, v0"); a("v_lshlrev_b32 v9, 3, v9"); a("v_add_u32 v8, v8, v9")
    a("s_lshl_b32 s52, s3, 14"); a("v_add_u32 v10, s52, v2")
    a("s_lshl_b32 s52, s3, 12"); a("v_add_u32 v11, s52, v2")
    a("s_waitcnt vmcnt(0)")
    for w in range(4):
        a.label(f"K2_EP{w}")
        if w < 3:
            a(f"s_cmp_lg_u32 s3, {w}"); a(f"s_cbranch_scc1 K2_EP{w+1}")
        for t in range(4):
            if t == w: continue
            for n in range(4):
                a(f"ds_write_b128 v10, {vr(acc(t,n),4)} offset:{(t*4+n)*1024}")
        for i in range(4): a(f"v_sub_f32 v{12+i}, 1.0, v{4+i}")
        a("v_cvt_pk_bf16_f32 v12, v12, v13"); a("v_cvt_pk_bf16_f32 v14, v14, v15")
        a("v_and_b32 v13, 0xffff0000, v12"); a("v_lshlrev_b32 v12, 16, v12"); a("v_and_b32 v15, 0xffff0000, v14"); a("v_lshlrev_b32 v14, 16, v14")
        a("s_waitcnt lgkmcnt(0)"); a("s_barrier")
        P = {}
        q = 0
        for src in range(4):
            if src == w: P[src] = acc(w, 0); continue
            P[src] = FR + 16 * q; q += 1
            for n in range(4):
                a(f"ds_read_b128 {vr(P[src]+4*n,4)}, v11 offset:{src*16384 + n*1024}")
        a("s_waitcnt lgkmcnt(0)")
        for i in range(16): a(f"v_add_f32 v{P[1]+i}, v{P[1]+i}, v{P[2]+i}")
        for i in range(16): a(f"v_mul_f32 v{P[0]+i}, v{P[0]+i}, v{4+(i&3)}")
        for i in range(16): a(f"v_add_f32 v{P[1]+i}, v{P[1]+i}, v{P[3]+i}")
        for i in range(16): a(f"v_fma_f32 v{P[0]+i}, v{P[1]+i}, v{12+(i&3)}, v{P[0]+i}")
        O = FR + 64
        for i in range(4):
            a(f"v_cvt_pk_bf16_f32 v{O+2*i}, v{P[0]+i}, v{P[0]+4+i}"); a(f"v_cvt_pk_bf16_f32 v{O+2*i+1}, v{P[0]+8+i}, v{P[0]+12+i}")
            a(f"buffer_store_dwordx2 {vr(O+2*i,2)}, v8, s[40:43], s{64+(i>>1)} offen offset:{(i&1)*2048}")
        if w < 3: a("s_branch K2_FIN")
    a.label("K2_FIN")
    stamp_mid(a, opt, 1)
    stamp_end(a, opt, 18, 1 << 18, 0)
    a.label("K2_END"); a("s_endpgm")

def kd(a, kn, nv, acc=None):
    a(f".amdhsa_kernel {kn}")
    a(f"  .amdhsa_next_free_vgpr {nv}"); a("  .amdhsa_next_free_sgpr 102"); a(f"  .amdhsa_accum_offset {acc or nv}")
    a("  .amdhsa_group_segment_fixed_size 0"); a("  .amdhsa_kernarg_size 80"); a("  .amdhsa_user_sgpr_count 2")
    a("  .amdhsa_user_sgpr_kernarg_segment_ptr 1"); a("  .amdhsa_system_sgpr_workgroup_id_x 1"); a(".end_amdhsa_kernel")

def generate(opt):
    a = Asm()
    a(f"; @launch kernel=k1_kernel grid=(256,1,1) block=(512,1,1) lds={K1_LDS}")
    a(f"; @launch kernel=k2_kernel grid=(256,1,1) block=(256,1,1) lds={opt.get('k2lds', 98304)}")
    a('.amdgcn_target "amdgcn-amd-amdhsa--gfx950"'); a(".text")
    gen_k1(a, opt)
    gen_k2(a, opt)
    a('.section .rodata,"a"'); a(".p2align 6")
    kd(a, "k1_kernel", 256)
    a(".p2align 6")
    kd(a, "k2_kernel", 256)
    errs = check(a.lines)
    for e in errs: print(e, file=sys.stderr)
    assert not errs
    return a.text()

if __name__ == "__main__":
    opt = {}
    for kv in sys.argv[2:]:
        k, v = kv.split("=")
        try: v = int(v)
        except: pass
        opt[k] = v
    open(sys.argv[1], "w").write(generate(opt))
```

```python
import sys, math
from asmlib import *

NAME = "gated_mix__sliding_local_dilated__dense_activation_relu__prompt"
A2_OFF = 0
A2_SIZE = 32 * 72 * 4096
W2_OFF = 0xA00000
W2_SIZE = 8 * 72 * 4096
G_OFF = 0xD00000
WS_USED = 0xD00000 + 8192
STAMP_OFF = 128 << 20
SLOT = 45056
XOFF, WOFF, EOFF = 0, 16384, 40960
SCR = 3 * SLOT
K1_LDS = SCR + 16384
BIG = 0xF149F2CA
LOG2E = 1.4426950408889634

def f32bits(x):
    import struct
    return struct.unpack("<I", struct.pack("<f", x))[0]

def srd(a, d, base, size, add=0):
    if add == 0:
        a(f"s_mov_b32 s{d}, s{base}"); a(f"s_mov_b32 s{d+1}, s{base+1}")
    else:
        a(f"s_add_u32 s{d}, s{base}, {add}"); a(f"s_addc_u32 s{d+1}, s{base+1}, 0")
    a(f"s_mov_b32 s{d+2}, {size}"); a(f"s_mov_b32 s{d+3}, 0x20000")

def csel(a, d, x, y):
    a(f"s_mov_b32 {d}, {y}"); a(f"s_cselect_b32 {d}, {x}, {d}")

def interleave(a, mf, other, start=0, per=1):
    other = list(other)
    for i, m in enumerate(mf):
        a(m)
        if i >= start:
            for _ in range(per):
                if other: a(other.pop(0))
    for o in other: a(o)

def stamp_begin(a, opt):
    if opt.get("stamps"):
        a("s_memrealtime s[90:91]"); a("s_memtime s[92:93]")

def stamp_mid(a, opt, k):
    if opt.get("stamps"):
        a(f"s_memtime s[{94+2*k}:{95+2*k}]")

def stamp_end(a, opt, ws, slot_base, tag):
    if not opt.get("stamps"): return
    a("s_waitcnt vmcnt(0) lgkmcnt(0)")
    a("s_memrealtime s[86:87]"); a("s_memtime s[88:89]")
    a("s_waitcnt lgkmcnt(0)")
    srd(a, 80, ws, 1 << 20, STAMP_OFF + slot_base)
    a("s_lshl_b32 s84, s2, 3"); a("s_add_u32 s84, s84, s3"); a("s_lshl_b32 s84, s84, 6")
    a("s_getreg_b32 s85, hwreg(HW_REG_XCC_ID)")
    for i, s in enumerate((90, 91, 86, 87, 92, 93, 88, 89, 94, 95, 96, 97, 98, 99, 85, 85)):
        a(f"v_mov_b32 v{8+i}, s{s}")
    a("v_mov_b32 v6, s84")
    a("s_mov_b64 exec, 1")
    for q in range(4):
        a(f"buffer_store_dwordx4 v[{8+4*q}:{11+4*q}], v6, s[80:83], 0 offen offset:{16*q}")
    a("s_waitcnt vmcnt(0)")

def gen_k1(a, opt):
    kn = "k1_kernel"
    a(f".globl {kn}"); a(".p2align 8"); a(f".type {kn},@function"); a.label(kn)
    a("s_cmp_ge_u32 s2, 256"); a("s_cbranch_scc1 K1_END")
    a("s_load_dwordx4 s[4:7], s[0:1], 0")
    a("s_load_dwordx2 s[8:9], s[0:1], 16")
    a("s_load_dwordx4 s[12:15], s[0:1], 32")
    a("s_load_dwordx2 s[16:17], s[0:1], 48")
    a("s_load_dwordx2 s[18:19], s[0:1], 72")
    stamp_begin(a, opt)
    a("v_lshrrev_b32 v1, 6, v0"); a("v_and_b32 v0, 63, v0")
    a("v_readfirstlane_b32 s3, v1")
    m = opt.get("k1map", "Z")
    a("s_and_b32 s52, s2, 7"); a("s_lshr_b32 s53, s2, 3")
    if m == "Z":
        a("s_lshr_b32 s20, s52, 1"); a("s_lshl_b32 s20, s20, 2"); a("s_and_b32 s54, s53, 3"); a("s_add_u32 s20, s20, s54")
        a("s_lshr_b32 s54, s53, 2")
        a("s_and_b32 s21, s54, 1")
        a("s_and_b32 s22, s52, 1"); a("s_lshl_b32 s22, s22, 2"); a("s_lshr_b32 s54, s54, 1"); a("s_add_u32 s22, s22, s54")
    elif m == "Y":
        a("s_lshr_b32 s20, s52, 2"); a("s_lshl_b32 s20, s20, 3"); a("s_and_b32 s54, s53, 7"); a("s_add_u32 s20, s20, s54")
        a("s_lshr_b32 s54, s53, 3")
        a("s_and_b32 s21, s54, 1")
        a("s_and_b32 s22, s52, 3"); a("s_lshl_b32 s22, s22, 1"); a("s_lshr_b32 s54, s54, 1"); a("s_add_u32 s22, s22, s54")
    elif m == "X":
        a("s_lshl_b32 s20, s52, 1"); a("s_and_b32 s54, s53, 1"); a("s_add_u32 s20, s20, s54")
        a("s_lshr_b32 s54, s53, 1")
        a("s_and_b32 s21, s54, 1"); a("s_lshr_b32 s22, s54, 1")
    a("s_and_b32 s23, s3, 3")
    a("s_cmp_ge_u32 s3, 4"); a("s_cbranch_scc1 K1_LOADER")
    a("s_cmp_eq_u32 s21, 0"); a("s_cbranch_scc1 K1_ATTN")
    gen_k1_ffn(a, opt)
    gen_k1_attn(a, opt)
    gen_k1_loader(a, opt)
    a.label("K1_END"); a("s_endpgm")

def slot_advance(a):
    return

def k1_mainloop(a, opt, pre, addr_regs, reads, mfmas):
    a("s_mov_b32 s60, 0"); a("s_mov_b32 s62, 0"); a(f"s_mov_b32 s56, {SLOT}"); a(f"s_mov_b32 s57, {(-2*SLOT) & 0xffffffff}")
    a("s_barrier")
    stamp_mid(a, opt, 0)
    for r in reads(0, 0): a(r)
    a(".p2align 3")
    a.label(pre + "_LOOP")
    a("s_waitcnt lgkmcnt(0)")
    a("s_add_u32 s60, s60, 1")
    interleave(a, mfmas(0), reads(1, 1))
    a("s_cmp_eq_u32 s60, 3"); a("s_cselect_b32 s61, s57, s56"); a("s_cselect_b32 s60, 0, s60")
    a("s_add_u32 s62, s62, 1")
    a("s_cmp_eq_u32 s62, 8")
    a("s_waitcnt lgkmcnt(0)")
    a(f"s_cbranch_scc1 {pre}_NOBAR")
    a("s_barrier")
    a.label(pre + "_NOBAR")
    adv = [f"v_add_u32 v{r}, s61, v{r}" for r in addr_regs]
    mf = mfmas(1)
    a(mf[0])
    for x in adv: a(x)
    if len(adv) % 2: a("s_nop 0")
    interleave(a, mf[1:], reads(0, 0))
    a(f"s_cbranch_scc0 {pre}_LOOP")
    a("s_waitcnt lgkmcnt(0)")
    stamp_mid(a, opt, 1)

def gen_k1_ffn(a, opt):
    ACC = 16; FR = 128
    def acc(t, n): return ACC + 4 * (t * 7 + n)
    def xf(s, t): return FR + 44 * s + 4 * t
    def wf(s, n): return FR + 44 * s + 16 + 4 * n
    XA = [2, 3]; WA = [4, 5, 6, 7]; SA = 8
    a("s_lshr_b32 s24, s23, 1")
    a("s_and_b32 s25, s23, 1")
    a("v_and_b32 v10, 15, v0"); a("v_lshrrev_b32 v11, 4, v0")
    a("v_lshrrev_b32 v12, 1, v10"); a("v_xor_b32 v12, v12, v11"); a("v_lshlrev_b32 v12, 4, v12")
    a("v_lshlrev_b32 v13, 7, v10"); a("v_add_u32 v12, v12, v13")
    a("s_lshl_b32 s52, s24, 13"); a(f"v_add_u32 v{XA[0]}, s52, v12"); a(f"v_xor_b32 v{XA[1]}, 64, v{XA[0]}")
    a("v_bfe_u32 v12, v0, 2, 2")
    a("v_lshlrev_b32 v13, 3, v11"); a("v_add_u32 v13, v13, v12")
    a("v_lshrrev_b32 v14, 1, v12"); a("v_and_b32 v15, 1, v11"); a("v_lshlrev_b32 v9, 1, v15"); a("v_or_b32 v14, v14, v9")
    a("v_and_b32 v9, 3, v0"); a("v_lshlrev_b32 v9, 3, v9")
    a("v_lshlrev_b32 v12, 7, v13"); a("v_add_u32 v12, v12, v9")
    for j in range(4):
        a(f"s_mul_i32 s52, s25, 6"); a(f"s_add_u32 s52, s52, {j}")
        a("s_and_b32 s53, s52, 3"); a("s_lshr_b32 s52, s52, 2"); a("s_lshl_b32 s52, s52, 13"); a(f"s_add_u32 s52, s52, {WOFF}")
        a(f"v_xor_b32 v{WA[j]}, s53, v14"); a(f"v_lshlrev_b32 v{WA[j]}, 5, v{WA[j]}"); a(f"v_add_u32 v{WA[j]}, v{WA[j]}, v12"); a(f"v_add_u32 v{WA[j]}, s52, v{WA[j]}")
    a(f"v_xor_b32 v{SA}, s25, v15"); a(f"v_lshlrev_b32 v{SA}, 5, v{SA}"); a(f"v_add_u32 v{SA}, v{SA}, v9")
    a("v_lshlrev_b32 v12, 6, v13"); a(f"v_add_u32 v{SA}, v{SA}, v12"); a(f"v_add_u32 v{SA}, {EOFF}, v{SA}")
    for i in range(112): a(f"v_mov_b32 v{ACC+i}, 0")
    a("s_waitcnt lgkmcnt(0)")
    srd(a, 40, 18, A2_SIZE, A2_OFF)
    a("s_lshl_b32 s52, s20, 1"); a("s_add_u32 s52, s52, s24"); a("s_mul_i32 s52, s52, 72")
    a("s_mul_i32 s53, s22, 7"); a("s_add_u32 s52, s52, s53"); a("s_add_u32 s52, s52, 16")
    a("s_and_b32 s53, s22, 1")
    a("s_mul_i32 s54, s25, 3"); a("s_add_u32 s54, s54, s53"); a("s_add_u32 s54, s54, s52"); a("s_lshl_b32 s64, s54, 12")
    a("s_add_u32 s65, s64, 4096"); a("s_add_u32 s66, s64, 8192")
    a("s_cmp_eq_u32 s53, 0"); a("s_cselect_b32 s54, 6, 0"); a("s_add_u32 s54, s54, s52"); a("s_lshl_b32 s67, s54, 12")
    a("s_lshl_b32 s53, s25, 3"); a("s_add_u32 s67, s67, s53")
    a("v_lshlrev_b32 v9, 4, v0")
    def reads(kk, s):
        r = []
        xs = [f"ds_read_b128 {vr(xf(s,t),4)}, v{XA[kk]} offset:{t*2048}" for t in range(4)]
        ws = []
        for n in range(6):
            for h in range(2):
                ws.append(f"ds_read_b64_tr_b16 {vr(wf(s,n)+2*h,2)}, v{WA[n&3]} offset:{(n>>2)*8192 + kk*4096 + h*512}")
        for h in range(2):
            ws.append(f"ds_read_b64_tr_b16 {vr(wf(s,6)+2*h,2)}, v{SA} offset:{kk*2048 + h*256}")
        return xs + ws
    def mfmas(s):
        return [f"v_mfma_f32_16x16x32_bf16 {vr(acc(t,n),4)}, {vr(wf(s,n),4)}, {vr(xf(s,t),4)}, {vr(acc(t,n),4)}" for n in range(7) for t in range(4)]
    k1_mainloop(a, opt, "K1F", XA + WA + [SA], reads, mfmas)
    a.nop(8)
    st = opt.get("k1st", "")
    T = FR
    q = 0
    for aa in range(3):
        for t in range(4):
            d = T + 4 * (q % 8); q += 1
            for hh in range(2):
                s = acc(t, 2 * aa + hh)
                a(f"v_cvt_pk_bf16_f32 v{d+2*hh}, v{s}, v{s+1}"); a(f"v_cvt_pk_bf16_f32 v{d+2*hh+1}, v{s+2}, v{s+3}")
            for i in range(4): a(f"v_pk_max_i16 v{d+i}, v{d+i}, 0")
            a(f"buffer_store_dwordx4 {vr(d,4)}, v9, s[40:43], s{64+aa} offen offset:{t*1024} {st}")
    for t in range(4):
        d = T + 4 * (q % 8); q += 1
        s = acc(t, 6)
        a(f"v_cvt_pk_bf16_f32 v{d}, v{s}, v{s+1}"); a(f"v_cvt_pk_bf16_f32 v{d+1}, v{s+2}, v{s+3}")
        for i in range(2): a(f"v_pk_max_i16 v{d+i}, v{d+i}, 0")
        a(f"buffer_store_dwordx2 {vr(d,2)}, v9, s[40:43], s67 offen offset:{t*1024} {st}")
    stamp_mid(a, opt, 2)
    stamp_end(a, opt, 18, 0, 0)
    a("s_endpgm")

def gen_k1_attn(a, opt):
    a.label("K1_ATTN")
    ACC = 36; FR = 140
    def Q(t): return ACC + 4 * t
    def K(t): return ACC + 32 + 4 * t
    def V(t): return ACC + 68 + 4 * t
    def xf(s, t): return FR + 48 * s + 4 * t
    def wf(s, p): return FR + 48 * s + 36 + 4 * p
    XA = [2, 3]; WA = 4
    BC, BP, BP0, BP4, MC = 16, 20, 24, 28, 32
    a("v_and_b32 v10, 15, v0"); a("v_lshrrev_b32 v11, 4, v0")
    a("v_lshrrev_b32 v12, 1, v10"); a("v_xor_b32 v12, v12, v11"); a("v_lshlrev_b32 v12, 4, v12")
    a("v_lshlrev_b32 v13, 7, v10"); a(f"v_add_u32 v{XA[0]}, v12, v13"); a(f"v_xor_b32 v{XA[1]}, 64, v{XA[0]}")
    a("v_bfe_u32 v12, v0, 2, 2")
    a("v_lshlrev_b32 v13, 3, v11"); a("v_add_u32 v13, v13, v12")
    a("v_lshrrev_b32 v14, 1, v12"); a("v_and_b32 v15, 1, v11"); a("v_lshlrev_b32 v9, 1, v15"); a("v_or_b32 v14, v14, v9")
    a("v_and_b32 v9, 3, v0"); a("v_lshlrev_b32 v9, 3, v9")
    a("v_lshlrev_b32 v12, 7, v13"); a("v_add_u32 v12, v12, v9")
    a(f"v_xor_b32 v{WA}, s23, v14"); a(f"v_lshlrev_b32 v{WA}, 5, v{WA}"); a(f"v_add_u32 v{WA}, v{WA}, v12"); a(f"v_add_u32 v{WA}, {WOFF}, v{WA}")
    a("v_lshlrev_b32 v12, 2, v11"); a("v_sub_u32 v13, v12, v10")
    a(f"v_mov_b32 v5, 0x{BIG:x}"); a("v_mov_b32 v6, 0")
    a("s_cmp_eq_u32 s20, 0"); a(f"s_cselect_b32 s52, 0x{BIG:x}, 0"); a("v_mov_b32 v7, s52")
    a(f"v_mov_b32 v{MC}, 0"); a(f"v_mov_b32 v{MC+1}, 0")
    for r in range(4):
        a(f"v_add_u32 v14, {r+7}, v13")
        a("v_cmp_gt_u32 vcc, 8, v14"); a.nop(2)
        a(f"v_cndmask_b32 v{BC+r}, v5, v6, vcc")
        a(f"v_mov_b32 v15, {'0xffff' if r % 2 == 0 else '0xffff0000'}")
        a("v_cndmask_b32 v15, v6, v15, vcc")
        a(f"v_or_b32 v{MC+(r>>1)}, v{MC+(r>>1)}, v15")
        a(f"v_add_u32 v14, {r}, v13")
        a("v_cmp_le_i32 vcc, 9, v14"); a.nop(2)
        a(f"v_cndmask_b32 v{BP+r}, v5, v6, vcc")
        a(f"v_cndmask_b32 v{BP0+r}, v5, v7, vcc")
        a("v_cmp_le_i32 vcc, 1, v14")
        a(f"v_add_u32 v15, {r}, v12")
        a("v_cmp_gt_u32 s[52:53], 8, v15"); a.nop(1)
        a("s_and_b64 vcc, vcc, s[52:53]")
        a(f"v_cndmask_b32 v{BP4+r}, v5, v7, vcc")
    for i in range(104): a(f"v_mov_b32 v{ACC+i}, 0")
    a("s_waitcnt lgkmcnt(0)")
    srd(a, 40, 18, A2_SIZE, A2_OFF)
    a("s_mul_i32 s52, s20, 144"); a("s_lshl_b32 s53, s22, 1"); a("s_add_u32 s52, s52, s53"); a("s_lshr_b32 s53, s23, 1"); a("s_add_u32 s52, s52, s53")
    a("s_lshl_b32 s64, s52, 12"); a("s_and_b32 s53, s23, 1"); a("s_lshl_b32 s53, s53, 3"); a("s_add_u32 s64, s64, s53")
    a(f"s_add_u32 s65, s64, {72*4096}")
    a(f"s_mov_b32 s66, 0x{f32bits(0.25*LOG2E):x}")
    a("v_lshlrev_b32 v9, 4, v0")
    def reads(kk, s):
        ws = []
        for p in range(3):
            for h in range(2):
                ws.append(f"ds_read_b64_tr_b16 {vr(wf(s,p)+2*h,2)}, v{WA} offset:{p*8192 + kk*4096 + h*512}")
        xs = [f"ds_read_b128 {vr(xf(s,t),4)}, v{XA[kk]} offset:{t*2048 if t < 8 else EOFF}" for t in range(9)]
        return ws + xs
    def mfmas(s):
        r = []
        for t in range(9):
            if t < 8: r.append(f"v_mfma_f32_16x16x32_bf16 {vr(Q(t),4)}, {vr(wf(s,0),4)}, {vr(xf(s,t),4)}, {vr(Q(t),4)}")
            r.append(f"v_mfma_f32_16x16x32_bf16 {vr(K(t),4)}, {vr(wf(s,1),4)}, {vr(xf(s,t),4)}, {vr(K(t),4)}")
            r.append(f"v_mfma_f32_16x16x32_bf16 {vr(V(t),4)}, {vr(xf(s,t),4)}, {vr(wf(s,2),4)}, {vr(V(t),4)}")
        return r
    k1_mainloop(a, opt, "K1A", XA + [WA], reads, mfmas)
    a.nop(8)
    QB = FR; KB = FR + 16; VB = FR + 34; ONES = FR + 54; PB = FR + 58
    M = FR + 90; TM = FR + 98
    assert TM + 8 <= 256
    def cvt(d, s): a(f"v_cvt_pk_bf16_f32 v{d}, v{s}, v{s+1}"); a(f"v_cvt_pk_bf16_f32 v{d+1}, v{s+2}, v{s+3}")
    for t in range(8): cvt(QB + 2 * t, Q(t))
    for t in range(9): cvt(KB + 2 * t, K(t))
    def vslot(t): return (1 + t) if t < 4 else (2 + t)
    smf = []
    for t in range(8):
        prev = 8 if t in (0, 4) else t - 1
        bp = BP0 if t == 0 else (BP4 if t == 4 else BP)
        smf.append(f"v_mfma_f32_16x16x16_bf16 {vr(Q(t),4)}, {vr(KB+2*t,2)}, {vr(QB+2*t,2)}, {vr(BC,4)}")
        smf.append(f"v_mfma_f32_16x16x16_bf16 {vr(K(t),4)}, {vr(KB+2*prev,2)}, {vr(QB+2*t,2)}, {vr(bp,4)}")
    vc = []
    for t in range(8):
        d = VB + 2 * vslot(t); s = V(t)
        vc += [f"v_cvt_pk_bf16_f32 v{d}, v{s}, v{s+1}", f"v_cvt_pk_bf16_f32 v{d+1}, v{s+2}, v{s+3}"]
    for d in (VB, VB + 10):
        s = V(8)
        vc += [f"v_cvt_pk_bf16_f32 v{d}, v{s}, v{s+1}", f"v_cvt_pk_bf16_f32 v{d+1}, v{s+2}, v{s+3}"]
    vc += [f"v_mov_b32 v{ONES+i}, 0x3f803f80" for i in range(4)]
    a.nop(2)
    interleave(a, smf, vc, per=2)
    a.nop(8)
    for t in range(8):
        for r in range(4): a(f"v_max_f32 v{Q(t)+r}, v{Q(t)+r}, v{K(t)+r}")
    for t in range(8): a(f"v_max3_f32 v{M+t}, v{Q(t)}, v{Q(t)+1}, v{Q(t)+2}")
    for t in range(8): a(f"v_max_f32 v{M+t}, v{M+t}, v{Q(t)+3}")
    for sw in ("v_permlane32_swap_b32", "v_permlane16_swap_b32"):
        for t in range(8): a(f"v_mov_b32 v{TM+t}, v{M+t}")
        a.nop(1)
        for t in range(8): a(f"{sw} v{M+t}, v{TM+t}")
        for t in range(8): a(f"v_max_f32 v{M+t}, v{M+t}, v{TM+t}")
    for t in range(8): a(f"v_mul_f32 v{M+t}, s66, v{M+t}")
    for t in range(8):
        for r in range(4): a(f"v_fma_f32 v{Q(t)+r}, v{Q(t)+r}, s66, -v{M+t}")
    for t in range(8):
        for r in range(4): a(f"v_exp_f32 v{Q(t)+r}, v{Q(t)+r}")
    a.nop(1)
    for t in range(8): cvt(PB + 4 * t + 2, Q(t))
    for t in range(8):
        for h in range(2): a(f"v_bfi_b32 v{PB+4*t+h}, v{MC+h}, 0, v{PB+4*t+2+h}")
        for h in range(2): a(f"v_and_b32 v{PB+4*t+2+h}, v{MC+h}, v{PB+4*t+2+h}")
    a.nop(2)
    for t in range(8):
        a(f"v_mfma_f32_16x16x32_bf16 {vr(K(t),4)}, {vr(ONES,4)}, {vr(PB+4*t,4)}, 0")
        a(f"v_mfma_f32_16x16x32_bf16 {vr(Q(t),4)}, {vr(VB+2*(vslot(t)-1),4)}, {vr(PB+4*t,4)}, 0")
    a.nop(8)
    for t in range(8): a(f"v_rcp_f32 v{M+t}, v{K(t)}")
    a.nop(1)
    st = opt.get("k1st", "")
    for t in range(8):
        for r in range(4): a(f"v_mul_f32 v{Q(t)+r}, v{Q(t)+r}, v{M+t}")
        cvt(QB + 2 * t, Q(t))
        a(f"buffer_store_dwordx2 {vr(QB+2*t,2)}, v9, s[40:43], s{64+(t>>2)} offen offset:{(t&3)*1024} {st}")
    stamp_mid(a, opt, 2)
    stamp_end(a, opt, 18, 0, 0)
    a("s_endpgm")

def gen_k1_loader(a, opt):
    a.label("K1_LOADER")
    VX0, VX1, VW, VE, VL16, VR = 2, 3, 4, 5, 6, 7
    a("v_lshrrev_b32 v10, 3, v0"); a("v_and_b32 v11, 7, v0"); a("v_lshrrev_b32 v12, 4, v0")
    a("s_and_b32 s24, s23, 1"); a("s_lshr_b32 s25, s23, 1")
    a("s_lshl_b32 s52, s20, 7"); a("s_lshl_b32 s53, s24, 6"); a("s_add_u32 s52, s52, s53"); a("s_add_u32 s52, s52, s25"); a("s_lshl_b32 s52, s52, 10")
    a("v_xor_b32 v13, v11, v12"); a("v_lshlrev_b32 v13, 4, v13")
    a("v_lshlrev_b32 v14, 11, v10"); a("v_add_u32 v14, v14, v13")
    a(f"v_add_u32 v{VX0}, s52, v14"); a(f"v_xor_b32 v{VX1}, 64, v{VX0}")
    a("s_cmp_eq_u32 s21, 0")
    csel(a, "s26", 3072, 3584); csel(a, "s27", 1024, 128)
    a("s_mul_i32 s54, s22, 448"); a("s_and_b32 s55, s22, 1"); a("s_lshl_b32 s56, s55, 6"); a("s_add_u32 s56, s56, s54")
    a("s_lshl_b32 s57, s22, 7")
    a("s_cmp_eq_u32 s21, 0"); a("s_cselect_b32 s56, s57, s56")
    a("v_and_b32 v15, 1, v12"); a("v_lshlrev_b32 v15, 1, v15"); a("v_xor_b32 v15, v15, v11"); a("s_lshl_b32 s53, s24, 2"); a("v_xor_b32 v15, s53, v15"); a("v_lshlrev_b32 v15, 4, v15")
    a("s_lshl_b32 s53, s23, 3"); a(f"v_add_u32 v{VW}, s53, v10"); a(f"v_mul_lo_u32 v{VW}, v{VW}, s26"); a(f"v_add_u32 v{VW}, v{VW}, v15"); a(f"v_add_u32 v{VW}, s56, v{VW}")
    a(f"v_lshlrev_b32 v{VL16}, 4, v0")
    a(f"v_lshlrev_b32 v{VR}, 10, v10"); a("v_lshlrev_b32 v15, 4, v11"); a(f"v_add_u32 v{VR}, v{VR}, v15")
    a("s_waitcnt lgkmcnt(0)")
    srd(a, 28, 4, 2048 * 1024)
    a("s_cmp_eq_u32 s21, 0")
    a("s_cselect_b32 s32, s6, s12"); a("s_cselect_b32 s33, s7, s13"); csel(a, "s34", 512*3072, 512*3584); a("s_mov_b32 s35, 0x20000")
    a("s_cselect_b32 s36, s4, s12"); a("s_cselect_b32 s37, s5, s13"); csel(a, "s38", 2048*1024, 512*3584); a("s_mov_b32 s39, 0x20000")
    a("s_cbranch_scc1 K1L_EA")
    a("s_cmp_eq_u32 s55, 0"); a("s_cselect_b32 s53, 384, 0"); a("s_add_u32 s54, s54, s53")
    a("v_lshrrev_b32 v15, 2, v0"); a("s_lshl_b32 s53, s23, 4"); a("v_add_u32 v15, s53, v15"); a(f"v_mul_u32_u24 v{VE}, 3584, v15")
    a("v_lshrrev_b32 v15, 5, v0"); a("v_lshlrev_b32 v15, 1, v15"); a("v_and_b32 v13, 3, v0"); a("v_xor_b32 v15, v15, v13"); a("v_lshlrev_b32 v15, 4, v15")
    a(f"v_add_u32 v{VE}, v{VE}, v15"); a(f"v_add_u32 v{VE}, s54, v{VE}")
    a("s_lshl_b32 s70, s23, 10")
    a(f"s_mov_b32 s71, {64*3584}")
    a("s_branch K1L_ED")
    a.label("K1L_EA")
    a("s_lshl_b32 s52, s20, 7"); a("s_cmp_eq_u32 s20, 0"); a("s_cselect_b32 s53, 0, 16"); a("s_cselect_b32 s38, 0, s38"); a("s_sub_u32 s52, s52, s53")
    a("s_add_u32 s52, s52, 1"); a("s_sub_u32 s52, s52, s24"); a("s_lshl_b32 s52, s52, 10")
    a("s_lshl_b32 s53, s24, 6"); a(f"v_xor_b32 v{VE}, s53, v14"); a(f"v_add_u32 v{VE}, s52, v{VE}")
    a("s_lshl_b32 s70, s24, 10")
    a("s_mov_b32 s71, 128")
    a.label("K1L_ED")
    a(f"s_add_u32 s70, s70, {EOFF}")
    a("s_lshl_b32 s68, s23, 12")
    a("s_lshl_b32 s69, s23, 10"); a(f"s_add_u32 s69, s69, {WOFF}")
    a("s_lshl_b32 s72, s26, 6")
    a("s_lshl_b32 s73, s26, 5")
    rot = opt.get("k1rot", 0)
    if rot == 0: a("s_mov_b32 s74, 0")
    elif rot == 1: a("s_add_u32 s74, s20, s22"); a("s_and_b32 s74, s74, 7")
    elif rot == 2: a("s_lshr_b32 s74, s2, 3"); a("s_and_b32 s52, s2, 7"); a("s_add_u32 s74, s74, s52"); a("s_and_b32 s74, s74, 7")
    ld = opt.get("k1ld", "")
    def stage(s):
        base = (s % 3) * SLOT
        a("s_lshl_b32 s75, s74, 7")
        a("s_mul_i32 s76, s74, s72")
        a("s_mul_i32 s77, s74, s71")
        for m in range(4):
            a(f"s_add_u32 m0, s68, {base + XOFF + m*1024}")
            a(f"s_add_u32 s78, s75, {m*16384}")
            a(f"buffer_load_dwordx4 v{VX0 if m % 2 == 0 else VX1}, s[28:31], s78 offen lds {ld}")
        for jj in range(2):
            for P in range(3):
                a(f"s_add_u32 m0, s69, {base + P*8192 + jj*4096}")
                if P == 0:
                    if jj == 0: a("s_mov_b32 s78, s76")
                    else: a("s_add_u32 s78, s76, s73")
                else: a("s_add_u32 s78, s78, s27")
                a(f"buffer_load_dwordx4 v{VW}, s[32:35], s78 offen lds {ld}")
        a(f"s_add_u32 m0, s70, {base}")
        a("s_add_u32 s74, s74, 1")
        a(f"buffer_load_dwordx4 v{VE}, s[36:39], s77 offen lds {ld}")
        a("s_and_b32 s74, s74, 7")
    for s in range(3): stage(s)
    a("s_lshl_b32 s52, s20, 7"); a("s_and_b32 s53, s22, 3"); a("s_lshl_b32 s53, s53, 5"); a("s_add_u32 s53, s53, s52")
    a("s_lshl_b32 s54, s21, 4"); a("s_add_u32 s53, s53, s54"); a("s_lshl_b32 s54, s23, 2"); a("s_add_u32 s53, s53, s54")
    a("s_lshr_b32 s54, s22, 2"); a("s_add_u32 s53, s53, s54"); a("s_lshl_b32 s53, s53, 10")
    a("s_lshl_b32 s54, s22, 4"); a("s_add_u32 s52, s52, s54"); a("s_lshl_b32 s54, s21, 3"); a("s_add_u32 s52, s52, s54"); a("s_lshl_b32 s54, s23, 1"); a("s_add_u32 s52, s52, s54")
    a("s_lshl_b32 s58, s52, 2"); a(f"s_add_u32 s58, s58, {G_OFF}")
    srd(a, 44, 16, 1024)
    a(f"buffer_load_dwordx4 v[16:19], v{VL16}, s[28:31], s53 offen")
    a(f"buffer_load_dwordx4 v[20:23], v{VL16}, s[28:31], s53 offen offset:2048")
    a(f"buffer_load_dwordx4 v[24:27], v{VL16}, s[44:47], 0 offen")
    a("s_lshl_b32 s52, s23, 8"); a("s_add_u32 s52, s52, s2")
    a("s_lshr_b32 s53, s52, 3"); a("s_and_b32 s54, s52, 7")
    a("s_mul_i32 s59, s54, 72"); a("s_add_u32 s59, s59, s53"); a("s_lshl_b32 s59, s59, 12"); a(f"s_add_u32 s59, s59, {W2_OFF}")
    a("s_cmp_lt_u32 s53, 16")
    a("s_cselect_b32 s48, s8, s14"); a("s_cselect_b32 s49, s9, s15"); csel(a, "s50", 512*1024, 1792*1024); a("s_mov_b32 s51, 0x20000")
    a("s_cselect_b32 s55, 0, 16"); a("s_sub_u32 s53, s53, s55"); a("s_lshl_b32 s53, s53, 15"); a("s_lshl_b32 s54, s54, 7"); a("s_add_u32 s53, s53, s54")
    a("s_cmp_lt_u32 s52, 576"); a("s_cselect_b32 s50, s50, 0"); a("s_cselect_b32 s53, s53, 0"); a("s_cselect_b32 s63, 1, 0")
    for j in range(4):
        a(f"s_add_u32 m0, s68, {SCR + j*1024}")
        a(f"s_add_u32 s78, s53, {j*8192}")
        a(f"buffer_load_dwordx4 v{VR}, s[48:51], s78 offen lds")
    X = 7
    a(f"s_waitcnt vmcnt({22+X})"); a("s_barrier")
    a(f"s_waitcnt vmcnt({11+X})"); a("s_barrier")
    stage(3)
    a(f"s_waitcnt vmcnt({11+X})"); a("s_barrier")
    stage(4)
    for s in (5, 6, 7):
        a("s_waitcnt vmcnt(11)"); a("s_barrier")
        stage(s)
    a("s_waitcnt vmcnt(11)"); a("s_barrier")
    a("s_waitcnt vmcnt(0)"); a("s_barrier")
    srd(a, 40, 18, WS_USED)
    for q in range(4):
        a(f"v_lshlrev_b32 v{28+2*q}, 16, v{24+q}"); a(f"v_and_b32 v{29+2*q}, 0xffff0000, v{24+q}")
    for row in range(2):
        xb = 16 + 4 * row; P = 36 + 8 * row
        for q in range(4):
            a(f"v_lshlrev_b32 v{P+2*q}, 16, v{xb+q}"); a(f"v_and_b32 v{P+2*q+1}, 0xffff0000, v{xb+q}")
        for i in range(8): a(f"v_mul_f32 v{P+i}, v{P+i}, v{28+i}")
        for q in range(4): a(f"v_cvt_pk_bf16_f32 v{xb+q}, v{P+2*q}, v{P+2*q+1}")
        for q in range(4):
            a(f"v_lshlrev_b32 v{P+2*q}, 16, v{xb+q}"); a(f"v_and_b32 v{P+2*q+1}, 0xffff0000, v{xb+q}")
        for i in range(4): a(f"v_add_f32 v{P+i}, v{P+i}, v{P+4+i}")
        for i in range(2): a(f"v_add_f32 v{P+i}, v{P+i}, v{P+2+i}")
        a(f"v_add_f32 v{52+row}, v{P}, v{P+1}")
    for sh in (8, 4, 2, 1):
        a.nop(2)
        for row in range(2): a(f"v_add_f32_dpp v{52+row}, v{52+row}, v{52+row} row_ror:{sh} row_mask:0xf bank_mask:0xf")
    for sw in ("v_permlane32_swap_b32", "v_permlane16_swap_b32"):
        for row in range(2): a(f"v_mov_b32 v{54+row}, v{52+row}")
        a.nop(2)
        for row in range(2): a(f"{sw} v{52+row}, v{54+row}")
        for row in range(2): a(f"v_add_f32 v{52+row}, v{52+row}, v{54+row}")
    a("v_cvt_pk_bf16_f32 v54, v52, v53")
    a("v_lshlrev_b32 v52, 16, v54"); a("v_and_b32 v53, 0xffff0000, v54")
    for row in range(2): a(f"v_mul_f32 v{52+row}, 0x{f32bits(-LOG2E):x}, v{52+row}")
    for row in range(2): a(f"v_exp_f32 v{52+row}, v{52+row}")
    a.nop(1)
    for row in range(2): a(f"v_add_f32 v{52+row}, 1.0, v{52+row}")
    for row in range(2): a(f"v_rcp_f32 v{52+row}, v{52+row}")
    a.nop(1)
    a("v_cvt_pk_bf16_f32 v54, v52, v53")
    a("v_lshlrev_b32 v52, 16, v54"); a("v_and_b32 v53, 0xffff0000, v54")
    a("v_mov_b32 v54, 0")
    st = opt.get("k1st", "")
    a("s_mov_b64 exec, 1")
    a(f"buffer_store_dwordx2 v[52:53], v54, s[40:43], s58 offen {st}")
    a("s_mov_b64 exec, -1")
    a("s_cmp_eq_u32 s63, 0"); a("s_cbranch_scc1 K1L_DONE")
    a("v_lshrrev_b32 v13, 2, v0"); a("v_lshlrev_b32 v13, 7, v13")
    a("v_and_b32 v14, 3, v0"); a("v_lshlrev_b32 v15, 3, v14"); a("v_add_u32 v13, v13, v15")
    a(f"s_add_u32 s52, s68, {SCR}"); a("v_add_u32 v13, s52, v13")
    for nt in range(4):
        for h in range(2):
            a(f"ds_read_b64_tr_b16 v[{60+4*nt+2*h}:{61+4*nt+2*h}], v13 offset:{h*2048 + nt*32}")
    a("v_lshlrev_b32 v14, 10, v14"); a("v_and_b32 v15, 48, v0"); a("v_bfe_u32 v13, v0, 2, 2"); a("v_add_u32 v15, v15, v13"); a("v_lshlrev_b32 v15, 4, v15"); a("v_add_u32 v14, v14, v15")
    a("s_waitcnt lgkmcnt(0)")
    for nt in range(4):
        a(f"buffer_store_dwordx4 v[{60+4*nt}:{63+4*nt}], v14, s[40:43], s59 offen offset:{nt*64} {st}")
    a.label("K1L_DONE")
    stamp_end(a, opt, 18, 0, 0)

def gen_k2(a, opt):
    kn = "k2_kernel"
    D = opt.get("k2d", 5)
    NST = 20
    assert NST % D == 0
    a(f".globl {kn}"); a(".p2align 8"); a(f".type {kn},@function"); a.label(kn)
    a("s_cmp_ge_u32 s2, 256"); a("s_cbranch_scc1 K2_END")
    a("s_load_dwordx2 s[4:5], s[0:1], 56")
    a("s_load_dwordx2 s[18:19], s[0:1], 72")
    stamp_begin(a, opt)
    a("v_lshrrev_b32 v1, 6, v0"); a("v_and_b32 v0, 63, v0")
    a("v_readfirstlane_b32 s3, v1")
    m = opt.get("k2map", "Z")
    a("s_and_b32 s52, s2, 7"); a("s_lshr_b32 s53, s2, 3")
    if m == "Z":
        a("s_lshr_b32 s20, s52, 1"); a("s_lshl_b32 s20, s20, 3"); a("s_and_b32 s54, s53, 7"); a("s_add_u32 s20, s20, s54")
        a("s_and_b32 s21, s52, 1"); a("s_lshl_b32 s21, s21, 2"); a("s_lshr_b32 s54, s53, 3"); a("s_add_u32 s21, s21, s54")
    elif m == "X":
        a("s_lshl_b32 s20, s52, 2"); a("s_and_b32 s54, s53, 3"); a("s_add_u32 s20, s20, s54")
        a("s_lshr_b32 s21, s53, 2")
    a("s_mul_i32 s22, s3, 19"); a("s_sub_u32 s22, s22, 3"); a("s_cmp_eq_u32 s3, 0"); a("s_cselect_b32 s22, 0, s22"); a("s_cselect_b32 s23, 16, 19")
    a("s_cmp_eq_u32 s3, 3"); a("s_cselect_b32 s23, 18, s23"); a("s_lshl_b32 s23, s23, 12")
    a("s_mul_i32 s24, s20, 72"); a("s_add_u32 s24, s24, s22"); a("s_lshl_b32 s24, s24, 12")
    a("s_mul_i32 s25, s21, 72"); a("s_add_u32 s25, s25, s22"); a("s_lshl_b32 s25, s25, 12"); a(f"s_add_u32 s25, s25, {W2_OFF}")
    a("v_lshlrev_b32 v2, 4, v0")
    a("s_lshl_b32 s26, s20, 2"); a("s_add_u32 s26, s26, s3"); a("s_lshl_b32 s26, s26, 6"); a(f"s_add_u32 s26, s26, {G_OFF}")
    a("v_and_b32 v3, 48, v0")
    ACC = 16; FR = 80
    def acc(t, n): return ACC + 4 * (4 * t + n)
    def af(s, t): return FR + 32 * s + 4 * t
    def bf(s, n): return FR + 32 * s + 16 + 4 * n
    assert FR + 32 * D <= 256
    a("s_waitcnt lgkmcnt(0)")
    srd(a, 28, 18, "s23", "s24"); srd(a, 32, 18, "s23", "s25"); srd(a, 36, 18, WS_USED)
    a("buffer_load_dwordx4 v[4:7], v3, s[36:39], s26 offen")
    ld = opt.get("k2ld", "")
    def loads(s, soff):
        r = []
        for t in range(4):
            r.append(f"buffer_load_dwordx4 {vr(af(s,t),4)}, v2, s[28:31], {soff} offen offset:{t*1024} {ld}")
            r.append(f"buffer_load_dwordx4 {vr(bf(s,t),4)}, v2, s[32:35], {soff} offen offset:{t*1024} {ld}")
        return r
    for s in range(D):
        a(f"s_mov_b32 s60, {s*4096}")
        for l in loads(s, "s60"): a(l)
    for i in range(64): a(f"v_mov_b32 v{ACC+i}, 0")
    srd(a, 40, 4, 2048 * 1024)
    a("s_mov_b32 s62, 0")
    a(".p2align 3")
    a.label("K2_LOOP")
    for s in range(D):
        a(f"s_waitcnt vmcnt({8*(D-1)})")
        a("s_add_u32 s60, s60, 4096")
        for t in range(4):
            for n in range(4):
                a(f"v_mfma_f32_16x16x32_bf16 {vr(acc(t,n),4)}, {vr(af(s,t),4)}, {vr(bf(s,n),4)}, {vr(acc(t,n),4)}")
        for l in loads(s, "s60"): a(l)
    a("s_add_u32 s62, s62, 1"); a(f"s_cmp_lt_u32 s62, {NST//D}"); a("s_cbranch_scc1 K2_LOOP")
    stamp_mid(a, opt, 0)
    a("s_lshr_b32 s52, s20, 1"); a("s_lshl_b32 s52, s52, 7"); a("s_lshl_b32 s53, s3, 5"); a("s_add_u32 s52, s52, s53"); a("s_and_b32 s53, s20, 1"); a("s_add_u32 s52, s52, s53")
    a("s_lshl_b32 s52, s52, 10"); a("s_lshl_b32 s53, s21, 7"); a("s_add_u32 s64, s52, s53"); a("s_add_u32 s65, s64, 4096")
    a("v_lshlrev_b32 v8, 9, v3")
    a("v_and_b32 v9, 15, v0"); a("v_lshlrev_b32 v9, 3, v9"); a("v_add_u32 v8, v8, v9")
    a("s_lshl_b32 s52, s3, 14"); a("v_add_u32 v10, s52, v2")
    a("s_lshl_b32 s52, s3, 12"); a("v_add_u32 v11, s52, v2")
    a("s_waitcnt vmcnt(0)")
    for w in range(4):
        a.label(f"K2_EP{w}")
        if w < 3:
            a(f"s_cmp_lg_u32 s3, {w}"); a(f"s_cbranch_scc1 K2_EP{w+1}")
        for t in range(4):
            if t == w: continue
            for n in range(4):
                a(f"ds_write_b128 v10, {vr(acc(t,n),4)} offset:{(t*4+n)*1024}")
        for i in range(4): a(f"v_sub_f32 v{12+i}, 1.0, v{4+i}")
        a("v_cvt_pk_bf16_f32 v12, v12, v13"); a("v_cvt_pk_bf16_f32 v14, v14, v15")
        a("v_and_b32 v13, 0xffff0000, v12"); a("v_lshlrev_b32 v12, 16, v12"); a("v_and_b32 v15, 0xffff0000, v14"); a("v_lshlrev_b32 v14, 16, v14")
        a("s_waitcnt lgkmcnt(0)"); a("s_barrier")
        P = {}
        q = 0
        for src in range(4):
            if src == w: P[src] = acc(w, 0); continue
            P[src] = FR + 16 * q; q += 1
            for n in range(4):
                a(f"ds_read_b128 {vr(P[src]+4*n,4)}, v11 offset:{src*16384 + n*1024}")
        a("s_waitcnt lgkmcnt(0)")
        for i in range(16): a(f"v_add_f32 v{P[1]+i}, v{P[1]+i}, v{P[2]+i}")
        for i in range(16): a(f"v_mul_f32 v{P[0]+i}, v{P[0]+i}, v{4+(i&3)}")
        for i in range(16): a(f"v_add_f32 v{P[1]+i}, v{P[1]+i}, v{P[3]+i}")
        for i in range(16): a(f"v_fma_f32 v{P[0]+i}, v{P[1]+i}, v{12+(i&3)}, v{P[0]+i}")
        O = FR + 64
        for i in range(4):
            a(f"v_cvt_pk_bf16_f32 v{O+2*i}, v{P[0]+i}, v{P[0]+4+i}"); a(f"v_cvt_pk_bf16_f32 v{O+2*i+1}, v{P[0]+8+i}, v{P[0]+12+i}")
            a(f"buffer_store_dwordx2 {vr(O+2*i,2)}, v8, s[40:43], s{64+(i>>1)} offen offset:{(i&1)*2048}")
        if w < 3: a("s_branch K2_FIN")
    a.label("K2_FIN")
    stamp_mid(a, opt, 1)
    stamp_end(a, opt, 18, 1 << 18, 0)
    a.label("K2_END"); a("s_endpgm")

def kd(a, kn, nv, acc=None):
    a(f".amdhsa_kernel {kn}")
    a(f"  .amdhsa_next_free_vgpr {nv}"); a("  .amdhsa_next_free_sgpr 102"); a(f"  .amdhsa_accum_offset {acc or nv}")
    a("  .amdhsa_group_segment_fixed_size 0"); a("  .amdhsa_kernarg_size 80"); a("  .amdhsa_user_sgpr_count 2")
    a("  .amdhsa_user_sgpr_kernarg_segment_ptr 1"); a("  .amdhsa_system_sgpr_workgroup_id_x 1"); a(".end_amdhsa_kernel")

def generate(opt):
    a = Asm()
    a(f"; @launch kernel=k1_kernel grid=(256,1,1) block=(512,1,1) lds={K1_LDS}")
    a(f"; @launch kernel=k2_kernel grid=(256,1,1) block=(256,1,1) lds={opt.get('k2lds', 98304)}")
    for i in range(opt.get("empty", 0)):
        a(f"; @launch kernel=k3_kernel grid=(256,1,1) block=(256,1,1) lds=0")
    a('.amdgcn_target "amdgcn-amd-amdhsa--gfx950"'); a(".text")
    if opt.get("empty", 0):
        a(".globl k3_kernel"); a(".p2align 8"); a(".type k3_kernel,@function"); a.label("k3_kernel"); a("s_endpgm")
    gen_k1(a, opt)
    gen_k2(a, opt)
    a('.section .rodata,"a"'); a(".p2align 6")
    kd(a, "k1_kernel", 256)
    a(".p2align 6")
    kd(a, "k2_kernel", 256)
    if opt.get("empty", 0):
        a(".p2align 6"); kd(a, "k3_kernel", 8)
    errs = check(a.lines)
    for e in errs: print(e, file=sys.stderr)
    assert not errs
    return a.text()

if __name__ == "__main__":
    opt = {}
    for kv in sys.argv[2:]:
        k, v = kv.split("=")
        try: v = int(v)
        except: pass
        opt[k] = v
    open(sys.argv[1], "w").write(generate(opt))
```

```python
import sys, math
from asmlib import *

NAME = "gated_mix__sliding_local_dilated__dense_activation_relu__prompt"
A2_OFF = 0
A2_SIZE = 32 * 72 * 4096
W2_OFF = 0xA00000
W2_SIZE = 8 * 72 * 4096
G_OFF = 0xD00000
WS_USED = 0xD00000 + 8192
STAMP_OFF = 128 << 20
SLOT = 45056
XOFF, WOFF, EOFF = 0, 16384, 40960
SCR = 3 * SLOT
K1_LDS = SCR + 16384
BIG = 0xF149F2CA
LOG2E = 1.4426950408889634

def f32bits(x):
    import struct
    return struct.unpack("<I", struct.pack("<f", x))[0]

def srd(a, d, base, size, add=0):
    if add == 0:
        a(f"s_mov_b32 s{d}, s{base}"); a(f"s_mov_b32 s{d+1}, s{base+1}")
    else:
        a(f"s_add_u32 s{d}, s{base}, {add}"); a(f"s_addc_u32 s{d+1}, s{base+1}, 0")
    a(f"s_mov_b32 s{d+2}, {size}"); a(f"s_mov_b32 s{d+3}, 0x20000")

def csel(a, d, x, y):
    a(f"s_mov_b32 {d}, {y}"); a(f"s_cselect_b32 {d}, {x}, {d}")

def spread(a, mf, other, last=4):
    n = len(mf) - last; other = list(other); k = 0
    for i, m in enumerate(mf):
        a(m)
        while k < len(other) and k * n <= i * len(other): a(other[k]); k += 1
    while k < len(other): a(other[k]); k += 1

def mix(xs, ws):
    out = []; i = j = 0
    while i < len(xs) or j < len(ws):
        if j >= len(ws) or (i < len(xs) and i * len(ws) <= j * len(xs)): out.append(xs[i]); i += 1
        else: out.append(ws[j]); j += 1
    return out

def interleave(a, mf, other, start=0, per=1):
    other = list(other)
    for i, m in enumerate(mf):
        a(m)
        if i >= start:
            for _ in range(per):
                if other: a(other.pop(0))
    for o in other: a(o)

def stamp_begin(a, opt):
    if opt.get("stamps"):
        a("s_memrealtime s[80:81]"); a("s_memtime s[82:83]")
        for k in range(8): a(f"s_mov_b32 s{84+2*k}, 0")

def stamp_mid(a, opt, k):
    if opt.get("stamps"):
        a(f"s_memtime s[{84+2*k}:{85+2*k}]")

def stamp_end(a, opt, ws, slot_base, tag):
    if not opt.get("stamps"): return
    a("s_waitcnt vmcnt(0) lgkmcnt(0)")
    a("s_memrealtime s[52:53]"); a("s_memtime s[54:55]")
    a("s_waitcnt lgkmcnt(0)")
    if opt.get("stamps") == 2:
        a("s_load_dwordx2 s[56:57], s[0:1], 64"); a("s_waitcnt lgkmcnt(0)")
        srd(a, 40, 56, 64)
        a("s_sub_u32 s52, s52, s80")
        for k in (84, 86, 88, 90, 92, 94, 96, 98, 54): a(f"s_sub_u32 s{k}, s{k}, s82")
    else:
        srd(a, 40, ws, 1 << 20, STAMP_OFF + slot_base)
    a("s_lshl_b32 s56, s2, 3"); a("s_add_u32 s56, s56, s3"); a("s_lshl_b32 s56, s56, 6")
    a("s_getreg_b32 s57, hwreg(HW_REG_XCC_ID)")
    a(f"s_mov_b32 s58, {tag}")
    for i, s in enumerate((80, 52, 82, 84, 86, 88, 90, 92, 94, 96, 98, 54, 57, 58, 58, 58)):
        a(f"v_mov_b32 v{8+i}, s{s}")
    a("v_mov_b32 v6, s56")
    a("s_mov_b64 exec, 1")
    for q in range(4):
        a(f"buffer_store_dwordx4 v[{8+4*q}:{11+4*q}], v6, s[40:43], 0 offen offset:{16*q}")
    a("s_waitcnt vmcnt(0)")

def gen_k1(a, opt):
    kn = "k1_kernel"
    a(f".globl {kn}"); a(".p2align 8"); a(f".type {kn},@function"); a.label(kn)
    a("s_cmp_ge_u32 s2, 256"); a("s_cbranch_scc1 K1_END")
    a("s_load_dwordx4 s[4:7], s[0:1], 0")
    a("s_load_dwordx2 s[8:9], s[0:1], 16")
    a("s_load_dwordx4 s[12:15], s[0:1], 32")
    a("s_load_dwordx2 s[16:17], s[0:1], 48")
    a("s_load_dwordx2 s[18:19], s[0:1], 72")
    stamp_begin(a, opt)
    a("v_lshrrev_b32 v1, 6, v0"); a("v_and_b32 v0, 63, v0")
    a("v_readfirstlane_b32 s3, v1")
    m = opt.get("k1map", "Z")
    a("s_and_b32 s52, s2, 7"); a("s_lshr_b32 s53, s2, 3")
    if m == "Z":
        a("s_lshr_b32 s20, s52, 1"); a("s_lshl_b32 s20, s20, 2"); a("s_and_b32 s54, s53, 3"); a("s_add_u32 s20, s20, s54")
        a("s_lshr_b32 s54, s53, 2")
        a("s_and_b32 s21, s54, 1")
        a("s_and_b32 s22, s52, 1"); a("s_lshl_b32 s22, s22, 2"); a("s_lshr_b32 s54, s54, 1"); a("s_add_u32 s22, s22, s54")
    elif m == "Y":
        a("s_lshr_b32 s20, s52, 2"); a("s_lshl_b32 s20, s20, 3"); a("s_and_b32 s54, s53, 7"); a("s_add_u32 s20, s20, s54")
        a("s_lshr_b32 s54, s53, 3")
        a("s_and_b32 s21, s54, 1")
        a("s_and_b32 s22, s52, 3"); a("s_lshl_b32 s22, s22, 1"); a("s_lshr_b32 s54, s54, 1"); a("s_add_u32 s22, s22, s54")
    elif m == "X":
        a("s_lshl_b32 s20, s52, 1"); a("s_and_b32 s54, s53, 1"); a("s_add_u32 s20, s20, s54")
        a("s_lshr_b32 s54, s53, 1")
        a("s_and_b32 s21, s54, 1"); a("s_lshr_b32 s22, s54, 1")
    a("s_and_b32 s23, s3, 3")
    a("s_cmp_ge_u32 s3, 4"); a("s_cbranch_scc1 K1_LOADER")
    a("s_cmp_eq_u32 s21, 0"); a("s_cbranch_scc1 K1_ATTN")
    gen_k1_ffn(a, opt)
    gen_k1_attn(a, opt)
    gen_k1_loader(a, opt)
    a.label("K1_END"); a("s_endpgm")

def slot_advance(a):
    return

def k1_mainloop(a, opt, pre, addr_regs, reads, mfmas):
    if opt.get("noreads"):
        _r = reads
        if opt["noreads"] == 1: reads = lambda kk, s: []
        if opt["noreads"] == 2: reads = lambda kk, s: [x for x in _r(kk, s) if "b128" in x]
        if opt["noreads"] == 3: reads = lambda kk, s: [x for x in _r(kk, s) if "tr_b16" in x]
    a("s_mov_b32 s60, 0"); a("s_mov_b32 s62, 0"); a(f"s_mov_b32 s56, {SLOT}"); a(f"s_mov_b32 s57, {(-2*SLOT) & 0xffffffff}")
    stamp_mid(a, opt, 0)
    a("s_barrier")
    stamp_mid(a, opt, 1)
    for r in reads(0, 0): a(r)
    a(".p2align 3")
    a.label(pre + "_LOOP")
    a("s_waitcnt lgkmcnt(0)")
    a("s_add_u32 s60, s60, 1")
    last = opt.get("last", 6)
    sal = ["s_cmp_eq_u32 s60, 3\ns_cselect_b32 s61, s57, s56", "s_cselect_b32 s60, 0, s60\ns_add_u32 s62, s62, 1", "s_cmp_eq_u32 s62, 8\ns_nop 0"]
    mf = mfmas(0)
    spread(a, mf[:-last], reads(1, 1), 0)
    interleave(a, mf[-last:], sal)
    a("s_waitcnt lgkmcnt(0)")
    a(f"s_cbranch_scc1 {pre}_NOBAR")
    a("s_barrier"); a("s_nop 0")
    a.label(pre + "_NOBAR")
    adv = [f"v_add_u32 v{r}, s61, v{r}" for r in addr_regs]
    if len(adv) % 2: adv.append("s_nop 0")
    adv = [adv[i] + "\n" + adv[i+1] for i in range(0, len(adv), 2)]
    mf = mfmas(1)
    interleave(a, mf[:len(adv)], adv)
    spread(a, mf[len(adv):], reads(0, 0), opt.get("last2", 2))
    a(f"s_cbranch_scc0 {pre}_LOOP")
    a("s_waitcnt lgkmcnt(0)")
    stamp_mid(a, opt, 2)

def gen_k1_ffn(a, opt):
    ACC = 16; FR = 128
    def acc(t, n): return ACC + 4 * (t * 7 + n)
    def xf(s, t): return FR + 44 * s + 4 * t
    def wf(s, n): return FR + 44 * s + 16 + 4 * n
    XA = [2, 3]; WA = [4, 5, 6, 7]; SA = 8
    a("s_lshr_b32 s24, s23, 1")
    a("s_and_b32 s25, s23, 1")
    a("v_and_b32 v10, 15, v0"); a("v_lshrrev_b32 v11, 4, v0")
    a("v_lshrrev_b32 v12, 1, v10"); a("v_xor_b32 v12, v12, v11"); a("v_lshlrev_b32 v12, 4, v12")
    a("v_lshlrev_b32 v13, 7, v10"); a("v_add_u32 v12, v12, v13")
    a("s_lshl_b32 s52, s24, 13"); a(f"v_add_u32 v{XA[0]}, s52, v12"); a(f"v_xor_b32 v{XA[1]}, 64, v{XA[0]}")
    a("v_bfe_u32 v12, v0, 2, 2")
    a("v_lshlrev_b32 v13, 3, v11"); a("v_add_u32 v13, v13, v12")
    a("v_lshrrev_b32 v14, 1, v12"); a("v_and_b32 v15, 1, v11"); a("v_lshlrev_b32 v9, 1, v15"); a("v_or_b32 v14, v14, v9")
    a("v_and_b32 v9, 3, v0"); a("v_lshlrev_b32 v9, 3, v9")
    a("v_lshlrev_b32 v12, 7, v13"); a("v_add_u32 v12, v12, v9")
    for j in range(4):
        a(f"s_mul_i32 s52, s25, 6"); a(f"s_add_u32 s52, s52, {j}")
        a("s_and_b32 s53, s52, 3"); a("s_lshr_b32 s52, s52, 2"); a("s_lshl_b32 s52, s52, 13"); a(f"s_add_u32 s52, s52, {WOFF}")
        a(f"v_xor_b32 v{WA[j]}, s53, v14"); a(f"v_lshlrev_b32 v{WA[j]}, 5, v{WA[j]}"); a(f"v_add_u32 v{WA[j]}, v{WA[j]}, v12"); a(f"v_add_u32 v{WA[j]}, s52, v{WA[j]}")
    a(f"v_xor_b32 v{SA}, s25, v15"); a(f"v_lshlrev_b32 v{SA}, 5, v{SA}"); a(f"v_add_u32 v{SA}, v{SA}, v9")
    a("v_lshlrev_b32 v12, 6, v13"); a(f"v_add_u32 v{SA}, v{SA}, v12"); a(f"v_add_u32 v{SA}, {EOFF}, v{SA}")
    for i in range(112): a(f"v_mov_b32 v{ACC+i}, 0")
    a("s_waitcnt lgkmcnt(0)")
    srd(a, 40, 18, A2_SIZE, A2_OFF)
    a("s_lshl_b32 s52, s20, 1"); a("s_add_u32 s52, s52, s24"); a("s_mul_i32 s52, s52, 72")
    a("s_mul_i32 s53, s22, 7"); a("s_add_u32 s52, s52, s53"); a("s_add_u32 s52, s52, 16")
    a("s_and_b32 s53, s22, 1")
    a("s_mul_i32 s54, s25, 3"); a("s_add_u32 s54, s54, s53"); a("s_add_u32 s54, s54, s52"); a("s_lshl_b32 s64, s54, 12")
    a("s_add_u32 s65, s64, 4096"); a("s_add_u32 s66, s64, 8192")
    a("s_cmp_eq_u32 s53, 0"); a("s_cselect_b32 s54, 6, 0"); a("s_add_u32 s54, s54, s52"); a("s_lshl_b32 s67, s54, 12")
    a("s_lshl_b32 s53, s25, 3"); a("s_add_u32 s67, s67, s53")
    a("v_lshlrev_b32 v9, 4, v0")
    def reads(kk, s):
        r = []
        xs = [f"ds_read_b128 {vr(xf(s,t),4)}, v{XA[kk]} offset:{t*2048}" for t in range(4)]
        ws = []
        for n in range(6):
            for h in range(2):
                ws.append(f"ds_read_b64_tr_b16 {vr(wf(s,n)+2*h,2)}, v{WA[n&3]} offset:{(n>>2)*8192 + kk*4096 + h*512}")
        for h in range(2):
            ws.append(f"ds_read_b64_tr_b16 {vr(wf(s,6)+2*h,2)}, v{SA} offset:{kk*2048 + h*256}")
        return mix(xs, ws) if opt.get('spread', 1) else xs + ws
    def mfmas(s):
        return [f"v_mfma_f32_16x16x32_bf16 {vr(acc(t,n),4)}, {vr(wf(s,n),4)}, {vr(xf(s,t),4)}, {vr(acc(t,n),4)}" for n in range(7) for t in range(4)]
    k1_mainloop(a, opt, "K1F", XA + WA + [SA], reads, mfmas)
    a.nop(8)
    st = opt.get("k1st", "")
    T = FR
    q = 0
    for aa in range(3):
        for t in range(4):
            d = T + 4 * (q % 8); q += 1
            for hh in range(2):
                s = acc(t, 2 * aa + hh)
                a(f"v_cvt_pk_bf16_f32 v{d+2*hh}, v{s}, v{s+1}"); a(f"v_cvt_pk_bf16_f32 v{d+2*hh+1}, v{s+2}, v{s+3}")
            for i in range(4): a(f"v_pk_max_i16 v{d+i}, v{d+i}, 0")
            a(f"buffer_store_dwordx4 {vr(d,4)}, v9, s[40:43], s{64+aa} offen offset:{t*1024} {st}")
    for t in range(4):
        d = T + 4 * (q % 8); q += 1
        s = acc(t, 6)
        a(f"v_cvt_pk_bf16_f32 v{d}, v{s}, v{s+1}"); a(f"v_cvt_pk_bf16_f32 v{d+1}, v{s+2}, v{s+3}")
        for i in range(2): a(f"v_pk_max_i16 v{d+i}, v{d+i}, 0")
        a(f"buffer_store_dwordx2 {vr(d,2)}, v9, s[40:43], s67 offen offset:{t*1024} {st}")
    stamp_mid(a, opt, 3)
    stamp_end(a, opt, 18, 0, 1)
    a("s_endpgm")

def gen_k1_attn(a, opt):
    a.label("K1_ATTN")
    ACC = 36; FR = 140
    def Q(t): return ACC + 4 * t
    def K(t): return ACC + 32 + 4 * t
    def V(t): return ACC + 68 + 4 * t
    def xf(s, t): return FR + 48 * s + 4 * t
    def wf(s, p): return FR + 48 * s + 36 + 4 * p
    XA = [2, 3]; WA = 4
    BC, BP, BP0, BP4, MC = 16, 20, 24, 28, 32
    a("v_and_b32 v10, 15, v0"); a("v_lshrrev_b32 v11, 4, v0")
    a("v_lshrrev_b32 v12, 1, v10"); a("v_xor_b32 v12, v12, v11"); a("v_lshlrev_b32 v12, 4, v12")
    a("v_lshlrev_b32 v13, 7, v10"); a(f"v_add_u32 v{XA[0]}, v12, v13"); a(f"v_xor_b32 v{XA[1]}, 64, v{XA[0]}")
    a("v_bfe_u32 v12, v0, 2, 2")
    a("v_lshlrev_b32 v13, 3, v11"); a("v_add_u32 v13, v13, v12")
    a("v_lshrrev_b32 v14, 1, v12"); a("v_and_b32 v15, 1, v11"); a("v_lshlrev_b32 v9, 1, v15"); a("v_or_b32 v14, v14, v9")
    a("v_and_b32 v9, 3, v0"); a("v_lshlrev_b32 v9, 3, v9")
    a("v_lshlrev_b32 v12, 7, v13"); a("v_add_u32 v12, v12, v9")
    a(f"v_xor_b32 v{WA}, s23, v14"); a(f"v_lshlrev_b32 v{WA}, 5, v{WA}"); a(f"v_add_u32 v{WA}, v{WA}, v12"); a(f"v_add_u32 v{WA}, {WOFF}, v{WA}")
    a("v_lshlrev_b32 v12, 2, v11"); a("v_sub_u32 v13, v12, v10")
    a(f"v_mov_b32 v5, 0x{BIG:x}"); a("v_mov_b32 v6, 0")
    a("s_cmp_eq_u32 s20, 0"); a(f"s_cselect_b32 s52, 0x{BIG:x}, 0"); a("v_mov_b32 v7, s52")
    a(f"v_mov_b32 v{MC}, 0"); a(f"v_mov_b32 v{MC+1}, 0")
    for r in range(4):
        a(f"v_add_u32 v14, {r+7}, v13")
        a("v_cmp_gt_u32 vcc, 8, v14"); a.nop(2)
        a(f"v_cndmask_b32 v{BC+r}, v5, v6, vcc")
        a(f"v_mov_b32 v15, {'0xffff' if r % 2 == 0 else '0xffff0000'}")
        a("v_cndmask_b32 v15, v6, v15, vcc")
        a(f"v_or_b32 v{MC+(r>>1)}, v{MC+(r>>1)}, v15")
        a(f"v_add_u32 v14, {r}, v13")
        a("v_cmp_le_i32 vcc, 9, v14"); a.nop(2)
        a(f"v_cndmask_b32 v{BP+r}, v5, v6, vcc")
        a(f"v_cndmask_b32 v{BP0+r}, v5, v7, vcc")
        a("v_cmp_le_i32 vcc, 1, v14")
        a(f"v_add_u32 v15, {r}, v12")
        a("v_cmp_gt_u32 s[52:53], 8, v15"); a.nop(1)
        a("s_and_b64 vcc, vcc, s[52:53]")
        a(f"v_cndmask_b32 v{BP4+r}, v5, v7, vcc")
    for i in range(104): a(f"v_mov_b32 v{ACC+i}, 0")
    a("s_waitcnt lgkmcnt(0)")
    srd(a, 40, 18, A2_SIZE, A2_OFF)
    a("s_mul_i32 s52, s20, 144"); a("s_lshl_b32 s53, s22, 1"); a("s_add_u32 s52, s52, s53"); a("s_lshr_b32 s53, s23, 1"); a("s_add_u32 s52, s52, s53")
    a("s_lshl_b32 s64, s52, 12"); a("s_and_b32 s53, s23, 1"); a("s_lshl_b32 s53, s53, 3"); a("s_add_u32 s64, s64, s53")
    a(f"s_add_u32 s65, s64, {72*4096}")
    a(f"s_mov_b32 s66, 0x{f32bits(0.25*LOG2E):x}")
    a("v_lshlrev_b32 v9, 4, v0")
    def reads(kk, s):
        ws = []
        for p in range(3):
            for h in range(2):
                ws.append(f"ds_read_b64_tr_b16 {vr(wf(s,p)+2*h,2)}, v{WA} offset:{p*8192 + kk*4096 + h*512}")
        xs = [f"ds_read_b128 {vr(xf(s,t),4)}, v{XA[kk]} offset:{t*2048 if t < 8 else EOFF}" for t in range(9)]
        return mix(xs, ws) if opt.get('spread', 1) else ws + xs
    def mfmas(s):
        r = []
        for t in range(9):
            if t < 8: r.append(f"v_mfma_f32_16x16x32_bf16 {vr(Q(t),4)}, {vr(wf(s,0),4)}, {vr(xf(s,t),4)}, {vr(Q(t),4)}")
            r.append(f"v_mfma_f32_16x16x32_bf16 {vr(K(t),4)}, {vr(wf(s,1),4)}, {vr(xf(s,t),4)}, {vr(K(t),4)}")
            r.append(f"v_mfma_f32_16x16x32_bf16 {vr(V(t),4)}, {vr(xf(s,t),4)}, {vr(wf(s,2),4)}, {vr(V(t),4)}")
        return r
    k1_mainloop(a, opt, "K1A", XA + [WA], reads, mfmas)
    a.nop(8)
    QB = FR; KB = FR + 16; VB = FR + 34; ONES = FR + 54; PB = FR + 58
    M = FR + 90; TM = FR + 98
    assert TM + 8 <= 256
    def cvt(d, s): a(f"v_cvt_pk_bf16_f32 v{d}, v{s}, v{s+1}"); a(f"v_cvt_pk_bf16_f32 v{d+1}, v{s+2}, v{s+3}")
    for t in range(8): cvt(QB + 2 * t, Q(t))
    for t in range(9): cvt(KB + 2 * t, K(t))
    def vslot(t): return (1 + t) if t < 4 else (2 + t)
    smf = []
    for t in range(8):
        prev = 8 if t in (0, 4) else t - 1
        bp = BP0 if t == 0 else (BP4 if t == 4 else BP)
        smf.append(f"v_mfma_f32_16x16x16_bf16 {vr(Q(t),4)}, {vr(KB+2*t,2)}, {vr(QB+2*t,2)}, {vr(BC,4)}")
        smf.append(f"v_mfma_f32_16x16x16_bf16 {vr(K(t),4)}, {vr(KB+2*prev,2)}, {vr(QB+2*t,2)}, {vr(bp,4)}")
    vc = []
    for t in range(8):
        d = VB + 2 * vslot(t); s = V(t)
        vc += [f"v_cvt_pk_bf16_f32 v{d}, v{s}, v{s+1}", f"v_cvt_pk_bf16_f32 v{d+1}, v{s+2}, v{s+3}"]
    for d in (VB, VB + 10):
        s = V(8)
        vc += [f"v_cvt_pk_bf16_f32 v{d}, v{s}, v{s+1}", f"v_cvt_pk_bf16_f32 v{d+1}, v{s+2}, v{s+3}"]
    vc += [f"v_mov_b32 v{ONES+i}, 0x3f803f80" for i in range(4)]
    a.nop(2)
    interleave(a, smf, vc, per=2)
    a.nop(8)
    for t in range(8):
        for r in range(4): a(f"v_max_f32 v{Q(t)+r}, v{Q(t)+r}, v{K(t)+r}")
    for t in range(8): a(f"v_max3_f32 v{M+t}, v{Q(t)}, v{Q(t)+1}, v{Q(t)+2}")
    for t in range(8): a(f"v_max_f32 v{M+t}, v{M+t}, v{Q(t)+3}")
    for sw in ("v_permlane32_swap_b32", "v_permlane16_swap_b32"):
        for t in range(8): a(f"v_mov_b32 v{TM+t}, v{M+t}")
        a.nop(1)
        for t in range(8): a(f"{sw} v{M+t}, v{TM+t}")
        for t in range(8): a(f"v_max_f32 v{M+t}, v{M+t}, v{TM+t}")
    for t in range(8): a(f"v_mul_f32 v{M+t}, s66, v{M+t}")
    for t in range(8):
        for r in range(4): a(f"v_fma_f32 v{Q(t)+r}, v{Q(t)+r}, s66, -v{M+t}")
    for t in range(8):
        for r in range(4): a(f"v_exp_f32 v{Q(t)+r}, v{Q(t)+r}")
    a.nop(1)
    for t in range(8): cvt(PB + 4 * t + 2, Q(t))
    for t in range(8):
        for h in range(2): a(f"v_bfi_b32 v{PB+4*t+h}, v{MC+h}, 0, v{PB+4*t+2+h}")
        for h in range(2): a(f"v_and_b32 v{PB+4*t+2+h}, v{MC+h}, v{PB+4*t+2+h}")
    a.nop(2)
    for t in range(8):
        a(f"v_mfma_f32_16x16x32_bf16 {vr(K(t),4)}, {vr(ONES,4)}, {vr(PB+4*t,4)}, 0")
        a(f"v_mfma_f32_16x16x32_bf16 {vr(Q(t),4)}, {vr(VB+2*(vslot(t)-1),4)}, {vr(PB+4*t,4)}, 0")
    a.nop(8)
    for t in range(8): a(f"v_rcp_f32 v{M+t}, v{K(t)}")
    a.nop(1)
    st = opt.get("k1st", "")
    stamp_mid(a, opt, 3)
    for t in range(8):
        for r in range(4): a(f"v_mul_f32 v{Q(t)+r}, v{Q(t)+r}, v{M+t}")
        cvt(QB + 2 * t, Q(t))
        a(f"buffer_store_dwordx2 {vr(QB+2*t,2)}, v9, s[40:43], s{64+(t>>2)} offen offset:{(t&3)*1024} {st}")
    stamp_mid(a, opt, 4)
    stamp_end(a, opt, 18, 0, 2)
    a("s_endpgm")

def gen_k1_loader(a, opt):
    a.label("K1_LOADER")
    VX0, VX1, VW, VE, VL16, VR = 2, 3, 4, 5, 6, 7
    a("v_lshrrev_b32 v10, 3, v0"); a("v_and_b32 v11, 7, v0"); a("v_lshrrev_b32 v12, 4, v0")
    a("s_and_b32 s24, s23, 1"); a("s_lshr_b32 s25, s23, 1")
    a("s_lshl_b32 s52, s20, 7"); a("s_lshl_b32 s53, s24, 6"); a("s_add_u32 s52, s52, s53"); a("s_add_u32 s52, s52, s25"); a("s_lshl_b32 s52, s52, 10")
    a("v_xor_b32 v13, v11, v12"); a("v_lshlrev_b32 v13, 4, v13")
    a("v_lshlrev_b32 v14, 11, v10"); a("v_add_u32 v14, v14, v13")
    a(f"v_add_u32 v{VX0}, s52, v14"); a(f"v_xor_b32 v{VX1}, 64, v{VX0}")
    a("s_cmp_eq_u32 s21, 0")
    csel(a, "s26", 3072, 3584); csel(a, "s27", 1024, 128)
    a("s_mul_i32 s54, s22, 448"); a("s_and_b32 s55, s22, 1"); a("s_lshl_b32 s56, s55, 6"); a("s_add_u32 s56, s56, s54")
    a("s_lshl_b32 s57, s22, 7")
    a("s_cmp_eq_u32 s21, 0"); a("s_cselect_b32 s56, s57, s56")
    a("v_and_b32 v15, 1, v12"); a("v_lshlrev_b32 v15, 1, v15"); a("v_xor_b32 v15, v15, v11"); a("s_lshl_b32 s53, s24, 2"); a("v_xor_b32 v15, s53, v15"); a("v_lshlrev_b32 v15, 4, v15")
    a("s_lshl_b32 s53, s23, 3"); a(f"v_add_u32 v{VW}, s53, v10"); a(f"v_mul_lo_u32 v{VW}, v{VW}, s26"); a(f"v_add_u32 v{VW}, v{VW}, v15"); a(f"v_add_u32 v{VW}, s56, v{VW}")
    a(f"v_lshlrev_b32 v{VL16}, 4, v0")
    a(f"v_lshlrev_b32 v{VR}, 10, v10"); a("v_lshlrev_b32 v15, 4, v11"); a(f"v_add_u32 v{VR}, v{VR}, v15")
    a("s_waitcnt lgkmcnt(0)")
    srd(a, 28, 4, 2048 * 1024)
    a("s_cmp_eq_u32 s21, 0")
    a("s_cselect_b32 s32, s6, s12"); a("s_cselect_b32 s33, s7, s13"); csel(a, "s34", 512*3072, 512*3584); a("s_mov_b32 s35, 0x20000")
    a("s_cselect_b32 s36, s4, s12"); a("s_cselect_b32 s37, s5, s13"); csel(a, "s38", 2048*1024, 512*3584); a("s_mov_b32 s39, 0x20000")
    a("s_cbranch_scc1 K1L_EA")
    a("s_cmp_eq_u32 s55, 0"); a("s_cselect_b32 s53, 384, 0"); a("s_add_u32 s54, s54, s53")
    a("v_lshrrev_b32 v15, 2, v0"); a("s_lshl_b32 s53, s23, 4"); a("v_add_u32 v15, s53, v15"); a(f"v_mul_u32_u24 v{VE}, 3584, v15")
    a("v_lshrrev_b32 v15, 5, v0"); a("v_lshlrev_b32 v15, 1, v15"); a("v_and_b32 v13, 3, v0"); a("v_xor_b32 v15, v15, v13"); a("v_lshlrev_b32 v15, 4, v15")
    a(f"v_add_u32 v{VE}, v{VE}, v15"); a(f"v_add_u32 v{VE}, s54, v{VE}")
    a("s_lshl_b32 s70, s23, 10")
    a(f"s_mov_b32 s71, {64*3584}")
    a("s_branch K1L_ED")
    a.label("K1L_EA")
    a("s_lshl_b32 s52, s20, 7"); a("s_cmp_eq_u32 s20, 0"); a("s_cselect_b32 s53, 0, 16"); a("s_cselect_b32 s38, 0, s38"); a("s_sub_u32 s52, s52, s53")
    a("s_add_u32 s52, s52, 1"); a("s_sub_u32 s52, s52, s24"); a("s_lshl_b32 s52, s52, 10")
    a("s_lshl_b32 s53, s24, 6"); a(f"v_xor_b32 v{VE}, s53, v14"); a(f"v_add_u32 v{VE}, s52, v{VE}")
    a("s_lshl_b32 s70, s24, 10")
    a("s_mov_b32 s71, 128")
    a.label("K1L_ED")
    a(f"s_add_u32 s70, s70, {EOFF}")
    a("s_lshl_b32 s68, s23, 12")
    a("s_lshl_b32 s69, s23, 10"); a(f"s_add_u32 s69, s69, {WOFF}")
    a("s_lshl_b32 s72, s26, 6")
    a("s_lshl_b32 s73, s26, 5")
    rot = opt.get("k1rot", 0)
    if rot == 0: a("s_mov_b32 s74, 0")
    elif rot == 1: a("s_add_u32 s74, s20, s22"); a("s_and_b32 s74, s74, 7")
    elif rot == 2: a("s_lshr_b32 s74, s2, 3"); a("s_and_b32 s52, s2, 7"); a("s_add_u32 s74, s74, s52"); a("s_and_b32 s74, s74, 7")
    ld = opt.get("k1ld", "")
    def stage(s):
        base = (s % 3) * SLOT
        a("s_lshl_b32 s75, s74, 7")
        a("s_mul_i32 s76, s74, s72")
        a("s_mul_i32 s77, s74, s71")
        for m in range(4):
            a(f"s_add_u32 m0, s68, {base + XOFF + m*1024}")
            a(f"s_add_u32 s78, s75, {m*16384}")
            a(f"buffer_load_dwordx4 v{VX0 if m % 2 == 0 else VX1}, s[28:31], s78 offen {ld} lds")
        for jj in range(2):
            for P in range(3):
                a(f"s_add_u32 m0, s69, {base + P*8192 + jj*4096}")
                if P == 0:
                    if jj == 0: a("s_mov_b32 s78, s76")
                    else: a("s_add_u32 s78, s76, s73")
                else: a("s_add_u32 s78, s78, s27")
                a(f"buffer_load_dwordx4 v{VW}, s[32:35], s78 offen {ld} lds")
        a(f"s_add_u32 m0, s70, {base}")
        a("s_add_u32 s74, s74, 1")
        a(f"buffer_load_dwordx4 v{VE}, s[36:39], s77 offen {ld} lds")
        a("s_and_b32 s74, s74, 7")
    stage(0)
    stage(1)
    a("s_waitcnt vmcnt(11)"); a("s_barrier"); stamp_mid(a, opt, 0)
    stage(2)
    a("s_waitcnt vmcnt(11)"); a("s_barrier"); stamp_mid(a, opt, 1)
    noload = opt.get("noload", 0)
    for s in (3, 4, 5, 6, 7):
        if not noload: stage(s)
        a("s_waitcnt vmcnt(11)"); a("s_barrier"); stamp_mid(a, opt, s - 1)
    a("s_lshl_b32 s52, s20, 7"); a("s_and_b32 s53, s22, 3"); a("s_lshl_b32 s53, s53, 5"); a("s_add_u32 s53, s53, s52")
    a("s_lshl_b32 s54, s21, 4"); a("s_add_u32 s53, s53, s54"); a("s_lshl_b32 s54, s23, 2"); a("s_add_u32 s53, s53, s54")
    a("s_lshr_b32 s54, s22, 2"); a("s_add_u32 s53, s53, s54"); a("s_lshl_b32 s53, s53, 10")
    a("s_lshl_b32 s54, s22, 4"); a("s_add_u32 s52, s52, s54"); a("s_lshl_b32 s54, s21, 3"); a("s_add_u32 s52, s52, s54"); a("s_lshl_b32 s54, s23, 1"); a("s_add_u32 s52, s52, s54")
    a("s_lshl_b32 s58, s52, 2"); a(f"s_add_u32 s58, s58, {G_OFF}")
    srd(a, 44, 16, 1024)
    a(f"buffer_load_dwordx4 v[16:19], v{VL16}, s[28:31], s53 offen")
    a(f"buffer_load_dwordx4 v[20:23], v{VL16}, s[28:31], s53 offen offset:2048")
    a(f"buffer_load_dwordx4 v[24:27], v{VL16}, s[44:47], 0 offen")
    a("s_lshl_b32 s52, s23, 8"); a("s_add_u32 s52, s52, s2")
    a("s_lshr_b32 s53, s52, 3"); a("s_and_b32 s54, s52, 7")
    a("s_mul_i32 s59, s54, 72"); a("s_add_u32 s59, s59, s53"); a("s_lshl_b32 s59, s59, 12"); a(f"s_add_u32 s59, s59, {W2_OFF}")
    a("s_cmp_lt_u32 s53, 16")
    a("s_cselect_b32 s48, s8, s14"); a("s_cselect_b32 s49, s9, s15"); csel(a, "s50", 512*1024, 1792*1024); a("s_mov_b32 s51, 0x20000")
    a("s_cselect_b32 s55, 0, 16"); a("s_sub_u32 s53, s53, s55"); a("s_lshl_b32 s53, s53, 15"); a("s_lshl_b32 s54, s54, 7"); a("s_add_u32 s53, s53, s54")
    a("s_cmp_lt_u32 s52, 576"); a("s_cselect_b32 s50, s50, 0"); a("s_cselect_b32 s53, s53, 0"); a("s_cselect_b32 s63, 1, 0")
    for j in range(4):
        a(f"s_add_u32 m0, s68, {SCR + j*1024}")
        a(f"s_add_u32 s78, s53, {j*8192}")
        a(f"buffer_load_dwordx4 v{VR}, s[48:51], s78 offen lds")
    X = 7
    a(f"s_waitcnt vmcnt({X})"); a("s_barrier")
    stamp_mid(a, opt, 7)
    a("s_waitcnt vmcnt(0)")
    srd(a, 40, 18, WS_USED)
    for q in range(4):
        a(f"v_lshlrev_b32 v{28+2*q}, 16, v{24+q}"); a(f"v_and_b32 v{29+2*q}, 0xffff0000, v{24+q}")
    for row in range(2):
        xb = 16 + 4 * row; P = 36 + 8 * row
        for q in range(4):
            a(f"v_lshlrev_b32 v{P+2*q}, 16, v{xb+q}"); a(f"v_and_b32 v{P+2*q+1}, 0xffff0000, v{xb+q}")
        for i in range(8): a(f"v_mul_f32 v{P+i}, v{P+i}, v{28+i}")
        for q in range(4): a(f"v_cvt_pk_bf16_f32 v{xb+q}, v{P+2*q}, v{P+2*q+1}")
        for q in range(4):
            a(f"v_lshlrev_b32 v{P+2*q}, 16, v{xb+q}"); a(f"v_and_b32 v{P+2*q+1}, 0xffff0000, v{xb+q}")
        for i in range(4): a(f"v_add_f32 v{P+i}, v{P+i}, v{P+4+i}")
        for i in range(2): a(f"v_add_f32 v{P+i}, v{P+i}, v{P+2+i}")
        a(f"v_add_f32 v{52+row}, v{P}, v{P+1}")
    for sh in (8, 4, 2, 1):
        a.nop(2)
        for row in range(2): a(f"v_add_f32_dpp v{52+row}, v{52+row}, v{52+row} row_ror:{sh} row_mask:0xf bank_mask:0xf")
    for sw in ("v_permlane32_swap_b32", "v_permlane16_swap_b32"):
        for row in range(2): a(f"v_mov_b32 v{54+row}, v{52+row}")
        a.nop(2)
        for row in range(2): a(f"{sw} v{52+row}, v{54+row}")
        for row in range(2): a(f"v_add_f32 v{52+row}, v{52+row}, v{54+row}")
    a("v_cvt_pk_bf16_f32 v54, v52, v53")
    a("v_lshlrev_b32 v52, 16, v54"); a("v_and_b32 v53, 0xffff0000, v54")
    for row in range(2): a(f"v_mul_f32 v{52+row}, 0x{f32bits(-LOG2E):x}, v{52+row}")
    for row in range(2): a(f"v_exp_f32 v{52+row}, v{52+row}")
    a.nop(1)
    for row in range(2): a(f"v_add_f32 v{52+row}, 1.0, v{52+row}")
    for row in range(2): a(f"v_rcp_f32 v{52+row}, v{52+row}")
    a.nop(1)
    a("v_cvt_pk_bf16_f32 v54, v52, v53")
    a("v_lshlrev_b32 v52, 16, v54"); a("v_and_b32 v53, 0xffff0000, v54")
    a("v_mov_b32 v54, 0")
    st = opt.get("k1st", "")
    a("s_mov_b64 exec, 1")
    a(f"buffer_store_dwordx2 v[52:53], v54, s[40:43], s58 offen {st}")
    a("s_mov_b64 exec, -1")
    a("s_cmp_eq_u32 s63, 0"); a("s_cbranch_scc1 K1L_DONE")
    a("v_lshrrev_b32 v13, 2, v0"); a("v_lshlrev_b32 v13, 7, v13")
    a("v_and_b32 v14, 3, v0"); a("v_lshlrev_b32 v15, 3, v14"); a("v_add_u32 v13, v13, v15")
    a(f"s_add_u32 s52, s68, {SCR}"); a("v_add_u32 v13, s52, v13")
    for nt in range(4):
        for h in range(2):
            a(f"ds_read_b64_tr_b16 v[{60+4*nt+2*h}:{61+4*nt+2*h}], v13 offset:{h*2048 + nt*32}")
    a("v_lshlrev_b32 v14, 10, v14"); a("v_and_b32 v15, 48, v0"); a("v_bfe_u32 v13, v0, 2, 2"); a("v_add_u32 v15, v15, v13"); a("v_lshlrev_b32 v15, 4, v15"); a("v_add_u32 v14, v14, v15")
    a("s_waitcnt lgkmcnt(0)")
    for nt in range(4):
        a(f"buffer_store_dwordx4 v[{60+4*nt}:{63+4*nt}], v14, s[40:43], s59 offen offset:{nt*64} {st}")
    a.label("K1L_DONE")
    if opt.get("stamps"): a("s_add_u32 s59, s21, 5")
    stamp_end(a, opt, 18, 0, "s59")

def gen_k2(a, opt):
    kn = "k2_kernel"
    D = opt.get("k2d", 5)
    a(f".globl {kn}"); a(".p2align 8"); a(f".type {kn},@function"); a.label(kn)
    a("s_cmp_ge_u32 s2, 256"); a("s_cbranch_scc1 K2_END")
    a("s_load_dwordx2 s[4:5], s[0:1], 56")
    a("s_load_dwordx2 s[18:19], s[0:1], 72")
    stamp_begin(a, opt)
    a("v_lshrrev_b32 v1, 6, v0"); a("v_and_b32 v0, 63, v0")
    a("v_readfirstlane_b32 s3, v1")
    m = opt.get("k2map", "Z")
    a("s_and_b32 s52, s2, 7"); a("s_lshr_b32 s53, s2, 3")
    if m == "Z":
        a("s_lshr_b32 s20, s52, 1"); a("s_lshl_b32 s20, s20, 3"); a("s_and_b32 s54, s53, 7"); a("s_add_u32 s20, s20, s54")
        a("s_and_b32 s21, s52, 1"); a("s_lshl_b32 s21, s21, 2"); a("s_lshr_b32 s54, s53, 3"); a("s_add_u32 s21, s21, s54")
    elif m == "X":
        a("s_lshl_b32 s20, s52, 2"); a("s_and_b32 s54, s53, 3"); a("s_add_u32 s20, s20, s54")
        a("s_lshr_b32 s21, s53, 2")
    a("s_mul_i32 s22, s3, 19"); a("s_sub_u32 s22, s22, 3"); a("s_cmp_eq_u32 s3, 0"); a("s_cselect_b32 s22, 0, s22"); a("s_cselect_b32 s23, 16, 19")
    a("s_cmp_eq_u32 s3, 3"); a("s_cselect_b32 s23, 18, s23"); a("s_lshl_b32 s23, s23, 12")
    a("s_mul_i32 s24, s20, 72"); a("s_add_u32 s24, s24, s22"); a("s_lshl_b32 s24, s24, 12")
    a("s_mul_i32 s25, s21, 72"); a("s_add_u32 s25, s25, s22"); a("s_lshl_b32 s25, s25, 12"); a(f"s_add_u32 s25, s25, {W2_OFF}")
    a("v_lshlrev_b32 v2, 4, v0")
    a("s_lshl_b32 s26, s20, 2"); a("s_add_u32 s26, s26, s3"); a("s_lshl_b32 s26, s26, 6"); a(f"s_add_u32 s26, s26, {G_OFF}")
    a("v_and_b32 v3, 48, v0")
    ACC = 16; FR = 80
    def acc(t, n): return ACC + 4 * (4 * t + n)
    def af(s, t): return FR + 32 * s + 4 * t
    def bf(s, n): return FR + 32 * s + 16 + 4 * n
    assert FR + 32 * D <= 256
    a("s_waitcnt lgkmcnt(0)")
    srd(a, 28, 18, "s23", "s24"); srd(a, 32, 18, "s23", "s25"); srd(a, 36, 18, WS_USED)
    a("buffer_load_dwordx4 v[4:7], v3, s[36:39], s26 offen")
    ld = opt.get("k2ld", "")
    def loads(s, soff):
        r = []
        for t in range(4):
            r.append(f"buffer_load_dwordx4 {vr(af(s,t),4)}, v2, s[28:31], {soff} offen offset:{t*1024} {ld}")
            r.append(f"buffer_load_dwordx4 {vr(bf(s,t),4)}, v2, s[32:35], {soff} offen offset:{t*1024} {ld}")
        return r
    for s in range(D):
        a(f"s_mov_b32 s60, {s*4096}")
        for l in loads(s, "s60"): a(l)
    for i in range(64): a(f"v_mov_b32 v{ACC+i}, 0")
    srd(a, 40, 4, 2048 * 1024)
    stamp_mid(a, opt, 0)
    a("s_cmp_eq_u32 s3, 0"); a("s_cbranch_scc1 K2_V16")
    for nst, lab in ((19, None), (16, "K2_V16")):
        if lab: a(".p2align 3"); a.label(lab)
        else: a(".p2align 3")
        for i in range(nst):
            s = i % D
            outstanding = min(D - 1, nst - 1 - i)
            a(f"s_waitcnt vmcnt({8*outstanding})")
            a(f"s_movk_i32 s60, {(i+D)*4}"); a("s_lshl_b32 s60, s60, 10"); a("s_nop 0")
            mf = [f"v_mfma_f32_16x16x32_bf16 {vr(acc(t,n),4)}, {vr(af(s,t),4)}, {vr(bf(s,n),4)}, {vr(acc(t,n),4)}" for t in range(4) for n in range(4)]
            ll = loads(s, "s60") if i + D < nst else []
            for t in range(4):
                for n in range(4):
                    a(mf[4*t+n])
                    if t == 3 and ll: a(ll[2*n+1])
                if ll: a(ll[2*t])
        if not lab: a("s_branch K2_POST")
    a.label("K2_POST")
    stamp_mid(a, opt, 2)
    a("s_lshr_b32 s52, s20, 1"); a("s_lshl_b32 s52, s52, 7"); a("s_lshl_b32 s53, s3, 5"); a("s_add_u32 s52, s52, s53"); a("s_and_b32 s53, s20, 1"); a("s_add_u32 s52, s52, s53")
    a("s_lshl_b32 s52, s52, 10"); a("s_lshl_b32 s53, s21, 7"); a("s_add_u32 s64, s52, s53"); a("s_add_u32 s65, s64, 4096")
    a("v_lshlrev_b32 v8, 9, v3")
    a("v_and_b32 v9, 15, v0"); a("v_lshlrev_b32 v9, 3, v9"); a("v_add_u32 v8, v8, v9")
    a("s_lshl_b32 s52, s3, 14"); a("v_add_u32 v10, s52, v2")
    a("s_lshl_b32 s52, s3, 12"); a("v_add_u32 v11, s52, v2")
    a("s_waitcnt vmcnt(0)")
    stamp_mid(a, opt, 3)
    for w in range(4):
        a.label(f"K2_EP{w}")
        if w < 3:
            a(f"s_cmp_lg_u32 s3, {w}"); a(f"s_cbranch_scc1 K2_EP{w+1}")
        for t in range(4):
            if t == w: continue
            for n in range(4):
                a(f"ds_write_b128 v10, {vr(acc(t,n),4)} offset:{(t*4+n)*1024}")
        for i in range(4): a(f"v_sub_f32 v{12+i}, 1.0, v{4+i}")
        a("v_cvt_pk_bf16_f32 v12, v12, v13"); a("v_cvt_pk_bf16_f32 v14, v14, v15")
        a("v_and_b32 v13, 0xffff0000, v12"); a("v_lshlrev_b32 v12, 16, v12"); a("v_and_b32 v15, 0xffff0000, v14"); a("v_lshlrev_b32 v14, 16, v14")
        a("s_waitcnt lgkmcnt(0)"); stamp_mid(a, opt, 4); a("s_barrier"); stamp_mid(a, opt, 5)
        P = {}
        q = 0
        for src in range(4):
            if src == w: P[src] = acc(w, 0); continue
            P[src] = FR + 16 * q; q += 1
            for n in range(4):
                a(f"ds_read_b128 {vr(P[src]+4*n,4)}, v11 offset:{src*16384 + n*1024}")
        a("s_waitcnt lgkmcnt(0)")
        for i in range(16): a(f"v_add_f32 v{P[1]+i}, v{P[1]+i}, v{P[2]+i}")
        for i in range(16): a(f"v_mul_f32 v{P[0]+i}, v{P[0]+i}, v{4+(i&3)}")
        for i in range(16): a(f"v_add_f32 v{P[1]+i}, v{P[1]+i}, v{P[3]+i}")
        for i in range(16): a(f"v_fma_f32 v{P[0]+i}, v{P[1]+i}, v{12+(i&3)}, v{P[0]+i}")
        O = FR + 64
        for i in range(4):
            a(f"v_cvt_pk_bf16_f32 v{O+2*i}, v{P[0]+i}, v{P[0]+4+i}"); a(f"v_cvt_pk_bf16_f32 v{O+2*i+1}, v{P[0]+8+i}, v{P[0]+12+i}")
            a(f"buffer_store_dwordx2 {vr(O+2*i,2)}, v8, s[40:43], s{64+(i>>1)} offen offset:{(i&1)*2048}")
        if w < 3: a("s_branch K2_FIN")
    a.label("K2_FIN")
    stamp_mid(a, opt, 6)
    stamp_end(a, opt, 18, 1 << 18, 4)
    a.label("K2_END"); a("s_endpgm")

def kd(a, kn, nv, acc=None):
    a(f".amdhsa_kernel {kn}")
    a(f"  .amdhsa_next_free_vgpr {nv}"); a("  .amdhsa_next_free_sgpr 102"); a(f"  .amdhsa_accum_offset {acc or nv}")
    a("  .amdhsa_group_segment_fixed_size 0"); a("  .amdhsa_kernarg_size 80"); a("  .amdhsa_user_sgpr_count 2")
    a("  .amdhsa_user_sgpr_kernarg_segment_ptr 1"); a("  .amdhsa_system_sgpr_workgroup_id_x 1"); a(".end_amdhsa_kernel")

def generate(opt):
    a = Asm()
    a(f"; @launch kernel=k1_kernel grid=(256,1,1) block=(512,1,1) lds={K1_LDS}")
    a(f"; @launch kernel=k2_kernel grid=(256,1,1) block=(256,1,1) lds={opt.get('k2lds', 98304)}")
    for i in range(opt.get("empty", 0)):
        a(f"; @launch kernel=k3_kernel grid=(256,1,1) block=(256,1,1) lds=0")
    a('.amdgcn_target "amdgcn-amd-amdhsa--gfx950"'); a(".text")
    if opt.get("empty", 0):
        a(".globl k3_kernel"); a(".p2align 8"); a(".type k3_kernel,@function"); a.label("k3_kernel"); a("s_endpgm")
    gen_k1(a, opt)
    gen_k2(a, opt)
    a('.section .rodata,"a"'); a(".p2align 6")
    kd(a, "k1_kernel", 256)
    a(".p2align 6")
    kd(a, "k2_kernel", 256)
    if opt.get("empty", 0):
        a(".p2align 6"); kd(a, "k3_kernel", 8)
    errs = check(a.lines)
    for e in errs: print(e, file=sys.stderr)
    assert not errs
    return a.text()

if __name__ == "__main__":
    opt = {}
    for kv in sys.argv[2:]:
        k, v = kv.split("=")
        try: v = int(v)
        except: pass
        opt[k] = v
    open(sys.argv[1], "w").write(generate(opt))
```

```python
import sys, struct
from asmlib import *

NAME = "gated_mix__sliding_local_dilated__dense_activation_relu__prompt"
A2_OFF = 0
W2_OFF = 0xA00000
G_OFF = 0xD00000
FW_OFF = 0xD10000
FA_OFF = 0xD20000
WS_USED = 0xD80000
FSTR = 1152
STAMP_OFF = 128 << 20
SLOT = 45056
XOFF, WOFF, EOFF = 0, 16384, 40960
SCR = 3 * SLOT
LDS_BYTES = 163840
TOP = LDS_BYTES
def slot_of(s): return ((7 - s) % 3) * SLOT
BIG = 0xF149F2CA
LOG2E = 1.4426950408889634
KS0 = [0, 16, 35, 54]; NST = [16, 19, 19, 18]
NBR = 9
BL_BASE = [0, 28672, 69632, 110592]
PX, PWQKV, PWO, PW1, PW2, PGATE, POUT, PDBG, PWS = 4, 6, 8, 12, 14, 16, 18, 20, 22
sB, sT, sG, sW, sU, sCT, TAG = "s24", "s25", "s26", "s27", "s28", "s29", 30
RX, RW, RE, RWS, RR, RAUX, RA, RB = 32, 36, 40, 44, 48, 52, 56, 60

def f32bits(x): return struct.unpack("<I", struct.pack("<f", x))[0]
def q(r): return f"s[{r}:{r+3}]"

def srd(a, d, base, size, add=0):
    if add == 0:
        a(f"s_mov_b32 s{d}, s{base}"); a(f"s_mov_b32 s{d+1}, s{base+1}")
    else:
        a(f"s_add_u32 s{d}, s{base}, {add}"); a(f"s_addc_u32 s{d+1}, s{base+1}, 0")
    a(f"s_mov_b32 s{d+2}, {size}"); a(f"s_mov_b32 s{d+3}, 0x20000")

def csel(a, d, x, y):
    a(f"s_mov_b32 {d}, {y}"); a(f"s_cselect_b32 {d}, {x}, {d}")

def spread(a, mf, other, last=4):
    n = len(mf) - last; other = list(other); k = 0
    for i, m in enumerate(mf):
        a(m)
        while k < len(other) and k * n <= i * len(other): a(other[k]); k += 1
    while k < len(other): a(other[k]); k += 1

def mix(xs, ws):
    out = []; i = j = 0
    while i < len(xs) or j < len(ws):
        if j >= len(ws) or (i < len(xs) and i * len(ws) <= j * len(xs)): out.append(xs[i]); i += 1
        else: out.append(ws[j]); j += 1
    return out

def interleave(a, mf, other, start=0, per=1):
    other = list(other)
    for i, m in enumerate(mf):
        a(m)
        if i >= start:
            for _ in range(per):
                if other: a(other.pop(0))
    for o in other: a(o)

def stamp_begin(a, opt):
    if opt.get("stamps"):
        a("s_memrealtime s[80:81]"); a("s_memtime s[82:83]")
        for k in range(8): a(f"s_mov_b32 s{84+2*k}, 0")

def stamp(a, opt, k, wait=False):
    if opt.get("stamps"):
        a(f"s_memtime s[{84+2*k}:{85+2*k}]")
        if wait: a("s_waitcnt lgkmcnt(0)")

def stamp_end(a, opt, tag):
    if not opt.get("stamps"): return
    a("s_waitcnt vmcnt(0) lgkmcnt(0)")
    a("s_memrealtime s[64:65]"); a("s_memtime s[66:67]")
    a("s_waitcnt lgkmcnt(0)")
    srd(a, RAUX, PWS, 1 << 20, STAMP_OFF)
    a("s_lshl_b32 s68, s2, 3"); a("s_add_u32 s68, s68, s3"); a("s_lshl_b32 s68, s68, 6")
    a("s_getreg_b32 s69, hwreg(HW_REG_XCC_ID)")
    a(f"s_mov_b32 s65, {tag}")
    for i, s in enumerate((80, 64, 82, 84, 86, 88, 90, 92, 94, 96, 98, 66, 69, 65, 65, 65)):
        a(f"v_mov_b32 v{8+i}, s{s}")
    a("v_mov_b32 v6, s68")
    a("s_mov_b64 exec, 1")
    for k in range(4):
        a(f"buffer_store_dwordx4 v[{8+4*k}:{11+4*k}], v6, {q(RAUX)}, 0 offen offset:{16*k}")
    a("s_waitcnt vmcnt(0)")

_lab = [0]
def newlab(p):
    _lab[0] += 1; return f"{p}_{_lab[0]}"

def tag_check(a, vt, vz):
    L = newlab("TAGL"); D = newlab("TAGD")
    a("s_mov_b32 s64, 0x40000")
    a.label(L)
    a(f"v_readfirstlane_b32 s{TAG}, v{vt}"); a(f"v_readfirstlane_b32 s{TAG+1}, v{vt+1}"); a("s_nop 0")
    a(f"s_cmp_lg_u32 s{TAG}, 0"); a(f"s_cbranch_scc1 {D}")
    a("s_sub_u32 s64, s64, 1"); a("s_cmp_eq_u32 s64, 0"); a(f"s_cbranch_scc1 {D}")
    a("s_sleep 2")
    a(f"global_load_dwordx2 v[{vt}:{vt+1}], v{vz}, s[{PDBG}:{PDBG+1}] sc1"); a("s_waitcnt vmcnt(0)")
    a(f"s_branch {L}")
    a.label(D)

def poll(a, vt, voff, soff, need, first_loaded=False):
    L = newlab("POLL"); C = newlab("POLC"); D = newlab("POLD")
    a("s_mov_b32 s66, 0x40000")
    if first_loaded: a(f"s_branch {C}")
    a.label(L)
    a(f"buffer_load_dwordx2 v[{vt}:{vt+1}], v{voff}, {q(RWS)}, {soff} offen sc1")
    a.label(C)
    a("s_waitcnt vmcnt(0)")
    a(f"v_cmp_eq_u64 vcc, s[{TAG}:{TAG+1}], v[{vt}:{vt+1}]"); a("s_nop 0")
    a(f"s_andn2_b64 s[64:65], {need}, vcc"); a(f"s_cbranch_scc0 {D}")
    a("s_sub_u32 s66, s66, 1"); a("s_cmp_eq_u32 s66, 0"); a(f"s_cbranch_scc1 {D}")
    a("s_sleep 1"); a(f"s_branch {L}")
    a.label(D)

def gen(a, opt):
    kn = NAME + "_kernel"
    a(f".globl {kn}"); a(".p2align 8"); a(f".type {kn},@function"); a.label(kn)
    a("s_cmp_ge_u32 s2, 256"); a("s_cbranch_scc1 K_END")
    a("s_load_dwordx16 s[4:19], s[0:1], 0")
    a("s_load_dwordx4 s[20:23], s[0:1], 64")
    stamp_begin(a, opt)
    a("v_lshrrev_b32 v1, 6, v0"); a("v_and_b32 v0, 63, v0")
    a("v_readfirstlane_b32 s3, v1")
    a("s_and_b32 s64, s2, 7"); a("s_lshr_b32 s65, s2, 3")
    m = opt.get("map", "Y")
    if m == "Z":
        a(f"s_lshr_b32 {sB}, s64, 1"); a(f"s_lshl_b32 {sB}, {sB}, 2"); a("s_and_b32 s66, s65, 3"); a(f"s_add_u32 {sB}, {sB}, s66")
        a("s_lshr_b32 s66, s65, 2")
        a(f"s_and_b32 {sT}, s66, 1")
        a("s_and_b32 s67, s64, 1"); a(f"s_lshl_b32 {sG}, s67, 2"); a("s_lshr_b32 s68, s66, 1"); a(f"s_add_u32 {sG}, {sG}, s68")
        if opt.get("p2map", 0) == 0:
            a(f"s_lshl_b32 {sU}, {sB}, 1"); a(f"s_add_u32 {sU}, {sU}, s67"); a(f"s_mov_b32 {sCT}, s66")
        else:
            a(f"s_lshl_b32 {sU}, {sB}, 1"); a(f"s_add_u32 {sU}, {sU}, {sT}"); a(f"s_mov_b32 {sCT}, {sG}")
    elif m == "X":
        a(f"s_lshl_b32 {sB}, s64, 1"); a("s_and_b32 s66, s65, 1"); a(f"s_add_u32 {sB}, {sB}, s66")
        a("s_lshr_b32 s66, s65, 1")
        a(f"s_and_b32 {sT}, s66, 1"); a(f"s_lshr_b32 {sG}, s66, 1")
        a(f"s_lshl_b32 {sU}, {sB}, 1"); a(f"s_add_u32 {sU}, {sU}, {sT}"); a(f"s_mov_b32 {sCT}, {sG}")
    elif m == "Y":
        a(f"s_lshr_b32 {sB}, s64, 2"); a(f"s_lshl_b32 {sB}, {sB}, 3"); a("s_and_b32 s66, s65, 7"); a(f"s_add_u32 {sB}, {sB}, s66")
        a("s_lshr_b32 s66, s65, 3")
        a(f"s_and_b32 {sT}, s66, 1")
        a("s_and_b32 s67, s64, 3"); a(f"s_lshl_b32 {sG}, s67, 1"); a("s_lshr_b32 s68, s66, 1"); a(f"s_add_u32 {sG}, {sG}, s68")
        a("s_and_b32 s68, s64, 1"); a(f"s_lshl_b32 {sU}, {sB}, 1"); a(f"s_add_u32 {sU}, {sU}, s68")
        a("s_and_b32 s68, s64, 2"); a("s_lshl_b32 s68, s68, 1"); a(f"s_add_u32 {sCT}, s68, s66")
    a(f"s_and_b32 {sW}, s3, 3")
    a("s_cmp_ge_u32 s3, 4"); a("s_cbranch_scc1 K_LOADER")
    a(f"s_cmp_eq_u32 {sT}, 0"); a("s_cbranch_scc1 K_ATTN")
    gen_ffn(a, opt)
    gen_attn(a, opt)
    gen_loader(a, opt)
    a.label("K_END"); a("s_endpgm")
    a.label("K_CODE_END")

def compute_common_setup(a, opt):
    L = newlab("CS")
    a("v_mov_b32 v1, 0")
    a("s_or_b32 s64, s2, s3"); a("s_cmp_lg_u32 s64, 0"); a(f"s_cbranch_scc1 {L}")
    a("s_memrealtime s[64:65]"); a("s_waitcnt lgkmcnt(0)")
    a("s_or_b32 s64, s64, 1"); a("s_xor_b32 s65, s65, 0x5bd1e995")
    a("v_mov_b32 v10, s64"); a("v_mov_b32 v11, s65")
    a("s_mov_b64 exec, 1")
    a(f"global_store_dwordx2 v1, v[10:11], s[{PDBG}:{PDBG+1}] sc1")
    a("s_mov_b64 exec, -1")
    a.label(L)
    if opt.get("cpf", 1):
        L = newlab("CS")
        a("s_cmp_ge_u32 s2, 8"); a(f"s_cbranch_scc1 {L}"); a("s_cmp_lg_u32 s3, 1"); a(f"s_cbranch_scc1 {L}")
        a("s_getpc_b64 s[64:65]")
        G = newlab("GP"); a.label(G)
        a(f"s_sub_u32 s64, s64, {G}-{NAME}_kernel"); a("s_subb_u32 s65, s65, 0")
        a("v_lshlrev_b32 v10, 7, v0")
        a(f"s_mov_b32 s66, K_CODE_END-{NAME}_kernel-4")
        for r in range(opt.get("cpfn", 4)):
            a("v_min_u32 v11, s66, v10"); a("global_load_dword v12, v11, s[64:65]"); a("v_add_u32 v10, 8192, v10")
        a.label(L)
    if opt.get("gt", 0):
        a(f"s_cmp_eq_u32 {sW}, 1"); a(f"s_cselect_b32 s{RR}, s{PWQKV}, s{PX}"); a(f"s_cselect_b32 s{RR+1}, s{PWQKV+1}, s{PX+1}"); csel(a, "s64", 48*128, 64*128)
        a(f"s_cmp_eq_u32 {sW}, 2"); a(f"s_cselect_b32 s{RR}, s{PW1}, s{RR}"); a(f"s_cselect_b32 s{RR+1}, s{PW1+1}, s{RR+1}"); a(f"s_cselect_b32 s64, {56*128}, s64")
        a(f"s_cmp_eq_u32 {sW}, 3"); a(f"s_cselect_b32 s{RR}, s{PW2}, s{RR}"); a(f"s_cselect_b32 s{RR+1}, s{PW2+1}, s{RR+1}"); a(f"s_cselect_b32 s64, {56*128}, s64")
        a("s_mul_i32 s65, s64, s2"); a(f"s_add_u32 s{RR+2}, s65, s64"); a(f"s_mov_b32 s{RR+3}, 0x20000")
        a("v_lshlrev_b32 v13, 7, v0")
        Lg = newlab("GT")
        if opt["gt"] == 2: a(f"s_cmp_lg_u32 {sW}, 3"); a(f"s_cbranch_scc1 {Lg}")
        a(f"buffer_load_dword v12, v13, {q(RR)}, s65 offen")
        a(f"s_cmp_lg_u32 {sW}, 3"); a(f"s_cbranch_scc1 {Lg}")
        a(f"s_mov_b32 s{RR}, s{PWO}"); a(f"s_mov_b32 s{RR+1}, s{PWO+1}"); a("s_lshl_b32 s65, s2, 11"); a(f"s_add_u32 s{RR+2}, s65, 2048")
        a(f"buffer_load_dword v12, v13, {q(RR)}, s65 offen")
        a.label(Lg)
    srd(a, RWS, PWS, WS_USED)
    if opt.get("tlb", 0):
        Lt = newlab("TLB")
        a(f"s_cmp_lg_u32 {sW}, 2"); a(f"s_cbranch_scc1 {Lt}")
        a("v_lshlrev_b32 v13, 21, v0"); a("s_mov_b64 exec, 0x7f")
        a(f"buffer_load_dword v12, v13, {q(RWS)}, 0 offen")
        a("s_mov_b64 exec, 1")
        for p in (PW2, PWO, POUT, PGATE, PDBG):
            a(f"global_load_dword v12, v1, s[{p}:{p+1}]")
        a("s_mov_b64 exec, -1")
        a.label(Lt)
    a(f"s_lshl_b32 s78, {sB}, 4"); a(f"s_lshl_b32 s64, {sT}, 3"); a("s_add_u32 s78, s78, s64"); a(f"s_add_u32 s78, s78, {sG}")
    a(f"s_mul_i32 s78, s78, {FSTR}"); a(f"s_add_u32 s78, s78, {FA_OFF}")

def compute_publish(a, opt, vt):
    L = newlab("NOPUB")
    a("s_waitcnt vmcnt(0)")
    stamp(a, opt, 6)
    a("s_mov_b64 exec, 1")
    a(f"v_mov_b32 v12, {TOP-4096}"); a("v_mov_b32 v13, 1")
    a("ds_add_rtn_u32 v13, v12, v13"); a("s_waitcnt lgkmcnt(0)")
    a("v_readfirstlane_b32 s64, v13"); a("s_nop 0")
    a("s_cmp_lg_u32 s64, 3"); a(f"s_cbranch_scc1 {L}")
    tag_check(a, vt, 1)
    a(f"buffer_store_dwordx2 v[{vt}:{vt+1}], v1, {q(RWS)}, s78 offen sc1")
    a.label(L)

def mainloop(a, opt, pre, addr_regs, reads, mfmas):
    a("s_mov_b32 s70, 1"); a("s_mov_b32 s72, 0"); a(f"s_mov_b32 s73, {(-SLOT) & 0xffffffff}"); a(f"s_mov_b32 s79, {2*SLOT}")
    for r in addr_regs: a(f"v_add_u32 v{r}, {slot_of(0)}, v{r}")
    if opt.get("prio", 1) == 1: a("s_setprio 1")
    stamp(a, opt, 0)
    a("s_barrier")
    stamp(a, opt, 1)
    for r in reads(0, 0): a(r)
    a(".p2align 3")
    a.label(pre + "_LOOP")
    a("s_waitcnt lgkmcnt(0)")
    a("s_add_u32 s70, s70, 1")
    last = opt.get("last", 6)
    sal = ["s_cmp_eq_u32 s70, 3\ns_cselect_b32 s71, s79, s73", "s_cselect_b32 s70, 0, s70\ns_add_u32 s72, s72, 1", "s_cmp_eq_u32 s72, 8\ns_nop 0"]
    mf = mfmas(0)
    spread(a, mf[:-last], reads(1, 1), 0)
    interleave(a, mf[-last:], sal)
    a("s_waitcnt lgkmcnt(0)")
    a("s_barrier")
    adv = [f"v_add_u32 v{r}, s71, v{r}" for r in addr_regs]
    if len(adv) % 2: adv.append("s_nop 0")
    adv = [adv[i] + "\n" + adv[i+1] for i in range(0, len(adv), 2)]
    mf = mfmas(1)
    interleave(a, mf[:len(adv)], adv)
    spread(a, mf[len(adv):], reads(0, 0), opt.get("last2", 2))
    a(f"s_cbranch_scc0 {pre}_LOOP")
    a("s_waitcnt lgkmcnt(0)")
    if opt.get("prio", 1) == 2: a("s_setprio 3")
    stamp(a, opt, 2)

def gen_ffn(a, opt):
    ACC = 16; FR = 128
    def acc(t, n): return ACC + 4 * (t * 7 + n)
    def xf(s, t): return FR + 44 * s + 4 * t
    def wf(s, n): return FR + 44 * s + 16 + 4 * n
    XA = [2, 3]; WA = [4, 5, 6, 7]; SA = 8
    a(f"s_lshr_b32 s68, {sW}, 1")
    a(f"s_and_b32 s69, {sW}, 1")
    a("v_and_b32 v10, 15, v0"); a("v_lshrrev_b32 v11, 4, v0")
    a("v_lshrrev_b32 v12, 1, v10"); a("v_xor_b32 v12, v12, v11"); a("v_lshlrev_b32 v12, 4, v12")
    a("v_lshlrev_b32 v13, 7, v10"); a("v_add_u32 v12, v12, v13")
    a("s_lshl_b32 s64, s68, 13"); a(f"v_add_u32 v{XA[0]}, s64, v12"); a(f"v_xor_b32 v{XA[1]}, 64, v{XA[0]}")
    a("v_bfe_u32 v12, v0, 2, 2")
    a("v_lshlrev_b32 v13, 3, v11"); a("v_add_u32 v13, v13, v12")
    a("v_lshrrev_b32 v14, 1, v12"); a("v_and_b32 v15, 1, v11"); a("v_lshlrev_b32 v9, 1, v15"); a("v_or_b32 v14, v14, v9")
    a("v_and_b32 v9, 3, v0"); a("v_lshlrev_b32 v9, 3, v9")
    a("v_lshlrev_b32 v12, 7, v13"); a("v_add_u32 v12, v12, v9")
    for j in range(4):
        a("s_mul_i32 s64, s69, 6"); a(f"s_add_u32 s64, s64, {j}")
        a("s_and_b32 s65, s64, 3"); a("s_lshr_b32 s64, s64, 2"); a("s_lshl_b32 s64, s64, 13"); a(f"s_add_u32 s64, s64, {WOFF}")
        a(f"v_xor_b32 v{WA[j]}, s65, v14"); a(f"v_lshlrev_b32 v{WA[j]}, 5, v{WA[j]}"); a(f"v_add_u32 v{WA[j]}, v{WA[j]}, v12"); a(f"v_add_u32 v{WA[j]}, s64, v{WA[j]}")
    a(f"v_xor_b32 v{SA}, s69, v15"); a(f"v_lshlrev_b32 v{SA}, 5, v{SA}"); a(f"v_add_u32 v{SA}, v{SA}, v9")
    a("v_lshlrev_b32 v12, 6, v13"); a(f"v_add_u32 v{SA}, v{SA}, v12"); a(f"v_add_u32 v{SA}, {EOFF}, v{SA}")
    a(f"s_lshl_b32 s64, {sB}, 1"); a("s_add_u32 s64, s64, s68"); a("s_mul_i32 s64, s64, 72")
    a(f"s_mul_i32 s65, {sG}, 7"); a("s_add_u32 s64, s64, s65"); a("s_add_u32 s64, s64, 16")
    a(f"s_and_b32 s65, {sG}, 1")
    a("s_mul_i32 s66, s69, 3"); a("s_add_u32 s66, s66, s65"); a("s_add_u32 s66, s66, s64"); a("s_lshl_b32 s74, s66, 12")
    a("s_add_u32 s75, s74, 4096"); a("s_add_u32 s76, s74, 8192")
    a("s_cmp_eq_u32 s65, 0"); a("s_cselect_b32 s66, 6, 0"); a("s_add_u32 s66, s66, s64"); a("s_lshl_b32 s77, s66, 12")
    a("s_lshl_b32 s65, s69, 11"); a("s_add_u32 s77, s77, s65")
    a("v_lshlrev_b32 v9, 4, v0")
    a("s_waitcnt lgkmcnt(0)")
    compute_common_setup(a, opt)
    for i in range(112): a(f"v_mov_b32 v{ACC+i}, 0")
    def reads(kk, s):
        xs = [f"ds_read_b128 {vr(xf(s,t),4)}, v{XA[kk]} offset:{t*2048}" for t in range(4)]
        ws = []
        for n in range(6):
            for h in range(2):
                ws.append(f"ds_read_b64_tr_b16 {vr(wf(s,n)+2*h,2)}, v{WA[n&3]} offset:{(n>>2)*8192 + kk*4096 + h*512}")
        for h in range(2):
            ws.append(f"ds_read_b64_tr_b16 {vr(wf(s,6)+2*h,2)}, v{SA} offset:{kk*2048 + h*256}")
        return mix(xs, ws)
    def mfmas(s):
        return [f"v_mfma_f32_16x16x32_bf16 {vr(acc(t,n),4)}, {vr(wf(s,n),4)}, {vr(xf(s,t),4)}, {vr(acc(t,n),4)}" for n in range(7) for t in range(4)]
    mainloop(a, opt, "KF", XA + WA + [SA], reads, mfmas)
    a(f"global_load_dwordx2 v[10:11], v1, s[{PDBG}:{PDBG+1}] sc1")
    T = FR; k = 0
    for n in range(7):
        for tp in range(2):
            d = T + 4 * (k % 8); k += 1
            for hh in range(2):
                sx = acc(2 * tp + hh, n)
                a(f"v_cvt_pk_bf16_f32 v{d+2*hh}, v{sx}, v{sx+1}"); a(f"v_cvt_pk_bf16_f32 v{d+2*hh+1}, v{sx+2}, v{sx+3}")
            for i in range(4): a(f"v_pk_max_i16 v{d+i}, v{d+i}, 0")
            off = ((n & 1) * 2048 if n < 6 else 0) + tp * 1024
            a(f"buffer_store_dwordx4 {vr(d,4)}, v9, {q(RWS)}, s{74+(n>>1)} offen offset:{off} sc1")
    stamp(a, opt, 3)
    compute_publish(a, opt, 10)
    stamp(a, opt, 5)
    stamp_end(a, opt, 1)
    a("s_endpgm")

def gen_attn(a, opt):
    a.label("K_ATTN")
    ACC = 36; FR = 140
    def Q(t): return ACC + 4 * t
    def K(t): return ACC + 32 + 4 * t
    def V(t): return ACC + 68 + 4 * t
    def xf(s, t): return FR + 48 * s + 4 * t
    def wf(s, p): return FR + 48 * s + 36 + 4 * p
    XA = [2, 3]; WA = 4
    BC, BP, BP0, BP4, MC = 16, 20, 24, 28, 32
    a("v_and_b32 v10, 15, v0"); a("v_lshrrev_b32 v11, 4, v0")
    a("v_lshrrev_b32 v12, 1, v10"); a("v_xor_b32 v12, v12, v11"); a("v_lshlrev_b32 v12, 4, v12")
    a("v_lshlrev_b32 v13, 7, v10"); a(f"v_add_u32 v{XA[0]}, v12, v13"); a(f"v_xor_b32 v{XA[1]}, 64, v{XA[0]}")
    a("v_bfe_u32 v12, v0, 2, 2")
    a("v_lshlrev_b32 v13, 3, v11"); a("v_add_u32 v13, v13, v12")
    a("v_lshrrev_b32 v14, 1, v12"); a("v_and_b32 v15, 1, v11"); a("v_lshlrev_b32 v9, 1, v15"); a("v_or_b32 v14, v14, v9")
    a("v_and_b32 v9, 3, v0"); a("v_lshlrev_b32 v9, 3, v9")
    a("v_lshlrev_b32 v12, 7, v13"); a("v_add_u32 v12, v12, v9")
    a(f"v_xor_b32 v{WA}, {sW}, v14"); a(f"v_lshlrev_b32 v{WA}, 5, v{WA}"); a(f"v_add_u32 v{WA}, v{WA}, v12"); a(f"v_add_u32 v{WA}, {WOFF}, v{WA}")
    a("v_lshlrev_b32 v5, 2, v11"); a("v_sub_u32 v6, v5, v10")
    a(f"s_mul_i32 s64, {sB}, 144"); a(f"s_lshl_b32 s65, {sG}, 1"); a("s_add_u32 s64, s64, s65"); a(f"s_lshr_b32 s65, {sW}, 1"); a("s_add_u32 s64, s64, s65")
    a("s_lshl_b32 s74, s64, 12"); a(f"s_and_b32 s65, {sW}, 1"); a("s_lshl_b32 s65, s65, 11"); a("s_add_u32 s74, s74, s65")
    a(f"s_add_u32 s75, s74, {72*4096}")
    a(f"s_mov_b32 s76, 0x{f32bits(0.25*LOG2E):x}")
    a("v_lshlrev_b32 v9, 4, v0")
    a("s_waitcnt lgkmcnt(0)")
    compute_common_setup(a, opt)
    a(f"v_mov_b32 v7, 0x{BIG:x}")
    a(f"s_cmp_eq_u32 {sB}, 0"); a(f"s_cselect_b32 s64, 0x{BIG:x}, 0"); a("v_mov_b32 v8, s64")
    a(f"v_mov_b32 v{MC}, 0"); a(f"v_mov_b32 v{MC+1}, 0")
    for r in range(4):
        a(f"v_add_u32 v14, {r+7}, v6")
        a("v_cmp_gt_u32 vcc, 8, v14")
        a(f"v_mov_b32 v15, {'0xffff' if r % 2 == 0 else '0xffff0000'}")
        a(f"v_add_u32 v14, {r}, v6")
        a(f"v_cndmask_b32 v{BC+r}, v7, v1, vcc")
        a("v_cndmask_b32 v15, v1, v15, vcc")
        a(f"v_or_b32 v{MC+(r>>1)}, v{MC+(r>>1)}, v15")
        a("v_cmp_le_i32 vcc, 9, v14")
        a(f"v_add_u32 v15, {r}, v5")
        a("v_cmp_gt_u32 s[64:65], 8, v15")
        a(f"v_cndmask_b32 v{BP+r}, v7, v1, vcc")
        a(f"v_cndmask_b32 v{BP0+r}, v7, v8, vcc")
        a("v_cmp_le_i32 vcc, 1, v14"); a("s_nop 0")
        a("s_and_b64 vcc, vcc, s[64:65]")
        a(f"v_cndmask_b32 v{BP4+r}, v7, v8, vcc")
    for i in range(104): a(f"v_mov_b32 v{ACC+i}, 0")
    def reads(kk, s):
        ws = []
        for p in range(3):
            for h in range(2):
                ws.append(f"ds_read_b64_tr_b16 {vr(wf(s,p)+2*h,2)}, v{WA} offset:{p*8192 + kk*4096 + h*512}")
        xs = [f"ds_read_b128 {vr(xf(s,t),4)}, v{XA[kk]} offset:{t*2048 if t < 8 else EOFF}" for t in range(9)]
        return mix(xs, ws)
    def mfmas(s):
        r = []
        for t in range(9):
            if t < 8: r.append(f"v_mfma_f32_16x16x32_bf16 {vr(Q(t),4)}, {vr(wf(s,0),4)}, {vr(xf(s,t),4)}, {vr(Q(t),4)}")
            r.append(f"v_mfma_f32_16x16x32_bf16 {vr(K(t),4)}, {vr(wf(s,1),4)}, {vr(xf(s,t),4)}, {vr(K(t),4)}")
            r.append(f"v_mfma_f32_16x16x32_bf16 {vr(V(t),4)}, {vr(xf(s,t),4)}, {vr(wf(s,2),4)}, {vr(V(t),4)}")
        return r
    mainloop(a, opt, "KA", XA + [WA], reads, mfmas)
    a(f"global_load_dwordx2 v[10:11], v1, s[{PDBG}:{PDBG+1}] sc1")
    QB = FR; KB = FR + 16; VB = FR + 34; ONES = FR + 54; PB = FR + 58
    M = FR + 90; TM = FR + 98
    def cvt(d, s): a(f"v_cvt_pk_bf16_f32 v{d}, v{s}, v{s+1}"); a(f"v_cvt_pk_bf16_f32 v{d+1}, v{s+2}, v{s+3}")
    for t in range(8): cvt(QB + 2 * t, Q(t))
    for t in range(9): cvt(KB + 2 * t, K(t))
    def vslot(t): return (1 + t) if t < 4 else (2 + t)
    smf = []
    for t in range(8):
        prev = 8 if t in (0, 4) else t - 1
        bp = BP0 if t == 0 else (BP4 if t == 4 else BP)
        smf.append(f"v_mfma_f32_16x16x16_bf16 {vr(Q(t),4)}, {vr(KB+2*t,2)}, {vr(QB+2*t,2)}, {vr(BC,4)}")
        smf.append(f"v_mfma_f32_16x16x16_bf16 {vr(K(t),4)}, {vr(KB+2*prev,2)}, {vr(QB+2*t,2)}, {vr(bp,4)}")
    vc = []
    for t in range(8):
        d = VB + 2 * vslot(t); s = V(t)
        vc += [f"v_cvt_pk_bf16_f32 v{d}, v{s}, v{s+1}", f"v_cvt_pk_bf16_f32 v{d+1}, v{s+2}, v{s+3}"]
    for d in (VB, VB + 10):
        s = V(8)
        vc += [f"v_cvt_pk_bf16_f32 v{d}, v{s}, v{s+1}", f"v_cvt_pk_bf16_f32 v{d+1}, v{s+2}, v{s+3}"]
    vc += [f"v_mov_b32 v{ONES+i}, 0x3f803f80" for i in range(4)]
    a.nop(2)
    interleave(a, smf, vc, per=2)
    for t in range(8):
        if t == 6: a.nop(4)
        for r in range(4): a(f"v_max_f32 v{Q(t)+r}, v{Q(t)+r}, v{K(t)+r}")
    for t in range(8): a(f"v_max3_f32 v{M+t}, v{Q(t)}, v{Q(t)+1}, v{Q(t)+2}")
    for t in range(8): a(f"v_max_f32 v{M+t}, v{M+t}, v{Q(t)+3}")
    for sw in ("v_permlane32_swap_b32", "v_permlane16_swap_b32"):
        for t in range(8): a(f"v_mov_b32 v{TM+t}, v{M+t}")
        for t in range(8): a(f"{sw} v{M+t}, v{TM+t}")
        for t in range(8): a(f"v_max_f32 v{M+t}, v{M+t}, v{TM+t}")
    for t in range(8): a(f"v_mul_f32 v{M+t}, s76, v{M+t}")
    for t in range(8):
        for r in range(4): a(f"v_fma_f32 v{Q(t)+r}, v{Q(t)+r}, s76, -v{M+t}")
    for t in range(8):
        for r in range(4): a(f"v_exp_f32 v{Q(t)+r}, v{Q(t)+r}")
    for t in range(8): cvt(PB + 4 * t + 2, Q(t))
    for t in range(8):
        for h in range(2): a(f"v_bfi_b32 v{PB+4*t+h}, v{MC+h}, 0, v{PB+4*t+2+h}")
        for h in range(2): a(f"v_and_b32 v{PB+4*t+2+h}, v{MC+h}, v{PB+4*t+2+h}")
    for t in range(8):
        a(f"v_mfma_f32_16x16x32_bf16 {vr(K(t),4)}, {vr(ONES,4)}, {vr(PB+4*t,4)}, 0")
        a(f"v_mfma_f32_16x16x32_bf16 {vr(Q(t),4)}, {vr(VB+2*(vslot(t)-1),4)}, {vr(PB+4*t,4)}, 0")
    a.nop(1)
    for t in range(8): a(f"v_rcp_f32 v{M+t}, v{K(t)}")
    stamp(a, opt, 3)
    for t in range(8):
        for r in range(4): a(f"v_mul_f32 v{Q(t)+r}, v{Q(t)+r}, v{M+t}")
        cvt(QB + 2 * t, Q(t))
        if t & 1: a(f"buffer_store_dwordx4 {vr(QB+2*t-2,4)}, v9, {q(RWS)}, s{74+(t>>2)} offen offset:{((t>>1)&1)*1024} sc1")
    stamp(a, opt, 4)
    compute_publish(a, opt, 10)
    stamp(a, opt, 5)
    stamp_end(a, opt, 2)
    a("s_endpgm")

def gen_loader(a, opt):
    a.label("K_LOADER")
    if opt.get("prio", 1) == 2: a("s_setprio 2")
    VL16, VX0, VX1, VW, VE, VR, VZ = 1, 2, 3, 4, 5, 6, 7
    a("v_lshrrev_b32 v10, 3, v0"); a("v_and_b32 v11, 7, v0"); a("v_lshrrev_b32 v12, 4, v0")
    a(f"s_and_b32 s68, {sW}, 1"); a(f"s_lshr_b32 s69, {sW}, 1")
    a(f"s_lshl_b32 s64, {sB}, 7"); a("s_lshl_b32 s65, s68, 6"); a("s_add_u32 s64, s64, s65"); a("s_add_u32 s64, s64, s69"); a("s_lshl_b32 s64, s64, 10")
    a("v_xor_b32 v13, v11, v12"); a("v_lshlrev_b32 v13, 4, v13")
    a("v_lshlrev_b32 v14, 11, v10"); a("v_add_u32 v14, v14, v13")
    a(f"v_add_u32 v{VX0}, s64, v14"); a(f"v_xor_b32 v{VX1}, 64, v{VX0}")
    a(f"s_cmp_eq_u32 {sT}, 0")
    csel(a, "s74", 3072, 3584); csel(a, "s75", 1024, 128)
    csel(a, f"s{RW+2}", 512*3072, 512*3584); csel(a, f"s{RE+2}", 2048*1024, 512*3584)
    a(f"s_mul_i32 s66, {sG}, 448"); a(f"s_and_b32 s67, {sG}, 1"); a("s_lshl_b32 s64, s67, 6"); a("s_add_u32 s64, s64, s66")
    a(f"s_lshl_b32 s65, {sG}, 7")
    a(f"s_cmp_eq_u32 {sT}, 0"); a("s_cselect_b32 s64, s65, s64")
    a("v_and_b32 v15, 1, v12"); a("v_lshlrev_b32 v15, 1, v15"); a("v_xor_b32 v15, v15, v11"); a("s_lshl_b32 s65, s68, 2"); a("v_xor_b32 v15, s65, v15"); a("v_lshlrev_b32 v15, 4, v15")
    a(f"s_lshl_b32 s65, {sW}, 3"); a(f"v_add_u32 v{VW}, s65, v10"); a(f"v_mul_lo_u32 v{VW}, v{VW}, s74"); a(f"v_add_u32 v{VW}, v{VW}, v15"); a(f"v_add_u32 v{VW}, s64, v{VW}")
    a(f"s_cmp_eq_u32 {sT}, 0"); a("s_cbranch_scc1 KL_EA")
    a("s_cmp_eq_u32 s67, 0"); a("s_cselect_b32 s65, 384, 0"); a("s_add_u32 s66, s66, s65")
    a("v_lshrrev_b32 v15, 2, v0"); a(f"s_lshl_b32 s65, {sW}, 4"); a("v_add_u32 v15, s65, v15"); a(f"v_mul_u32_u24 v{VE}, 3584, v15")
    a("v_lshrrev_b32 v15, 5, v0"); a("v_lshlrev_b32 v15, 1, v15"); a("v_and_b32 v13, 3, v0"); a("v_xor_b32 v15, v15, v13"); a("v_lshlrev_b32 v15, 4, v15")
    a(f"v_add_u32 v{VE}, v{VE}, v15"); a(f"v_add_u32 v{VE}, s66, v{VE}")
    a(f"s_lshl_b32 s72, {sW}, 10"); a(f"s_mov_b32 s76, {64*3584}")
    a("s_branch KL_ED")
    a.label("KL_EA")
    a(f"s_lshl_b32 s64, {sB}, 7"); a(f"s_cmp_eq_u32 {sB}, 0"); a("s_cselect_b32 s65, 0, 16"); a(f"s_cselect_b32 s{RE+2}, 0, s{RE+2}"); a("s_sub_u32 s64, s64, s65")
    a("s_add_u32 s64, s64, 1"); a("s_sub_u32 s64, s64, s68"); a("s_lshl_b32 s64, s64, 10")
    a("s_lshl_b32 s65, s68, 6"); a(f"v_xor_b32 v{VE}, s65, v14"); a(f"v_add_u32 v{VE}, s64, v{VE}")
    a("s_lshl_b32 s72, s68, 10"); a("s_mov_b32 s76, 128")
    a.label("KL_ED")
    a(f"s_add_u32 s72, s72, {EOFF}")
    a(f"s_lshl_b32 s70, {sW}, 12")
    a(f"s_lshl_b32 s71, {sW}, 10"); a(f"s_add_u32 s71, s71, {WOFF}")
    a("s_lshl_b32 s73, s74, 6"); a("s_lshl_b32 s74, s74, 5")
    rot = opt.get("rot", 0)
    if rot == 0: a("s_mov_b32 s77, 0")
    elif rot == 1: a(f"s_add_u32 s77, {sB}, {sG}"); a("s_and_b32 s77, s77, 7")
    a(f"s_mov_b32 s{RX+2}, {2048*1024}"); a(f"s_mov_b32 s{RX+3}, 0x20000"); a(f"s_mov_b32 s{RW+3}, 0x20000"); a(f"s_mov_b32 s{RE+3}, 0x20000")
    a(f"s_cmp_eq_u32 {sT}, 0")
    a("s_waitcnt lgkmcnt(0)")
    a(f"s_mov_b32 s{RX}, s{PX}"); a(f"s_mov_b32 s{RX+1}, s{PX+1}")
    a(f"s_cselect_b32 s{RW}, s{PWQKV}, s{PW1}"); a(f"s_cselect_b32 s{RW+1}, s{PWQKV+1}, s{PW1+1}")
    a(f"s_cselect_b32 s{RE}, s{PX}, s{PW1}"); a(f"s_cselect_b32 s{RE+1}, s{PX+1}, s{PW1+1}")
    def stage(s):
        base = slot_of(s)
        a("s_lshl_b32 s64, s77, 7"); a("s_mul_i32 s65, s77, s73"); a("s_mul_i32 s66, s77, s76")
        for m in range(4):
            a(f"s_add_u32 m0, s70, {base + XOFF + m*1024}")
            a(f"s_add_u32 s67, s64, {m*16384}")
            a(f"buffer_load_dwordx4 v{VX0 if m % 2 == 0 else VX1}, {q(RX)}, s67 offen lds")
        for jj in range(2):
            for P in range(3):
                a(f"s_add_u32 m0, s71, {base + P*8192 + jj*4096}")
                if P == 0:
                    if jj == 0: a("s_mov_b32 s67, s65")
                    else: a("s_add_u32 s67, s65, s74")
                else: a("s_add_u32 s67, s67, s75")
                a(f"buffer_load_dwordx4 v{VW}, {q(RW)}, s67 offen lds")
        a(f"s_add_u32 m0, s72, {base}")
        a("s_add_u32 s77, s77, 1")
        a(f"buffer_load_dwordx4 v{VE}, {q(RE)}, s66 offen lds")
        a("s_and_b32 s77, s77, 7")
    def bar(n, k):
        a(f"s_waitcnt vmcnt({n})"); a("s_barrier")
        if opt.get("lstamp"): a(f"s_memtime s[{84+2*k}:{85+2*k}]")
    if opt.get("lstamp"):
        opt = dict(opt); so = opt.copy(); opt["stamps"] = 0
    else: so = opt
    stage(0); stage(1)
    a(f"v_lshlrev_b32 v{VL16}, 4, v0"); a(f"v_mov_b32 v{VZ}, 0")
    srd(a, RWS, PWS, WS_USED); srd(a, RAUX, PGATE, 1024)
    a(f"s_lshl_b32 s64, {sB}, 7"); a(f"s_and_b32 s65, {sG}, 3"); a("s_lshl_b32 s65, s65, 5"); a("s_add_u32 s65, s65, s64")
    a(f"s_lshl_b32 s66, {sT}, 4"); a("s_add_u32 s65, s65, s66"); a(f"s_lshl_b32 s66, {sW}, 2"); a("s_add_u32 s65, s65, s66")
    a(f"s_lshr_b32 s66, {sG}, 2"); a("s_add_u32 s65, s65, s66"); a("s_lshl_b32 s68, s65, 10")
    a(f"s_lshl_b32 s66, {sG}, 4"); a("s_add_u32 s64, s64, s66"); a(f"s_lshl_b32 s66, {sT}, 3"); a("s_add_u32 s64, s64, s66"); a(f"s_lshl_b32 s66, {sW}, 1"); a("s_add_u32 s64, s64, s66")
    a("s_lshl_b32 s78, s64, 3"); a(f"s_add_u32 s78, s78, {G_OFF}")
    a("v_lshlrev_b32 v15, 1, v12"); a("v_xor_b32 v15, v15, v11"); a("v_lshlrev_b32 v15, 4, v15")
    a(f"v_lshlrev_b32 v{VR}, 10, v10"); a(f"v_add_u32 v{VR}, v{VR}, v15")
    a(f"s_mul_i32 s100, {sW}, 19"); a("s_sub_u32 s100, s100, 3"); a(f"s_cmp_eq_u32 {sW}, 0"); a("s_cselect_b32 s100, 0, s100"); a("s_cselect_b32 s101, 16, 19")
    a(f"s_cmp_eq_u32 {sW}, 3"); a("s_cselect_b32 s101, 18, s101"); a("s_lshl_b32 s101, s101, 12")
    a(f"s_mul_i32 s64, {sU}, 72"); a("s_add_u32 s64, s64, s100"); a("s_lshl_b32 s64, s64, 12")
    srd(a, RA, PWS, "s101", "s64")
    a("s_sub_u32 s64, s100, 16"); a("s_lshl_b32 s64, s64, 15")
    a(f"s_cmp_eq_u32 {sW}, 0"); a("s_cselect_b32 s64, 0, s64")
    a(f"s_cselect_b32 s66, s{PWO}, s{PW2}"); a(f"s_cselect_b32 s67, s{PWO+1}, s{PW2+1}")
    a(f"s_lshl_b32 s65, {sCT}, 7"); a("s_add_u32 s64, s64, s65")
    a(f"s_add_u32 s{RB}, s66, s64"); a(f"s_addc_u32 s{RB+1}, s67, 0")
    a(f"s_lshl_b32 s{RB+2}, s101, 3"); a(f"s_sub_u32 s{RB+2}, s{RB+2}, s65"); a(f"s_mov_b32 s{RB+3}, 0x20000")
    a(f"s_lshl_b32 s79, {sW}, 12"); a(f"s_sub_u32 s79, {TOP-4096}, s79")
    a(f"s_cmp_eq_u32 {sW}, 0"); a(f"s_cselect_b32 s79, {TOP-4096-16384}, s79")
    a(f"v_mov_b32 v13, {TOP-4096}"); a(f"ds_write_b32 v13, v{VZ}"); a("s_waitcnt lgkmcnt(0)")
    X = 3
    NT = 0
    wt = opt.get("wt", 0)
    def wtouch():
        La = newlab("WT"); Lb = newlab("WT")
        a(f"s_cmp_ge_u32 {sW}, 2"); a(f"s_cbranch_scc1 {La}")
        a(f"s_mul_i32 s64, {sB}, 24"); a(f"s_mul_i32 s65, {sW}, 12"); a("s_add_u32 s64, s64, s65"); a("s_add_u32 s64, s64, 128")
        a("s_lshr_b32 s65, s74, 5")
        a("v_lshrrev_b32 v13, 2, v0"); a("v_min_u32 v13, 11, v13"); a("v_add_u32 v13, s64, v13"); a("v_mul_lo_u32 v13, v13, s65")
        a("v_and_b32 v14, 3, v0")
        a(f"s_cmp_eq_u32 {sT}, 0"); a("s_cselect_b32 s64, 2, 3"); a("v_min_u32 v14, s64, v14"); a("v_mul_lo_u32 v14, v14, s75"); a("v_add_u32 v13, v13, v14")
        a(f"s_mul_i32 s64, {sG}, 448"); a(f"s_lshl_b32 s65, {sG}, 7"); a(f"s_cmp_eq_u32 {sT}, 0"); a("s_cselect_b32 s64, s65, s64")
        a(f"buffer_load_dword v14, v13, {q(RW)}, s64 offen")
        a(f"s_branch {Lb}")
        a.label(La)
        if wt == 2:
            a(f"buffer_load_dword v14, v{VZ}, {q(RAUX)}, 0 offen")
            a.label(Lb); return
        a(f"s_mul_i32 s64, {sU}, 72"); a(f"s_mul_i32 s65, {sW}, 36"); a("s_add_u32 s64, s64, s65"); a("s_sub_u32 s64, s64, 72")
        a("s_cmp_lt_u32 s64, 512")
        a(f"s_cselect_b32 s{RR}, s{PWO}, s{PW2}"); a(f"s_cselect_b32 s{RR+1}, s{PWO+1}, s{PW2+1}"); csel(a, f"s{RR+2}", 512*1024, 1792*1024); a(f"s_mov_b32 s{RR+3}, 0x20000")
        a("s_cselect_b32 s65, 0, 512"); a("s_sub_u32 s64, s64, s65"); a("s_lshl_b32 s64, s64, 10"); a(f"s_lshl_b32 s65, {sCT}, 7"); a("s_add_u32 s64, s64, s65")
        a("v_min_u32 v13, 35, v0"); a("v_lshlrev_b32 v13, 10, v13")
        a(f"buffer_load_dword v14, v13, {q(RR)}, s64 offen")
        a.label(Lb)
    def xloads():
        a(f"buffer_load_dwordx4 v[16:19], v{VL16}, {q(RX)}, s68 offen")
        a(f"buffer_load_dwordx4 v[20:23], v{VL16}, {q(RX)}, s68 offen offset:2048")
        a(f"buffer_load_dwordx4 v[24:27], v{VL16}, {q(RAUX)}, 0 offen")
    if wt: X = 4
    if opt.get("xearly", 1):
        xloads()
        if wt: wtouch()
        bar(11 + X, 0); stamp(a, opt, 0)
    else:
        bar(11, 0); stamp(a, opt, 0)
        xloads()
        if wt: wtouch()
    a(f"global_load_dwordx2 v[8:9], v{VZ}, s[{PDBG}:{PDBG+1}] sc1")
    stage(2)
    bar(X + 1 + 11, 1)
    stage(3)
    bar(NT + 11, 2)
    stage(4)
    tag_check(a, 8, VZ)
    for k in range(4):
        a(f"v_lshlrev_b32 v{28+2*k}, 16, v{24+k}"); a(f"v_and_b32 v{29+2*k}, 0xffff0000, v{24+k}")
    for row in range(2):
        xb = 16 + 4 * row; P = 36 + 8 * row
        for k in range(4):
            a(f"v_lshlrev_b32 v{P+2*k}, 16, v{xb+k}"); a(f"v_and_b32 v{P+2*k+1}, 0xffff0000, v{xb+k}")
        for i in range(0, 8, 2): a(f"v_pk_mul_f32 {vr(P+i,2)}, {vr(P+i,2)}, {vr(28+i,2)}")
        for k in range(4): a(f"v_cvt_pk_bf16_f32 v{xb+k}, v{P+2*k}, v{P+2*k+1}")
        for k in range(4):
            a(f"v_lshlrev_b32 v{P+2*k}, 16, v{xb+k}"); a(f"v_and_b32 v{P+2*k+1}, 0xffff0000, v{xb+k}")
        a(f"v_pk_add_f32 {vr(P,2)}, {vr(P,2)}, {vr(P+4,2)}"); a(f"v_pk_add_f32 {vr(P+2,2)}, {vr(P+2,2)}, {vr(P+6,2)}")
        a(f"v_pk_add_f32 {vr(P,2)}, {vr(P,2)}, {vr(P+2,2)}")
        a(f"v_add_f32 v{52+row}, v{P}, v{P+1}")
    bar(11, 3)
    stage(5)
    for sh in (8, 4, 2, 1):
        a.nop(1)
        for row in range(2): a(f"v_add_f32_dpp v{52+row}, v{52+row}, v{52+row} row_ror:{sh} row_mask:0xf bank_mask:0xf")
    for sw in ("v_permlane32_swap_b32", "v_permlane16_swap_b32"):
        for row in range(2): a(f"v_mov_b32 v{54+row}, v{52+row}")
        a.nop(2)
        for row in range(2): a(f"{sw} v{52+row}, v{54+row}")
        for row in range(2): a(f"v_add_f32 v{52+row}, v{52+row}, v{54+row}")
    a("v_cvt_pk_bf16_f32 v54, v52, v53")
    a("v_lshlrev_b32 v52, 16, v54"); a("v_and_b32 v53, 0xffff0000, v54")
    for row in range(2): a(f"v_mul_f32 v{52+row}, 0x{f32bits(-LOG2E):x}, v{52+row}")
    for row in range(2): a(f"v_exp_f32 v{52+row}, v{52+row}")
    a.nop(1)
    for row in range(2): a(f"v_add_f32 v{52+row}, 1.0, v{52+row}")
    for row in range(2): a(f"v_rcp_f32 v{52+row}, v{52+row}")
    a.nop(1)
    a("v_cvt_pk_bf16_f32 v54, v52, v53")
    a("v_lshlrev_b32 v52, 16, v54"); a("v_and_b32 v53, 0xffff0000, v54")
    a("v_mov_b32 v54, v8"); a("v_mov_b32 v55, v9")
    a("s_mov_b64 exec, 1")
    a(f"buffer_store_dwordx4 v[52:55], v{VZ}, {q(RWS)}, s78 offen sc1")
    a("s_mov_b64 exec, -1")
    bar(11 + 1, 4)
    stage(6)
    srd(a, RAUX, POUT, 2048 * 1024)
    a(f"s_mul_i32 s68, {sB}, {16*FSTR}"); a(f"s_add_u32 s68, s68, {FA_OFF}")
    def fm(g0, g1): return sum(0x100 << g for g in range(g0, g1 + 1))
    a(f"s_mov_b32 s{RR}, 0x{fm(0,2):x}"); a(f"s_cmp_eq_u32 {sW}, 2"); a(f"s_cselect_b32 s{RR}, 0x{fm(2,5):x}, s{RR}")
    a(f"s_cmp_eq_u32 {sW}, 3"); a(f"s_cselect_b32 s{RR}, 0x{fm(5,7):x}, s{RR}")
    a(f"s_cmp_eq_u32 {sW}, 0"); a(f"s_cselect_b32 s{RR}, 0xff, s{RR}"); a(f"s_mov_b32 s{RR+1}, 0")
    a(f"s_lshl_b32 s69, {sU}, 9"); a(f"s_lshl_b32 s64, {sW}, 7"); a("s_add_u32 s69, s69, s64"); a(f"s_add_u32 s69, s69, {G_OFF}")
    bar(1 + 11, 5)
    stage(7)
    br = opt.get("brot", 1)
    mp = opt.get("map", "Y")
    if br == 0: a("s_mov_b32 s77, 0")
    elif mp == "Z" and opt.get("p2map", 0) == 0: a(f"s_and_b32 s77, {sB}, 3"); a("s_lshl_b32 s77, s77, 14")
    elif mp == "Z": a(f"s_and_b32 s77, {sU}, 7"); a("s_lshl_b32 s77, s77, 13")
    elif mp == "Y": a(f"s_and_b32 s77, {sB}, 7"); a("s_lshl_b32 s77, s77, 13")
    else: a(f"s_and_b32 s77, {sU}, 3"); a("s_lshl_b32 s77, s77, 14")
    a("s_lshl_b32 s76, s77, 3"); a("s_lshl_b32 s75, s101, 3")
    def bdma(i):
        j = i if i < 10 else i - 10
        for k in range(4):
            a(f"s_sub_u32 m0, s79, {16384*j - 1024*k}") if 16384*j - 1024*k >= 0 else a(f"s_add_u32 m0, s79, {1024*k - 16384*j}")
            a("s_nop 0")
            a(f"buffer_load_dwordx4 v{VR}, {q(RB)}, s76 offen lds")
            a("s_add_u32 s76, s76, 8192")
        a("s_cmp_ge_u32 s76, s75"); a("s_cselect_b32 s76, 0, s76")
    bdma(0)
    a("v_lshrrev_b32 v13, 2, v0"); a("v_lshlrev_b32 v13, 7, v13"); a("v_and_b32 v14, 3, v0"); a("v_lshlrev_b32 v14, 3, v14"); a("v_add_u32 v13, v13, v14")
    a("v_bfe_u32 v14, v0, 3, 2"); a("v_lshlrev_b32 v14, 5, v14"); a("v_add_u32 v13, v13, v14")
    a(f"s_sub_u32 s64, s79, {3*16384}"); a("v_add_u32 v2, s64, v13")
    for nt in range(1, 4): a(f"v_xor_b32 v{2+nt}, {32*nt}, v2")
    bar(11 + 4, 6)
    stamp(a, opt, 1)
    for i in range(1, 4): bdma(i)
    bar(16, 7)
    for i in range(4, 7): bdma(i)
    a("s_barrier")
    stamp(a, opt, 2)
    for i in range(7, 9): bdma(i)
    a(f"s_cmp_eq_u32 {sW}, 0"); a("s_cbranch_scc1 KL_SK9")
    bdma(9)
    a.label("KL_SK9")
    ACC = 8; BR = 72
    ref = [3]
    def btr(j, regs):
        r = 3 if j < 4 else (7 if j < 8 else 9)
        out = []
        if r != ref[0]:
            d = ((ref[0] - r) * 16384) & 0xffffffff
            out.append("\n".join(f"v_add_u32 v{2+nt}, 0x{d:x}, v{2+nt}" for nt in range(4))); ref[0] = r
        for nt in range(4):
            out.append("\n".join(f"ds_read_b64_tr_b16 {vr(regs[nt]+2*h,2)}, v{2+nt} offset:{(r-j)*16384 + h*2048}" for h in range(2)))
        return out
    for i in range(NBR):
        a(f"s_waitcnt vmcnt({32 if i < 8 else 28})")
        for x in btr(i, [BR + 16*i + 4*n for n in range(4)]): a(x)
        L = None
        if i + 10 >= 17:
            L = newlab("BS"); a(f"s_cmp_le_u32 s101, {(i+10)*4096}"); a(f"s_cbranch_scc1 {L}")
        a("s_waitcnt lgkmcnt(0)")
        bdma(i + 10)
        if L: a.label(L)
    a(f"v_mul_u32_u24 v6, {FSTR}, v0")
    a("v_lshrrev_b32 v7, 4, v0"); a("v_lshlrev_b32 v7, 4, v7")
    stamp(a, opt, 3)
    a(f"s_mov_b64 exec, s[{RR}:{RR+1}]")
    poll(a, 8, 6, "s68", f"s[{RR}:{RR+1}]")
    a("s_mov_b64 exec, -1")
    a("s_waitcnt lgkmcnt(0)")
    stamp(a, opt, 4)
    ref0 = ref[0]
    a(f"s_cmp_eq_u32 {sW}, 0"); a("s_cbranch_scc1 KL_V16")
    def acc(t, n): return ACC + 4 * (4 * t + n)
    DM = opt.get("dmax", 12)
    GR = {}
    for nst, lab in ((19, None), (16, "KL_V16")):
        a(".p2align 3")
        if lab: a.label(lab)
        free = list(range(BR + 16 * NBR, 256, 4)); ref[0] = ref0
        pend = [("A", i, b) for i in range(nst) for b in (0, 2, 1, 3)] + [("G", 0, 0), ("G", 1, 0)]
        loc = {}; issued = []; cur_soff = [None]
        done_loads = [0]
        def issue():
            if not pend or not free: return False
            if len(free) <= reserve[0]: return False
            if len(issued) - done_loads[0] >= DM: return False
            k = pend.pop(0); r = free.pop(0); loc[k] = r; issued.append(k)
            if k[0] == "A":
                if cur_soff[0] != k[1] and k[1]:
                    a("s_add_u32 s77, s77, 4096"); a("s_cmp_ge_u32 s77, s101"); a("s_cselect_b32 s77, 0, s77"); cur_soff[0] = k[1]
                if not opt.get("p2noload"): a(f"buffer_load_dwordx4 {vr(r,4)}, v{VL16}, {q(RA)}, s77 offen offset:{k[2]*1024} {opt.get('ald', 'sc1')}")
            else:
                a(f"buffer_load_dwordx4 {vr(r,4)}, v7, {q(RWS)}, s69 offen offset:{k[1]*64} sc1")
            return True
        reserve = [0]
        while issue(): pass
        bl = {}
        lds_batches = []
        for i in range(nst):
            last = max(issued.index(("A", i, b)) for b in range(4))
            done_loads[0] = last + 1
            nw = len(issued) - last - 1
            w = f"s_waitcnt vmcnt({nw})"
            if i >= NBR:
                younger = sum(1 for j in lds_batches if j > i)
                w += f" lgkmcnt({8*younger})"
            if nst == 19 and i == 18:
                assert not pend
                a(f"s_cmp_eq_u32 {sW}, 3"); a("s_cbranch_scc1 KL_POST")
            a(w)
            A = [loc[("A", i, b)] for b in range(4)]
            Bv = [BR + 16 * i + 4 * n for n in range(4)] if i < NBR else bl[i]
            for tp in range(2):
                for e in range(2): a(f"v_swap_b32 v{A[tp]+2+e}, v{A[tp+2]+e}")
            a("s_nop 0")
            tile = {0: 0, 2: 1, 1: 2, 3: 3}
            needb = NBR <= i + 2 < nst
            if needb:
                tr = btr((9 if i + 2 == 9 else i + 2 - 10) if nst == 19 else i + 2 - 9, Bv)
                if len(tr) == 5: a(tr.pop(0))
                bl[i + 2] = Bv
            for ti, t in enumerate((0, 2, 1, 3)):
                for n in range(4):
                    c = vr(acc(tile[t], n), 4) if i > 0 else "0"
                    if not opt.get("p2nomfma") or i == 0: a(f"v_mfma_f32_16x16x32_bf16 {vr(acc(tile[t],n),4)}, {vr(Bv[n],4)}, {vr(A[t],4)}, {c}")
                    if ti == 3:
                        if needb:
                            a(tr[n])
                        else:
                            free.append(Bv[n]); issue()
                    else:
                        if n == 3: free.append(A[t])
                        issue()
            free.append(A[3]); issue()
            if needb: lds_batches.append(i + 2)
        assert not pend
        GR[nst] = (loc[("G", 0, 0)], loc[("G", 1, 0)])
        if not lab:
            a.label("KL_POST")
        a("s_waitcnt vmcnt(0) lgkmcnt(0)")
        assert GR[nst][1] != 72
        for h in range(2):
            for e in range(4): a(f"v_mov_b32 v{72+4*h+e}, v{GR[nst][h]+e}") if GR[nst][h] != 72 + 4 * h else None
        if not lab: a("s_branch KL_FIN")
    a.label("KL_FIN")
    stamp(a, opt, 5)
    final(a, opt, ACC)
    stamp(a, opt, 7)
    if so.get("stamps"): a(f"s_add_u32 s100, {sW}, 40")
    if so.get("lstamp"): a(f"s_add_u32 s100, {sT}, 50")
    stamp_end(a, so, "s100")

def final(a, opt, ACC):
    def acc(t, n): return ACC + 4 * (4 * t + n)
    a("v_and_b32 v80, 15, v0"); a("v_lshrrev_b32 v81, 4, v0"); a("v_xor_b32 v81, v81, v80"); a("v_lshlrev_b32 v81, 4, v81")
    a("v_lshlrev_b32 v82, 8, v80"); a("v_add_u32 v81, v81, v82"); a(f"s_sub_u32 s64, s79, {3*16384}"); a("v_add_u32 v81, s64, v81")
    for n in range(1, 4): a(f"v_xor_b32 v{81+n}, {64*n}, v81")
    for t in range(4):
        for n in range(4):
            a(f"ds_write_b128 v{81+n}, {vr(acc(t,n),4)} offset:{(3-t)*16384}")
    L = newlab("GL"); D = newlab("GD")
    a("s_mov_b32 s66, 0x40000")
    a.label(L)
    a(f"v_cmp_eq_u64 vcc, s[{TAG}:{TAG+1}], v[74:75]"); a(f"v_cmp_eq_u64 s[64:65], s[{TAG}:{TAG+1}], v[78:79]"); a("s_nop 0")
    a("s_and_b64 s[64:65], s[64:65], vcc"); a("s_andn2_b64 s[64:65], exec, s[64:65]"); a(f"s_cbranch_scc0 {D}")
    a("s_sub_u32 s66, s66, 1"); a("s_cmp_eq_u32 s66, 0"); a(f"s_cbranch_scc1 {D}")
    a("s_sleep 1")
    a(f"buffer_load_dwordx4 v[72:75], v7, {q(RWS)}, s69 offen sc1"); a(f"buffer_load_dwordx4 v[76:79], v7, {q(RWS)}, s69 offen offset:64 sc1")
    a("s_waitcnt vmcnt(0)"); a(f"s_branch {L}")
    a.label(D)
    a("v_and_b32 v85, 8, v0"); a("v_cmp_ne_u32 vcc, 0, v85")
    a(f"s_lshr_b32 s64, {sU}, 1"); a("s_lshl_b32 s64, s64, 7"); a(f"s_lshl_b32 s65, {sW}, 5"); a("s_add_u32 s64, s64, s65"); a(f"s_and_b32 s65, {sU}, 1"); a("s_add_u32 s64, s64, s65")
    a("s_lshl_b32 s64, s64, 10"); a(f"s_lshl_b32 s65, {sCT}, 7"); a("s_add_u32 s70, s64, s65"); a("s_add_u32 s71, s70, 16384")
    a("v_cndmask_b32 v72, v72, v73, vcc"); a("v_cndmask_b32 v73, v76, v77, vcc")
    a("v_lshrrev_b32 v85, 3, v0"); a("v_and_b32 v86, 7, v0")
    a("v_lshlrev_b32 v87, 11, v85"); a("v_lshlrev_b32 v88, 4, v86"); a("v_add_u32 v87, v87, v88")
    a("v_lshlrev_b32 v88, 1, v86"); a("v_xor_b32 v88, v88, v85"); a("v_lshlrev_b32 v88, 4, v88"); a("v_lshlrev_b32 v85, 8, v85"); a("v_add_u32 v88, v88, v85")
    a(f"s_lshl_b32 s64, {sW}, 14"); a(f"s_sub_u32 s64, {TOP-32768}, s64"); a("v_add_u32 v88, s64, v88")
    a("v_xor_b32 v89, 16, v88"); a("v_xor_b32 v90, 128, v88"); a("v_xor_b32 v91, 144, v88")
    for i in range(2): a(f"v_sub_f32 v{74+i}, 1.0, v{72+i}")
    a("v_cvt_pk_bf16_f32 v74, v74, v75"); a("v_and_b32 v75, 0xffff0000, v74"); a("v_lshlrev_b32 v74, 16, v74")
    a("s_waitcnt lgkmcnt(0)"); a("s_barrier"); stamp(a, opt, 6, True)
    T = 96
    def P(h, src): return T + 32 * h + 8 * src
    for h in range(2):
        for src in (1, 2, 3, 0):
            for e in range(2):
                ra = 88 + 2 * h + e
                off = (3 - src) * 4096 + h * 2048 + (16384 if src else 0)
                a(f"ds_read_b128 {vr(P(h,src)+4*e,4)}, v{ra} offset:{off}")
    for h in range(2):
        a(f"s_waitcnt lgkmcnt({8*(1-h)+4})")
        for i in range(0, 8, 2): a(f"v_pk_add_f32 {vr(P(h,1)+i,2)}, {vr(P(h,1)+i,2)}, {vr(P(h,2)+i,2)}")
        a(f"s_waitcnt lgkmcnt({8*(1-h)+2})")
        for i in range(0, 8, 2): a(f"v_pk_add_f32 {vr(P(h,1)+i,2)}, {vr(P(h,1)+i,2)}, {vr(P(h,3)+i,2)}")
        a(f"s_waitcnt lgkmcnt({8*(1-h)})")
        for i in range(8): a(f"v_mul_f32 v{P(h,0)+i}, v{P(h,0)+i}, v{72+h}")
        for i in range(8): a(f"v_fma_f32 v{P(h,0)+i}, v{P(h,1)+i}, v{74+h}, v{P(h,0)+i}")
        for i in range(4): a(f"v_cvt_pk_bf16_f32 v{P(h,2)+i}, v{P(h,0)+2*i}, v{P(h,0)+2*i+1}")
        a(f"buffer_store_dwordx4 {vr(P(h,2),4)}, v87, {q(RAUX)}, s{70+h} offen")

def generate(opt):
    a = Asm()
    a(f"; @launch grid=(256,1,1) block=(512,1,1) lds={LDS_BYTES}")
    a('.amdgcn_target "amdgcn-amd-amdhsa--gfx950"'); a(".text")
    gen(a, opt)
    a('.section .rodata,"a"'); a(".p2align 6")
    a(f".amdhsa_kernel {NAME}_kernel")
    a("  .amdhsa_next_free_vgpr 256"); a("  .amdhsa_next_free_sgpr 102"); a("  .amdhsa_accum_offset 256")
    a("  .amdhsa_group_segment_fixed_size 0"); a("  .amdhsa_kernarg_size 80"); a("  .amdhsa_user_sgpr_count 2")
    a("  .amdhsa_user_sgpr_kernarg_segment_ptr 1"); a("  .amdhsa_system_sgpr_workgroup_id_x 1"); a(".end_amdhsa_kernel")
    errs = check(a.lines)
    for e in errs: print(e, file=sys.stderr)
    assert not errs
    return a.text()

if __name__ == "__main__":
    opt = {}
    for kv in sys.argv[2:]:
        k, v = kv.split("=")
        try: v = int(v)
        except: pass
        opt[k] = v
    open(sys.argv[1], "w").write(generate(opt))
```

```python
import sys, struct
from asmlib import *

NAME = "gated_mix__sliding_local_dilated__dense_activation_relu__prompt"
A2_OFF = 0
W2_OFF = 0xA00000
G_OFF = 0xD00000
FW_OFF = 0xD10000
FA_OFF = 0xD20000
WS_USED = 0xD80000
FSTR = 1152
STAMP_OFF = 128 << 20
SLOT = 45056
XOFF, WOFF, EOFF = 0, 16384, 40960
SCR = 3 * SLOT
LDS_BYTES = 163840
TOP = LDS_BYTES
def slot_of(s): return ((7 - s) % 3) * SLOT
BIG = 0xF149F2CA
LOG2E = 1.4426950408889634
KS0 = [0, 16, 35, 54]; NST = [16, 19, 19, 18]
NBR = 9
BL_BASE = [0, 28672, 69632, 110592]
PX, PWQKV, PWO, PW1, PW2, PGATE, POUT, PDBG, PWS = 4, 6, 8, 12, 14, 16, 18, 20, 22
sB, sT, sG, sW, sU, sCT, TAG = "s24", "s25", "s26", "s27", "s28", "s29", 30
RX, RW, RE, RWS, RR, RAUX, RA, RB = 32, 36, 40, 44, 48, 52, 56, 60

def f32bits(x): return struct.unpack("<I", struct.pack("<f", x))[0]
def q(r): return f"s[{r}:{r+3}]"

def srd(a, d, base, size, add=0):
    if add == 0:
        a(f"s_mov_b32 s{d}, s{base}"); a(f"s_mov_b32 s{d+1}, s{base+1}")
    else:
        a(f"s_add_u32 s{d}, s{base}, {add}"); a(f"s_addc_u32 s{d+1}, s{base+1}, 0")
    a(f"s_mov_b32 s{d+2}, {size}"); a(f"s_mov_b32 s{d+3}, 0x20000")

def csel(a, d, x, y):
    a(f"s_mov_b32 {d}, {y}"); a(f"s_cselect_b32 {d}, {x}, {d}")

def spread(a, mf, other, last=4):
    n = len(mf) - last; other = list(other); k = 0
    for i, m in enumerate(mf):
        a(m)
        while k < len(other) and k * n <= i * len(other): a(other[k]); k += 1
    while k < len(other): a(other[k]); k += 1

def mix(xs, ws):
    out = []; i = j = 0
    while i < len(xs) or j < len(ws):
        if j >= len(ws) or (i < len(xs) and i * len(ws) <= j * len(xs)): out.append(xs[i]); i += 1
        else: out.append(ws[j]); j += 1
    return out

def interleave(a, mf, other, start=0, per=1):
    other = list(other)
    for i, m in enumerate(mf):
        a(m)
        if i >= start:
            for _ in range(per):
                if other: a(other.pop(0))
    for o in other: a(o)

def stamp_begin(a, opt):
    if opt.get("stamps"):
        a("s_memrealtime s[80:81]"); a("s_memtime s[82:83]")
        for k in range(8): a(f"s_mov_b32 s{84+2*k}, 0")

def stamp(a, opt, k, wait=False):
    if opt.get("stamps"):
        a(f"s_memtime s[{84+2*k}:{85+2*k}]")
        if wait: a("s_waitcnt lgkmcnt(0)")

def stamp_end(a, opt, tag):
    if not opt.get("stamps"): return
    a("s_waitcnt vmcnt(0) lgkmcnt(0)")
    a("s_memrealtime s[64:65]"); a("s_memtime s[66:67]")
    a("s_waitcnt lgkmcnt(0)")
    srd(a, RAUX, PWS, 1 << 20, STAMP_OFF)
    a("s_lshl_b32 s68, s2, 3"); a("s_add_u32 s68, s68, s3"); a("s_lshl_b32 s68, s68, 6")
    a("s_getreg_b32 s69, hwreg(HW_REG_XCC_ID)")
    a(f"s_mov_b32 s65, {tag}")
    for i, s in enumerate((80, 64, 82, 84, 86, 88, 90, 92, 94, 96, 98, 66, 69, 65, 65, 65)):
        a(f"v_mov_b32 v{8+i}, s{s}")
    a("v_mov_b32 v6, s68")
    a("s_mov_b64 exec, 1")
    for k in range(4):
        a(f"buffer_store_dwordx4 v[{8+4*k}:{11+4*k}], v6, {q(RAUX)}, 0 offen offset:{16*k}")
    a("s_waitcnt vmcnt(0)")

_lab = [0]
def newlab(p):
    _lab[0] += 1; return f"{p}_{_lab[0]}"

def tag_check(a, vt, vz):
    L = newlab("TAGL"); D = newlab("TAGD")
    a("s_mov_b32 s64, 0x40000")
    a.label(L)
    a(f"v_readfirstlane_b32 s{TAG}, v{vt}"); a(f"v_readfirstlane_b32 s{TAG+1}, v{vt+1}"); a("s_nop 0")
    a(f"s_cmp_lg_u32 s{TAG}, 0"); a(f"s_cbranch_scc1 {D}")
    a("s_sub_u32 s64, s64, 1"); a("s_cmp_eq_u32 s64, 0"); a(f"s_cbranch_scc1 {D}")
    a("s_sleep 2")
    a(f"global_load_dwordx2 v[{vt}:{vt+1}], v{vz}, s[{PDBG}:{PDBG+1}] sc1"); a("s_waitcnt vmcnt(0)")
    a(f"s_branch {L}")
    a.label(D)

def poll(a, vt, voff, soff, need, first_loaded=False):
    L = newlab("POLL"); C = newlab("POLC"); D = newlab("POLD")
    a("s_mov_b32 s66, 0x40000")
    if first_loaded: a(f"s_branch {C}")
    a.label(L)
    a(f"buffer_load_dwordx2 v[{vt}:{vt+1}], v{voff}, {q(RWS)}, {soff} offen sc1")
    a("s_waitcnt vmcnt(0)")
    a.label(C)
    a(f"v_cmp_eq_u64 vcc, s[{TAG}:{TAG+1}], v[{vt}:{vt+1}]"); a("s_nop 0")
    a(f"s_andn2_b64 s[64:65], {need}, vcc"); a(f"s_cbranch_scc0 {D}")
    a("s_sub_u32 s66, s66, 1"); a("s_cmp_eq_u32 s66, 0"); a(f"s_cbranch_scc1 {D}")
    a("s_sleep 1"); a(f"s_branch {L}")
    a.label(D)

def gen(a, opt):
    kn = NAME + "_kernel"
    a(f".globl {kn}"); a(".p2align 8"); a(f".type {kn},@function"); a.label(kn)
    a("s_cmp_ge_u32 s2, 256"); a("s_cbranch_scc1 K_END")
    a("s_load_dwordx16 s[4:19], s[0:1], 0")
    a("s_load_dwordx4 s[20:23], s[0:1], 64")
    stamp_begin(a, opt)
    a("v_lshrrev_b32 v1, 6, v0"); a("v_and_b32 v0, 63, v0")
    a("v_readfirstlane_b32 s3, v1")
    a("s_and_b32 s64, s2, 7"); a("s_lshr_b32 s65, s2, 3")
    m = opt.get("map", "Y")
    if m == "Z":
        a(f"s_lshr_b32 {sB}, s64, 1"); a(f"s_lshl_b32 {sB}, {sB}, 2"); a("s_and_b32 s66, s65, 3"); a(f"s_add_u32 {sB}, {sB}, s66")
        a("s_lshr_b32 s66, s65, 2")
        a(f"s_and_b32 {sT}, s66, 1")
        a("s_and_b32 s67, s64, 1"); a(f"s_lshl_b32 {sG}, s67, 2"); a("s_lshr_b32 s68, s66, 1"); a(f"s_add_u32 {sG}, {sG}, s68")
        if opt.get("p2map", 0) == 0:
            a(f"s_lshl_b32 {sU}, {sB}, 1"); a(f"s_add_u32 {sU}, {sU}, s67"); a(f"s_mov_b32 {sCT}, s66")
        else:
            a(f"s_lshl_b32 {sU}, {sB}, 1"); a(f"s_add_u32 {sU}, {sU}, {sT}"); a(f"s_mov_b32 {sCT}, {sG}")
    elif m == "X":
        a(f"s_lshl_b32 {sB}, s64, 1"); a("s_and_b32 s66, s65, 1"); a(f"s_add_u32 {sB}, {sB}, s66")
        a("s_lshr_b32 s66, s65, 1")
        a(f"s_and_b32 {sT}, s66, 1"); a(f"s_lshr_b32 {sG}, s66, 1")
        a(f"s_lshl_b32 {sU}, {sB}, 1"); a(f"s_add_u32 {sU}, {sU}, {sT}"); a(f"s_mov_b32 {sCT}, {sG}")
    elif m == "Y":
        a(f"s_lshr_b32 {sB}, s64, 2"); a(f"s_lshl_b32 {sB}, {sB}, 3"); a("s_and_b32 s66, s65, 7"); a(f"s_add_u32 {sB}, {sB}, s66")
        a("s_lshr_b32 s66, s65, 3")
        a(f"s_and_b32 {sT}, s66, 1")
        a("s_and_b32 s67, s64, 3"); a(f"s_lshl_b32 {sG}, s67, 1"); a("s_lshr_b32 s68, s66, 1"); a(f"s_add_u32 {sG}, {sG}, s68")
        a("s_and_b32 s68, s64, 1"); a(f"s_lshl_b32 {sU}, {sB}, 1"); a(f"s_add_u32 {sU}, {sU}, s68")
        a("s_and_b32 s68, s64, 2"); a("s_lshl_b32 s68, s68, 1"); a(f"s_add_u32 {sCT}, s68, s66")
    a(f"s_and_b32 {sW}, s3, 3")
    a("s_cmp_ge_u32 s3, 4"); a("s_cbranch_scc1 K_LOADER")
    a(f"s_cmp_eq_u32 {sT}, 0"); a("s_cbranch_scc1 K_ATTN")
    gen_ffn(a, opt)
    gen_attn(a, opt)
    gen_loader(a, opt)
    a.label("K_END"); a("s_endpgm")
    a.label("K_CODE_END")

def compute_common_setup(a, opt):
    L = newlab("CS")
    a("v_mov_b32 v1, 0")
    a("s_or_b32 s64, s2, s3"); a("s_cmp_lg_u32 s64, 0"); a(f"s_cbranch_scc1 {L}")
    a("s_memrealtime s[64:65]"); a("s_waitcnt lgkmcnt(0)")
    a("s_or_b32 s64, s64, 1"); a("s_xor_b32 s65, s65, 0x5bd1e995")
    a("v_mov_b32 v10, s64"); a("v_mov_b32 v11, s65")
    a("s_mov_b64 exec, 1")
    a(f"global_store_dwordx2 v1, v[10:11], s[{PDBG}:{PDBG+1}] sc1")
    a("s_mov_b64 exec, -1")
    a.label(L)
    if opt.get("cpf", 1):
        L = newlab("CS")
        a("s_cmp_ge_u32 s2, 8"); a(f"s_cbranch_scc1 {L}"); a("s_cmp_lg_u32 s3, 1"); a(f"s_cbranch_scc1 {L}")
        a("s_getpc_b64 s[64:65]")
        G = newlab("GP"); a.label(G)
        a(f"s_sub_u32 s64, s64, {G}-{NAME}_kernel"); a("s_subb_u32 s65, s65, 0")
        a("v_lshlrev_b32 v10, 7, v0")
        a(f"s_mov_b32 s66, K_CODE_END-{NAME}_kernel-4")
        for r in range(opt.get("cpfn", 4)):
            a("v_min_u32 v11, s66, v10"); a("global_load_dword v255, v11, s[64:65]"); a("v_add_u32 v10, 8192, v10")
        a.label(L)
    if opt.get("duty", 1):
        Lb = newlab("DU"); Lc = newlab("DU"); Ld = newlab("DU")
        a("v_lshlrev_b32 v254, 7, v0")
        a(f"s_mov_b32 s{RR+3}, 0x20000")
        a("s_cmp_ge_u32 s2, 156"); a(f"s_cbranch_scc1 {Lb}")
        a("s_lshl_b32 s64, s2, 1"); a(f"s_add_u32 s64, s64, {sW}")
        a("s_mul_i32 s65, s64, 1261"); a("s_lshr_b32 s65, s65, 16"); a("s_mul_i32 s66, s65, 52"); a("s_sub_u32 s64, s64, s66")
        a(f"s_max_u32 s101, s65, {opt.get('dlead', 1)}"); a(f"s_sub_u32 s101, s101, {opt.get('dlead', 1)}")
        a("s_add_u32 s65, s65, 2")
        a("s_cmp_lt_u32 s64, 24")
        a(f"s_cselect_b32 s{RR}, s{PWQKV}, s{PW1}"); a(f"s_cselect_b32 s{RR+1}, s{PWQKV+1}, s{PW1+1}"); csel(a, f"s{RR+2}", 512*3072, 512*3584)
        a("s_cselect_b32 s66, 24, 28"); a("s_cselect_b32 s67, 0, 24"); a("s_mul_i32 s65, s65, s66"); a("s_add_u32 s64, s64, s65"); a("s_sub_u32 s64, s64, s67"); a("s_lshl_b32 s100, s64, 13")
        a(f"s_cmp_ge_u32 {sW}, 2"); a("s_cselect_b32 s101, 255, s101")
        a(f"s_branch {Lc}")
        a.label(Lb)
        a("s_sub_u32 s64, s2, 156"); a("s_mul_i32 s64, s64, 3"); a(f"s_add_u32 s64, s64, {sW}")
        a("s_mul_i32 s101, s64, 911"); a("s_lshr_b32 s101, s101, 16"); a(f"s_add_u32 s101, s101, {opt.get('dbs', 1)}")
        a(f"s_cmp_ge_u32 {sW}, 3"); a("s_cselect_b32 s101, 255, s101"); a("s_cmp_ge_u32 s64, 288"); a("s_cselect_b32 s101, 255, s101")
        a("s_cmp_lt_u32 s64, 64")
        a(f"s_cselect_b32 s{RR}, s{PWO}, s{PW2}"); a(f"s_cselect_b32 s{RR+1}, s{PWO+1}, s{PW2+1}"); csel(a, f"s{RR+2}", 512*1024, 1792*1024)
        a("s_cselect_b32 s67, 0, 64"); a("s_sub_u32 s64, s64, s67"); a("s_lshl_b32 s100, s64, 13")
        a.label(Lc)
    srd(a, RWS, PWS, WS_USED)
    if opt.get("tlb", 0):
        Lt = newlab("TLB")
        a(f"s_cmp_lg_u32 {sW}, 2"); a(f"s_cbranch_scc1 {Lt}")
        a("v_lshlrev_b32 v13, 21, v0"); a("s_mov_b64 exec, 0x7f")
        a(f"buffer_load_dword v12, v13, {q(RWS)}, 0 offen")
        a("s_mov_b64 exec, 1")
        for p in (PW2, PWO, POUT, PGATE, PDBG):
            a(f"global_load_dword v12, v1, s[{p}:{p+1}]")
        a("s_mov_b64 exec, -1")
        a.label(Lt)
    a(f"s_lshl_b32 s78, {sB}, 4"); a(f"s_lshl_b32 s64, {sT}, 3"); a("s_add_u32 s78, s78, s64"); a(f"s_add_u32 s78, s78, {sG}")
    a(f"s_mul_i32 s78, s78, {FSTR}"); a(f"s_add_u32 s78, s78, {FA_OFF}")

def compute_publish(a, opt, vt, nst):
    L = newlab("NOPUB")
    a("s_mov_b64 exec, 1")
    a(f"v_mov_b32 v12, {TOP-4096}"); a("v_mov_b32 v13, 1")
    a(f"s_waitcnt vmcnt({nst})")
    tag_check(a, vt, 1)
    a("s_waitcnt vmcnt(0)")
    stamp(a, opt, 6)
    a("ds_add_rtn_u32 v13, v12, v13"); a("s_waitcnt lgkmcnt(0)")
    a("v_cmp_eq_u32 vcc, 3, v13"); a("s_nop 0"); a(f"s_cbranch_vccz {L}")
    a(f"buffer_store_dwordx2 v[{vt}:{vt+1}], v1, {q(RWS)}, s78 offen sc1")
    a.label(L)

def mainloop(a, opt, pre, addr_regs, reads, mfmas):
    a("s_mov_b32 s70, 1"); a("s_mov_b32 s72, 0"); a(f"s_mov_b32 s73, {(-SLOT) & 0xffffffff}"); a(f"s_mov_b32 s79, {2*SLOT}")
    for r in addr_regs: a(f"v_add_u32 v{r}, {slot_of(0)}, v{r}")
    if opt.get("prio", 2) == 1: a("s_setprio 1")
    du = opt.get("duty", 1)
    dl = f"buffer_load_dword v255, v254, {q(RR)}, s100 offen"
    if du:
        Ld = newlab("DU"); a("s_cmp_lg_u32 s101, 0"); a(f"s_cbranch_scc1 {Ld}"); a(dl); a.label(Ld)
    stamp(a, opt, 0)
    a("s_barrier")
    stamp(a, opt, 1)
    for r in reads(0, 0): a(r)
    a(".p2align 3")
    a.label(pre + "_LOOP")
    a("s_waitcnt lgkmcnt(0)")
    a("s_add_u32 s70, s70, 1")
    last = opt.get("last", 6)
    sal = ["s_cmp_eq_u32 s70, 3\ns_cselect_b32 s71, s79, s73", "s_cselect_b32 s70, 0, s70\ns_add_u32 s72, s72, 1"]
    if du: sal.append(f"s_cmp_eq_u32 s72, s101\ns_cbranch_scc1 {pre}_DUTY\n{pre}_DBACK:")
    sal.append("s_cmp_eq_u32 s72, 8\ns_nop 0")
    mf = mfmas(0)
    spread(a, mf[:-last], reads(1, 1), 0)
    interleave(a, mf[-last:], sal)
    a("s_waitcnt lgkmcnt(0)")
    a("s_barrier")
    adv = [f"v_add_u32 v{r}, s71, v{r}" for r in addr_regs]
    if len(adv) % 2: adv.append("s_nop 0")
    adv = [adv[i] + "\n" + adv[i+1] for i in range(0, len(adv), 2)]
    mf = mfmas(1)
    interleave(a, mf[:len(adv)], adv)
    spread(a, mf[len(adv):], reads(0, 0), opt.get("last2", 2))
    a(f"s_cbranch_scc0 {pre}_LOOP")
    if du:
        a(f"s_branch {pre}_DONE"); a.label(pre + "_DUTY"); a(dl); a(f"s_branch {pre}_DBACK"); a.label(pre + "_DONE")
    a("s_waitcnt lgkmcnt(0)")
    if opt.get("prio", 2) == 2: a("s_setprio 3")
    stamp(a, opt, 2)

def gen_ffn(a, opt):
    ACC = 16; FR = 128
    def acc(t, n): return ACC + 4 * (t * 7 + n)
    def xf(s, t): return FR + 44 * s + 4 * t
    def wf(s, n): return FR + 44 * s + 16 + 4 * n
    XA = [2, 3]; WA = [4, 5, 6, 7]; SA = 8
    a(f"s_lshr_b32 s68, {sW}, 1")
    a(f"s_and_b32 s69, {sW}, 1")
    a("v_and_b32 v10, 15, v0"); a("v_lshrrev_b32 v11, 4, v0")
    a("v_lshrrev_b32 v12, 1, v10"); a("v_xor_b32 v12, v12, v11"); a("v_lshlrev_b32 v12, 4, v12")
    a("v_lshlrev_b32 v13, 7, v10"); a("v_add_u32 v12, v12, v13")
    a("s_lshl_b32 s64, s68, 13"); a(f"v_add_u32 v{XA[0]}, s64, v12"); a(f"v_xor_b32 v{XA[1]}, 64, v{XA[0]}")
    a("v_bfe_u32 v12, v0, 2, 2")
    a("v_lshlrev_b32 v13, 3, v11"); a("v_add_u32 v13, v13, v12")
    a("v_lshrrev_b32 v14, 1, v12"); a("v_and_b32 v15, 1, v11"); a("v_lshlrev_b32 v9, 1, v15"); a("v_or_b32 v14, v14, v9")
    a("v_and_b32 v9, 3, v0"); a("v_lshlrev_b32 v9, 3, v9")
    a("v_lshlrev_b32 v12, 7, v13"); a("v_add_u32 v12, v12, v9")
    for j in range(4):
        a("s_mul_i32 s64, s69, 6"); a(f"s_add_u32 s64, s64, {j}")
        a("s_and_b32 s65, s64, 3"); a("s_lshr_b32 s64, s64, 2"); a("s_lshl_b32 s64, s64, 13"); a(f"s_add_u32 s64, s64, {WOFF}")
        a(f"v_xor_b32 v{WA[j]}, s65, v14"); a(f"v_lshlrev_b32 v{WA[j]}, 5, v{WA[j]}"); a(f"v_add_u32 v{WA[j]}, v{WA[j]}, v12"); a(f"v_add_u32 v{WA[j]}, s64, v{WA[j]}")
    a(f"v_xor_b32 v{SA}, s69, v15"); a(f"v_lshlrev_b32 v{SA}, 5, v{SA}"); a(f"v_add_u32 v{SA}, v{SA}, v9")
    a("v_lshlrev_b32 v12, 6, v13"); a(f"v_add_u32 v{SA}, v{SA}, v12"); a(f"v_add_u32 v{SA}, {EOFF}, v{SA}")
    a(f"s_lshl_b32 s64, {sB}, 1"); a("s_add_u32 s64, s64, s68"); a("s_mul_i32 s64, s64, 72")
    a(f"s_mul_i32 s65, {sG}, 7"); a("s_add_u32 s64, s64, s65"); a("s_add_u32 s64, s64, 16")
    a(f"s_and_b32 s65, {sG}, 1")
    a("s_mul_i32 s66, s69, 3"); a("s_add_u32 s66, s66, s65"); a("s_add_u32 s66, s66, s64"); a("s_lshl_b32 s74, s66, 12")
    a("s_add_u32 s75, s74, 4096"); a("s_add_u32 s76, s74, 8192")
    a("s_cmp_eq_u32 s65, 0"); a("s_cselect_b32 s66, 6, 0"); a("s_add_u32 s66, s66, s64"); a("s_lshl_b32 s77, s66, 12")
    a("s_lshl_b32 s65, s69, 11"); a("s_add_u32 s77, s77, s65")
    a("v_lshlrev_b32 v9, 4, v0")
    a("s_waitcnt lgkmcnt(0)")
    compute_common_setup(a, opt)
    for i in range(112): a(f"v_mov_b32 v{ACC+i}, 0")
    def reads(kk, s):
        xs = [f"ds_read_b128 {vr(xf(s,t),4)}, v{XA[kk]} offset:{t*2048}" for t in range(4)]
        ws = []
        for n in range(6):
            for h in range(2):
                ws.append(f"ds_read_b64_tr_b16 {vr(wf(s,n)+2*h,2)}, v{WA[n&3]} offset:{(n>>2)*8192 + kk*4096 + h*512}")
        for h in range(2):
            ws.append(f"ds_read_b64_tr_b16 {vr(wf(s,6)+2*h,2)}, v{SA} offset:{kk*2048 + h*256}")
        return mix(xs, ws)
    def mfmas(s):
        return [f"v_mfma_f32_16x16x32_bf16 {vr(acc(t,n),4)}, {vr(wf(s,n),4)}, {vr(xf(s,t),4)}, {vr(acc(t,n),4)}" for n in range(7) for t in range(4)]
    mainloop(a, opt, "KF", XA + WA + [SA], reads, mfmas)
    a(f"global_load_dwordx2 v[10:11], v1, s[{PDBG}:{PDBG+1}] sc1")
    T = FR; k = 0; pendst = []
    for n in range(7):
        for tp in range(2):
            d = T + 4 * (k % 8); k += 1
            for hh in range(2):
                sx = acc(2 * tp + hh, n)
                a(f"v_cvt_pk_bf16_f32 v{d+2*hh}, v{sx}, v{sx+1}"); a(f"v_cvt_pk_bf16_f32 v{d+2*hh+1}, v{sx+2}, v{sx+3}")
            for i in (0, 2, 1, 3): a(f"v_pk_max_i16 v{d+i}, v{d+i}, 0")
            if pendst: a(pendst.pop())
            else: a("s_nop 0")
            a(f"v_permlane16_swap_b32 v{d}, v{d+2}"); a(f"v_permlane16_swap_b32 v{d+1}, v{d+3}")
            off = ((n & 1) * 2048 if n < 6 else 0) + tp * 1024
            a(f"buffer_store_dwordx4 {vr(d,4)}, v9, {q(RWS)}, s{74+(n>>1)} offen offset:{off} sc1")
    if opt.get("sb", 1): a("s_barrier")
    stamp(a, opt, 3)
    compute_publish(a, opt, 10, 14)
    stamp(a, opt, 5)
    stamp_end(a, opt, 1)
    a("s_endpgm")

def gen_attn(a, opt):
    a.label("K_ATTN")
    ACC = 36; FR = 140
    def Q(t): return ACC + 4 * t
    def K(t): return ACC + 32 + 4 * t
    def V(t): return ACC + 68 + 4 * t
    def xf(s, t): return FR + 48 * s + 4 * t
    def wf(s, p): return FR + 48 * s + 36 + 4 * p
    XA = [2, 3]; WA = 4
    BC, BP, BP0, BP4, MC = 16, 20, 24, 28, 32
    a("v_and_b32 v10, 15, v0"); a("v_lshrrev_b32 v11, 4, v0")
    a("v_lshrrev_b32 v12, 1, v10"); a("v_xor_b32 v12, v12, v11"); a("v_lshlrev_b32 v12, 4, v12")
    a("v_lshlrev_b32 v13, 7, v10"); a(f"v_add_u32 v{XA[0]}, v12, v13"); a(f"v_xor_b32 v{XA[1]}, 64, v{XA[0]}")
    a("v_bfe_u32 v12, v0, 2, 2")
    a("v_lshlrev_b32 v13, 3, v11"); a("v_add_u32 v13, v13, v12")
    a("v_lshrrev_b32 v14, 1, v12"); a("v_and_b32 v15, 1, v11"); a("v_lshlrev_b32 v9, 1, v15"); a("v_or_b32 v14, v14, v9")
    a("v_and_b32 v9, 3, v0"); a("v_lshlrev_b32 v9, 3, v9")
    a("v_lshlrev_b32 v12, 7, v13"); a("v_add_u32 v12, v12, v9")
    a(f"v_xor_b32 v{WA}, {sW}, v14"); a(f"v_lshlrev_b32 v{WA}, 5, v{WA}"); a(f"v_add_u32 v{WA}, v{WA}, v12"); a(f"v_add_u32 v{WA}, {WOFF}, v{WA}")
    a("v_lshlrev_b32 v5, 2, v11"); a("v_sub_u32 v6, v5, v10")
    a(f"s_mul_i32 s64, {sB}, 144"); a(f"s_lshl_b32 s65, {sG}, 1"); a("s_add_u32 s64, s64, s65"); a(f"s_lshr_b32 s65, {sW}, 1"); a("s_add_u32 s64, s64, s65")
    a("s_lshl_b32 s74, s64, 12"); a(f"s_and_b32 s65, {sW}, 1"); a("s_lshl_b32 s65, s65, 11"); a("s_add_u32 s74, s74, s65")
    a(f"s_add_u32 s75, s74, {72*4096}")
    a(f"s_mov_b32 s76, 0x{f32bits(0.25*LOG2E):x}")
    a("v_lshlrev_b32 v9, 4, v0")
    a("s_waitcnt lgkmcnt(0)")
    compute_common_setup(a, opt)
    a(f"v_mov_b32 v7, 0x{BIG:x}")
    a(f"s_cmp_eq_u32 {sB}, 0"); a(f"s_cselect_b32 s64, 0x{BIG:x}, 0"); a("v_mov_b32 v8, s64")
    a(f"v_mov_b32 v{MC}, 0"); a(f"v_mov_b32 v{MC+1}, 0")
    for r in range(4):
        a(f"v_add_u32 v14, {r+7}, v6")
        a("v_cmp_gt_u32 vcc, 8, v14")
        a(f"v_mov_b32 v15, {'0xffff' if r % 2 == 0 else '0xffff0000'}")
        a(f"v_add_u32 v14, {r}, v6")
        a(f"v_cndmask_b32 v{BC+r}, v7, v1, vcc")
        a("v_cndmask_b32 v15, v1, v15, vcc")
        a(f"v_or_b32 v{MC+(r>>1)}, v{MC+(r>>1)}, v15")
        a("v_cmp_le_i32 vcc, 9, v14")
        a(f"v_add_u32 v15, {r}, v5")
        a("v_cmp_gt_u32 s[64:65], 8, v15")
        a(f"v_cndmask_b32 v{BP+r}, v7, v1, vcc")
        a(f"v_cndmask_b32 v{BP0+r}, v7, v8, vcc")
        a("v_cmp_le_i32 vcc, 1, v14"); a("s_nop 0")
        a("s_and_b64 vcc, vcc, s[64:65]")
        a(f"v_cndmask_b32 v{BP4+r}, v7, v8, vcc")
    for i in range(104): a(f"v_mov_b32 v{ACC+i}, 0")
    def reads(kk, s):
        ws = []
        for p in range(3):
            for h in range(2):
                ws.append(f"ds_read_b64_tr_b16 {vr(wf(s,p)+2*h,2)}, v{WA} offset:{p*8192 + kk*4096 + h*512}")
        xs = [f"ds_read_b128 {vr(xf(s,t),4)}, v{XA[kk]} offset:{t*2048 if t < 8 else EOFF}" for t in range(9)]
        return mix(xs, ws)
    def mfmas(s):
        r = []
        for t in range(9):
            if t < 8: r.append(f"v_mfma_f32_16x16x32_bf16 {vr(Q(t),4)}, {vr(wf(s,0),4)}, {vr(xf(s,t),4)}, {vr(Q(t),4)}")
            r.append(f"v_mfma_f32_16x16x32_bf16 {vr(K(t),4)}, {vr(wf(s,1),4)}, {vr(xf(s,t),4)}, {vr(K(t),4)}")
            r.append(f"v_mfma_f32_16x16x32_bf16 {vr(V(t),4)}, {vr(xf(s,t),4)}, {vr(wf(s,2),4)}, {vr(V(t),4)}")
        return r
    mainloop(a, opt, "KA", XA + [WA], reads, mfmas)
    a(f"global_load_dwordx2 v[10:11], v1, s[{PDBG}:{PDBG+1}] sc1")
    QB = FR; KB = FR + 16; VB = FR + 34; ONES = FR + 54; PB = FR + 58
    M = FR + 90; TM = FR + 98
    def cvt(d, s): a(f"v_cvt_pk_bf16_f32 v{d}, v{s}, v{s+1}"); a(f"v_cvt_pk_bf16_f32 v{d+1}, v{s+2}, v{s+3}")
    for t in range(8): cvt(QB + 2 * t, Q(t))
    for t in range(9): cvt(KB + 2 * t, K(t))
    def vslot(t): return (1 + t) if t < 4 else (2 + t)
    smf = []
    for t in range(8):
        prev = 8 if t in (0, 4) else t - 1
        bp = BP0 if t == 0 else (BP4 if t == 4 else BP)
        smf.append(f"v_mfma_f32_16x16x16_bf16 {vr(Q(t),4)}, {vr(KB+2*t,2)}, {vr(QB+2*t,2)}, {vr(BC,4)}")
        smf.append(f"v_mfma_f32_16x16x16_bf16 {vr(K(t),4)}, {vr(KB+2*prev,2)}, {vr(QB+2*t,2)}, {vr(bp,4)}")
    vc = []
    for t in range(8):
        d = VB + 2 * vslot(t); s = V(t)
        vc += [f"v_cvt_pk_bf16_f32 v{d}, v{s}, v{s+1}", f"v_cvt_pk_bf16_f32 v{d+1}, v{s+2}, v{s+3}"]
    for d in (VB, VB + 10):
        s = V(8)
        vc += [f"v_cvt_pk_bf16_f32 v{d}, v{s}, v{s+1}", f"v_cvt_pk_bf16_f32 v{d+1}, v{s+2}, v{s+3}"]
    vc += [f"v_mov_b32 v{ONES+i}, 0x3f803f80" for i in range(4)]
    a.nop(2)
    interleave(a, smf, vc, per=2)
    for t in range(8):
        if t == 6: a.nop(4)
        for r in range(4): a(f"v_max_f32 v{Q(t)+r}, v{Q(t)+r}, v{K(t)+r}")
    for t in range(8): a(f"v_max3_f32 v{M+t}, v{Q(t)}, v{Q(t)+1}, v{Q(t)+2}")
    for t in range(8): a(f"v_max_f32 v{M+t}, v{M+t}, v{Q(t)+3}")
    for sw in ("v_permlane32_swap_b32", "v_permlane16_swap_b32"):
        for t in range(8): a(f"v_mov_b32 v{TM+t}, v{M+t}")
        for t in range(8): a(f"{sw} v{M+t}, v{TM+t}")
        for t in range(8): a(f"v_max_f32 v{M+t}, v{M+t}, v{TM+t}")
    for t in range(8): a(f"v_mul_f32 v{M+t}, s76, v{M+t}")
    for t in range(8):
        for r in range(4): a(f"v_fma_f32 v{Q(t)+r}, v{Q(t)+r}, s76, -v{M+t}")
    for t in range(8):
        for r in range(4): a(f"v_exp_f32 v{Q(t)+r}, v{Q(t)+r}")
    for t in range(8): cvt(PB + 4 * t + 2, Q(t))
    for t in range(8):
        for h in range(2): a(f"v_bfi_b32 v{PB+4*t+h}, v{MC+h}, 0, v{PB+4*t+2+h}")
        for h in range(2): a(f"v_and_b32 v{PB+4*t+2+h}, v{MC+h}, v{PB+4*t+2+h}")
    for t in range(8):
        a(f"v_mfma_f32_16x16x32_bf16 {vr(K(t),4)}, {vr(ONES,4)}, {vr(PB+4*t,4)}, 0")
        a(f"v_mfma_f32_16x16x32_bf16 {vr(Q(t),4)}, {vr(VB+2*(vslot(t)-1),4)}, {vr(PB+4*t,4)}, 0")
    a.nop(1)
    for t in range(8): a(f"v_rcp_f32 v{M+t}, v{K(t)}")
    stamp(a, opt, 3)
    for t in range(8):
        for r in range(4): a(f"v_mul_f32 v{Q(t)+r}, v{Q(t)+r}, v{M+t}")
        cvt(QB + 2 * t, Q(t))
        if t & 1:
            d = QB + 2 * t - 2
            a("s_nop 0"); a(f"v_permlane16_swap_b32 v{d}, v{d+2}"); a(f"v_permlane16_swap_b32 v{d+1}, v{d+3}")
        if t & 1: a(f"buffer_store_dwordx4 {vr(QB+2*t-2,4)}, v9, {q(RWS)}, s{74+(t>>2)} offen offset:{((t>>1)&1)*1024} sc1")
    stamp(a, opt, 4)
    compute_publish(a, opt, 10, 4)
    stamp(a, opt, 5)
    stamp_end(a, opt, 2)
    a("s_endpgm")

def gen_loader(a, opt):
    a.label("K_LOADER")
    if opt.get("prio", 2) == 2: a("s_setprio 2")
    VL16, VX0, VX1, VW, VE, VR, VZ = 1, 2, 3, 4, 5, 6, 7
    a("v_lshrrev_b32 v10, 3, v0"); a("v_and_b32 v11, 7, v0"); a("v_lshrrev_b32 v12, 4, v0")
    a(f"s_and_b32 s68, {sW}, 1"); a(f"s_lshr_b32 s69, {sW}, 1")
    a(f"s_lshl_b32 s64, {sB}, 7"); a("s_lshl_b32 s65, s68, 6"); a("s_add_u32 s64, s64, s65"); a("s_add_u32 s64, s64, s69"); a("s_lshl_b32 s64, s64, 10")
    a("v_xor_b32 v13, v11, v12"); a("v_lshlrev_b32 v13, 4, v13")
    a("v_lshlrev_b32 v14, 11, v10"); a("v_add_u32 v14, v14, v13")
    a(f"v_add_u32 v{VX0}, s64, v14"); a(f"v_xor_b32 v{VX1}, 64, v{VX0}")
    a(f"s_cmp_eq_u32 {sT}, 0")
    csel(a, "s74", 3072, 3584); csel(a, "s75", 1024, 128)
    csel(a, f"s{RW+2}", 512*3072, 512*3584); csel(a, f"s{RE+2}", 2048*1024, 512*3584)
    a(f"s_mul_i32 s66, {sG}, 448"); a(f"s_and_b32 s67, {sG}, 1"); a("s_lshl_b32 s64, s67, 6"); a("s_add_u32 s64, s64, s66")
    a(f"s_lshl_b32 s65, {sG}, 7")
    a(f"s_cmp_eq_u32 {sT}, 0"); a("s_cselect_b32 s64, s65, s64")
    a("v_and_b32 v15, 1, v12"); a("v_lshlrev_b32 v15, 1, v15"); a("v_xor_b32 v15, v15, v11"); a("s_lshl_b32 s65, s68, 2"); a("v_xor_b32 v15, s65, v15"); a("v_lshlrev_b32 v15, 4, v15")
    a(f"s_lshl_b32 s65, {sW}, 3"); a(f"v_add_u32 v{VW}, s65, v10"); a(f"v_mul_lo_u32 v{VW}, v{VW}, s74"); a(f"v_add_u32 v{VW}, v{VW}, v15"); a(f"v_add_u32 v{VW}, s64, v{VW}")
    a(f"s_cmp_eq_u32 {sT}, 0"); a("s_cbranch_scc1 KL_EA")
    a("s_cmp_eq_u32 s67, 0"); a("s_cselect_b32 s65, 384, 0"); a("s_add_u32 s66, s66, s65")
    a("v_lshrrev_b32 v15, 2, v0"); a(f"s_lshl_b32 s65, {sW}, 4"); a("v_add_u32 v15, s65, v15"); a(f"v_mul_u32_u24 v{VE}, 3584, v15")
    a("v_lshrrev_b32 v15, 5, v0"); a("v_lshlrev_b32 v15, 1, v15"); a("v_and_b32 v13, 3, v0"); a("v_xor_b32 v15, v15, v13"); a("v_lshlrev_b32 v15, 4, v15")
    a(f"v_add_u32 v{VE}, v{VE}, v15"); a(f"v_add_u32 v{VE}, s66, v{VE}")
    a(f"s_lshl_b32 s72, {sW}, 10"); a(f"s_mov_b32 s76, {64*3584}")
    a("s_branch KL_ED")
    a.label("KL_EA")
    a(f"s_lshl_b32 s64, {sB}, 7"); a(f"s_cmp_eq_u32 {sB}, 0"); a("s_cselect_b32 s65, 0, 16"); a(f"s_cselect_b32 s{RE+2}, 0, s{RE+2}"); a("s_sub_u32 s64, s64, s65")
    a("s_add_u32 s64, s64, 1"); a("s_sub_u32 s64, s64, s68"); a("s_lshl_b32 s64, s64, 10")
    a("s_lshl_b32 s65, s68, 6"); a(f"v_xor_b32 v{VE}, s65, v14"); a(f"v_add_u32 v{VE}, s64, v{VE}")
    a("s_lshl_b32 s72, s68, 10"); a("s_mov_b32 s76, 128")
    a.label("KL_ED")
    a(f"s_add_u32 s72, s72, {EOFF}")
    a(f"s_lshl_b32 s70, {sW}, 12")
    a(f"s_lshl_b32 s71, {sW}, 10"); a(f"s_add_u32 s71, s71, {WOFF}")
    a("s_lshl_b32 s73, s74, 6"); a("s_lshl_b32 s74, s74, 5")
    rot = opt.get("rot", 0)
    if rot == 0: a("s_mov_b32 s77, 0")
    elif rot == 1: a(f"s_add_u32 s77, {sB}, {sG}"); a("s_and_b32 s77, s77, 7")
    a(f"s_mov_b32 s{RX+2}, {2048*1024}"); a(f"s_mov_b32 s{RX+3}, 0x20000"); a(f"s_mov_b32 s{RW+3}, 0x20000"); a(f"s_mov_b32 s{RE+3}, 0x20000")
    a(f"s_cmp_eq_u32 {sT}, 0")
    a("s_waitcnt lgkmcnt(0)")
    a(f"s_mov_b32 s{RX}, s{PX}"); a(f"s_mov_b32 s{RX+1}, s{PX+1}")
    a(f"s_cselect_b32 s{RW}, s{PWQKV}, s{PW1}"); a(f"s_cselect_b32 s{RW+1}, s{PWQKV+1}, s{PW1+1}")
    a(f"s_cselect_b32 s{RE}, s{PX}, s{PW1}"); a(f"s_cselect_b32 s{RE+1}, s{PX+1}, s{PW1+1}")
    def stage(s):
        base = slot_of(s)
        a("s_lshl_b32 s64, s77, 7"); a("s_mul_i32 s65, s77, s73"); a("s_mul_i32 s66, s77, s76")
        for m in range(4):
            a(f"s_add_u32 m0, s70, {base + XOFF + m*1024}")
            a(f"s_add_u32 s67, s64, {m*16384}")
            a(f"buffer_load_dwordx4 v{VX0 if m % 2 == 0 else VX1}, {q(RX)}, s67 offen lds")
        for jj in range(2):
            for P in range(3):
                a(f"s_add_u32 m0, s71, {base + P*8192 + jj*4096}")
                if P == 0:
                    if jj == 0: a("s_mov_b32 s67, s65")
                    else: a("s_add_u32 s67, s65, s74")
                else: a("s_add_u32 s67, s67, s75")
                a(f"buffer_load_dwordx4 v{VW}, {q(RW)}, s67 offen lds")
        a(f"s_add_u32 m0, s72, {base}")
        a("s_add_u32 s77, s77, 1")
        a(f"buffer_load_dwordx4 v{VE}, {q(RE)}, s66 offen lds")
        a("s_and_b32 s77, s77, 7")
    def bar(n, k):
        a(f"s_waitcnt vmcnt({n})"); a("s_barrier")
        if opt.get("lstamp"): a(f"s_memtime s[{84+2*k}:{85+2*k}]")
    if opt.get("lstamp"):
        opt = dict(opt); so = opt.copy(); opt["stamps"] = 0
    else: so = opt
    stage(0); stage(1)
    a(f"v_lshlrev_b32 v{VL16}, 4, v0"); a(f"v_mov_b32 v{VZ}, 0")
    srd(a, RWS, PWS, WS_USED); srd(a, RAUX, PGATE, 1024)
    a(f"s_lshl_b32 s64, {sB}, 7"); a(f"s_and_b32 s65, {sG}, 3"); a("s_lshl_b32 s65, s65, 5"); a("s_add_u32 s65, s65, s64")
    a(f"s_lshl_b32 s66, {sT}, 4"); a("s_add_u32 s65, s65, s66"); a(f"s_lshl_b32 s66, {sW}, 2"); a("s_add_u32 s65, s65, s66")
    a(f"s_lshr_b32 s66, {sG}, 2"); a("s_add_u32 s65, s65, s66"); a("s_lshl_b32 s68, s65, 10")
    a(f"s_lshl_b32 s66, {sG}, 4"); a("s_add_u32 s64, s64, s66"); a(f"s_lshl_b32 s66, {sT}, 3"); a("s_add_u32 s64, s64, s66"); a(f"s_lshl_b32 s66, {sW}, 1"); a("s_add_u32 s64, s64, s66")
    a("s_lshl_b32 s78, s64, 3"); a(f"s_add_u32 s78, s78, {G_OFF}")
    a("v_and_b32 v15, 1, v12"); a("v_lshlrev_b32 v15, 2, v15"); a("v_xor_b32 v15, v15, v11"); a("v_lshlrev_b32 v15, 4, v15")
    a(f"v_lshlrev_b32 v{VR}, 10, v10"); a(f"v_add_u32 v{VR}, v{VR}, v15")
    a(f"s_mul_i32 s100, {sW}, 19"); a("s_sub_u32 s100, s100, 3"); a(f"s_cmp_eq_u32 {sW}, 0"); a("s_cselect_b32 s100, 0, s100"); a("s_cselect_b32 s101, 16, 19")
    a(f"s_cmp_eq_u32 {sW}, 3"); a("s_cselect_b32 s101, 18, s101"); a("s_lshl_b32 s101, s101, 12")
    a(f"s_mul_i32 s64, {sU}, 72"); a("s_add_u32 s64, s64, s100"); a("s_lshl_b32 s64, s64, 12")
    srd(a, RA, PWS, "s101", "s64")
    a("s_sub_u32 s64, s100, 16"); a("s_lshl_b32 s64, s64, 15")
    a(f"s_cmp_eq_u32 {sW}, 0"); a("s_cselect_b32 s64, 0, s64")
    a(f"s_cselect_b32 s66, s{PWO}, s{PW2}"); a(f"s_cselect_b32 s67, s{PWO+1}, s{PW2+1}")
    a(f"s_lshl_b32 s65, {sCT}, 7"); a("s_add_u32 s64, s64, s65")
    a(f"s_add_u32 s{RB}, s66, s64"); a(f"s_addc_u32 s{RB+1}, s67, 0")
    a(f"s_lshl_b32 s{RB+2}, s101, 3"); a(f"s_sub_u32 s{RB+2}, s{RB+2}, s65"); a(f"s_mov_b32 s{RB+3}, 0x20000")
    a(f"s_lshl_b32 s79, {sW}, 12"); a(f"s_sub_u32 s79, {TOP-4096}, s79")
    a(f"s_cmp_eq_u32 {sW}, 0"); a(f"s_cselect_b32 s79, {TOP-4096-16384}, s79")
    a(f"v_mov_b32 v13, {TOP-4096}"); a(f"ds_write_b32 v13, v{VZ}"); a("s_waitcnt lgkmcnt(0)")
    a("v_lshrrev_b32 v13, 5, v0"); a("v_lshlrev_b32 v13, 10, v13"); a("v_bfe_u32 v14, v0, 2, 2"); a("v_lshlrev_b32 v14, 7, v14"); a("v_add_u32 v13, v13, v14")
    a("v_bfe_u32 v14, v0, 3, 1"); a("v_lshlrev_b32 v14, 6, v14"); a("v_add_u32 v13, v13, v14")
    a("v_bfe_u32 v14, v0, 4, 1"); a("v_lshlrev_b32 v14, 5, v14"); a("v_add_u32 v13, v13, v14")
    a("v_and_b32 v14, 3, v0"); a("v_lshlrev_b32 v14, 3, v14"); a("v_add_u32 v13, v13, v14")
    a(f"s_sub_u32 s64, s79, {3*16384}"); a("v_add_u32 v58, s64, v13"); a("v_xor_b32 v59, 64, v58")
    X = 3
    NT = 0
    wt = opt.get("wt", 0)
    def wtouch():
        La = newlab("WT"); Lb = newlab("WT")
        a(f"s_cmp_ge_u32 {sW}, 2"); a(f"s_cbranch_scc1 {La}")
        a(f"s_mul_i32 s64, {sB}, 24"); a(f"s_mul_i32 s65, {sW}, 12"); a("s_add_u32 s64, s64, s65"); a("s_add_u32 s64, s64, 128")
        a("s_lshr_b32 s65, s74, 5")
        a("v_lshrrev_b32 v13, 2, v0"); a("v_min_u32 v13, 11, v13"); a("v_add_u32 v13, s64, v13"); a("v_mul_lo_u32 v13, v13, s65")
        a("v_and_b32 v14, 3, v0")
        a(f"s_cmp_eq_u32 {sT}, 0"); a("s_cselect_b32 s64, 2, 3"); a("v_min_u32 v14, s64, v14"); a("v_mul_lo_u32 v14, v14, s75"); a("v_add_u32 v13, v13, v14")
        a(f"s_mul_i32 s64, {sG}, 448"); a(f"s_lshl_b32 s65, {sG}, 7"); a(f"s_cmp_eq_u32 {sT}, 0"); a("s_cselect_b32 s64, s65, s64")
        a(f"buffer_load_dword v14, v13, {q(RW)}, s64 offen")
        a(f"s_branch {Lb}")
        a.label(La)
        if wt == 2:
            a(f"buffer_load_dword v14, v{VZ}, {q(RAUX)}, 0 offen")
            a.label(Lb); return
        a(f"s_mul_i32 s64, {sU}, 72"); a(f"s_mul_i32 s65, {sW}, 36"); a("s_add_u32 s64, s64, s65"); a("s_sub_u32 s64, s64, 72")
        a("s_cmp_lt_u32 s64, 512")
        a(f"s_cselect_b32 s{RR}, s{PWO}, s{PW2}"); a(f"s_cselect_b32 s{RR+1}, s{PWO+1}, s{PW2+1}"); csel(a, f"s{RR+2}", 512*1024, 1792*1024); a(f"s_mov_b32 s{RR+3}, 0x20000")
        a("s_cselect_b32 s65, 0, 512"); a("s_sub_u32 s64, s64, s65"); a("s_lshl_b32 s64, s64, 10"); a(f"s_lshl_b32 s65, {sCT}, 7"); a("s_add_u32 s64, s64, s65")
        a("v_min_u32 v13, 35, v0"); a("v_lshlrev_b32 v13, 10, v13")
        a(f"buffer_load_dword v14, v13, {q(RR)}, s64 offen")
        a.label(Lb)
    def xloads():
        a(f"buffer_load_dwordx4 v[16:19], v{VL16}, {q(RX)}, s68 offen")
        a(f"buffer_load_dwordx4 v[20:23], v{VL16}, {q(RX)}, s68 offen offset:2048")
        a(f"buffer_load_dwordx4 v[24:27], v{VL16}, {q(RAUX)}, 0 offen")
    if wt: X = 4
    if opt.get("xearly", 1):
        xloads()
        if wt: wtouch()
        bar(11 + X, 0); stamp(a, opt, 0)
    else:
        bar(11, 0); stamp(a, opt, 0)
        xloads()
        if wt: wtouch()
    a(f"global_load_dwordx2 v[8:9], v{VZ}, s[{PDBG}:{PDBG+1}] sc1")
    stage(2)
    bar(X + 1 + 11, 1)
    stage(3)
    bar(NT + 11, 2)
    stage(4)
    bar(11, 3)
    stage(5)
    bar(11, 4)
    stage(6)
    srd(a, RAUX, POUT, 2048 * 1024)
    a(f"s_mul_i32 s68, {sB}, {16*FSTR}"); a(f"s_add_u32 s68, s68, {FA_OFF}")
    def fm(g0, g1): return sum(0x100 << g for g in range(g0, g1 + 1))
    a(f"s_mov_b32 s{RR}, 0x{fm(0,2):x}"); a(f"s_cmp_eq_u32 {sW}, 2"); a(f"s_cselect_b32 s{RR}, 0x{fm(2,5):x}, s{RR}")
    a(f"s_cmp_eq_u32 {sW}, 3"); a(f"s_cselect_b32 s{RR}, 0x{fm(5,7):x}, s{RR}")
    a(f"s_cmp_eq_u32 {sW}, 0"); a(f"s_cselect_b32 s{RR}, 0xff, s{RR}"); a(f"s_mov_b32 s{RR+1}, 0")
    a(f"s_lshl_b32 s69, {sU}, 9"); a(f"s_lshl_b32 s64, {sW}, 7"); a("s_add_u32 s69, s69, s64"); a(f"s_add_u32 s69, s69, {G_OFF}")
    bar(11, 5)
    stage(7)
    br = opt.get("brot", 1)
    mp = opt.get("map", "Y")
    if br == 0: a("s_mov_b32 s77, 0")
    elif mp == "Z" and opt.get("p2map", 0) == 0: a(f"s_and_b32 s77, {sB}, 3"); a("s_lshl_b32 s77, s77, 14")
    elif mp == "Z": a(f"s_and_b32 s77, {sU}, 7"); a("s_lshl_b32 s77, s77, 13")
    elif mp == "Y": a(f"s_and_b32 s77, {sB}, 7"); a("s_lshl_b32 s77, s77, 13")
    else: a(f"s_and_b32 s77, {sU}, 3"); a("s_lshl_b32 s77, s77, 14")
    a("s_lshl_b32 s76, s77, 3"); a("s_lshl_b32 s75, s101, 3")
    def bdma(i):
        j = i if i < 10 else i - 10
        for k in range(4):
            a(f"s_sub_u32 m0, s79, {16384*j - 1024*k}") if 16384*j - 1024*k >= 0 else a(f"s_add_u32 m0, s79, {1024*k - 16384*j}")
            a("s_nop 0")
            a(f"buffer_load_dwordx4 v{VR}, {q(RB)}, s76 offen lds")
            a("s_add_u32 s76, s76, 8192")
        a("s_cmp_ge_u32 s76, s75"); a("s_cselect_b32 s76, 0, s76")
    bdma(0)
    a("v_mov_b32 v2, v58"); a("v_mov_b32 v3, v59")
    bar(11 + 4, 6)
    stamp(a, opt, 1)
    for i in range(1, 4): bdma(i)
    bar(16, 7)
    for i in range(4, 7): bdma(i)
    a("s_barrier")
    stamp(a, opt, 2)
    def gate():
        tag_check(a, 8, VZ)
        for k in range(4):
            a(f"v_lshlrev_b32 v{28+2*k}, 16, v{24+k}"); a(f"v_and_b32 v{29+2*k}, 0xffff0000, v{24+k}")
        for row in range(2):
            xb = 16 + 4 * row; P = 36 + 8 * row
            for k in range(4):
                a(f"v_lshlrev_b32 v{P+2*k}, 16, v{xb+k}"); a(f"v_and_b32 v{P+2*k+1}, 0xffff0000, v{xb+k}")
            for i in range(0, 8, 2): a(f"v_pk_mul_f32 {vr(P+i,2)}, {vr(P+i,2)}, {vr(28+i,2)}")
            for k in range(4): a(f"v_cvt_pk_bf16_f32 v{xb+k}, v{P+2*k}, v{P+2*k+1}")
            for k in range(4):
                a(f"v_lshlrev_b32 v{P+2*k}, 16, v{xb+k}"); a(f"v_and_b32 v{P+2*k+1}, 0xffff0000, v{xb+k}")
            a(f"v_pk_add_f32 {vr(P,2)}, {vr(P,2)}, {vr(P+4,2)}"); a(f"v_pk_add_f32 {vr(P+2,2)}, {vr(P+2,2)}, {vr(P+6,2)}")
            a(f"v_pk_add_f32 {vr(P,2)}, {vr(P,2)}, {vr(P+2,2)}")
            a(f"v_add_f32 v{52+row}, v{P}, v{P+1}")
        for sh in (8, 4, 2, 1):
            a.nop(1)
            for row in range(2): a(f"v_add_f32_dpp v{52+row}, v{52+row}, v{52+row} row_ror:{sh} row_mask:0xf bank_mask:0xf")
        for sw in ("v_permlane32_swap_b32", "v_permlane16_swap_b32"):
            for row in range(2): a(f"v_mov_b32 v{54+row}, v{52+row}")
            a.nop(2)
            for row in range(2): a(f"{sw} v{52+row}, v{54+row}")
            for row in range(2): a(f"v_add_f32 v{52+row}, v{52+row}, v{54+row}")
        a("v_cvt_pk_bf16_f32 v54, v52, v53")
        a("v_lshlrev_b32 v52, 16, v54"); a("v_and_b32 v53, 0xffff0000, v54")
        for row in range(2): a(f"v_mul_f32 v{52+row}, 0x{f32bits(-LOG2E):x}, v{52+row}")
        for row in range(2): a(f"v_exp_f32 v{52+row}, v{52+row}")
        a.nop(1)
        for row in range(2): a(f"v_add_f32 v{52+row}, 1.0, v{52+row}")
        for row in range(2): a(f"v_rcp_f32 v{52+row}, v{52+row}")
        a.nop(1)
        a("v_cvt_pk_bf16_f32 v54, v52, v53")
        a("v_lshlrev_b32 v52, 16, v54"); a("v_and_b32 v53, 0xffff0000, v54")
        a("v_mov_b32 v54, v8"); a("v_mov_b32 v55, v9")
        a("s_mov_b64 exec, 1")
        a(f"buffer_store_dwordx4 v[52:55], v{VZ}, {q(RWS)}, s78 offen sc1")
        a("s_mov_b64 exec, -1")
        a(f"v_mul_u32_u24 v57, {FSTR}, v0")
    ACC = 8; BR = 72
    ref = [3]
    def btr(j, regs):
        r = 3 if j < 4 else (7 if j < 8 else 9)
        out = []
        if r != ref[0]:
            d = ((ref[0] - r) * 16384) & 0xffffffff
            out.append("\n".join(f"v_add_u32 v{2+nt}, 0x{d:x}, v{2+nt}" for nt in range(2))); ref[0] = r
        for f in range(4):
            out.append("\n".join(f"ds_read_b64_tr_b16 {vr(regs[f]+2*e,2)}, v{2+(f&1)} offset:{(r-j)*16384 + (f>>1)*2048 + e*512}" for e in range(2)))
        return out
    sbn = opt.get("sbn", 1)
    for i in range(7, 7 + sbn): bdma(i)
    gpos = opt.get("gpos", 0)
    if gpos == 0: gate()
    for i in range(7):
        a(f"s_waitcnt vmcnt({4*(6 - i + sbn)})")
        for x in btr(i, [BR + 16*i + 4*n for n in range(4)]): a(x)
    if gpos == 1: gate()
    a(f"s_cmp_eq_u32 {sT}, 0"); a("s_cbranch_scc1 KL_NOSB"); a("s_barrier"); a.label("KL_NOSB")
    a("s_waitcnt lgkmcnt(0)")
    for i in range(7 + sbn, 9): bdma(i)
    a(f"s_cmp_eq_u32 {sW}, 0"); a("s_cbranch_scc1 KL_SK9")
    bdma(9)
    a.label("KL_SK9")
    for i in range(10, 15): bdma(i)
    a("s_waitcnt vmcnt(20)")
    for i in (7, 8):
        for x in btr(i, [BR + 16*i + 4*n for n in range(4)]): a(x)
    for i in range(15, 17): bdma(i)
    a(f"s_mov_b64 exec, s[{RR}:{RR+1}]")
    a(f"buffer_load_dwordx2 v[8:9], v57, {q(RWS)}, s68 offen sc1")
    a("s_mov_b64 exec, -1")
    a("s_waitcnt lgkmcnt(0)")
    a(f"s_cmp_eq_u32 {sW}, 0"); a("s_cbranch_scc1 KL_W0")
    bdma(17)
    a(f"s_cmp_eq_u32 {sW}, 3"); a("s_cbranch_scc1 KL_W1")
    bdma(18)
    a("s_waitcnt vmcnt(8)"); a("s_branch KL_W2")
    a.label("KL_W0"); a("s_waitcnt vmcnt(0)")
    a.label("KL_W1"); a("s_waitcnt vmcnt(4)")
    a.label("KL_W2")
    stamp(a, opt, 3)
    a("v_lshrrev_b32 v7, 4, v0"); a("v_lshlrev_b32 v7, 4, v7")
    a(f"s_mov_b64 exec, s[{RR}:{RR+1}]")
    poll(a, 8, 57, "s68", f"s[{RR}:{RR+1}]", first_loaded=True)
    a("s_mov_b64 exec, -1")
    a("s_waitcnt lgkmcnt(0)")
    stamp(a, opt, 4)
    ref0 = ref[0]
    a(f"s_cmp_eq_u32 {sW}, 0"); a("s_cbranch_scc1 KL_V16")
    def acc(tp, np_): return ACC + 16 * (2 * tp + np_)
    DM = opt.get("dmax", 12)
    GR = {}
    for nst, lab in ((19, None), (16, "KL_V16")):
        a(".p2align 3")
        if lab: a.label(lab)
        free = list(range(BR + 16 * NBR, 256, 4)); ref[0] = ref0
        pend = [("A", i, b) for i in range(nst) for b in range(4)] + [("G", 0, 0), ("G", 1, 0)]
        loc = {}; issued = []; cur_soff = [None]
        done_loads = [0]
        def issue():
            if not pend or not free: return False
            if len(issued) - done_loads[0] >= DM: return False
            k = pend.pop(0); r = free.pop(0); loc[k] = r; issued.append(k)
            if k[0] == "A":
                if cur_soff[0] != k[1] and k[1]:
                    a("s_add_u32 s77, s77, 4096"); a("s_cmp_ge_u32 s77, s101"); a("s_cselect_b32 s77, 0, s77"); cur_soff[0] = k[1]
                if not opt.get("p2noload"): a(f"buffer_load_dwordx4 {vr(r,4)}, v{VL16}, {q(RA)}, s77 offen offset:{k[2]*1024} {opt.get('ald', 'sc1')}")
            else:
                a(f"buffer_load_dwordx4 {vr(r,4)}, v7, {q(RWS)}, s69 offen offset:{k[1]*64} sc1")
            return True
        while issue(): pass
        bl = {}
        ldsq = []
        for i in range(nst):
            if nst == 19 and i == 18:
                assert not pend
                a(f"s_cmp_eq_u32 {sW}, 3"); a("s_cbranch_scc1 KL_POST")
            Bv = [BR + 16 * i + 4 * n for n in range(4)] if i < NBR else bl[i]
            needb = NBR <= i + 2 < nst
            if needb:
                tr = btr((9 if i + 2 == 9 else i + 2 - 10) if nst == 19 else i + 2 - 9, Bv)
                if len(tr) == 5: a(tr.pop(0))
                bl[i + 2] = Bv
            for half in range(2):
                for tp in range(2):
                    blk = 2 * half + tp
                    idx = issued.index(("A", i, blk)); done_loads[0] = idx + 1
                    w = f"s_waitcnt vmcnt({len(issued) - idx - 1})"
                    if i >= NBR and tp == 0:
                        li = ldsq.index((i, 2 * half + 1))
                        w += f" lgkmcnt({min(15, 2 * (len(ldsq) - li - 1))})"
                    a(w); a("s_nop 0")
                    A = loc[("A", i, blk)]
                    for np_ in range(2):
                        c = vr(acc(tp, np_), 16) if (i > 0 or half > 0) else "0"
                        f = 2 * half + np_
                        if not opt.get("p2nomfma") or i == 0: a(f"v_mfma_f32_32x32x16_bf16 {vr(acc(tp,np_),16)}, {vr(Bv[f],4)}, {vr(A,4)}, {c}")
                        if np_ == 1: free.append(A)
                        if tp == 1:
                            if needb: a(tr[f]); ldsq.append((i + 2, f))
                            else: free.append(Bv[f])
                        issue()
        assert not pend
        GR[nst] = (loc[("G", 0, 0)], loc[("G", 1, 0)])
        if not lab:
            a.label("KL_POST")
        a("s_waitcnt vmcnt(0) lgkmcnt(0)")
        assert GR[nst][1] != 72
        for h in range(2):
            for e in range(4): a(f"v_mov_b32 v{72+4*h+e}, v{GR[nst][h]+e}") if GR[nst][h] != 72 + 4 * h else None
        if not lab: a("s_branch KL_FIN")
    a.label("KL_FIN")
    stamp(a, opt, 5)
    final(a, opt, ACC)
    stamp(a, opt, 7)
    if so.get("stamps"): a(f"s_add_u32 s100, {sW}, 40")
    if so.get("stamps"): a(f"s_lshl_b32 s64, {sT}, 2"); a("s_add_u32 s100, s100, s64")
    stamp_end(a, so, "s100")

def final(a, opt, ACC):
    a("v_and_b32 v80, 15, v0"); a("v_lshrrev_b32 v81, 5, v0"); a("v_xor_b32 v81, v81, v80"); a("v_lshlrev_b32 v81, 4, v81")
    a("v_lshlrev_b32 v82, 8, v80"); a("v_add_u32 v81, v81, v82"); a("v_bfe_u32 v82, v0, 4, 1"); a("v_lshlrev_b32 v82, 14, v82"); a("v_sub_u32 v81, v81, v82")
    a(f"s_sub_u32 s64, s79, {2*16384}"); a("v_add_u32 v96, s64, v81")
    for k in range(1, 8): a(f"v_xor_b32 v{96+k}, {32*k}, v96")
    for tp in range(2):
        for np_ in range(2):
            for j in range(4):
                a(f"ds_write_b128 v{96+4*np_+j}, {vr(ACC+16*(2*tp+np_)+4*j,4)} offset:{(1-tp)*32768}")
    L = newlab("GL"); D = newlab("GD")
    a("s_mov_b32 s66, 0x40000")
    a.label(L)
    a(f"v_cmp_eq_u64 vcc, s[{TAG}:{TAG+1}], v[74:75]"); a(f"v_cmp_eq_u64 s[64:65], s[{TAG}:{TAG+1}], v[78:79]"); a("s_nop 0")
    a("s_and_b64 s[64:65], s[64:65], vcc"); a("s_andn2_b64 s[64:65], exec, s[64:65]"); a(f"s_cbranch_scc0 {D}")
    a("s_sub_u32 s66, s66, 1"); a("s_cmp_eq_u32 s66, 0"); a(f"s_cbranch_scc1 {D}")
    a("s_sleep 1")
    a(f"buffer_load_dwordx4 v[72:75], v7, {q(RWS)}, s69 offen sc1"); a(f"buffer_load_dwordx4 v[76:79], v7, {q(RWS)}, s69 offen offset:64 sc1")
    a("s_waitcnt vmcnt(0)"); a(f"s_branch {L}")
    a.label(D)
    a("v_and_b32 v85, 8, v0"); a("v_cmp_ne_u32 vcc, 0, v85")
    a(f"s_lshr_b32 s64, {sU}, 1"); a("s_lshl_b32 s64, s64, 7"); a(f"s_lshl_b32 s65, {sW}, 5"); a("s_add_u32 s64, s64, s65"); a(f"s_and_b32 s65, {sU}, 1"); a("s_add_u32 s64, s64, s65")
    a("s_lshl_b32 s64, s64, 10"); a(f"s_lshl_b32 s65, {sCT}, 7"); a("s_add_u32 s70, s64, s65"); a("s_add_u32 s71, s70, 16384")
    a("v_cndmask_b32 v72, v72, v73, vcc"); a("v_cndmask_b32 v73, v76, v77, vcc")
    a("v_lshrrev_b32 v85, 3, v0"); a("v_and_b32 v86, 7, v0")
    a("v_lshlrev_b32 v87, 11, v85"); a("v_lshlrev_b32 v88, 4, v86"); a("v_add_u32 v87, v87, v88")
    a("v_lshlrev_b32 v88, 1, v86"); a("v_xor_b32 v88, v88, v85"); a("v_lshlrev_b32 v88, 4, v88"); a("v_lshlrev_b32 v85, 8, v85"); a("v_add_u32 v88, v88, v85")
    a(f"s_lshl_b32 s64, {sW}, 14"); a(f"s_sub_u32 s64, {TOP-32768}, s64"); a("v_add_u32 v88, s64, v88")
    a("v_xor_b32 v89, 16, v88"); a("v_xor_b32 v90, 128, v88"); a("v_xor_b32 v91, 144, v88")
    for i in range(2): a(f"v_sub_f32 v{74+i}, 1.0, v{72+i}")
    a("v_cvt_pk_bf16_f32 v74, v74, v75"); a("v_and_b32 v75, 0xffff0000, v74"); a("v_lshlrev_b32 v74, 16, v74")
    a("s_waitcnt lgkmcnt(0)"); a("s_barrier"); stamp(a, opt, 6, True)
    T = 104
    def P(h, src): return T + 32 * h + 8 * src
    for h in range(2):
        for src in (1, 2, 3, 0):
            for e in range(2):
                ra = 88 + 2 * h + e
                off = (3 - src) * 4096 + h * 2048 + (16384 if src else 0)
                a(f"ds_read_b128 {vr(P(h,src)+4*e,4)}, v{ra} offset:{off}")
    for h in range(2):
        a(f"s_waitcnt lgkmcnt({8*(1-h)+4})")
        for i in range(0, 8, 2): a(f"v_pk_add_f32 {vr(P(h,1)+i,2)}, {vr(P(h,1)+i,2)}, {vr(P(h,2)+i,2)}")
        a(f"s_waitcnt lgkmcnt({8*(1-h)+2})")
        for i in range(0, 8, 2): a(f"v_pk_add_f32 {vr(P(h,1)+i,2)}, {vr(P(h,1)+i,2)}, {vr(P(h,3)+i,2)}")
        a(f"s_waitcnt lgkmcnt({8*(1-h)})")
        for i in range(8): a(f"v_mul_f32 v{P(h,0)+i}, v{P(h,0)+i}, v{72+h}")
        for i in range(8): a(f"v_fma_f32 v{P(h,0)+i}, v{P(h,1)+i}, v{74+h}, v{P(h,0)+i}")
        for i in range(4): a(f"v_cvt_pk_bf16_f32 v{P(h,2)+i}, v{P(h,0)+2*i}, v{P(h,0)+2*i+1}")
        a(f"buffer_store_dwordx4 {vr(P(h,2),4)}, v87, {q(RAUX)}, s{70+h} offen {opt.get('ost', '')}")

def generate(opt):
    a = Asm()
    a(f"; @launch grid=(256,1,1) block=(512,1,1) lds={LDS_BYTES}")
    a('.amdgcn_target "amdgcn-amd-amdhsa--gfx950"'); a(".text")
    gen(a, opt)
    a('.section .rodata,"a"'); a(".p2align 6")
    a(f".amdhsa_kernel {NAME}_kernel")
    a("  .amdhsa_next_free_vgpr 256"); a("  .amdhsa_next_free_sgpr 102"); a("  .amdhsa_accum_offset 256")
    a("  .amdhsa_group_segment_fixed_size 0"); a("  .amdhsa_kernarg_size 80"); a("  .amdhsa_user_sgpr_count 2")
    a("  .amdhsa_user_sgpr_kernarg_segment_ptr 1"); a("  .amdhsa_system_sgpr_workgroup_id_x 1"); a(".end_amdhsa_kernel")
    errs = check(a.lines)
    for e in errs: print(e, file=sys.stderr)
    assert not errs
    return a.text()

if __name__ == "__main__":
    opt = {}
    for kv in sys.argv[2:]:
        k, v = kv.split("=")
        try: v = int(v)
        except: pass
        opt[k] = v
    open(sys.argv[1], "w").write(generate(opt))
```

```python
import sys, struct
from asmlib import *

NAME = "gated_mix__sliding_local_dilated__dense_activation_relu__prompt"
A2_OFF = 0
W2_OFF = 0xA00000
G_OFF = 0xD00000
FW_OFF = 0xD10000
FA_OFF = 0xD20000
WS_USED = 0xD80000
FSTR = 1152
STAMP_OFF = 128 << 20
SLOT = 45056
XOFF, WOFF, EOFF = 0, 16384, 40960
SCR = 3 * SLOT
LDS_BYTES = 163840
TOP = LDS_BYTES
def slot_of(s): return ((7 - s) % 3) * SLOT
BIG = 0xF149F2CA
LOG2E = 1.4426950408889634
KS0 = [0, 16, 35, 54]; NST = [16, 19, 19, 18]
NBR = 9
BL_BASE = [0, 28672, 69632, 110592]
PX, PWQKV, PWO, PW1, PW2, PGATE, POUT, PDBG, PWS = 4, 6, 8, 12, 14, 16, 18, 20, 22
sB, sT, sG, sW, sU, sCT, TAG = "s24", "s25", "s26", "s27", "s28", "s29", 30
RX, RW, RE, RWS, RR, RAUX, RA, RB = 32, 36, 40, 44, 48, 52, 56, 60

def f32bits(x): return struct.unpack("<I", struct.pack("<f", x))[0]
def q(r): return f"s[{r}:{r+3}]"

def srd(a, d, base, size, add=0):
    if add == 0:
        a(f"s_mov_b32 s{d}, s{base}"); a(f"s_mov_b32 s{d+1}, s{base+1}")
    else:
        a(f"s_add_u32 s{d}, s{base}, {add}"); a(f"s_addc_u32 s{d+1}, s{base+1}, 0")
    a(f"s_mov_b32 s{d+2}, {size}"); a(f"s_mov_b32 s{d+3}, 0x20000")

def csel(a, d, x, y):
    a(f"s_mov_b32 {d}, {y}"); a(f"s_cselect_b32 {d}, {x}, {d}")

def spread(a, mf, other, last=4):
    n = len(mf) - last; other = list(other); k = 0
    for i, m in enumerate(mf):
        a(m)
        while k < len(other) and k * n <= i * len(other): a(other[k]); k += 1
    while k < len(other): a(other[k]); k += 1

def mix(xs, ws):
    out = []; i = j = 0
    while i < len(xs) or j < len(ws):
        if j >= len(ws) or (i < len(xs) and i * len(ws) <= j * len(xs)): out.append(xs[i]); i += 1
        else: out.append(ws[j]); j += 1
    return out

def interleave(a, mf, other, start=0, per=1):
    other = list(other)
    for i, m in enumerate(mf):
        a(m)
        if i >= start:
            for _ in range(per):
                if other: a(other.pop(0))
    for o in other: a(o)

def stamp_begin(a, opt):
    if opt.get("stamps"):
        a("s_memrealtime s[80:81]"); a("s_memtime s[82:83]")
        for k in range(8): a(f"s_mov_b32 s{84+2*k}, 0")

def stamp(a, opt, k, wait=False):
    if opt.get("stamps"):
        a(f"s_memtime s[{84+2*k}:{85+2*k}]")
        if wait: a("s_waitcnt lgkmcnt(0)")

def stamp_end(a, opt, tag):
    if not opt.get("stamps"): return
    a("s_waitcnt vmcnt(0) lgkmcnt(0)")
    a("s_memrealtime s[64:65]"); a("s_memtime s[66:67]")
    a("s_waitcnt lgkmcnt(0)")
    srd(a, RAUX, PWS, 1 << 20, STAMP_OFF)
    a("s_lshl_b32 s68, s2, 3"); a("s_add_u32 s68, s68, s3"); a("s_lshl_b32 s68, s68, 6")
    a("s_getreg_b32 s69, hwreg(HW_REG_XCC_ID)")
    a(f"s_mov_b32 s65, {tag}")
    for i, s in enumerate((80, 64, 82, 84, 86, 88, 90, 92, 94, 96, 98, 66, 69, 65, 65, 65)):
        a(f"v_mov_b32 v{8+i}, s{s}")
    a("v_mov_b32 v6, s68")
    a("s_mov_b64 exec, 1")
    for k in range(4):
        a(f"buffer_store_dwordx4 v[{8+4*k}:{11+4*k}], v6, {q(RAUX)}, 0 offen offset:{16*k}")
    a("s_waitcnt vmcnt(0)")

_lab = [0]
def newlab(p):
    _lab[0] += 1; return f"{p}_{_lab[0]}"

def tag_check(a, vt, vz):
    L = newlab("TAGL"); D = newlab("TAGD")
    a("s_mov_b32 s64, 0x40000")
    a.label(L)
    a(f"v_readfirstlane_b32 s{TAG}, v{vt}"); a(f"v_readfirstlane_b32 s{TAG+1}, v{vt+1}"); a("s_nop 0")
    a(f"s_cmp_lg_u32 s{TAG}, 0"); a(f"s_cbranch_scc1 {D}")
    a("s_sub_u32 s64, s64, 1"); a("s_cmp_eq_u32 s64, 0"); a(f"s_cbranch_scc1 {D}")
    a("s_sleep 2")
    a(f"global_load_dwordx2 v[{vt}:{vt+1}], v{vz}, s[{PDBG}:{PDBG+1}] sc1"); a("s_waitcnt vmcnt(0)")
    a(f"s_branch {L}")
    a.label(D)

def poll(a, vt, voff, soff, need, first_loaded=False):
    L = newlab("POLL"); C = newlab("POLC"); D = newlab("POLD")
    a("s_mov_b32 s66, 0x40000")
    if first_loaded: a(f"s_branch {C}")
    a.label(L)
    a(f"buffer_load_dwordx2 v[{vt}:{vt+1}], v{voff}, {q(RWS)}, {soff} offen sc1")
    a("s_waitcnt vmcnt(0)")
    a.label(C)
    a(f"v_cmp_eq_u64 vcc, s[{TAG}:{TAG+1}], v[{vt}:{vt+1}]"); a("s_nop 0")
    a(f"s_andn2_b64 s[64:65], {need}, vcc"); a(f"s_cbranch_scc0 {D}")
    a("s_sub_u32 s66, s66, 1"); a("s_cmp_eq_u32 s66, 0"); a(f"s_cbranch_scc1 {D}")
    a("s_sleep 1"); a(f"s_branch {L}")
    a.label(D)

def gen(a, opt):
    kn = NAME + "_kernel"
    a(f".globl {kn}"); a(".p2align 8"); a(f".type {kn},@function"); a.label(kn)
    a("s_cmp_ge_u32 s2, 256"); a("s_cbranch_scc1 K_END")
    a("s_load_dwordx16 s[4:19], s[0:1], 0")
    a("s_load_dwordx4 s[20:23], s[0:1], 64")
    stamp_begin(a, opt)
    a("v_lshrrev_b32 v1, 6, v0"); a("v_and_b32 v0, 63, v0")
    a("v_readfirstlane_b32 s3, v1")
    a("s_and_b32 s64, s2, 7"); a("s_lshr_b32 s65, s2, 3")
    m = opt.get("map", "Y")
    if m == "Z":
        a(f"s_lshr_b32 {sB}, s64, 1"); a(f"s_lshl_b32 {sB}, {sB}, 2"); a("s_and_b32 s66, s65, 3"); a(f"s_add_u32 {sB}, {sB}, s66")
        a("s_lshr_b32 s66, s65, 2")
        a(f"s_and_b32 {sT}, s66, 1")
        a("s_and_b32 s67, s64, 1"); a(f"s_lshl_b32 {sG}, s67, 2"); a("s_lshr_b32 s68, s66, 1"); a(f"s_add_u32 {sG}, {sG}, s68")
        if opt.get("p2map", 0) == 0:
            a(f"s_lshl_b32 {sU}, {sB}, 1"); a(f"s_add_u32 {sU}, {sU}, s67"); a(f"s_mov_b32 {sCT}, s66")
        else:
            a(f"s_lshl_b32 {sU}, {sB}, 1"); a(f"s_add_u32 {sU}, {sU}, {sT}"); a(f"s_mov_b32 {sCT}, {sG}")
    elif m == "X":
        a(f"s_lshl_b32 {sB}, s64, 1"); a("s_and_b32 s66, s65, 1"); a(f"s_add_u32 {sB}, {sB}, s66")
        a("s_lshr_b32 s66, s65, 1")
        a(f"s_and_b32 {sT}, s66, 1"); a(f"s_lshr_b32 {sG}, s66, 1")
        a(f"s_lshl_b32 {sU}, {sB}, 1"); a(f"s_add_u32 {sU}, {sU}, {sT}"); a(f"s_mov_b32 {sCT}, {sG}")
    elif m == "Y":
        a(f"s_lshr_b32 {sB}, s64, 2"); a(f"s_lshl_b32 {sB}, {sB}, 3"); a("s_and_b32 s66, s65, 7"); a(f"s_add_u32 {sB}, {sB}, s66")
        a("s_lshr_b32 s66, s65, 3")
        a(f"s_and_b32 {sT}, s66, 1")
        a("s_and_b32 s67, s64, 3"); a(f"s_lshl_b32 {sG}, s67, 1"); a("s_lshr_b32 s68, s66, 1"); a(f"s_add_u32 {sG}, {sG}, s68")
        a("s_and_b32 s68, s64, 1"); a(f"s_lshl_b32 {sU}, {sB}, 1"); a(f"s_add_u32 {sU}, {sU}, s68")
        a("s_and_b32 s68, s64, 2"); a("s_lshl_b32 s68, s68, 1"); a(f"s_add_u32 {sCT}, s68, s66")
    a(f"s_and_b32 {sW}, s3, 3")
    a("s_cmp_ge_u32 s3, 4"); a("s_cbranch_scc1 K_LOADER")
    a(f"s_cmp_eq_u32 {sT}, 0"); a("s_cbranch_scc1 K_ATTN")
    gen_ffn(a, opt)
    gen_attn(a, opt)
    gen_loader(a, opt)
    a.label("K_END"); a("s_endpgm")
    a.label("K_CODE_END")

def compute_common_setup(a, opt):
    L = newlab("CS")
    a("v_mov_b32 v1, 0")
    a("s_or_b32 s64, s2, s3"); a("s_cmp_lg_u32 s64, 0"); a(f"s_cbranch_scc1 {L}")
    a("s_memrealtime s[64:65]"); a("s_waitcnt lgkmcnt(0)")
    a("s_or_b32 s64, s64, 1"); a("s_xor_b32 s65, s65, 0x5bd1e995")
    a("v_mov_b32 v10, s64"); a("v_mov_b32 v11, s65")
    a("s_mov_b64 exec, 1")
    a(f"global_store_dwordx2 v1, v[10:11], s[{PDBG}:{PDBG+1}] sc1")
    a("s_mov_b64 exec, -1")
    a.label(L)
    if opt.get("cpf", 1):
        L = newlab("CS")
        a("s_cmp_ge_u32 s2, 8"); a(f"s_cbranch_scc1 {L}"); a("s_cmp_lg_u32 s3, 1"); a(f"s_cbranch_scc1 {L}")
        a("s_getpc_b64 s[64:65]")
        G = newlab("GP"); a.label(G)
        a(f"s_sub_u32 s64, s64, {G}-{NAME}_kernel"); a("s_subb_u32 s65, s65, 0")
        a("v_lshlrev_b32 v10, 7, v0")
        a(f"s_mov_b32 s66, K_CODE_END-{NAME}_kernel-4")
        for r in range(opt.get("cpfn", 4)):
            a("v_min_u32 v11, s66, v10"); a("global_load_dword v255, v11, s[64:65]"); a("v_add_u32 v10, 8192, v10")
        a.label(L)
    if opt.get("duty", 1):
        Lb = newlab("DU"); Lc = newlab("DU"); Ld = newlab("DU")
        a("v_lshlrev_b32 v254, 7, v0")
        a(f"s_mov_b32 s{RR+3}, 0x20000")
        a("s_cmp_ge_u32 s2, 156"); a(f"s_cbranch_scc1 {Lb}")
        a("s_lshl_b32 s64, s2, 1"); a(f"s_add_u32 s64, s64, {sW}")
        a("s_mul_i32 s65, s64, 1261"); a("s_lshr_b32 s65, s65, 16"); a("s_mul_i32 s66, s65, 52"); a("s_sub_u32 s64, s64, s66")
        a(f"s_max_u32 s101, s65, {opt.get('dlead', 1)}"); a(f"s_sub_u32 s101, s101, {opt.get('dlead', 1)}")
        a("s_add_u32 s65, s65, 2")
        a("s_cmp_lt_u32 s64, 24")
        a(f"s_cselect_b32 s{RR}, s{PWQKV}, s{PW1}"); a(f"s_cselect_b32 s{RR+1}, s{PWQKV+1}, s{PW1+1}"); csel(a, f"s{RR+2}", 512*3072, 512*3584)
        a("s_cselect_b32 s66, 24, 28"); a("s_cselect_b32 s67, 0, 24"); a("s_mul_i32 s65, s65, s66"); a("s_add_u32 s64, s64, s65"); a("s_sub_u32 s64, s64, s67"); a("s_lshl_b32 s100, s64, 13")
        a(f"s_cmp_ge_u32 {sW}, 2"); a("s_cselect_b32 s101, 255, s101")
        a(f"s_branch {Lc}")
        a.label(Lb)
        a("s_sub_u32 s64, s2, 156"); a("s_mul_i32 s64, s64, 3"); a(f"s_add_u32 s64, s64, {sW}")
        a("s_mul_i32 s101, s64, 911"); a("s_lshr_b32 s101, s101, 16"); a(f"s_add_u32 s101, s101, {opt.get('dbs', 1)}")
        a(f"s_cmp_ge_u32 {sW}, 3"); a("s_cselect_b32 s101, 255, s101"); a("s_cmp_ge_u32 s64, 288"); a("s_cselect_b32 s101, 255, s101")
        a("s_cmp_lt_u32 s64, 64")
        a(f"s_cselect_b32 s{RR}, s{PWO}, s{PW2}"); a(f"s_cselect_b32 s{RR+1}, s{PWO+1}, s{PW2+1}"); csel(a, f"s{RR+2}", 512*1024, 1792*1024)
        a("s_cselect_b32 s67, 0, 64"); a("s_sub_u32 s64, s64, s67"); a("s_lshl_b32 s100, s64, 13")
        a.label(Lc)
    srd(a, RWS, PWS, WS_USED)
    if opt.get("tlb", 0):
        Lt = newlab("TLB")
        a(f"s_cmp_lg_u32 {sW}, 2"); a(f"s_cbranch_scc1 {Lt}")
        a("v_lshlrev_b32 v13, 21, v0"); a("s_mov_b64 exec, 0x7f")
        a(f"buffer_load_dword v12, v13, {q(RWS)}, 0 offen")
        a("s_mov_b64 exec, 1")
        for p in (PW2, PWO, POUT, PGATE, PDBG):
            a(f"global_load_dword v12, v1, s[{p}:{p+1}]")
        a("s_mov_b64 exec, -1")
        a.label(Lt)
    a(f"s_lshl_b32 s78, {sB}, 4"); a(f"s_lshl_b32 s64, {sT}, 3"); a("s_add_u32 s78, s78, s64"); a(f"s_add_u32 s78, s78, {sG}")
    a(f"s_mul_i32 s78, s78, {FSTR}"); a(f"s_add_u32 s78, s78, {FA_OFF}")

def compute_publish(a, opt, vt, nst):
    L = newlab("NOPUB")
    a("s_mov_b64 exec, 1")
    a(f"v_mov_b32 v12, {TOP-4096}"); a("v_mov_b32 v13, 1")
    a(f"s_waitcnt vmcnt({nst})")
    tag_check(a, vt, 1)
    a("s_waitcnt vmcnt(0)")
    stamp(a, opt, 6)
    a("ds_add_rtn_u32 v13, v12, v13"); a("s_waitcnt lgkmcnt(0)")
    a("v_cmp_eq_u32 vcc, 3, v13"); a("s_nop 0"); a(f"s_cbranch_vccz {L}")
    a(f"buffer_store_dwordx2 v[{vt}:{vt+1}], v1, {q(RWS)}, s78 offen sc1")
    a.label(L)

def mainloop(a, opt, pre, addr_regs, reads, mfmas):
    a("s_mov_b32 s70, 1"); a("s_mov_b32 s72, 0"); a(f"s_mov_b32 s73, {(-SLOT) & 0xffffffff}"); a(f"s_mov_b32 s79, {2*SLOT}")
    for r in addr_regs: a(f"v_add_u32 v{r}, {slot_of(0)}, v{r}")
    if opt.get("prio", 2) == 1: a("s_setprio 1")
    du = opt.get("duty", 1)
    dl = f"buffer_load_dword v255, v254, {q(RR)}, s100 offen"
    if du:
        Ld = newlab("DU"); a("s_cmp_lg_u32 s101, 0"); a(f"s_cbranch_scc1 {Ld}"); a(dl); a.label(Ld)
    stamp(a, opt, 0)
    a("s_barrier")
    stamp(a, opt, 1)
    for r in reads(0, 0): a(r)
    a(".p2align 3")
    a.label(pre + "_LOOP")
    a("s_waitcnt lgkmcnt(0)")
    a("s_add_u32 s70, s70, 1")
    last = opt.get("last", 6)
    sal = ["s_cmp_eq_u32 s70, 3\ns_cselect_b32 s71, s79, s73", "s_cselect_b32 s70, 0, s70\ns_add_u32 s72, s72, 1"]
    if du: sal.append(f"s_cmp_eq_u32 s72, s101\ns_cbranch_scc1 {pre}_DUTY\n{pre}_DBACK:")
    sal.append("s_cmp_eq_u32 s72, 8\ns_nop 0")
    mf = mfmas(0)
    spread(a, mf[:-last], reads(1, 1), 0)
    interleave(a, mf[-last:], sal)
    a("s_waitcnt lgkmcnt(0)")
    a("s_barrier")
    adv = [f"v_add_u32 v{r}, s71, v{r}" for r in addr_regs]
    if len(adv) % 2: adv.append("s_nop 0")
    adv = [adv[i] + "\n" + adv[i+1] for i in range(0, len(adv), 2)]
    mf = mfmas(1)
    interleave(a, mf[:len(adv)], adv)
    spread(a, mf[len(adv):], reads(0, 0), opt.get("last2", 2))
    a(f"s_cbranch_scc0 {pre}_LOOP")
    if du:
        a(f"s_branch {pre}_DONE"); a.label(pre + "_DUTY"); a(dl); a(f"s_branch {pre}_DBACK"); a.label(pre + "_DONE")
    a("s_waitcnt lgkmcnt(0)")
    if opt.get("prio", 2) == 2: a("s_setprio 3")
    stamp(a, opt, 2)

def gen_ffn(a, opt):
    ACC = 16; FR = 128
    def acc(t, n): return ACC + 4 * (t * 7 + n)
    def xf(s, t): return FR + 44 * s + 4 * t
    def wf(s, n): return FR + 44 * s + 16 + 4 * n
    XA = [2, 3]; WA = [4, 5, 6, 7]; SA = 8
    a(f"s_lshr_b32 s68, {sW}, 1")
    a(f"s_and_b32 s69, {sW}, 1")
    a("v_and_b32 v10, 15, v0"); a("v_lshrrev_b32 v11, 4, v0")
    a("v_lshrrev_b32 v12, 1, v10"); a("v_xor_b32 v12, v12, v11"); a("v_lshlrev_b32 v12, 4, v12")
    a("v_lshlrev_b32 v13, 7, v10"); a("v_add_u32 v12, v12, v13")
    a("s_lshl_b32 s64, s68, 13"); a(f"v_add_u32 v{XA[0]}, s64, v12"); a(f"v_xor_b32 v{XA[1]}, 64, v{XA[0]}")
    a("v_bfe_u32 v12, v0, 2, 2")
    a("v_lshlrev_b32 v13, 3, v11"); a("v_add_u32 v13, v13, v12")
    a("v_lshrrev_b32 v14, 1, v12"); a("v_and_b32 v15, 1, v11"); a("v_lshlrev_b32 v9, 1, v15"); a("v_or_b32 v14, v14, v9")
    a("v_and_b32 v9, 3, v0"); a("v_lshlrev_b32 v9, 3, v9")
    a("v_lshlrev_b32 v12, 7, v13"); a("v_add_u32 v12, v12, v9")
    for j in range(4):
        a("s_mul_i32 s64, s69, 6"); a(f"s_add_u32 s64, s64, {j}")
        a("s_and_b32 s65, s64, 3"); a("s_lshr_b32 s64, s64, 2"); a("s_lshl_b32 s64, s64, 13"); a(f"s_add_u32 s64, s64, {WOFF}")
        a(f"v_xor_b32 v{WA[j]}, s65, v14"); a(f"v_lshlrev_b32 v{WA[j]}, 5, v{WA[j]}"); a(f"v_add_u32 v{WA[j]}, v{WA[j]}, v12"); a(f"v_add_u32 v{WA[j]}, s64, v{WA[j]}")
    a(f"v_xor_b32 v{SA}, s69, v15"); a(f"v_lshlrev_b32 v{SA}, 5, v{SA}"); a(f"v_add_u32 v{SA}, v{SA}, v9")
    a("v_lshlrev_b32 v12, 6, v13"); a(f"v_add_u32 v{SA}, v{SA}, v12"); a(f"v_add_u32 v{SA}, {EOFF}, v{SA}")
    a(f"s_lshl_b32 s64, {sB}, 1"); a("s_add_u32 s64, s64, s68"); a("s_mul_i32 s64, s64, 72")
    a(f"s_mul_i32 s65, {sG}, 7"); a("s_add_u32 s64, s64, s65"); a("s_add_u32 s64, s64, 16")
    a(f"s_and_b32 s65, {sG}, 1")
    a("s_mul_i32 s66, s69, 3"); a("s_add_u32 s66, s66, s65"); a("s_add_u32 s66, s66, s64"); a("s_lshl_b32 s74, s66, 12")
    a("s_add_u32 s75, s74, 4096"); a("s_add_u32 s76, s74, 8192")
    a("s_cmp_eq_u32 s65, 0"); a("s_cselect_b32 s66, 6, 0"); a("s_add_u32 s66, s66, s64"); a("s_lshl_b32 s77, s66, 12")
    a("s_lshl_b32 s65, s69, 11"); a("s_add_u32 s77, s77, s65")
    a("v_lshlrev_b32 v9, 4, v0")
    a("s_waitcnt lgkmcnt(0)")
    compute_common_setup(a, opt)
    for i in range(112): a(f"v_mov_b32 v{ACC+i}, 0")
    def reads(kk, s):
        xs = [f"ds_read_b128 {vr(xf(s,t),4)}, v{XA[kk]} offset:{t*2048}" for t in range(4)]
        ws = []
        for n in range(6):
            for h in range(2):
                ws.append(f"ds_read_b64_tr_b16 {vr(wf(s,n)+2*h,2)}, v{WA[n&3]} offset:{(n>>2)*8192 + kk*4096 + h*512}")
        for h in range(2):
            ws.append(f"ds_read_b64_tr_b16 {vr(wf(s,6)+2*h,2)}, v{SA} offset:{kk*2048 + h*256}")
        return mix(xs, ws)
    def mfmas(s):
        return [f"v_mfma_f32_16x16x32_bf16 {vr(acc(t,n),4)}, {vr(wf(s,n),4)}, {vr(xf(s,t),4)}, {vr(acc(t,n),4)}" for n in range(7) for t in range(4)]
    mainloop(a, opt, "KF", XA + WA + [SA], reads, mfmas)
    a(f"global_load_dwordx2 v[10:11], v1, s[{PDBG}:{PDBG+1}] sc1")
    T = FR; k = 0; pendst = []
    for n in range(7):
        for tp in range(2):
            d = T + 4 * (k % 8); k += 1
            for hh in range(2):
                sx = acc(2 * tp + hh, n)
                a(f"v_cvt_pk_bf16_f32 v{d+2*hh}, v{sx}, v{sx+1}"); a(f"v_cvt_pk_bf16_f32 v{d+2*hh+1}, v{sx+2}, v{sx+3}")
            for i in (0, 2, 1, 3): a(f"v_pk_max_i16 v{d+i}, v{d+i}, 0")
            if pendst: a(pendst.pop())
            else: a("s_nop 0")
            a(f"v_permlane16_swap_b32 v{d}, v{d+2}"); a(f"v_permlane16_swap_b32 v{d+1}, v{d+3}")
            off = ((n & 1) * 2048 if n < 6 else 0) + tp * 1024
            a(f"buffer_store_dwordx4 {vr(d,4)}, v9, {q(RWS)}, s{74+(n>>1)} offen offset:{off} sc1")
    if opt.get("sb", 1): a("s_barrier")
    stamp(a, opt, 3)
    compute_publish(a, opt, 10, 14)
    stamp(a, opt, 5)
    stamp_end(a, opt, 1)
    a("s_endpgm")

def gen_attn(a, opt):
    a.label("K_ATTN")
    ACC = 36; FR = 140
    def Q(t): return ACC + 4 * t
    def K(t): return ACC + 32 + 4 * t
    def V(t): return ACC + 68 + 4 * t
    def xf(s, t): return FR + 48 * s + 4 * t
    def wf(s, p): return FR + 48 * s + 36 + 4 * p
    XA = [2, 3]; WA = 4
    BC, BP, BP0, BP4, MC = 16, 20, 24, 28, 32
    a("v_and_b32 v10, 15, v0"); a("v_lshrrev_b32 v11, 4, v0")
    a("v_lshrrev_b32 v12, 1, v10"); a("v_xor_b32 v12, v12, v11"); a("v_lshlrev_b32 v12, 4, v12")
    a("v_lshlrev_b32 v13, 7, v10"); a(f"v_add_u32 v{XA[0]}, v12, v13"); a(f"v_xor_b32 v{XA[1]}, 64, v{XA[0]}")
    a("v_bfe_u32 v12, v0, 2, 2")
    a("v_lshlrev_b32 v13, 3, v11"); a("v_add_u32 v13, v13, v12")
    a("v_lshrrev_b32 v14, 1, v12"); a("v_and_b32 v15, 1, v11"); a("v_lshlrev_b32 v9, 1, v15"); a("v_or_b32 v14, v14, v9")
    a("v_and_b32 v9, 3, v0"); a("v_lshlrev_b32 v9, 3, v9")
    a("v_lshlrev_b32 v12, 7, v13"); a("v_add_u32 v12, v12, v9")
    a(f"v_xor_b32 v{WA}, {sW}, v14"); a(f"v_lshlrev_b32 v{WA}, 5, v{WA}"); a(f"v_add_u32 v{WA}, v{WA}, v12"); a(f"v_add_u32 v{WA}, {WOFF}, v{WA}")
    a("v_lshlrev_b32 v5, 2, v11"); a("v_sub_u32 v6, v5, v10")
    a(f"s_mul_i32 s64, {sB}, 144"); a(f"s_lshl_b32 s65, {sG}, 1"); a("s_add_u32 s64, s64, s65"); a(f"s_lshr_b32 s65, {sW}, 1"); a("s_add_u32 s64, s64, s65")
    a("s_lshl_b32 s74, s64, 12"); a(f"s_and_b32 s65, {sW}, 1"); a("s_lshl_b32 s65, s65, 11"); a("s_add_u32 s74, s74, s65")
    a(f"s_add_u32 s75, s74, {72*4096}")
    a(f"s_mov_b32 s76, 0x{f32bits(0.25*LOG2E):x}")
    a("v_lshlrev_b32 v9, 4, v0")
    a("s_waitcnt lgkmcnt(0)")
    compute_common_setup(a, opt)
    a(f"v_mov_b32 v7, 0x{BIG:x}")
    a(f"s_cmp_eq_u32 {sB}, 0"); a(f"s_cselect_b32 s64, 0x{BIG:x}, 0"); a("v_mov_b32 v8, s64")
    a(f"v_mov_b32 v{MC}, 0"); a(f"v_mov_b32 v{MC+1}, 0")
    for r in range(4):
        a(f"v_add_u32 v14, {r+7}, v6")
        a("v_cmp_gt_u32 vcc, 8, v14")
        a(f"v_mov_b32 v15, {'0xffff' if r % 2 == 0 else '0xffff0000'}")
        a(f"v_add_u32 v14, {r}, v6")
        a(f"v_cndmask_b32 v{BC+r}, v7, v1, vcc")
        a("v_cndmask_b32 v15, v1, v15, vcc")
        a(f"v_or_b32 v{MC+(r>>1)}, v{MC+(r>>1)}, v15")
        a("v_cmp_le_i32 vcc, 9, v14")
        a(f"v_add_u32 v15, {r}, v5")
        a("v_cmp_gt_u32 s[64:65], 8, v15")
        a(f"v_cndmask_b32 v{BP+r}, v7, v1, vcc")
        a(f"v_cndmask_b32 v{BP0+r}, v7, v8, vcc")
        a("v_cmp_le_i32 vcc, 1, v14"); a("s_nop 0")
        a("s_and_b64 vcc, vcc, s[64:65]")
        a(f"v_cndmask_b32 v{BP4+r}, v7, v8, vcc")
    for i in range(104): a(f"v_mov_b32 v{ACC+i}, 0")
    def reads(kk, s):
        ws = []
        for p in range(3):
            for h in range(2):
                ws.append(f"ds_read_b64_tr_b16 {vr(wf(s,p)+2*h,2)}, v{WA} offset:{p*8192 + kk*4096 + h*512}")
        xs = [f"ds_read_b128 {vr(xf(s,t),4)}, v{XA[kk]} offset:{t*2048 if t < 8 else EOFF}" for t in range(9)]
        return mix(xs, ws)
    def mfmas(s):
        r = []
        for t in range(9):
            if t < 8: r.append(f"v_mfma_f32_16x16x32_bf16 {vr(Q(t),4)}, {vr(wf(s,0),4)}, {vr(xf(s,t),4)}, {vr(Q(t),4)}")
            r.append(f"v_mfma_f32_16x16x32_bf16 {vr(K(t),4)}, {vr(wf(s,1),4)}, {vr(xf(s,t),4)}, {vr(K(t),4)}")
            r.append(f"v_mfma_f32_16x16x32_bf16 {vr(V(t),4)}, {vr(xf(s,t),4)}, {vr(wf(s,2),4)}, {vr(V(t),4)}")
        return r
    mainloop(a, opt, "KA", XA + [WA], reads, mfmas)
    a(f"global_load_dwordx2 v[10:11], v1, s[{PDBG}:{PDBG+1}] sc1")
    QB = FR; KB = FR + 16; VB = FR + 34; ONES = FR + 54; PB = FR + 58
    M = FR + 90; TM = FR + 98
    def cvt(d, s): a(f"v_cvt_pk_bf16_f32 v{d}, v{s}, v{s+1}"); a(f"v_cvt_pk_bf16_f32 v{d+1}, v{s+2}, v{s+3}")
    for t in range(8): cvt(QB + 2 * t, Q(t))
    for t in range(9): cvt(KB + 2 * t, K(t))
    def vslot(t): return (1 + t) if t < 4 else (2 + t)
    smf = []
    for t in range(8):
        prev = 8 if t in (0, 4) else t - 1
        bp = BP0 if t == 0 else (BP4 if t == 4 else BP)
        smf.append(f"v_mfma_f32_16x16x16_bf16 {vr(Q(t),4)}, {vr(KB+2*t,2)}, {vr(QB+2*t,2)}, {vr(BC,4)}")
        smf.append(f"v_mfma_f32_16x16x16_bf16 {vr(K(t),4)}, {vr(KB+2*prev,2)}, {vr(QB+2*t,2)}, {vr(bp,4)}")
    vc = []
    for t in range(8):
        d = VB + 2 * vslot(t); s = V(t)
        vc += [f"v_cvt_pk_bf16_f32 v{d}, v{s}, v{s+1}", f"v_cvt_pk_bf16_f32 v{d+1}, v{s+2}, v{s+3}"]
    for d in (VB, VB + 10):
        s = V(8)
        vc += [f"v_cvt_pk_bf16_f32 v{d}, v{s}, v{s+1}", f"v_cvt_pk_bf16_f32 v{d+1}, v{s+2}, v{s+3}"]
    vc += [f"v_mov_b32 v{ONES+i}, 0x3f803f80" for i in range(4)]
    a.nop(2)
    interleave(a, smf, vc, per=2)
    for t in range(8):
        if t == 6: a.nop(4)
        for r in range(4): a(f"v_max_f32 v{Q(t)+r}, v{Q(t)+r}, v{K(t)+r}")
    for t in range(8): a(f"v_max3_f32 v{M+t}, v{Q(t)}, v{Q(t)+1}, v{Q(t)+2}")
    for t in range(8): a(f"v_max_f32 v{M+t}, v{M+t}, v{Q(t)+3}")
    for sw in ("v_permlane32_swap_b32", "v_permlane16_swap_b32"):
        for t in range(8): a(f"v_mov_b32 v{TM+t}, v{M+t}")
        for t in range(8): a(f"{sw} v{M+t}, v{TM+t}")
        for t in range(8): a(f"v_max_f32 v{M+t}, v{M+t}, v{TM+t}")
    for t in range(8): a(f"v_mul_f32 v{M+t}, s76, v{M+t}")
    for t in range(8):
        for r in range(4): a(f"v_fma_f32 v{Q(t)+r}, v{Q(t)+r}, s76, -v{M+t}")
    for t in range(8):
        for r in range(4): a(f"v_exp_f32 v{Q(t)+r}, v{Q(t)+r}")
    for t in range(8): cvt(PB + 4 * t + 2, Q(t))
    for t in range(8):
        for h in range(2): a(f"v_bfi_b32 v{PB+4*t+h}, v{MC+h}, 0, v{PB+4*t+2+h}")
        for h in range(2): a(f"v_and_b32 v{PB+4*t+2+h}, v{MC+h}, v{PB+4*t+2+h}")
    for t in range(8):
        a(f"v_mfma_f32_16x16x32_bf16 {vr(K(t),4)}, {vr(ONES,4)}, {vr(PB+4*t,4)}, 0")
        a(f"v_mfma_f32_16x16x32_bf16 {vr(Q(t),4)}, {vr(VB+2*(vslot(t)-1),4)}, {vr(PB+4*t,4)}, 0")
    a.nop(1)
    for t in range(8): a(f"v_rcp_f32 v{M+t}, v{K(t)}")
    stamp(a, opt, 3)
    for t in range(8):
        for r in range(4): a(f"v_mul_f32 v{Q(t)+r}, v{Q(t)+r}, v{M+t}")
        cvt(QB + 2 * t, Q(t))
        if t & 1:
            d = QB + 2 * t - 2
            a("s_nop 0"); a(f"v_permlane16_swap_b32 v{d}, v{d+2}"); a(f"v_permlane16_swap_b32 v{d+1}, v{d+3}")
        if t & 1: a(f"buffer_store_dwordx4 {vr(QB+2*t-2,4)}, v9, {q(RWS)}, s{74+(t>>2)} offen offset:{((t>>1)&1)*1024} sc1")
    stamp(a, opt, 4)
    compute_publish(a, opt, 10, 4)
    stamp(a, opt, 5)
    stamp_end(a, opt, 2)
    a("s_endpgm")

def gen_loader(a, opt):
    a.label("K_LOADER")
    if opt.get("prio", 2) == 2: a("s_setprio 2")
    VL16, VX0, VX1, VW, VE, VR, VZ = 1, 2, 3, 4, 5, 6, 7
    a("v_lshrrev_b32 v10, 3, v0"); a("v_and_b32 v11, 7, v0"); a("v_lshrrev_b32 v12, 4, v0")
    a(f"s_and_b32 s68, {sW}, 1"); a(f"s_lshr_b32 s69, {sW}, 1")
    a(f"s_lshl_b32 s64, {sB}, 7"); a("s_lshl_b32 s65, s68, 6"); a("s_add_u32 s64, s64, s65"); a("s_add_u32 s64, s64, s69"); a("s_lshl_b32 s64, s64, 10")
    a("v_xor_b32 v13, v11, v12"); a("v_lshlrev_b32 v13, 4, v13")
    a("v_lshlrev_b32 v14, 11, v10"); a("v_add_u32 v14, v14, v13")
    a(f"v_add_u32 v{VX0}, s64, v14"); a(f"v_xor_b32 v{VX1}, 64, v{VX0}")
    a(f"s_cmp_eq_u32 {sT}, 0")
    csel(a, "s74", 3072, 3584); csel(a, "s75", 1024, 128)
    csel(a, f"s{RW+2}", 512*3072, 512*3584); csel(a, f"s{RE+2}", 2048*1024, 512*3584)
    a(f"s_mul_i32 s66, {sG}, 448"); a(f"s_and_b32 s67, {sG}, 1"); a("s_lshl_b32 s64, s67, 6"); a("s_add_u32 s64, s64, s66")
    a(f"s_lshl_b32 s65, {sG}, 7")
    a(f"s_cmp_eq_u32 {sT}, 0"); a("s_cselect_b32 s64, s65, s64")
    a("v_and_b32 v15, 1, v12"); a("v_lshlrev_b32 v15, 1, v15"); a("v_xor_b32 v15, v15, v11"); a("s_lshl_b32 s65, s68, 2"); a("v_xor_b32 v15, s65, v15"); a("v_lshlrev_b32 v15, 4, v15")
    a(f"s_lshl_b32 s65, {sW}, 3"); a(f"v_add_u32 v{VW}, s65, v10"); a(f"v_mul_lo_u32 v{VW}, v{VW}, s74"); a(f"v_add_u32 v{VW}, v{VW}, v15"); a(f"v_add_u32 v{VW}, s64, v{VW}")
    a(f"s_cmp_eq_u32 {sT}, 0"); a("s_cbranch_scc1 KL_EA")
    a("s_cmp_eq_u32 s67, 0"); a("s_cselect_b32 s65, 384, 0"); a("s_add_u32 s66, s66, s65")
    a("v_lshrrev_b32 v15, 2, v0"); a(f"s_lshl_b32 s65, {sW}, 4"); a("v_add_u32 v15, s65, v15"); a(f"v_mul_u32_u24 v{VE}, 3584, v15")
    a("v_lshrrev_b32 v15, 5, v0"); a("v_lshlrev_b32 v15, 1, v15"); a("v_and_b32 v13, 3, v0"); a("v_xor_b32 v15, v15, v13"); a("v_lshlrev_b32 v15, 4, v15")
    a(f"v_add_u32 v{VE}, v{VE}, v15"); a(f"v_add_u32 v{VE}, s66, v{VE}")
    a(f"s_lshl_b32 s72, {sW}, 10"); a(f"s_mov_b32 s76, {64*3584}")
    a("s_branch KL_ED")
    a.label("KL_EA")
    a(f"s_lshl_b32 s64, {sB}, 7"); a(f"s_cmp_eq_u32 {sB}, 0"); a("s_cselect_b32 s65, 0, 16"); a(f"s_cselect_b32 s{RE+2}, 0, s{RE+2}"); a("s_sub_u32 s64, s64, s65")
    a("s_add_u32 s64, s64, 1"); a("s_sub_u32 s64, s64, s68"); a("s_lshl_b32 s64, s64, 10")
    a("s_lshl_b32 s65, s68, 6"); a(f"v_xor_b32 v{VE}, s65, v14"); a(f"v_add_u32 v{VE}, s64, v{VE}")
    a("s_lshl_b32 s72, s68, 10"); a("s_mov_b32 s76, 128")
    a.label("KL_ED")
    a(f"s_add_u32 s72, s72, {EOFF}")
    a(f"s_lshl_b32 s70, {sW}, 12")
    a(f"s_lshl_b32 s71, {sW}, 10"); a(f"s_add_u32 s71, s71, {WOFF}")
    a("s_lshl_b32 s73, s74, 6"); a("s_lshl_b32 s74, s74, 5")
    rot = opt.get("rot", 0)
    if rot == 0: a("s_mov_b32 s77, 0")
    elif rot == 1: a(f"s_add_u32 s77, {sB}, {sG}"); a("s_and_b32 s77, s77, 7")
    a(f"s_mov_b32 s{RX+2}, {2048*1024}"); a(f"s_mov_b32 s{RX+3}, 0x20000"); a(f"s_mov_b32 s{RW+3}, 0x20000"); a(f"s_mov_b32 s{RE+3}, 0x20000")
    a(f"s_cmp_eq_u32 {sT}, 0")
    a("s_waitcnt lgkmcnt(0)")
    a(f"s_mov_b32 s{RX}, s{PX}"); a(f"s_mov_b32 s{RX+1}, s{PX+1}")
    a(f"s_cselect_b32 s{RW}, s{PWQKV}, s{PW1}"); a(f"s_cselect_b32 s{RW+1}, s{PWQKV+1}, s{PW1+1}")
    a(f"s_cselect_b32 s{RE}, s{PX}, s{PW1}"); a(f"s_cselect_b32 s{RE+1}, s{PX+1}, s{PW1+1}")
    def stage(s):
        base = slot_of(s)
        a("s_lshl_b32 s64, s77, 7"); a("s_mul_i32 s65, s77, s73"); a("s_mul_i32 s66, s77, s76")
        for m in range(4):
            a(f"s_add_u32 m0, s70, {base + XOFF + m*1024}")
            a(f"s_add_u32 s67, s64, {m*16384}")
            a(f"buffer_load_dwordx4 v{VX0 if m % 2 == 0 else VX1}, {q(RX)}, s67 offen lds")
        for jj in range(2):
            for P in range(3):
                a(f"s_add_u32 m0, s71, {base + P*8192 + jj*4096}")
                if P == 0:
                    if jj == 0: a("s_mov_b32 s67, s65")
                    else: a("s_add_u32 s67, s65, s74")
                else: a("s_add_u32 s67, s67, s75")
                a(f"buffer_load_dwordx4 v{VW}, {q(RW)}, s67 offen lds")
        a(f"s_add_u32 m0, s72, {base}")
        a("s_add_u32 s77, s77, 1")
        a(f"buffer_load_dwordx4 v{VE}, {q(RE)}, s66 offen lds")
        a("s_and_b32 s77, s77, 7")
    def bar(n, k):
        a(f"s_waitcnt vmcnt({n})"); a("s_barrier")
        if opt.get("lstamp"): a(f"s_memtime s[{84+2*k}:{85+2*k}]")
    if opt.get("lstamp"):
        opt = dict(opt); so = opt.copy(); opt["stamps"] = 0
    else: so = opt
    stage(0); stage(1)
    a(f"v_lshlrev_b32 v{VL16}, 4, v0"); a(f"v_mov_b32 v{VZ}, 0")
    srd(a, RWS, PWS, WS_USED); srd(a, RAUX, PGATE, 1024)
    a(f"s_lshl_b32 s64, {sB}, 7"); a(f"s_and_b32 s65, {sG}, 3"); a("s_lshl_b32 s65, s65, 5"); a("s_add_u32 s65, s65, s64")
    a(f"s_lshl_b32 s66, {sT}, 4"); a("s_add_u32 s65, s65, s66"); a(f"s_lshl_b32 s66, {sW}, 2"); a("s_add_u32 s65, s65, s66")
    a(f"s_lshr_b32 s66, {sG}, 2"); a("s_add_u32 s65, s65, s66"); a("s_lshl_b32 s68, s65, 10")
    a(f"s_lshl_b32 s66, {sG}, 4"); a("s_add_u32 s64, s64, s66"); a(f"s_lshl_b32 s66, {sT}, 3"); a("s_add_u32 s64, s64, s66"); a(f"s_lshl_b32 s66, {sW}, 1"); a("s_add_u32 s64, s64, s66")
    a("s_lshl_b32 s78, s64, 3"); a(f"s_add_u32 s78, s78, {G_OFF}")
    a("v_and_b32 v15, 1, v12"); a("v_lshlrev_b32 v15, 2, v15"); a("v_xor_b32 v15, v15, v11"); a("v_lshlrev_b32 v15, 4, v15")
    a(f"v_lshlrev_b32 v{VR}, 10, v10"); a(f"v_add_u32 v{VR}, v{VR}, v15")
    a(f"s_mul_i32 s100, {sW}, 19"); a("s_sub_u32 s100, s100, 3"); a(f"s_cmp_eq_u32 {sW}, 0"); a("s_cselect_b32 s100, 0, s100"); a("s_cselect_b32 s101, 16, 19")
    a(f"s_cmp_eq_u32 {sW}, 3"); a("s_cselect_b32 s101, 18, s101"); a("s_lshl_b32 s101, s101, 12")
    a(f"s_mul_i32 s64, {sU}, 72"); a("s_add_u32 s64, s64, s100"); a("s_lshl_b32 s64, s64, 12")
    srd(a, RA, PWS, "s101", "s64")
    a("s_sub_u32 s64, s100, 16"); a("s_lshl_b32 s64, s64, 15")
    a(f"s_cmp_eq_u32 {sW}, 0"); a("s_cselect_b32 s64, 0, s64")
    a(f"s_cselect_b32 s66, s{PWO}, s{PW2}"); a(f"s_cselect_b32 s67, s{PWO+1}, s{PW2+1}")
    a(f"s_lshl_b32 s65, {sCT}, 7"); a("s_add_u32 s64, s64, s65")
    a(f"s_add_u32 s{RB}, s66, s64"); a(f"s_addc_u32 s{RB+1}, s67, 0")
    a(f"s_lshl_b32 s{RB+2}, s101, 3"); a(f"s_sub_u32 s{RB+2}, s{RB+2}, s65"); a(f"s_mov_b32 s{RB+3}, 0x20000")
    a(f"s_lshl_b32 s79, {sW}, 12"); a(f"s_sub_u32 s79, {TOP-4096}, s79")
    a(f"s_cmp_eq_u32 {sW}, 0"); a(f"s_cselect_b32 s79, {TOP-4096-16384}, s79")
    a(f"v_mov_b32 v13, {TOP-4096}"); a(f"ds_write_b32 v13, v{VZ}"); a("s_waitcnt lgkmcnt(0)")
    a("v_lshrrev_b32 v13, 5, v0"); a("v_lshlrev_b32 v13, 10, v13"); a("v_bfe_u32 v14, v0, 2, 2"); a("v_lshlrev_b32 v14, 7, v14"); a("v_add_u32 v13, v13, v14")
    a("v_bfe_u32 v14, v0, 3, 1"); a("v_lshlrev_b32 v14, 6, v14"); a("v_add_u32 v13, v13, v14")
    a("v_bfe_u32 v14, v0, 4, 1"); a("v_lshlrev_b32 v14, 5, v14"); a("v_add_u32 v13, v13, v14")
    a("v_and_b32 v14, 3, v0"); a("v_lshlrev_b32 v14, 3, v14"); a("v_add_u32 v13, v13, v14")
    a(f"s_sub_u32 s64, s79, {3*16384}"); a("v_add_u32 v58, s64, v13"); a("v_xor_b32 v59, 64, v58")
    X = 3
    NT = 0
    wt = opt.get("wt", 0)
    def wtouch():
        La = newlab("WT"); Lb = newlab("WT")
        a(f"s_cmp_ge_u32 {sW}, 2"); a(f"s_cbranch_scc1 {La}")
        a(f"s_mul_i32 s64, {sB}, 24"); a(f"s_mul_i32 s65, {sW}, 12"); a("s_add_u32 s64, s64, s65"); a("s_add_u32 s64, s64, 128")
        a("s_lshr_b32 s65, s74, 5")
        a("v_lshrrev_b32 v13, 2, v0"); a("v_min_u32 v13, 11, v13"); a("v_add_u32 v13, s64, v13"); a("v_mul_lo_u32 v13, v13, s65")
        a("v_and_b32 v14, 3, v0")
        a(f"s_cmp_eq_u32 {sT}, 0"); a("s_cselect_b32 s64, 2, 3"); a("v_min_u32 v14, s64, v14"); a("v_mul_lo_u32 v14, v14, s75"); a("v_add_u32 v13, v13, v14")
        a(f"s_mul_i32 s64, {sG}, 448"); a(f"s_lshl_b32 s65, {sG}, 7"); a(f"s_cmp_eq_u32 {sT}, 0"); a("s_cselect_b32 s64, s65, s64")
        a(f"buffer_load_dword v14, v13, {q(RW)}, s64 offen")
        a(f"s_branch {Lb}")
        a.label(La)
        if wt == 2:
            a(f"buffer_load_dword v14, v{VZ}, {q(RAUX)}, 0 offen")
            a.label(Lb); return
        a(f"s_mul_i32 s64, {sU}, 72"); a(f"s_mul_i32 s65, {sW}, 36"); a("s_add_u32 s64, s64, s65"); a("s_sub_u32 s64, s64, 72")
        a("s_cmp_lt_u32 s64, 512")
        a(f"s_cselect_b32 s{RR}, s{PWO}, s{PW2}"); a(f"s_cselect_b32 s{RR+1}, s{PWO+1}, s{PW2+1}"); csel(a, f"s{RR+2}", 512*1024, 1792*1024); a(f"s_mov_b32 s{RR+3}, 0x20000")
        a("s_cselect_b32 s65, 0, 512"); a("s_sub_u32 s64, s64, s65"); a("s_lshl_b32 s64, s64, 10"); a(f"s_lshl_b32 s65, {sCT}, 7"); a("s_add_u32 s64, s64, s65")
        a("v_min_u32 v13, 35, v0"); a("v_lshlrev_b32 v13, 10, v13")
        a(f"buffer_load_dword v14, v13, {q(RR)}, s64 offen")
        a.label(Lb)
    def xloads():
        a(f"buffer_load_dwordx4 v[16:19], v{VL16}, {q(RX)}, s68 offen")
        a(f"buffer_load_dwordx4 v[20:23], v{VL16}, {q(RX)}, s68 offen offset:2048")
        a(f"buffer_load_dwordx4 v[24:27], v{VL16}, {q(RAUX)}, 0 offen")
    if wt: X = 4
    if opt.get("xearly", 1):
        xloads()
        if wt: wtouch()
        bar(11 + X, 0); stamp(a, opt, 0)
    else:
        bar(11, 0); stamp(a, opt, 0)
        xloads()
        if wt: wtouch()
    a(f"global_load_dwordx2 v[8:9], v{VZ}, s[{PDBG}:{PDBG+1}] sc1")
    stage(2)
    bar(X + 1 + 11, 1)
    stage(3)
    bar(NT + 11, 2)
    stage(4)
    bar(11, 3)
    stage(5)
    bar(11, 4)
    stage(6)
    srd(a, RAUX, POUT, 2048 * 1024)
    a(f"s_mul_i32 s68, {sB}, {16*FSTR}"); a(f"s_add_u32 s68, s68, {FA_OFF}")
    def fm(g0, g1): return sum(0x100 << g for g in range(g0, g1 + 1))
    a(f"s_mov_b32 s{RR}, 0x{fm(0,2):x}"); a(f"s_cmp_eq_u32 {sW}, 2"); a(f"s_cselect_b32 s{RR}, 0x{fm(2,5):x}, s{RR}")
    a(f"s_cmp_eq_u32 {sW}, 3"); a(f"s_cselect_b32 s{RR}, 0x{fm(5,7):x}, s{RR}")
    a(f"s_cmp_eq_u32 {sW}, 0"); a(f"s_cselect_b32 s{RR}, 0xff, s{RR}"); a(f"s_mov_b32 s{RR+1}, 0")
    a(f"s_lshl_b32 s69, {sU}, 9"); a(f"s_lshl_b32 s64, {sW}, 7"); a("s_add_u32 s69, s69, s64"); a(f"s_add_u32 s69, s69, {G_OFF}")
    bar(11, 5)
    stage(7)
    br = opt.get("brot", 1)
    mp = opt.get("map", "Y")
    if br == 0: a("s_mov_b32 s77, 0")
    elif mp == "Z" and opt.get("p2map", 0) == 0: a(f"s_and_b32 s77, {sB}, 3"); a("s_lshl_b32 s77, s77, 14")
    elif mp == "Z": a(f"s_and_b32 s77, {sU}, 7"); a("s_lshl_b32 s77, s77, 13")
    elif mp == "Y": a(f"s_and_b32 s77, {sB}, 7"); a("s_lshl_b32 s77, s77, 13")
    else: a(f"s_and_b32 s77, {sU}, 3"); a("s_lshl_b32 s77, s77, 14")
    a("s_lshl_b32 s76, s77, 3"); a("s_lshl_b32 s75, s101, 3")
    def bdma(i):
        j = i if i < 10 else i - 10
        for k in range(4):
            a(f"s_sub_u32 m0, s79, {16384*j - 1024*k}") if 16384*j - 1024*k >= 0 else a(f"s_add_u32 m0, s79, {1024*k - 16384*j}")
            a("s_nop 0")
            a(f"buffer_load_dwordx4 v{VR}, {q(RB)}, s76 offen lds")
            a("s_add_u32 s76, s76, 8192")
        a("s_cmp_ge_u32 s76, s75"); a("s_cselect_b32 s76, 0, s76")
    bdma(0)
    a("v_mov_b32 v2, v58"); a("v_mov_b32 v3, v59")
    bar(11 + 4, 6)
    stamp(a, opt, 1)
    for i in range(1, 4): bdma(i)
    bar(16, 7)
    for i in range(4, 7): bdma(i)
    a("s_barrier")
    stamp(a, opt, 2)
    def gate():
        tag_check(a, 8, VZ)
        for k in range(4):
            a(f"v_lshlrev_b32 v{28+2*k}, 16, v{24+k}"); a(f"v_and_b32 v{29+2*k}, 0xffff0000, v{24+k}")
        for row in range(2):
            xb = 16 + 4 * row; P = 36 + 8 * row
            for k in range(4):
                a(f"v_lshlrev_b32 v{P+2*k}, 16, v{xb+k}"); a(f"v_and_b32 v{P+2*k+1}, 0xffff0000, v{xb+k}")
            for i in range(0, 8, 2): a(f"v_pk_mul_f32 {vr(P+i,2)}, {vr(P+i,2)}, {vr(28+i,2)}")
            for k in range(4): a(f"v_cvt_pk_bf16_f32 v{xb+k}, v{P+2*k}, v{P+2*k+1}")
            for k in range(4):
                a(f"v_lshlrev_b32 v{P+2*k}, 16, v{xb+k}"); a(f"v_and_b32 v{P+2*k+1}, 0xffff0000, v{xb+k}")
            a(f"v_pk_add_f32 {vr(P,2)}, {vr(P,2)}, {vr(P+4,2)}"); a(f"v_pk_add_f32 {vr(P+2,2)}, {vr(P+2,2)}, {vr(P+6,2)}")
            a(f"v_pk_add_f32 {vr(P,2)}, {vr(P,2)}, {vr(P+2,2)}")
            a(f"v_add_f32 v{52+row}, v{P}, v{P+1}")
        for sh in (8, 4, 2, 1):
            a.nop(1)
            for row in range(2): a(f"v_add_f32_dpp v{52+row}, v{52+row}, v{52+row} row_ror:{sh} row_mask:0xf bank_mask:0xf")
        for sw in ("v_permlane32_swap_b32", "v_permlane16_swap_b32"):
            for row in range(2): a(f"v_mov_b32 v{54+row}, v{52+row}")
            a.nop(2)
            for row in range(2): a(f"{sw} v{52+row}, v{54+row}")
            for row in range(2): a(f"v_add_f32 v{52+row}, v{52+row}, v{54+row}")
        a("v_cvt_pk_bf16_f32 v54, v52, v53")
        a("v_lshlrev_b32 v52, 16, v54"); a("v_and_b32 v53, 0xffff0000, v54")
        for row in range(2): a(f"v_mul_f32 v{52+row}, 0x{f32bits(-LOG2E):x}, v{52+row}")
        for row in range(2): a(f"v_exp_f32 v{52+row}, v{52+row}")
        a.nop(1)
        for row in range(2): a(f"v_add_f32 v{52+row}, 1.0, v{52+row}")
        for row in range(2): a(f"v_rcp_f32 v{52+row}, v{52+row}")
        a.nop(1)
        a("v_cvt_pk_bf16_f32 v54, v52, v53")
        a("v_lshlrev_b32 v52, 16, v54"); a("v_and_b32 v53, 0xffff0000, v54")
        a("v_mov_b32 v54, v8"); a("v_mov_b32 v55, v9")
        a("s_mov_b64 exec, 1")
        a(f"buffer_store_dwordx4 v[52:55], v{VZ}, {q(RWS)}, s78 offen sc1")
        a("s_mov_b64 exec, -1")
        a(f"v_mul_u32_u24 v57, {FSTR}, v0")
    ACC = 8; BR = 72
    ref = [3]
    def btr(j, regs):
        r = 3 if j < 4 else (7 if j < 8 else 9)
        out = []
        if r != ref[0]:
            d = ((ref[0] - r) * 16384) & 0xffffffff
            out.append("\n".join(f"v_add_u32 v{2+nt}, 0x{d:x}, v{2+nt}" for nt in range(2))); ref[0] = r
        for f in range(4):
            out.append("\n".join(f"ds_read_b64_tr_b16 {vr(regs[f]+2*e,2)}, v{2+(f&1)} offset:{(r-j)*16384 + (f>>1)*2048 + e*512}" for e in range(2)))
        return out
    sbn = opt.get("sbn", 1)
    for i in range(7, 7 + sbn): bdma(i)
    gpos = opt.get("gpos", 0)
    if gpos == 0: gate()
    for i in range(7):
        a(f"s_waitcnt vmcnt({4*(6 - i + sbn)})")
        for x in btr(i, [BR + 16*i + 4*n for n in range(4)]): a(x)
    if gpos == 1: gate()
    a(f"s_cmp_eq_u32 {sT}, 0"); a("s_cbranch_scc1 KL_NOSB"); a("s_barrier"); a.label("KL_NOSB")
    a("s_waitcnt lgkmcnt(0)")
    for i in range(7 + sbn, 9): bdma(i)
    a(f"s_cmp_eq_u32 {sW}, 0"); a("s_cbranch_scc1 KL_SK9")
    bdma(9)
    a.label("KL_SK9")
    for i in range(10, 15): bdma(i)
    a("s_waitcnt vmcnt(20)")
    for i in (7, 8):
        for x in btr(i, [BR + 16*i + 4*n for n in range(4)]): a(x)
    for i in range(15, 17): bdma(i)
    a(f"s_mov_b64 exec, s[{RR}:{RR+1}]")
    a(f"buffer_load_dwordx2 v[8:9], v57, {q(RWS)}, s68 offen sc1")
    a("s_mov_b64 exec, -1")
    a("s_waitcnt lgkmcnt(0)")
    a(f"s_cmp_eq_u32 {sW}, 0"); a("s_cbranch_scc1 KL_W0")
    bdma(17)
    a(f"s_cmp_eq_u32 {sW}, 3"); a("s_cbranch_scc1 KL_W1")
    bdma(18)
    a("s_waitcnt vmcnt(8)"); a("s_branch KL_W2")
    a.label("KL_W0"); a("s_waitcnt vmcnt(0)")
    a.label("KL_W1"); a("s_waitcnt vmcnt(4)")
    a.label("KL_W2")
    stamp(a, opt, 3)
    a("v_lshrrev_b32 v7, 4, v0"); a("v_lshlrev_b32 v7, 4, v7")
    a(f"s_mov_b64 exec, s[{RR}:{RR+1}]")
    poll(a, 8, 57, "s68", f"s[{RR}:{RR+1}]", first_loaded=True)
    a("s_mov_b64 exec, -1")
    a("s_waitcnt lgkmcnt(0)")
    stamp(a, opt, 4)
    ref0 = ref[0]
    a(f"s_cmp_eq_u32 {sW}, 0"); a("s_cbranch_scc1 KL_V16")
    def acc(tp, np_): return ACC + 16 * (2 * tp + np_)
    DM = opt.get("dmax", 12)
    GR = {}
    for nst, lab in ((19, None), (16, "KL_V16")):
        a(".p2align 3")
        if lab: a.label(lab)
        free = list(range(BR + 16 * NBR, 256, 4)); ref[0] = ref0
        pend = [("A", i, b) for i in range(nst) for b in range(4)] + [("G", 0, 0), ("G", 1, 0)]
        loc = {}; issued = []; cur_soff = [None]
        done_loads = [0]
        def issue():
            if not pend or not free: return False
            if len(issued) - done_loads[0] >= DM: return False
            k = pend.pop(0); r = free.pop(0); loc[k] = r; issued.append(k)
            if k[0] == "A":
                if cur_soff[0] != k[1] and k[1]:
                    a("s_add_u32 s77, s77, 4096"); a("s_cmp_ge_u32 s77, s101"); a("s_cselect_b32 s77, 0, s77"); cur_soff[0] = k[1]
                if not opt.get("p2noload"): a(f"buffer_load_dwordx4 {vr(r,4)}, v{VL16}, {q(RA)}, s77 offen offset:{k[2]*1024} {opt.get('ald', 'sc1')}")
            else:
                a(f"buffer_load_dwordx4 {vr(r,4)}, v7, {q(RWS)}, s69 offen offset:{k[1]*64} sc1")
            return True
        while issue(): pass
        bl = {}
        ldsq = []
        for i in range(nst):
            if nst == 19 and i == 18:
                assert not pend
                a(f"s_cmp_eq_u32 {sW}, 3"); a("s_cbranch_scc1 KL_POST")
            Bv = [BR + 16 * i + 4 * n for n in range(4)] if i < NBR else bl[i]
            needb = NBR <= i + 2 < nst
            if needb:
                tr = btr((9 if i + 2 == 9 else i + 2 - 10) if nst == 19 else i + 2 - 9, Bv)
                if len(tr) == 5: a(tr.pop(0))
                bl[i + 2] = Bv
            for half in range(2):
                for tp in range(2):
                    blk = 2 * half + tp
                    idx = issued.index(("A", i, blk)); done_loads[0] = idx + 1
                    w = f"s_waitcnt vmcnt({len(issued) - idx - 1})"
                    if i >= NBR and tp == 0:
                        li = ldsq.index((i, 2 * half + 1))
                        w += f" lgkmcnt({min(15, 2 * (len(ldsq) - li - 1))})"
                    a(w); a("s_nop 0")
                    A = loc[("A", i, blk)]
                    for np_ in range(2):
                        c = vr(acc(tp, np_), 16) if (i > 0 or half > 0) else "0"
                        f = 2 * half + np_
                        if not opt.get("p2nomfma") or i == 0: a(f"v_mfma_f32_32x32x16_bf16 {vr(acc(tp,np_),16)}, {vr(Bv[f],4)}, {vr(A,4)}, {c}")
                        if np_ == 1: free.append(A)
                        if tp == 1:
                            if needb: a(tr[f]); ldsq.append((i + 2, f))
                            else: free.append(Bv[f])
                        issue()
        assert not pend
        GR[nst] = (loc[("G", 0, 0)], loc[("G", 1, 0)])
        if not lab:
            a.label("KL_POST")
        a("s_waitcnt vmcnt(0) lgkmcnt(0)")
        assert GR[nst][1] != 72
        for h in range(2):
            for e in range(4): a(f"v_mov_b32 v{72+4*h+e}, v{GR[nst][h]+e}") if GR[nst][h] != 72 + 4 * h else None
        if not lab: a("s_branch KL_FIN")
    a.label("KL_FIN")
    stamp(a, opt, 5)
    final(a, opt, ACC)
    stamp(a, opt, 7)
    if so.get("stamps"): a(f"s_add_u32 s100, {sW}, 40")
    if so.get("stamps"): a(f"s_lshl_b32 s64, {sT}, 2"); a("s_add_u32 s100, s100, s64")
    stamp_end(a, so, "s100")

def final(a, opt, ACC):
    a("v_and_b32 v80, 15, v0"); a("v_lshrrev_b32 v81, 5, v0"); a("v_xor_b32 v81, v81, v80"); a("v_lshlrev_b32 v81, 4, v81")
    a("v_lshlrev_b32 v82, 8, v80"); a("v_add_u32 v81, v81, v82"); a("v_bfe_u32 v82, v0, 4, 1"); a("v_lshlrev_b32 v82, 14, v82"); a("v_sub_u32 v81, v81, v82")
    a(f"s_sub_u32 s64, s79, {2*16384}"); a("v_add_u32 v96, s64, v81")
    for k in range(1, 8): a(f"v_xor_b32 v{96+k}, {32*k}, v96")
    for tp in range(2):
        for np_ in range(2):
            for j in range(4):
                a(f"ds_write_b128 v{96+4*np_+j}, {vr(ACC+16*(2*tp+np_)+4*j,4)} offset:{(1-tp)*32768}")
    L = newlab("GL"); D = newlab("GD")
    a("s_mov_b32 s66, 0x40000")
    a.label(L)
    a(f"v_cmp_eq_u64 vcc, s[{TAG}:{TAG+1}], v[74:75]"); a(f"v_cmp_eq_u64 s[64:65], s[{TAG}:{TAG+1}], v[78:79]"); a("s_nop 0")
    a("s_and_b64 s[64:65], s[64:65], vcc"); a("s_andn2_b64 s[64:65], exec, s[64:65]"); a(f"s_cbranch_scc0 {D}")
    a("s_sub_u32 s66, s66, 1"); a("s_cmp_eq_u32 s66, 0"); a(f"s_cbranch_scc1 {D}")
    a("s_sleep 1")
    a(f"buffer_load_dwordx4 v[72:75], v7, {q(RWS)}, s69 offen sc1"); a(f"buffer_load_dwordx4 v[76:79], v7, {q(RWS)}, s69 offen offset:64 sc1")
    a("s_waitcnt vmcnt(0)"); a(f"s_branch {L}")
    a.label(D)
    a("v_and_b32 v85, 8, v0"); a("v_cmp_ne_u32 vcc, 0, v85")
    a(f"s_lshr_b32 s64, {sU}, 1"); a("s_lshl_b32 s64, s64, 7"); a(f"s_lshl_b32 s65, {sW}, 5"); a("s_add_u32 s64, s64, s65"); a(f"s_and_b32 s65, {sU}, 1"); a("s_add_u32 s64, s64, s65")
    a("s_lshl_b32 s64, s64, 10"); a(f"s_lshl_b32 s65, {sCT}, 7"); a("s_add_u32 s70, s64, s65"); a("s_add_u32 s71, s70, 16384")
    a("v_cndmask_b32 v72, v72, v73, vcc"); a("v_cndmask_b32 v73, v76, v77, vcc")
    a("v_lshrrev_b32 v85, 3, v0"); a("v_and_b32 v86, 7, v0")
    a("v_lshlrev_b32 v87, 11, v85"); a("v_lshlrev_b32 v88, 4, v86"); a("v_add_u32 v87, v87, v88")
    a("v_lshlrev_b32 v88, 1, v86"); a("v_xor_b32 v88, v88, v85"); a("v_lshlrev_b32 v88, 4, v88"); a("v_lshlrev_b32 v85, 8, v85"); a("v_add_u32 v88, v88, v85")
    a(f"s_lshl_b32 s64, {sW}, 14"); a(f"s_sub_u32 s64, {TOP-32768}, s64"); a("v_add_u32 v88, s64, v88")
    a("v_xor_b32 v89, 16, v88"); a("v_xor_b32 v90, 128, v88"); a("v_xor_b32 v91, 144, v88")
    for i in range(2): a(f"v_sub_f32 v{74+i}, 1.0, v{72+i}")
    a("v_cvt_pk_bf16_f32 v74, v74, v75"); a("v_and_b32 v75, 0xffff0000, v74"); a("v_lshlrev_b32 v74, 16, v74")
    a("s_waitcnt lgkmcnt(0)"); a("s_barrier"); stamp(a, opt, 6, True)
    T = 104
    def P(h, src): return T + 32 * h + 8 * src
    for h in range(2):
        for src in (1, 2, 3, 0):
            for e in range(2):
                ra = 88 + 2 * h + e
                off = (3 - src) * 4096 + h * 2048 + (16384 if src else 0)
                a(f"ds_read_b128 {vr(P(h,src)+4*e,4)}, v{ra} offset:{off}")
    for h in range(2):
        a(f"s_waitcnt lgkmcnt({8*(1-h)+4})")
        for i in range(0, 8, 2): a(f"v_pk_add_f32 {vr(P(h,1)+i,2)}, {vr(P(h,1)+i,2)}, {vr(P(h,2)+i,2)}")
        a(f"s_waitcnt lgkmcnt({8*(1-h)+2})")
        for i in range(0, 8, 2): a(f"v_pk_add_f32 {vr(P(h,1)+i,2)}, {vr(P(h,1)+i,2)}, {vr(P(h,3)+i,2)}")
        a(f"s_waitcnt lgkmcnt({8*(1-h)})")
        for i in range(8): a(f"v_mul_f32 v{P(h,0)+i}, v{P(h,0)+i}, v{72+h}")
        for i in range(8): a(f"v_fma_f32 v{P(h,0)+i}, v{P(h,1)+i}, v{74+h}, v{P(h,0)+i}")
        for i in range(4): a(f"v_cvt_pk_bf16_f32 v{P(h,2)+i}, v{P(h,0)+2*i}, v{P(h,0)+2*i+1}")
        a(f"buffer_store_dwordx4 {vr(P(h,2),4)}, v87, {q(RAUX)}, s{70+h} offen {opt.get('ost', '')}")

def generate(opt):
    a = Asm()
    post = opt.get("post")
    if post is None:
        a(f"; @launch grid=(256,1,1) block=(512,1,1) lds={LDS_BYTES}")
    else:
        a(f"; @launch kernel={NAME}_kernel grid=(256,1,1) block=(512,1,1) lds={LDS_BYTES}")
        a(f"; @launch kernel=k3_kernel grid=(1,1,1) block=(64,1,1) lds=0")
    a('.amdgcn_target "amdgcn-amd-amdhsa--gfx950"'); a(".text")
    gen(a, opt)
    if post is not None:
        wg, wv, idx, rf, sh = [int(x) for x in post.split(",")]
        a(".globl k3_kernel"); a(".p2align 8"); a(".type k3_kernel,@function"); a.label("k3_kernel")
        a("s_load_dwordx2 s[8:9], s[0:1], 72"); a("s_waitcnt lgkmcnt(0)")
        a(f"s_add_u32 s8, s8, {STAMP_OFF}"); a("s_addc_u32 s9, s9, 0")
        off = (wg * 8 + wv) * 64
        a("s_load_dword s4, s[8:9], 0"); a(f"s_load_dword s12, s[8:9], {off + 4*idx}"); a(f"s_load_dword s13, s[8:9], {off + 4*rf}"); a("s_memrealtime s[10:11]"); a("s_waitcnt lgkmcnt(0)")
        a("s_sub_u32 s12, s12, s13")
        a(f"s_lshr_b32 s12, s12, {sh}") if sh >= 0 else a(f"s_lshl_b32 s12, s12, {-sh}")
        a("s_min_u32 s12, s12, 20000"); a("s_add_u32 s12, s12, 6000")
        a.label("K3_L"); a("s_memrealtime s[6:7]"); a("s_waitcnt lgkmcnt(0)")
        a("s_sub_u32 s7, s6, s10"); a("s_cmp_gt_u32 s7, 30000"); a("s_cbranch_scc1 K3_E")
        a("s_sub_u32 s6, s6, s4"); a("s_cmp_lt_u32 s6, s12"); a("s_cbranch_scc1 K3_L")
        a.label("K3_E"); a("s_endpgm")
    a('.section .rodata,"a"'); a(".p2align 6")
    a(f".amdhsa_kernel {NAME}_kernel")
    a("  .amdhsa_next_free_vgpr 256"); a("  .amdhsa_next_free_sgpr 102"); a("  .amdhsa_accum_offset 256")
    a("  .amdhsa_group_segment_fixed_size 0"); a("  .amdhsa_kernarg_size 80"); a("  .amdhsa_user_sgpr_count 2")
    a("  .amdhsa_user_sgpr_kernarg_segment_ptr 1"); a("  .amdhsa_system_sgpr_workgroup_id_x 1"); a(".end_amdhsa_kernel")
    if post is not None:
        a(".p2align 6"); a(".amdhsa_kernel k3_kernel")
        a("  .amdhsa_next_free_vgpr 8"); a("  .amdhsa_next_free_sgpr 102"); a("  .amdhsa_accum_offset 8")
        a("  .amdhsa_group_segment_fixed_size 0"); a("  .amdhsa_kernarg_size 80"); a("  .amdhsa_user_sgpr_count 2")
        a("  .amdhsa_user_sgpr_kernarg_segment_ptr 1"); a("  .amdhsa_system_sgpr_workgroup_id_x 1"); a(".end_amdhsa_kernel")
    errs = check(a.lines)
    for e in errs: print(e, file=sys.stderr)
    assert not errs
    return a.text()

if __name__ == "__main__":
    opt = {}
    for kv in sys.argv[2:]:
        k, v = kv.split("=")
        try: v = int(v)
        except: pass
        opt[k] = v
    open(sys.argv[1], "w").write(generate(opt))
```

```python
import re

class Asm:
    def __init__(self):
        self.lines = []
    def e(self, s):
        for l in s.split("\n"):
            l = l.strip()
            if l: self.lines.append(l)
    def __call__(self, s): self.e(s)
    def label(self, n): self.lines.append(n + ":")
    def nop(self, n):
        while n > 0:
            k = min(n, 16); self.e(f"s_nop {k-1}"); n -= k
    def text(self): return "\n".join(self.lines) + "\n"

def vr(a, n=1): return f"v{a}" if n == 1 else f"v[{a}:{a+n-1}]"
def ar(a, n=1): return f"a{a}" if n == 1 else f"a[{a}:{a+n-1}]"
def sr(a, n=1): return f"s{a}" if n == 1 else f"s[{a}:{a+n-1}]"

_reg = re.compile(r"^(-|abs\()?([vsa])(?:(\d+)|\[(\d+):(\d+)\])\)?$")
def regs(op):
    op = op.strip()
    if op in ("vcc",): return {("s", 106), ("s", 107)}
    if op == "vcc_lo": return {("s", 106)}
    if op == "vcc_hi": return {("s", 107)}
    if op == "exec": return {("s", 126), ("s", 127)}
    if op == "m0": return {("s", 124)}
    m = _reg.match(op)
    if not m: return set()
    k = m.group(2)
    if m.group(3) is not None: return {(k, int(m.group(3)))}
    return {(k, i) for i in range(int(m.group(4)), int(m.group(5)) + 1)}

TRANS = ("v_exp_", "v_log_", "v_rcp_", "v_rsq_", "v_sqrt_", "v_sin_", "v_cos_")
def passes(op):
    if "32x32x16" in op or "32x32x8" in op: return 8
    if "16x16x32" in op or "16x16x16" in op: return 4
    if "4x4x4" in op: return 2
    raise ValueError(op)

class I:
    def __init__(self, line):
        self.line = line
        body = line.split(";")[0].strip()
        parts = body.split(None, 1)
        self.op = parts[0]
        rest = parts[1] if len(parts) > 1 else ""
        ops = []; cur = ""; d = 0
        for ch in rest:
            if ch in "[(": d += 1
            if ch in "])": d -= 1
            if ch == "," and d == 0: ops.append(cur.strip()); cur = ""
            else: cur += ch
        if cur.strip(): ops.append(cur.strip())
        self.mods = ""
        if ops:
            sp = ops[-1].split(None, 1)
            if len(sp) > 1: ops[-1] = sp[0]; self.mods = sp[1]
        self.ops = ops
        op = self.op
        self.w = set(); self.r = set()
        self.kind = "other"
        self.ws = 1
        R = [regs(o) for o in ops]
        if op == "s_nop": self.ws = int(ops[0], 0) + 1; self.kind = "nop"
        elif op.startswith("v_mfma"):
            self.kind = "mfma"; self.w = R[0]; self.A = R[1]; self.B = R[2]; self.C = R[3]; self.r = R[1] | R[2] | R[3]; self.p = passes(op)
        elif op.startswith("v_"):
            self.kind = "valu"
            if op.startswith("v_cmp"):
                self.w = R[0]; self.r = set().union(*R[1:])
            elif ("permlane" in op and "swap" in op) or op.startswith("v_swap"):
                self.w = R[0] | R[1]; self.r = R[0] | R[1]
            elif op.startswith(("v_add_co", "v_sub_co", "v_addc_co", "v_subb_co", "v_subrev_co")):
                self.w = R[0] | R[1]; self.r = set().union(*R[2:])
            else:
                self.w = R[0]; self.r = set().union(*R[1:]) if len(R) > 1 else set()
                if op.startswith(("v_fmac", "v_dot2c", "v_pk_fmac", "v_writelane")) or "_dpp" in op: self.r |= R[0]
                if op.startswith("v_cndmask") and len(ops) == 3: self.r |= regs("vcc")
        elif op.startswith("ds_"):
            self.kind = "ds"
            if op.startswith(("ds_read", "ds_bpermute", "ds_permute", "ds_swizzle")) or "_rtn_" in op: self.w = R[0]; self.r = set().union(*R[1:])
            else: self.r = set().union(*R)
        elif op.startswith(("buffer_", "global_")):
            self.kind = "vmem"
            lds = " lds" in (" " + self.mods) or "_lds_" in op
            self.lds = lds
            if op.startswith(("buffer_wbl2", "buffer_inv")): pass
            elif "load" in op and not lds: self.w = R[0]; self.r = set().union(*R[1:])
            elif "atomic" in op and "sc0" in self.mods:
                self.w = R[0]; self.r = set().union(*R[0:])
            else: self.r = set().union(*R)
            if lds: self.r |= regs("m0")
            self.wide_data = set()
            if "store" in op and ("x4" in op or "x3" in op):
                self.wide_data = R[0] if op.startswith("buffer_") else R[1]
        elif op.startswith("s_"):
            self.kind = "salu"
            if op.startswith("s_cbranch_vcc"): self.r = regs("vcc")
            elif op.startswith(("s_cmp", "s_cbranch", "s_branch", "s_waitcnt", "s_barrier", "s_endpgm", "s_setprio", "s_sleep", "s_bitcmp", "s_setpc")):
                self.r = set().union(*R) if R else set()
            else:
                self.w = R[0] if R else set(); self.r = set().union(*R[1:]) if len(R) > 1 else set()
                if "saveexec" in op: self.w |= regs("exec")
                if op.startswith(("s_addk", "s_cmov", "s_mulk")): self.r |= self.w
            if op.startswith(("s_load", "s_memtime", "s_memrealtime", "s_buffer_load")): self.kind = "smem"

def vg(s): return {x for x in s if x[0] in "va"}
def sg(s): return {x for x in s if x[0] == "s"}

def need(p, c):
    n = 0
    tab = {2: 0, 4: 1, 8: 2}
    if p.kind == "valu":
        isdl = p.op.startswith("v_dot")
        if c.kind == "mfma" and vg(p.w) & c.r: n = max(n, 3 if isdl else 2)
        if c.kind == "vmem" and sg(p.w) & c.r: n = max(n, 5)
        if c.kind == "valu" and sg(p.w) & c.r:
            n = max(n, 4 if c.op.startswith(("v_readlane", "v_writelane")) else 2)
        if c.kind in ("salu", "smem") and sg(p.w) & c.r: n = max(n, 1)
        if c.kind == "valu" and vg(p.w) & c.r:
            if "permlane" in c.op or "_dpp" in c.op: n = max(n, 2)
            if c.op.startswith(("v_readlane", "v_readfirstlane")): n = max(n, 1)
            if p.op.startswith(TRANS) and not c.op.startswith(TRANS): n = max(n, 1)
        if p.op.startswith(TRANS) and c.kind in ("mfma",) and vg(p.w) & c.r: n = max(n, 2)
        if isdl and c.op != p.op and vg(p.w) & (c.r | c.w): n = max(n, 3)
        if isdl and c.op == p.op and len(c.ops) >= 3 and vg(p.w) & (regs(c.ops[1]) | regs(c.ops[2])): n = max(n, 3)
    if p.kind == "mfma":
        k = tab[p.p]
        if c.kind == "mfma":
            if p.w & (c.A | c.B): n = max(n, [5, 8, 12][k])
            if p.w & c.C:
                if p.w == c.C and p.p == c.p: n = max(n, [2, 0, 0][k])
                else: n = max(n, [4, 6, 10][k])
            elif p.w & c.w: n = max(n, [4, 6, 10][k])
        elif c.kind in ("valu", "vmem", "ds"):
            if p.w & (c.r | c.w): n = max(n, [5, 8, 12][k])
            if c.kind == "valu" and p.C & c.w: n = max(n, [1, 3, 7][k])
    if p.kind == "salu" and ("s", 124) in p.w and c.kind == "vmem" and getattr(c, "lds", False): n = max(n, 1)
    if p.kind == "vmem" and getattr(p, "wide_data", None):
        if p.wide_data & c.w: n = max(n, 2 if c.kind == "valu" else 1)
    return n

def check(lines, window=24):
    ins = []; labels = {}
    for l in lines:
        b = l.split(";")[0].strip()
        if not b or b.startswith("."): continue
        if b.endswith(":"): labels[b[:-1]] = len(ins); continue
        ins.append(I(b))
    errs = []
    def succ(i):
        x = ins[i]
        if x.op == "s_endpgm": return []
        if x.op == "s_branch": return [labels[x.ops[0]]]
        if x.op.startswith("s_cbranch"): return [i + 1, labels[x.ops[0]]]
        return [i + 1]
    seen = set()
    for i, p in enumerate(ins):
        if p.kind not in ("valu", "mfma", "salu", "vmem"): continue
        stack = [(j, 0) for j in succ(i)]
        vis = set()
        while stack:
            j, d = stack.pop()
            if j >= len(ins) or d >= 20 or (j, d) in vis: continue
            vis.add((j, d))
            c = ins[j]
            n = need(p, c)
            if n > d and (i, j) not in seen:
                seen.add((i, j)); errs.append(f"hazard: need {n} have {d}: [{i}] {p.line}  ->  [{j}] {c.line}")
            for k in succ(j): stack.append((k, d + c.ws))
    return errs

def schedule(lines, store_bonus=0):
    ins = [I(l) for l in lines]
    n = len(ins)
    preds = [set() for _ in range(n)]; succs = [set() for _ in range(n)]
    lastw = {}; readers = {}; lastmem = None
    for i, x in enumerate(ins):
        for r in x.r:
            if r in lastw: preds[i].add(lastw[r])
        for w in x.w:
            if w in lastw: preds[i].add(lastw[w])
            for j in readers.get(w, ()):
                if j != i: preds[i].add(j)
        if x.kind in ("vmem", "ds", "smem", "other") or (x.kind == "salu"):
            if lastmem is not None: preds[i].add(lastmem)
            lastmem = i
        for r in x.r: readers.setdefault(r, []).append(i)
        for w in x.w: lastw[w] = i; readers[w] = []
    for i in range(n):
        for p in preds[i]: succs[p].add(i)
    def cost(x):
        if x.kind == "mfma": return 8
        if x.op.startswith(TRANS): return 8
        if x.kind == "vmem": return 16
        return 4
    def lat(p, c):
        x = ins[p]
        raw = bool(x.w & ins[c].r)
        if x.kind == "mfma" and raw:
            if ins[c].kind == "mfma" and x.w == ins[c].C: return 4 * x.p
            return 4 * x.p + 24
        if raw and x.op.startswith(TRANS): return 12
        if raw: return max(cost(x), 4 * (need(x, ins[c]) + 1))
        return cost(x)
    prio = [0] * n
    for i in range(n - 1, -1, -1):
        prio[i] = max([lat(i, c) + prio[c] for c in succs[i]], default=cost(ins[i]))
        if ins[i].kind == "vmem": prio[i] += store_bonus
    out = []; pos = {}; tis = {}; t = 0; mfree = 0; states = 0
    done = set(); remaining = set(range(n)); emitted = []
    while remaining:
        cand = []
        for i in remaining:
            if not preds[i] <= done: continue
            ok = True
            for j, pj in emitted[-20:]:
                if need(ins[j], ins[i]) > states - pj - 1: ok = False; break
            if not ok: continue
            rt = max([tis[p] + lat(p, i) for p in preds[i]], default=0)
            if ins[i].kind == "mfma": rt = max(rt, mfree)
            cand.append((max(rt - t, 0), -prio[i], i, rt))
        if not cand:
            out.append("s_nop 0"); states += 1; t += 4; continue
        ready = [c for c in cand if c[0] == 0]
        if ready:
            mf = [c for c in ready if ins[c[2]].kind == "mfma"]
            c = min(mf) if mf else min(ready)
        else: c = min(cand)
        i = c[2]; t = max(t, c[3]); tis[i] = t
        if ins[i].kind == "mfma": mfree = t + 4 * ins[i].p
        out.append(lines[i]); emitted.append((i, states)); states += ins[i].ws
        t += cost(ins[i]); done.add(i); remaining.remove(i)
    return out, t
```

```python
import sys, struct
from asmlib import *

NAME = "gated_mix__sliding_local_dilated__dense_activation_relu__prompt"
A2_OFF = 0
W2_OFF = 0xA00000
G_OFF = 0xD00000
FW_OFF = 0xD10000
FA_OFF = 0xD20000
WS_USED = 0xD80000
FSTR = 1152
STAMP_OFF = 128 << 20
SLOT = 45056
XOFF, WOFF, EOFF = 0, 16384, 40960
SCR = 3 * SLOT
LDS_BYTES = 163840
TOP = LDS_BYTES
def slot_of(s): return ((7 - s) % 3) * SLOT
BIG = 0xF149F2CA
LOG2E = 1.4426950408889634
KS0 = [0, 16, 35, 54]; NST = [16, 19, 19, 18]
NBR = 9
BL_BASE = [0, 28672, 69632, 110592]
PX, PWQKV, PWO, PW1, PW2, PGATE, POUT, PDBG, PWS = 4, 6, 8, 12, 14, 16, 18, 20, 22
sB, sT, sG, sW, sU, sCT, TAG = "s24", "s25", "s26", "s27", "s28", "s29", 30
RX, RW, RE, RWS, RR, RAUX, RA, RB = 32, 36, 40, 44, 48, 52, 56, 60

def f32bits(x): return struct.unpack("<I", struct.pack("<f", x))[0]
def q(r): return f"s[{r}:{r+3}]"

def srd(a, d, base, size, add=0):
    if add == 0:
        a(f"s_mov_b32 s{d}, s{base}"); a(f"s_mov_b32 s{d+1}, s{base+1}")
    else:
        a(f"s_add_u32 s{d}, s{base}, {add}"); a(f"s_addc_u32 s{d+1}, s{base+1}, 0")
    a(f"s_mov_b32 s{d+2}, {size}"); a(f"s_mov_b32 s{d+3}, 0x20000")

def csel(a, d, x, y):
    a(f"s_mov_b32 {d}, {y}"); a(f"s_cselect_b32 {d}, {x}, {d}")

def spread(a, mf, other, last=4):
    n = len(mf) - last; other = list(other); k = 0
    for i, m in enumerate(mf):
        a(m)
        while k < len(other) and k * n <= i * len(other): a(other[k]); k += 1
    while k < len(other): a(other[k]); k += 1

def mix(xs, ws):
    out = []; i = j = 0
    while i < len(xs) or j < len(ws):
        if j >= len(ws) or (i < len(xs) and i * len(ws) <= j * len(xs)): out.append(xs[i]); i += 1
        else: out.append(ws[j]); j += 1
    return out

def interleave(a, mf, other, start=0, per=1):
    other = list(other)
    for i, m in enumerate(mf):
        a(m)
        if i >= start:
            for _ in range(per):
                if other: a(other.pop(0))
    for o in other: a(o)

def stamp_begin(a, opt):
    if opt.get("stamps"):
        a("s_memrealtime s[80:81]"); a("s_memtime s[82:83]")
        for k in range(8): a(f"s_mov_b32 s{84+2*k}, 0")

def stamp(a, opt, k, wait=False):
    if opt.get("stamps"):
        a(f"s_memtime s[{84+2*k}:{85+2*k}]")
        if wait: a("s_waitcnt lgkmcnt(0)")

def stamp_end(a, opt, tag):
    if not opt.get("stamps"): return
    a("s_waitcnt vmcnt(0) lgkmcnt(0)")
    a("s_memrealtime s[64:65]"); a("s_memtime s[66:67]")
    a("s_waitcnt lgkmcnt(0)")
    srd(a, RAUX, PWS, 1 << 20, STAMP_OFF)
    a("s_lshl_b32 s68, s2, 3"); a("s_add_u32 s68, s68, s3"); a("s_lshl_b32 s68, s68, 6")
    a("s_getreg_b32 s69, hwreg(HW_REG_XCC_ID)")
    a(f"s_mov_b32 s65, {tag}")
    for i, s in enumerate((80, 64, 82, 84, 86, 88, 90, 92, 94, 96, 98, 66, 69, 65, 65, 65)):
        a(f"v_mov_b32 v{8+i}, s{s}")
    a("v_mov_b32 v6, s68")
    a("s_mov_b64 exec, 1")
    for k in range(4):
        a(f"buffer_store_dwordx4 v[{8+4*k}:{11+4*k}], v6, {q(RAUX)}, 0 offen offset:{16*k}")
    a("s_waitcnt vmcnt(0)")

_lab = [0]
def newlab(p):
    _lab[0] += 1; return f"{p}_{_lab[0]}"

def tag_check(a, vt, vz):
    L = newlab("TAGL"); D = newlab("TAGD")
    a("s_mov_b32 s64, 0x40000")
    a.label(L)
    a(f"v_readfirstlane_b32 s{TAG}, v{vt}"); a(f"v_readfirstlane_b32 s{TAG+1}, v{vt+1}"); a("s_nop 0")
    a(f"s_cmp_lg_u32 s{TAG}, 0"); a(f"s_cbranch_scc1 {D}")
    a("s_sub_u32 s64, s64, 1"); a("s_cmp_eq_u32 s64, 0"); a(f"s_cbranch_scc1 {D}")
    a("s_sleep 2")
    a(f"global_load_dwordx2 v[{vt}:{vt+1}], v{vz}, s[{PDBG}:{PDBG+1}] sc1"); a("s_waitcnt vmcnt(0)")
    a(f"s_branch {L}")
    a.label(D)

def poll(a, vt, voff, soff, need, first_loaded=False):
    L = newlab("POLL"); C = newlab("POLC"); D = newlab("POLD")
    a("s_mov_b32 s66, 0x40000")
    if first_loaded: a(f"s_branch {C}")
    a.label(L)
    a(f"buffer_load_dwordx2 v[{vt}:{vt+1}], v{voff}, {q(RWS)}, {soff} offen sc1")
    a("s_waitcnt vmcnt(0)")
    a.label(C)
    a(f"v_cmp_eq_u64 vcc, s[{TAG}:{TAG+1}], v[{vt}:{vt+1}]"); a("s_nop 0")
    a(f"s_andn2_b64 s[64:65], {need}, vcc"); a(f"s_cbranch_scc0 {D}")
    a("s_sub_u32 s66, s66, 1"); a("s_cmp_eq_u32 s66, 0"); a(f"s_cbranch_scc1 {D}")
    a("s_sleep 1"); a(f"s_branch {L}")
    a.label(D)

def gen(a, opt):
    kn = NAME + "_kernel"
    a(f".globl {kn}"); a(".p2align 8"); a(f".type {kn},@function"); a.label(kn)
    a("s_cmp_ge_u32 s2, 256"); a("s_cbranch_scc1 K_END")
    a("s_load_dwordx16 s[4:19], s[0:1], 0")
    a("s_load_dwordx4 s[20:23], s[0:1], 64")
    stamp_begin(a, opt)
    a("v_lshrrev_b32 v1, 6, v0"); a("v_and_b32 v0, 63, v0")
    a("v_readfirstlane_b32 s3, v1")
    if opt.get("lw", 1): a("s_nop 0"); a("s_xor_b32 s3, s3, 4")
    if opt.get("cpf", 2) == 2:
        L = newlab("CS")
        a("s_cmp_ge_u32 s2, 32"); a(f"s_cbranch_scc1 {L}"); a("s_cmp_lg_u32 s3, 1"); a(f"s_cbranch_scc1 {L}")
        a("s_getpc_b64 s[64:65]")
        G = newlab("GP"); a.label(G)
        a("s_lshr_b32 s66, s2, 3"); a("s_lshl_b32 s66, s66, 13")
        a("v_lshlrev_b32 v10, 7, v0"); a("v_add_u32 v10, s66, v10")
        a(f"s_mov_b32 s66, K_CODE_END-{G}-4")
        a("v_min_u32 v10, s66, v10"); a("global_load_dword v255, v10, s[64:65]")
        a.label(L)
    a("s_and_b32 s64, s2, 7"); a("s_lshr_b32 s65, s2, 3")
    m = opt.get("map", "Y")
    if m == "Z":
        a(f"s_lshr_b32 {sB}, s64, 1"); a(f"s_lshl_b32 {sB}, {sB}, 2"); a("s_and_b32 s66, s65, 3"); a(f"s_add_u32 {sB}, {sB}, s66")
        a("s_lshr_b32 s66, s65, 2")
        a(f"s_and_b32 {sT}, s66, 1")
        a("s_and_b32 s67, s64, 1"); a(f"s_lshl_b32 {sG}, s67, 2"); a("s_lshr_b32 s68, s66, 1"); a(f"s_add_u32 {sG}, {sG}, s68")
        if opt.get("p2map", 0) == 0:
            a(f"s_lshl_b32 {sU}, {sB}, 1"); a(f"s_add_u32 {sU}, {sU}, s67"); a(f"s_mov_b32 {sCT}, s66")
        else:
            a(f"s_lshl_b32 {sU}, {sB}, 1"); a(f"s_add_u32 {sU}, {sU}, {sT}"); a(f"s_mov_b32 {sCT}, {sG}")
    elif m == "X":
        a(f"s_lshl_b32 {sB}, s64, 1"); a("s_and_b32 s66, s65, 1"); a(f"s_add_u32 {sB}, {sB}, s66")
        a("s_lshr_b32 s66, s65, 1")
        a(f"s_and_b32 {sT}, s66, 1"); a(f"s_lshr_b32 {sG}, s66, 1")
        a(f"s_lshl_b32 {sU}, {sB}, 1"); a(f"s_add_u32 {sU}, {sU}, {sT}"); a(f"s_mov_b32 {sCT}, {sG}")
    elif m == "Y":
        a(f"s_lshr_b32 {sB}, s64, 2"); a(f"s_lshl_b32 {sB}, {sB}, 3"); a("s_and_b32 s66, s65, 7"); a(f"s_add_u32 {sB}, {sB}, s66")
        a("s_lshr_b32 s66, s65, 3")
        a(f"s_and_b32 {sT}, s66, 1")
        a("s_and_b32 s67, s64, 3"); a(f"s_lshl_b32 {sG}, s67, 1"); a("s_lshr_b32 s68, s66, 1"); a(f"s_add_u32 {sG}, {sG}, s68")
        a("s_and_b32 s68, s64, 1"); a(f"s_lshl_b32 {sU}, {sB}, 1"); a(f"s_add_u32 {sU}, {sU}, s68")
        a("s_and_b32 s68, s64, 2"); a("s_lshl_b32 s68, s68, 1"); a(f"s_add_u32 {sCT}, s68, s66")
        if opt.get("p2alt", 0):
            a(f"s_lshl_b32 {sU}, s64, 2"); a("s_and_b32 s68, s65, 3"); a(f"s_add_u32 {sU}, {sU}, s68"); a(f"s_lshr_b32 {sCT}, s65, 2")
    a(f"s_and_b32 {sW}, s3, 3")
    a("s_cmp_ge_u32 s3, 4"); a("s_cbranch_scc1 K_LOADER")
    if opt.get("duty", 1):
        Lb = newlab("DU"); Lc = newlab("DU"); Ld = newlab("DU")
        a("s_waitcnt lgkmcnt(0)")
        a("v_lshlrev_b32 v254, 7, v0")
        a(f"s_mov_b32 s{RR+3}, 0x20000")
        if opt.get("duty", 1) == 2:
            a("s_lshr_b32 s64, s2, 7"); a("s_lshl_b32 s64, s64, 6"); a("s_and_b32 s65, s2, 63"); a("s_add_u32 s64, s64, s65")
            a(f"s_cmp_eq_u32 {sT}, 0"); a("s_cselect_b32 s64, s64, 128")
            a(f"s_branch {Lb}X")
        a("s_cmp_ge_u32 s2, 156"); a(f"s_cbranch_scc1 {Lb}")
        a("s_lshl_b32 s64, s2, 1"); a(f"s_and_b32 s65, {sW}, 1"); a("s_add_u32 s64, s64, s65")
        a("s_mul_i32 s65, s64, 1261"); a("s_lshr_b32 s65, s65, 16"); a("s_mul_i32 s66, s65, 52"); a("s_sub_u32 s64, s64, s66")
        a(f"s_max_u32 s101, s65, {opt.get('dlead', 1)}"); a(f"s_sub_u32 s101, s101, {opt.get('dlead', 1)}")
        a("s_add_u32 s65, s65, 2")
        if opt.get("xduty", 1):
            Le = newlab("DU")
            a(f"s_cmp_lt_u32 {sW}, 2"); a(f"s_cbranch_scc1 {Le}")
            a(f"s_mov_b32 s{RR}, s{PX}"); a(f"s_mov_b32 s{RR+1}, s{PX+1}"); a(f"s_mov_b32 s{RR+2}, {2048*1024}")
            a("v_lshlrev_b32 v254, 10, v0")
            a("s_lshl_b32 s100, s64, 16"); a("s_lshl_b32 s65, s65, 7"); a("s_add_u32 s100, s100, s65")
            a("s_cmp_ge_u32 s64, 32"); a("s_cselect_b32 s101, 255, s101")
            a(f"s_branch {Lc}")
            a.label(Le)
        a("s_cmp_lt_u32 s64, 24")
        a(f"s_cselect_b32 s{RR}, s{PWQKV}, s{PW1}"); a(f"s_cselect_b32 s{RR+1}, s{PWQKV+1}, s{PW1+1}"); csel(a, f"s{RR+2}", 512*3072, 512*3584)
        a("s_cselect_b32 s66, 24, 28"); a("s_cselect_b32 s67, 0, 24"); a("s_mul_i32 s65, s65, s66"); a("s_add_u32 s64, s64, s65"); a("s_sub_u32 s64, s64, s67"); a("s_lshl_b32 s100, s64, 13")
        a(f"s_cmp_ge_u32 {sW}, 2"); a("s_cselect_b32 s101, 255, s101")
        a(f"s_branch {Lc}")
        a.label(Lb)
        a("s_sub_u32 s64, s2, 156")
        a.label(Lb + "X")
        a("s_mul_i32 s64, s64, 3"); a(f"s_add_u32 s64, s64, {sW}")
        a("s_mul_i32 s101, s64, 911"); a(f"s_lshr_b32 s101, s101, {16 + opt.get('dbw', 0)}"); a(f"s_add_u32 s101, s101, {opt.get('dbs', 1)}")
        a(f"s_cmp_ge_u32 {sW}, 3"); a("s_cselect_b32 s101, 255, s101"); a("s_cmp_ge_u32 s64, 288"); a("s_cselect_b32 s101, 255, s101")
        a("s_cmp_lt_u32 s64, 64")
        a(f"s_cselect_b32 s{RR}, s{PWO}, s{PW2}"); a(f"s_cselect_b32 s{RR+1}, s{PWO+1}, s{PW2+1}"); csel(a, f"s{RR+2}", 512*1024, 1792*1024)
        a("s_cselect_b32 s67, 0, 64"); a("s_sub_u32 s64, s64, s67"); a("s_lshl_b32 s100, s64, 13")
        a.label(Lc)
        a("s_cmp_lg_u32 s101, 0"); a(f"s_cbranch_scc1 {Ld}"); a(f"buffer_load_dword v255, v254, {q(RR)}, s100 offen"); a.label(Ld)
    a("s_branch K_COMPUTE")
    gen_loader(a, opt)
    a.label("K_END"); a("s_endpgm")
    a.label("K_COMPUTE")
    a(f"s_cmp_eq_u32 {sT}, 0"); a("s_cbranch_scc1 K_ATTN")
    gen_ffn(a, opt)
    gen_attn(a, opt)
    a.label("K_CODE_END")

def compute_common_setup(a, opt):
    L = newlab("CS")
    a("v_mov_b32 v1, 0")
    a("s_or_b32 s64, s2, s3"); a("s_cmp_lg_u32 s64, 0"); a(f"s_cbranch_scc1 {L}")
    a("s_memrealtime s[64:65]"); a("s_waitcnt lgkmcnt(0)")
    a("s_or_b32 s64, s64, 1"); a("s_xor_b32 s65, s65, 0x5bd1e995")
    a("v_mov_b32 v10, s64"); a("v_mov_b32 v11, s65")
    a("s_mov_b64 exec, 1")
    a(f"global_store_dwordx2 v1, v[10:11], s[{PDBG}:{PDBG+1}] sc1")
    a("s_mov_b64 exec, -1")
    a.label(L)
    if opt.get("cpf", 2) == 1:
        L = newlab("CS")
        a("s_cmp_ge_u32 s2, 8"); a(f"s_cbranch_scc1 {L}"); a("s_cmp_lg_u32 s3, 1"); a(f"s_cbranch_scc1 {L}")
        a("s_getpc_b64 s[64:65]")
        G = newlab("GP"); a.label(G)
        a(f"s_sub_u32 s64, s64, {G}-{NAME}_kernel"); a("s_subb_u32 s65, s65, 0")
        a("v_lshlrev_b32 v10, 7, v0")
        a(f"s_mov_b32 s66, K_CODE_END-{NAME}_kernel-4")
        for r in range(opt.get("cpfn", 4)):
            a("v_min_u32 v11, s66, v10"); a("global_load_dword v255, v11, s[64:65]"); a("v_add_u32 v10, 8192, v10")
        a.label(L)
    srd(a, RWS, PWS, WS_USED)
    if opt.get("tlb", 0):
        Lt = newlab("TLB")
        a(f"s_cmp_lg_u32 {sW}, 2"); a(f"s_cbranch_scc1 {Lt}")
        a("v_lshlrev_b32 v13, 21, v0"); a("s_mov_b64 exec, 0x7f")
        a(f"buffer_load_dword v12, v13, {q(RWS)}, 0 offen")
        a("s_mov_b64 exec, 1")
        for p in (PW2, PWO, POUT, PGATE, PDBG):
            a(f"global_load_dword v12, v1, s[{p}:{p+1}]")
        a("s_mov_b64 exec, -1")
        a.label(Lt)
    a(f"s_lshl_b32 s78, {sB}, 4"); a(f"s_lshl_b32 s64, {sT}, 3"); a("s_add_u32 s78, s78, s64"); a(f"s_add_u32 s78, s78, {sG}")
    a(f"s_mul_i32 s78, s78, {FSTR}"); a(f"s_add_u32 s78, s78, {FA_OFF}")

def compute_publish(a, opt, vt, nst):
    L = newlab("NOPUB")
    a("s_mov_b64 exec, 1")
    a(f"v_mov_b32 v12, {TOP-4096}"); a("v_mov_b32 v13, 1")
    a(f"s_waitcnt vmcnt({nst})")
    tag_check(a, vt, 1)
    a("s_waitcnt vmcnt(0)")
    stamp(a, opt, 6)
    a("ds_add_rtn_u32 v13, v12, v13"); a("s_waitcnt lgkmcnt(0)")
    a("v_cmp_eq_u32 vcc, 3, v13"); a("s_nop 0"); a(f"s_cbranch_vccz {L}")
    a(f"buffer_store_dwordx2 v[{vt}:{vt+1}], v1, {q(RWS)}, s78 offen sc1")
    a.label(L)

def mainloop(a, opt, pre, addr_regs, reads, mfmas):
    a("s_mov_b32 s70, 1"); a("s_mov_b32 s72, 0"); a(f"s_mov_b32 s73, {(-SLOT) & 0xffffffff}"); a(f"s_mov_b32 s79, {2*SLOT}")
    for r in addr_regs: a(f"v_add_u32 v{r}, {slot_of(0)}, v{r}")
    if opt.get("prio", 2) == 1: a("s_setprio 1")
    du = opt.get("duty", 1)
    dl = f"buffer_load_dword v255, v254, {q(RR)}, s100 offen"
    stamp(a, opt, 0)
    a("s_barrier")
    stamp(a, opt, 1)
    for r in reads(0, 0): a(r)
    a(".p2align 3")
    a.label(pre + "_LOOP")
    a("s_waitcnt lgkmcnt(0)")
    a("s_add_u32 s70, s70, 1")
    last = opt.get("last", 6)
    sal = ["s_cmp_eq_u32 s70, 3\ns_cselect_b32 s71, s79, s73", "s_cselect_b32 s70, 0, s70\ns_add_u32 s72, s72, 1"]
    if du: sal.append(f"s_cmp_eq_u32 s72, s101\ns_cbranch_scc1 {pre}_DUTY\n{pre}_DBACK:")
    sal.append("s_cmp_eq_u32 s72, 8\ns_nop 0")
    mf = mfmas(0)
    spread(a, mf[:-last], reads(1, 1), 0)
    interleave(a, mf[-last:], sal)
    a("s_waitcnt lgkmcnt(0)")
    a("s_barrier")
    a(f"s_cbranch_scc1 {pre}_DONE"); a("s_nop 0")
    for _ in range(opt.get("slow", 0)): a("s_nop 15"); a("s_nop 15")
    adv = [f"v_add_u32 v{r}, s71, v{r}" for r in addr_regs]
    if len(adv) % 2: adv.append("s_nop 0")
    adv = [adv[i] + "\n" + adv[i+1] for i in range(0, len(adv), 2)]
    mf = mfmas(1)
    interleave(a, mf[:len(adv)], adv)
    spread(a, mf[len(adv):], reads(0, 0), opt.get("last2", 2))
    a(f"s_branch {pre}_LOOP")
    if du:
        a.label(pre + "_DUTY"); a(dl); a(f"s_branch {pre}_DBACK")
    a(".p2align 3")
    a.label(pre + "_DONE")
    if opt.get("prio", 2) == 2: a("s_setprio 3"); a("s_nop 0")
    stamp(a, opt, 2)

def gen_ffn(a, opt):
    ACC = 16; FR = 128
    def acc(t, n): return ACC + 4 * (t * 7 + n)
    def xf(s, t): return FR + 44 * s + 4 * t
    def wf(s, n): return FR + 44 * s + 16 + 4 * n
    XA = [2, 3]; WA = [4, 5, 6, 7]; SA = 8
    a(f"s_lshr_b32 s68, {sW}, 1")
    a(f"s_and_b32 s69, {sW}, 1")
    a("v_and_b32 v10, 15, v0"); a("v_lshrrev_b32 v11, 4, v0")
    a("v_lshrrev_b32 v12, 1, v10"); a("v_xor_b32 v12, v12, v11"); a("v_lshlrev_b32 v12, 4, v12")
    a("v_lshlrev_b32 v13, 7, v10"); a("v_add_u32 v12, v12, v13")
    a("s_lshl_b32 s64, s68, 13"); a(f"v_add_u32 v{XA[0]}, s64, v12"); a(f"v_xor_b32 v{XA[1]}, 64, v{XA[0]}")
    a("v_bfe_u32 v12, v0, 2, 2")
    a("v_lshlrev_b32 v13, 3, v11"); a("v_add_u32 v13, v13, v12")
    a("v_lshrrev_b32 v14, 1, v12"); a("v_and_b32 v15, 1, v11"); a("v_lshlrev_b32 v9, 1, v15"); a("v_or_b32 v14, v14, v9")
    a("v_and_b32 v9, 3, v0"); a("v_lshlrev_b32 v9, 3, v9")
    a("v_lshlrev_b32 v12, 7, v13"); a("v_add_u32 v12, v12, v9")
    for j in range(4):
        a("s_mul_i32 s64, s69, 6"); a(f"s_add_u32 s64, s64, {j}")
        a("s_and_b32 s65, s64, 3"); a("s_lshr_b32 s64, s64, 2"); a("s_lshl_b32 s64, s64, 13"); a(f"s_add_u32 s64, s64, {WOFF}")
        a(f"v_xor_b32 v{WA[j]}, s65, v14"); a(f"v_lshlrev_b32 v{WA[j]}, 5, v{WA[j]}"); a(f"v_add_u32 v{WA[j]}, v{WA[j]}, v12"); a(f"v_add_u32 v{WA[j]}, s64, v{WA[j]}")
    a(f"v_xor_b32 v{SA}, s69, v15"); a(f"v_lshlrev_b32 v{SA}, 5, v{SA}"); a(f"v_add_u32 v{SA}, v{SA}, v9")
    a("v_lshlrev_b32 v12, 6, v13"); a(f"v_add_u32 v{SA}, v{SA}, v12"); a(f"v_add_u32 v{SA}, {EOFF}, v{SA}")
    a(f"s_lshl_b32 s64, {sB}, 1"); a("s_add_u32 s64, s64, s68"); a("s_mul_i32 s64, s64, 72")
    a(f"s_mul_i32 s65, {sG}, 7"); a("s_add_u32 s64, s64, s65"); a("s_add_u32 s64, s64, 16")
    a(f"s_and_b32 s65, {sG}, 1")
    a("s_mul_i32 s66, s69, 3"); a("s_add_u32 s66, s66, s65"); a("s_add_u32 s66, s66, s64"); a("s_lshl_b32 s74, s66, 12")
    a("s_add_u32 s75, s74, 4096"); a("s_add_u32 s76, s74, 8192")
    a("s_cmp_eq_u32 s65, 0"); a("s_cselect_b32 s66, 6, 0"); a("s_add_u32 s66, s66, s64"); a("s_lshl_b32 s77, s66, 12")
    a("s_lshl_b32 s65, s69, 11"); a("s_add_u32 s77, s77, s65")
    a("v_lshlrev_b32 v9, 4, v0")
    a("s_waitcnt lgkmcnt(0)")
    compute_common_setup(a, opt)
    for i in range(112): a(f"v_mov_b32 v{ACC+i}, 0")
    def reads(kk, s):
        xs = [f"ds_read_b128 {vr(xf(s,t),4)}, v{XA[kk]} offset:{t*2048}" for t in range(4)]
        ws = []
        for n in range(6):
            for h in range(2):
                ws.append(f"ds_read_b64_tr_b16 {vr(wf(s,n)+2*h,2)}, v{WA[n&3]} offset:{(n>>2)*8192 + kk*4096 + h*512}")
        for h in range(2):
            ws.append(f"ds_read_b64_tr_b16 {vr(wf(s,6)+2*h,2)}, v{SA} offset:{kk*2048 + h*256}")
        return mix(xs, ws)
    def mfmas(s):
        return [f"v_mfma_f32_16x16x32_bf16 {vr(acc(t,n),4)}, {vr(wf(s,n),4)}, {vr(xf(s,t),4)}, {vr(acc(t,n),4)}" for n in range(7) for t in range(4)]
    mainloop(a, opt, "KF", XA + WA + [SA], reads, mfmas)
    E = [f"global_load_dwordx2 v[10:11], v1, s[{PDBG}:{PDBG+1}] sc1"] + mfmas(1)
    tmp = [FR + 4 * k for k in range(11)] + [216 + 4 * k for k in range(3)]
    k = 0
    for n in range(7):
        for tp in range(2):
            d = tmp[k]; k += 1
            for hh in range(2):
                sx = acc(2 * tp + hh, n)
                E.append(f"v_cvt_pk_bf16_f32 v{d+2*hh}, v{sx}, v{sx+1}"); E.append(f"v_cvt_pk_bf16_f32 v{d+2*hh+1}, v{sx+2}, v{sx+3}")
            for i in (0, 2, 1, 3): E.append(f"v_pk_max_i16 v{d+i}, v{d+i}, 0")
            E.append(f"v_permlane16_swap_b32 v{d}, v{d+2}"); E.append(f"v_permlane16_swap_b32 v{d+1}, v{d+3}")
            off = ((n & 1) * 2048 if n < 6 else 0) + tp * 1024
            E.append(f"buffer_store_dwordx4 {vr(d,4)}, v9, {q(RWS)}, s{74+(n>>1)} offen offset:{off} sc1")
    o, t = schedule(E, 40)
    print("ffn epilogue est", t, len(o), file=sys.stderr)
    wn = opt.get("wn", 0); ns = 0
    for x in o:
        if x.startswith("buffer_store"):
            if wn and ns >= wn: a(f"s_waitcnt vmcnt({wn-1})")
            ns += 1
        a(x)
    if opt.get("sb", 1): a("s_barrier")
    stamp(a, opt, 3)
    compute_publish(a, opt, 10, 14)
    stamp(a, opt, 5)
    stamp_end(a, opt, 1)
    a("s_endpgm")

def gen_attn(a, opt):
    a.label("K_ATTN")
    ACC = 36; FR = 140
    def Q(t): return ACC + 4 * t
    def K(t): return ACC + 32 + 4 * t
    def V(t): return ACC + 68 + 4 * t
    def xf(s, t): return FR + 48 * s + 4 * t
    def wf(s, p): return FR + 48 * s + 36 + 4 * p
    XA = [2, 3]; WA = 4
    BC, BP, BP0, BP4, MC = 16, 20, 24, 28, 32
    a("v_and_b32 v10, 15, v0"); a("v_lshrrev_b32 v11, 4, v0")
    a("v_lshrrev_b32 v12, 1, v10"); a("v_xor_b32 v12, v12, v11"); a("v_lshlrev_b32 v12, 4, v12")
    a("v_lshlrev_b32 v13, 7, v10"); a(f"v_add_u32 v{XA[0]}, v12, v13"); a(f"v_xor_b32 v{XA[1]}, 64, v{XA[0]}")
    a("v_bfe_u32 v12, v0, 2, 2")
    a("v_lshlrev_b32 v13, 3, v11"); a("v_add_u32 v13, v13, v12")
    a("v_lshrrev_b32 v14, 1, v12"); a("v_and_b32 v15, 1, v11"); a("v_lshlrev_b32 v9, 1, v15"); a("v_or_b32 v14, v14, v9")
    a("v_and_b32 v9, 3, v0"); a("v_lshlrev_b32 v9, 3, v9")
    a("v_lshlrev_b32 v12, 7, v13"); a("v_add_u32 v12, v12, v9")
    a(f"v_xor_b32 v{WA}, {sW}, v14"); a(f"v_lshlrev_b32 v{WA}, 5, v{WA}"); a(f"v_add_u32 v{WA}, v{WA}, v12"); a(f"v_add_u32 v{WA}, {WOFF}, v{WA}")
    a("v_lshlrev_b32 v5, 2, v11"); a("v_sub_u32 v6, v5, v10")
    a(f"s_mul_i32 s64, {sB}, 144"); a(f"s_lshl_b32 s65, {sG}, 1"); a("s_add_u32 s64, s64, s65"); a(f"s_lshr_b32 s65, {sW}, 1"); a("s_add_u32 s64, s64, s65")
    a("s_lshl_b32 s74, s64, 12"); a(f"s_and_b32 s65, {sW}, 1"); a("s_lshl_b32 s65, s65, 11"); a("s_add_u32 s74, s74, s65")
    a(f"s_add_u32 s75, s74, {72*4096}")
    a(f"s_mov_b32 s76, 0x{f32bits(0.25*LOG2E):x}"); a("s_mov_b32 s77, s76")
    a("v_lshlrev_b32 v9, 4, v0")
    a("s_waitcnt lgkmcnt(0)")
    compute_common_setup(a, opt)
    a(f"v_mov_b32 v7, 0x{BIG:x}")
    a(f"s_cmp_eq_u32 {sB}, 0"); a(f"s_cselect_b32 s64, 0x{BIG:x}, 0"); a("v_mov_b32 v8, s64")
    a(f"v_mov_b32 v{MC}, 0"); a(f"v_mov_b32 v{MC+1}, 0")
    for r in range(4):
        a(f"v_add_u32 v14, {r+7}, v6")
        a("v_cmp_gt_u32 vcc, 8, v14")
        a(f"v_mov_b32 v15, {'0xffff' if r % 2 == 0 else '0xffff0000'}")
        a(f"v_add_u32 v14, {r}, v6")
        a(f"v_cndmask_b32 v{BC+r}, v7, v1, vcc")
        a("v_cndmask_b32 v15, v1, v15, vcc")
        a(f"v_or_b32 v{MC+(r>>1)}, v{MC+(r>>1)}, v15")
        a("v_cmp_le_i32 vcc, 9, v14")
        a(f"v_add_u32 v15, {r}, v5")
        a("v_cmp_gt_u32 s[64:65], 8, v15")
        a(f"v_cndmask_b32 v{BP+r}, v7, v1, vcc")
        a(f"v_cndmask_b32 v{BP0+r}, v7, v8, vcc")
        a("v_cmp_le_i32 vcc, 1, v14"); a("s_nop 0")
        a("s_and_b64 vcc, vcc, s[64:65]")
        a(f"v_cndmask_b32 v{BP4+r}, v7, v8, vcc")
    for i in range(104): a(f"v_mov_b32 v{ACC+i}, 0")
    def reads(kk, s):
        ws = []
        for p in range(3):
            for h in range(2):
                ws.append(f"ds_read_b64_tr_b16 {vr(wf(s,p)+2*h,2)}, v{WA} offset:{p*8192 + kk*4096 + h*512}")
        xs = [f"ds_read_b128 {vr(xf(s,t),4)}, v{XA[kk]} offset:{t*2048 if t < 8 else EOFF}" for t in range(9)]
        return mix(xs, ws)
    def mfmas(s):
        r = []
        for t in range(9):
            if t < 8: r.append(f"v_mfma_f32_16x16x32_bf16 {vr(Q(t),4)}, {vr(wf(s,0),4)}, {vr(xf(s,t),4)}, {vr(Q(t),4)}")
            r.append(f"v_mfma_f32_16x16x32_bf16 {vr(K(t),4)}, {vr(wf(s,1),4)}, {vr(xf(s,t),4)}, {vr(K(t),4)}")
            r.append(f"v_mfma_f32_16x16x32_bf16 {vr(V(t),4)}, {vr(xf(s,t),4)}, {vr(wf(s,2),4)}, {vr(V(t),4)}")
        return r
    a("s_mov_b32 s66, 0x3f803f80")
    mainloop(a, opt, "KA", XA + [WA], reads, mfmas)
    QB = FR; KB = FR + 16; M = FR + 34; ONES = FR + 44; VB = FR + 48; PB = FR + 68; TM = FR + 100
    E = [f"global_load_dwordx2 v[10:11], v1, s[{PDBG}:{PDBG+1}] sc1"] + mfmas(1)
    e = E.append
    def cvt(d, s): e(f"v_cvt_pk_bf16_f32 v{d}, v{s}, v{s+1}"); e(f"v_cvt_pk_bf16_f32 v{d+1}, v{s+2}, v{s+3}")
    for i in range(4): e(f"v_mov_b32 v{ONES+i}, s66")
    for t in range(8): cvt(QB + 2 * t, Q(t))
    for t in range(9): cvt(KB + 2 * t, K(t))
    def vslot(t): return (1 + t) if t < 4 else (2 + t)
    for t in range(8): cvt(VB + 2 * vslot(t), V(t))
    for d in (VB, VB + 10): cvt(d, V(8))
    for t in range(8):
        prev = 8 if t in (0, 4) else t - 1
        bp = BP0 if t == 0 else (BP4 if t == 4 else BP)
        e(f"v_mfma_f32_16x16x16_bf16 {vr(Q(t),4)}, {vr(KB+2*t,2)}, {vr(QB+2*t,2)}, {vr(BC,4)}")
        e(f"v_mfma_f32_16x16x16_bf16 {vr(K(t),4)}, {vr(KB+2*prev,2)}, {vr(QB+2*t,2)}, {vr(bp,4)}")
    for t in range(8):
        for r in range(4): e(f"v_max_f32 v{Q(t)+r}, v{Q(t)+r}, v{K(t)+r}")
        e(f"v_max3_f32 v{M+t}, v{Q(t)}, v{Q(t)+1}, v{Q(t)+2}")
        e(f"v_max_f32 v{M+t}, v{M+t}, v{Q(t)+3}")
    for b4 in (0, 4):
        m0, m1, m2, m3 = M + b4, M + b4 + 1, M + b4 + 2, M + b4 + 3
        e(f"v_permlane32_swap_b32 v{m0}, v{m1}"); e(f"v_max_f32 v{m0}, v{m0}, v{m1}")
        e(f"v_permlane32_swap_b32 v{m2}, v{m3}"); e(f"v_max_f32 v{m2}, v{m2}, v{m3}")
        e(f"v_permlane16_swap_b32 v{m0}, v{m2}"); e(f"v_max_f32 v{m0}, v{m0}, v{m2}")
        k0, k1, k2, k3 = K(b4), K(b4 + 1), K(b4 + 2), K(b4 + 3)
        e(f"v_mul_f32 v{k0}, s76, v{m0}"); e(f"v_mul_f32 v{k2}, s76, v{m0}")
        e(f"v_permlane16_swap_b32 v{k0}, v{k2}")
        e(f"v_mov_b32 v{k1}, v{k0}"); e(f"v_mov_b32 v{k3}, v{k2}")
        e(f"v_permlane32_swap_b32 v{k0}, v{k1}"); e(f"v_permlane32_swap_b32 v{k2}, v{k3}")
    pk = opt.get("pk", 1)
    for t in range(8):
        if pk:
            for r in (0, 2): e(f"v_pk_fma_f32 {vr(Q(t)+r,2)}, {vr(Q(t)+r,2)}, s[76:77], {vr(K(t),2)} op_sel_hi:[1,1,0] neg_lo:[0,0,1] neg_hi:[0,0,1]")
        else:
            for r in range(4): e(f"v_fma_f32 v{Q(t)+r}, v{Q(t)+r}, s76, -v{K(t)}")
        for r in range(4): e(f"v_exp_f32 v{Q(t)+r}, v{Q(t)+r}")
        cvt(PB + 4 * t + 2, Q(t))
        for h in range(2): e(f"v_bfi_b32 v{PB+4*t+h}, v{MC+h}, 0, v{PB+4*t+2+h}")
        for h in range(2): e(f"v_and_b32 v{PB+4*t+2+h}, v{MC+h}, v{PB+4*t+2+h}")
        e(f"v_mfma_f32_16x16x32_bf16 {vr(K(t),4)}, {vr(ONES,4)}, {vr(PB+4*t,4)}, 0")
        e(f"v_mfma_f32_16x16x32_bf16 {vr(Q(t),4)}, {vr(VB+2*(vslot(t)-1),4)}, {vr(PB+4*t,4)}, 0")
        e(f"v_rcp_f32 v{K(t)}, v{K(t)}")
        if pk:
            for r in (0, 2): e(f"v_pk_mul_f32 {vr(Q(t)+r,2)}, {vr(Q(t)+r,2)}, {vr(K(t),2)} op_sel_hi:[1,0]")
        else:
            for r in range(4): e(f"v_mul_f32 v{Q(t)+r}, v{Q(t)+r}, v{K(t)}")
        cvt(QB + 2 * t, Q(t))
        if t & 1:
            d = QB + 2 * t - 2
            e(f"v_permlane16_swap_b32 v{d}, v{d+2}"); e(f"v_permlane16_swap_b32 v{d+1}, v{d+3}")
            e(f"buffer_store_dwordx4 {vr(d,4)}, v9, {q(RWS)}, s{74+(t>>2)} offen offset:{((t>>1)&1)*1024} sc1")
    o, t = schedule(E, 0)
    print("attn epilogue est", t, len(o), file=sys.stderr)
    for x in o: a(x)
    stamp(a, opt, 4)
    compute_publish(a, opt, 10, 4)
    stamp(a, opt, 5)
    stamp_end(a, opt, 2)
    a("s_endpgm")

def gen_loader(a, opt):
    a.label("K_LOADER")
    if opt.get("prio", 2) == 2: a("s_setprio 2")
    VL16, VX0, VX1, VW, VE, VR, VZ = 1, 2, 3, 4, 5, 6, 7
    a("v_lshrrev_b32 v10, 3, v0"); a("v_and_b32 v11, 7, v0"); a("v_lshrrev_b32 v12, 4, v0")
    a(f"s_and_b32 s68, {sW}, 1"); a(f"s_lshr_b32 s69, {sW}, 1")
    a(f"s_lshl_b32 s64, {sB}, 7"); a("s_lshl_b32 s65, s68, 6"); a("s_add_u32 s64, s64, s65"); a("s_add_u32 s64, s64, s69"); a("s_lshl_b32 s64, s64, 10")
    a("v_xor_b32 v13, v11, v12"); a("v_lshlrev_b32 v13, 4, v13")
    a("v_lshlrev_b32 v14, 11, v10"); a("v_add_u32 v14, v14, v13")
    a(f"v_add_u32 v{VX0}, s64, v14"); a(f"v_xor_b32 v{VX1}, 64, v{VX0}")
    a(f"s_cmp_eq_u32 {sT}, 0")
    csel(a, "s74", 3072, 3584); csel(a, "s75", 1024, 128)
    csel(a, f"s{RW+2}", 512*3072, 512*3584); csel(a, f"s{RE+2}", 2048*1024, 512*3584)
    a(f"s_mul_i32 s66, {sG}, 448"); a(f"s_and_b32 s67, {sG}, 1"); a("s_lshl_b32 s64, s67, 6"); a("s_add_u32 s64, s64, s66")
    a(f"s_lshl_b32 s65, {sG}, 7")
    a(f"s_cmp_eq_u32 {sT}, 0"); a("s_cselect_b32 s64, s65, s64")
    a("v_and_b32 v15, 1, v12"); a("v_lshlrev_b32 v15, 1, v15"); a("v_xor_b32 v15, v15, v11"); a("s_lshl_b32 s65, s68, 2"); a("v_xor_b32 v15, s65, v15"); a("v_lshlrev_b32 v15, 4, v15")
    a(f"s_lshl_b32 s65, {sW}, 3"); a(f"v_add_u32 v{VW}, s65, v10"); a(f"v_mul_lo_u32 v{VW}, v{VW}, s74"); a(f"v_add_u32 v{VW}, v{VW}, v15"); a(f"v_add_u32 v{VW}, s64, v{VW}")
    a(f"s_cmp_eq_u32 {sT}, 0"); a("s_cbranch_scc1 KL_EA")
    a("s_cmp_eq_u32 s67, 0"); a("s_cselect_b32 s65, 384, 0"); a("s_add_u32 s66, s66, s65")
    a("v_lshrrev_b32 v15, 2, v0"); a(f"s_lshl_b32 s65, {sW}, 4"); a("v_add_u32 v15, s65, v15"); a(f"v_mul_u32_u24 v{VE}, 3584, v15")
    a("v_lshrrev_b32 v15, 5, v0"); a("v_lshlrev_b32 v15, 1, v15"); a("v_and_b32 v13, 3, v0"); a("v_xor_b32 v15, v15, v13"); a("v_lshlrev_b32 v15, 4, v15")
    a(f"v_add_u32 v{VE}, v{VE}, v15"); a(f"v_add_u32 v{VE}, s66, v{VE}")
    a(f"s_lshl_b32 s72, {sW}, 10"); a(f"s_mov_b32 s76, {64*3584}")
    a("s_branch KL_ED")
    a.label("KL_EA")
    a(f"s_lshl_b32 s64, {sB}, 7"); a(f"s_cmp_eq_u32 {sB}, 0"); a("s_cselect_b32 s65, 0, 16"); a(f"s_cselect_b32 s{RE+2}, 0, s{RE+2}"); a("s_sub_u32 s64, s64, s65")
    a("s_add_u32 s64, s64, 1"); a("s_sub_u32 s64, s64, s68"); a("s_lshl_b32 s64, s64, 10")
    a("s_lshl_b32 s65, s68, 6"); a(f"v_xor_b32 v{VE}, s65, v14"); a(f"v_add_u32 v{VE}, s64, v{VE}")
    a("s_lshl_b32 s72, s68, 10"); a("s_mov_b32 s76, 128")
    a.label("KL_ED")
    a(f"s_add_u32 s72, s72, {EOFF}")
    a(f"s_lshl_b32 s70, {sW}, 12")
    a(f"s_lshl_b32 s71, {sW}, 10"); a(f"s_add_u32 s71, s71, {WOFF}")
    a("s_lshl_b32 s73, s74, 6"); a("s_lshl_b32 s74, s74, 5")
    if opt.get("wrot", 1):
        if opt.get("wrot", 1) == 1:
            a(f"s_lshl_b32 s64, {sB}, 1"); a("s_lshr_b32 s64, 0x24924924, s64"); a("s_and_b32 s64, s64, 3"); a(f"s_and_b32 s65, {sB}, 1")
        else:
            a("s_mov_b32 s64, 0"); a("s_mov_b32 s65, 0")
        a("s_lshl_b32 s66, s64, 13"); a("s_add_u32 s71, s71, s66"); a("s_lshl_b32 s66, s65, 12"); a("s_add_u32 s71, s71, s66")
        a("s_mul_i32 s51, s64, s75"); a("s_mul_i32 s66, s65, s74"); a("s_add_u32 s51, s51, s66")
        a("s_cmp_eq_u32 s65, 0"); a("s_cselect_b32 s66, 1, -1"); a("s_lshl_b32 s48, s66, 12"); a("s_mul_i32 s49, s66, s74")
        a("s_cmp_eq_u32 s64, 2"); a("s_cselect_b32 s66, -2, 1"); a("s_lshl_b32 s68, s66, 13"); a("s_mul_i32 s69, s66, s75")
        a("s_cmp_eq_u32 s64, 1"); a("s_cselect_b32 s66, -2, 1"); a("s_lshl_b32 s74, s66, 13"); a("s_mul_i32 s75, s66, s75")
    rot = opt.get("rot", 0)
    win = opt.get("win")
    if win:
        wins = [int(c) for c in str(win)]
        assert sum(wins) == 8
        xm = opt.get("xm", 1)
        a("s_lshr_b32 s64, s2, 6"); a(f"s_mul_i32 s64, s64, {xm}"); a(f"s_and_b32 s65, {sB}, 7"); a("s_add_u32 s64, s64, s65")
        nr = 8 + 3 * xm
        for r in range(nr):
            t = 0; base = 0; k = 0
            for w_ in wins:
                for i in range(w_):
                    t |= (base + (i + r) % w_) << (4 * k); k += 1
                base += w_
            if r == 0: a(f"s_mov_b32 s78, 0x{t:x}")
            else: a(f"s_cmp_eq_u32 s64, {r}"); a(f"s_cselect_b32 s78, 0x{t:x}, s78")
        a("s_and_b32 s77, s78, 7")
    elif rot == 0: a("s_mov_b32 s77, 0")
    elif rot == 1: a(f"s_add_u32 s77, {sB}, {sG}"); a("s_and_b32 s77, s77, 7")
    elif rot == 2: a("s_lshr_b32 s77, s2, 6"); a("s_lshl_b32 s77, s77, 1"); a(f"s_add_u32 s77, s77, {sB}"); a("s_and_b32 s77, s77, 7")
    elif rot == 3:
        a("s_lshr_b32 s77, s2, 6"); a("s_lshl_b32 s77, s77, 1"); a(f"s_add_u32 s77, s77, {sB}"); a("s_and_b32 s64, s2, 1"); a("s_add_u32 s77, s77, s64"); a("s_and_b32 s77, s77, 7")
    a(f"s_mov_b32 s{RX+2}, {2048*1024}"); a(f"s_mov_b32 s{RX+3}, 0x20000"); a(f"s_mov_b32 s{RW+3}, 0x20000"); a(f"s_mov_b32 s{RE+3}, 0x20000")
    a(f"s_cmp_eq_u32 {sT}, 0")
    a("s_waitcnt lgkmcnt(0)")
    a(f"s_mov_b32 s{RX}, s{PX}"); a(f"s_mov_b32 s{RX+1}, s{PX+1}")
    a(f"s_cselect_b32 s{RW}, s{PWQKV}, s{PW1}"); a(f"s_cselect_b32 s{RW+1}, s{PWQKV+1}, s{PW1+1}")
    a(f"s_cselect_b32 s{RE}, s{PX}, s{PW1}"); a(f"s_cselect_b32 s{RE+1}, s{PX+1}, s{PW1+1}")
    def stage(s, lo=0, hi=11):
        base = slot_of(s)
        L = []
        for m in range(4):
            L.append([f"s_add_u32 m0, s70, {base + XOFF + m*1024}", f"s_add_u32 s67, s10, {m*16384}", f"buffer_load_dwordx4 v{VX0 if m % 2 == 0 else VX1}, {q(RX)}, s67 offen lds"])
        if opt.get("wrot", 1):
            W = []
            for k in range(6):
                if k == 0: pre = [f"s_add_u32 m0, s71, {base}", "s_add_u32 s50, s11, s51"]
                elif k == 3: pre = ["s_add_u32 m0, m0, s48", "s_add_u32 s50, s50, s49"]
                elif k < 3: pre = [f"s_add_u32 m0, m0, s{(68,74)[k-1]}", f"s_add_u32 s50, s50, s{(69,75)[k-1]}"]
                else: pre = [f"s_sub_u32 m0, m0, s{(68,74)[5-k]}", f"s_sub_u32 s50, s50, s{(69,75)[5-k]}"]
                W.append(pre + [f"buffer_load_dwordx4 v{VW}, {q(RW)}, s50 offen lds"])
            L = W + L if opt.get("wfirst", 1) else L + W
            assert lo in (0, 6, 7, 8, 9, 10) or not opt.get("wfirst", 1)
        else:
          for jj in range(2):
            for P in range(3):
                if P == 0: so_ = "s_mov_b32 s50, s11" if jj == 0 else "s_add_u32 s50, s11, s74"
                else: so_ = "s_add_u32 s50, s50, s75"
                L.append([f"s_add_u32 m0, s71, {base + P*8192 + jj*4096}", so_, f"buffer_load_dwordx4 v{VW}, {q(RW)}, s50 offen lds"])
        L.append([f"s_add_u32 m0, s72, {base}", "s_mul_i32 s67, s77, s76", f"buffer_load_dwordx4 v{VE}, {q(RE)}, s67 offen lds", "s_lshr_b32 s78, s78, 4" if win else "s_add_u32 s77, s77, 1", "s_and_b32 s77, s78, 7" if win else "s_and_b32 s77, s77, 7"])
        if lo == 0: a("s_lshl_b32 s10, s77, 7"); a("s_mul_i32 s11, s77, s73")
        for x in L[lo:hi]:
            for y in x: a(y)
    def bar(n, k):
        a(f"s_waitcnt vmcnt({n})"); a("s_barrier")
        if opt.get("lstamp"): a(f"s_memtime s[{84+2*k}:{85+2*k}]")
    if opt.get("lstamp"):
        opt = dict(opt); so = opt.copy(); opt["stamps"] = 0
    else: so = opt
    s1a = int(str(opt.get("split", "x7bbbbbb"))[1], 16)
    stage(0); stage(1, 0, s1a)
    a(f"v_lshlrev_b32 v{VL16}, 4, v0"); a(f"v_mov_b32 v{VZ}, 0")
    srd(a, RWS, PWS, WS_USED)
    a("v_and_b32 v15, 1, v12"); a("v_lshlrev_b32 v15, 2, v15"); a("v_xor_b32 v15, v15, v11"); a("v_lshlrev_b32 v15, 4, v15")
    a(f"v_lshlrev_b32 v{VR}, 10, v10"); a(f"v_add_u32 v{VR}, v{VR}, v15")
    a(f"s_mul_i32 s100, {sW}, 19"); a("s_sub_u32 s100, s100, 3"); a(f"s_cmp_eq_u32 {sW}, 0"); a("s_cselect_b32 s100, 0, s100"); a("s_cselect_b32 s101, 16, 19")
    a(f"s_cmp_eq_u32 {sW}, 3"); a("s_cselect_b32 s101, 18, s101"); a("s_lshl_b32 s101, s101, 12")
    a(f"s_mul_i32 s64, {sU}, 72"); a("s_add_u32 s64, s64, s100"); a("s_lshl_b32 s64, s64, 12")
    srd(a, RA, PWS, "s101", "s64")
    a("s_sub_u32 s64, s100, 16"); a("s_lshl_b32 s64, s64, 15")
    a(f"s_cmp_eq_u32 {sW}, 0"); a("s_cselect_b32 s64, 0, s64")
    a(f"s_cselect_b32 s66, s{PWO}, s{PW2}"); a(f"s_cselect_b32 s67, s{PWO+1}, s{PW2+1}")
    a(f"s_lshl_b32 s65, {sCT}, 7"); a("s_add_u32 s64, s64, s65")
    a(f"s_add_u32 s{RB}, s66, s64"); a(f"s_addc_u32 s{RB+1}, s67, 0")
    a(f"s_lshl_b32 s{RB+2}, s101, 3"); a(f"s_sub_u32 s{RB+2}, s{RB+2}, s65"); a(f"s_mov_b32 s{RB+3}, 0x20000")
    a(f"s_lshl_b32 s79, {sW}, 12"); a(f"s_sub_u32 s79, {TOP-4096}, s79")
    a(f"s_cmp_eq_u32 {sW}, 0"); a(f"s_cselect_b32 s79, {TOP-4096-16384}, s79")
    a(f"v_mov_b32 v13, {TOP-4096}"); a(f"ds_write_b32 v13, v{VZ}"); a("s_waitcnt lgkmcnt(0)")
    a("v_lshrrev_b32 v13, 5, v0"); a("v_lshlrev_b32 v13, 10, v13"); a("v_bfe_u32 v14, v0, 2, 2"); a("v_lshlrev_b32 v14, 7, v14"); a("v_add_u32 v13, v13, v14")
    a("v_bfe_u32 v14, v0, 3, 1"); a("v_lshlrev_b32 v14, 6, v14"); a("v_add_u32 v13, v13, v14")
    a("v_bfe_u32 v14, v0, 4, 1"); a("v_lshlrev_b32 v14, 5, v14"); a("v_add_u32 v13, v13, v14")
    a("v_and_b32 v14, 3, v0"); a("v_lshlrev_b32 v14, 3, v14"); a("v_add_u32 v13, v13, v14")
    a(f"s_sub_u32 s64, s79, {3*16384}"); a("v_add_u32 v58, s64, v13"); a("v_xor_b32 v59, 64, v58")
    for k, dr in ((60, 4), (62, 6)):
        a(f"v_subrev_u32 v{k}, {dr*16384}, v58"); a(f"v_subrev_u32 v{k+1}, {dr*16384}, v59")
    a(f"v_mul_u32_u24 v57, {FSTR}, v0")
    sp = [int(c, 16) for c in str(opt.get("split", "x7bbbbbb"))[1:]]
    assert sp[0] == s1a
    vm = [("S", 0)] * 11 + [("S", 1)] * s1a
    def younger(tag): return len(vm) - 1 - max(i for i, t in enumerate(vm) if t == tag)
    def stage_t(s_, lo=0, hi=11): stage(s_, lo, hi); vm.extend([("S", s_)] * (hi - lo))
    br = opt.get("brot", 1)
    mp = opt.get("map", "Y")
    if br == 0: a("s_mov_b32 s14, 0")
    elif mp == "Z" and opt.get("p2map", 0) == 0: a(f"s_and_b32 s14, {sB}, 3"); a("s_lshl_b32 s14, s14, 14")
    elif mp == "Z": a(f"s_and_b32 s14, {sU}, 7"); a("s_lshl_b32 s14, s14, 13")
    elif mp == "Y" and not opt.get("p2alt", 0): a(f"s_and_b32 s14, {sB}, 7"); a("s_lshl_b32 s14, s14, 13")
    else: a(f"s_and_b32 s14, {sU}, 3"); a("s_lshl_b32 s14, s14, 14")
    a("s_lshl_b32 s8, s14, 3"); a("s_lshl_b32 s9, s101, 3")
    ACC = 8; BR = 72
    def bdma(tag, j, certain=True):
        for k in range(4):
            a(f"s_sub_u32 m0, s79, {16384*j - 1024*k}") if 16384*j - 1024*k >= 0 else a(f"s_add_u32 m0, s79, {1024*k - 16384*j}")
            a("s_nop 0")
            a(f"buffer_load_dwordx4 v{VR}, {q(RB)}, s8 offen lds")
            a("s_add_u32 s8, s8, 8192")
        a("s_cmp_ge_u32 s8, s9"); a("s_cselect_b32 s8, 0, s8")
        if certain: vm.extend([("B", tag)] * 4)
    def stg(i, j):
        r = 3 if j < 4 else (7 if j < 8 else 9)
        va = {3: 58, 7: 60, 9: 62}[r]
        for f in range(4):
            for e in range(2):
                a(f"ds_read_b64_tr_b16 {vr(BR+16*i+4*f+2*e,2)}, v{va+(f&1)} offset:{(r-j)*16384 + (f>>1)*2048 + e*512}")
    E = opt.get("eb", 4)
    ne = 0
    for s_ in range(6):
        bar(younger(("S", s_)), s_)
        if s_ == 0: stamp(a, opt, 0)
        if sp[s_] < 11: stage_t(s_ + 1, sp[s_], 11)
        stage_t(s_ + 2, 0, sp[s_ + 1])
        if s_ >= 5 - E:
            if ne > 0:
                a(f"s_waitcnt vmcnt({younger(('B', ne - 1))})"); stg(ne - 1, 0); a("s_waitcnt lgkmcnt(0)")
            bdma(ne, 0); ne += 1
    assert sp[6] == 11 and ne == E + 1
    a("s_mov_b32 s77, s14")
    srd(a, RAUX, POUT, 2048 * 1024)
    a(f"s_lshr_b32 s68, {sU}, 1"); a(f"s_mul_i32 s68, s68, {16*FSTR}"); a(f"s_add_u32 s68, s68, {FA_OFF}")
    def fm(g0, g1): return sum(0x100 << g for g in range(g0, g1 + 1))
    a(f"s_mov_b32 s{RR}, 0x{fm(0,2):x}"); a(f"s_cmp_eq_u32 {sW}, 2"); a(f"s_cselect_b32 s{RR}, 0x{fm(2,5):x}, s{RR}")
    a(f"s_cmp_eq_u32 {sW}, 3"); a(f"s_cselect_b32 s{RR}, 0x{fm(5,7):x}, s{RR}")
    a(f"s_cmp_eq_u32 {sW}, 0"); a(f"s_cselect_b32 s{RR}, 0xff, s{RR}"); a(f"s_mov_b32 s{RR+1}, 0")
    a(f"s_lshl_b32 s69, {sU}, 9"); a(f"s_lshl_b32 s64, {sW}, 7"); a("s_add_u32 s69, s69, s64"); a(f"s_add_u32 s69, s69, {G_OFF}")
    bar(younger(("S", 6)), 6)
    stamp(a, opt, 1)
    for t in range(1, 4): bdma(E + t, t)
    bar(younger(("S", 7)), 7)
    for t in range(4, 7): bdma(E + t, t)
    NSG = 9 - E
    staged = 0
    def stage_upto(t_end):
        nonlocal staged
        t_end = min(t_end, NSG)
        if staged >= t_end: return
        a(f"s_waitcnt vmcnt({younger(('B', E + t_end - 1))})")
        for t in range(staged, t_end): stg(E + t, t)
        staged = t_end
    if opt.get("early", 1): stage_upto(3)
    a("s_barrier")
    stamp(a, opt, 2)
    def gate_loads():
        a(f"s_lshl_b32 s64, {sB}, 7"); a(f"s_and_b32 s65, {sG}, 3"); a("s_lshl_b32 s65, s65, 5"); a("s_add_u32 s65, s65, s64")
        a(f"s_lshl_b32 s66, {sW}, 3"); a("s_add_u32 s65, s65, s66"); a(f"s_lshr_b32 s66, {sG}, 2"); a("s_add_u32 s65, s65, s66"); a("s_lshl_b32 s65, s65, 10")
        a(f"s_lshl_b32 s66, {sG}, 4"); a("s_add_u32 s64, s64, s66"); a(f"s_lshl_b32 s66, {sW}, 2"); a("s_add_u32 s64, s64, s66")
        a("s_lshl_b32 s78, s64, 3"); a(f"s_add_u32 s78, s78, {G_OFF}")
        a(f"global_load_dwordx4 v[32:35], v{VL16}, s[{PGATE}:{PGATE+1}]")
        a(f"buffer_load_dwordx4 v[16:19], v{VL16}, {q(RX)}, s65 offen"); a(f"buffer_load_dwordx4 v[20:23], v{VL16}, {q(RX)}, s65 offen offset:2048")
        a("s_add_u32 s65, s65, 4096")
        a(f"buffer_load_dwordx4 v[24:27], v{VL16}, {q(RX)}, s65 offen"); a(f"buffer_load_dwordx4 v[28:31], v{VL16}, {q(RX)}, s65 offen offset:2048")
    def gate_math():
        GU = 36; P = 44; R = 52
        for k in range(4):
            a(f"v_lshlrev_b32 v{GU+2*k}, 16, v{32+k}"); a(f"v_and_b32 v{GU+1+2*k}, 0xffff0000, v{32+k}")
        for row in range(4):
            xb = 16 + 4 * row
            for k in range(4):
                a(f"v_lshlrev_b32 v{P+2*k}, 16, v{xb+k}"); a(f"v_and_b32 v{P+2*k+1}, 0xffff0000, v{xb+k}")
            for i in range(0, 8, 2): a(f"v_pk_mul_f32 {vr(P+i,2)}, {vr(P+i,2)}, {vr(GU+i,2)}")
            for k in range(4): a(f"v_cvt_pk_bf16_f32 v{xb+k}, v{P+2*k}, v{P+2*k+1}")
            for k in range(4):
                a(f"v_lshlrev_b32 v{P+2*k}, 16, v{xb+k}"); a(f"v_and_b32 v{P+2*k+1}, 0xffff0000, v{xb+k}")
            a(f"v_pk_add_f32 {vr(P,2)}, {vr(P,2)}, {vr(P+4,2)}"); a(f"v_pk_add_f32 {vr(P+2,2)}, {vr(P+2,2)}, {vr(P+6,2)}")
            a(f"v_pk_add_f32 {vr(P,2)}, {vr(P,2)}, {vr(P+2,2)}")
            a(f"v_add_f32 v{R+row}, v{P}, v{P+1}")
        a.nop(1)
        for sh in (8, 4, 2, 1):
            for row in range(4): a(f"v_add_f32_dpp v{R+row}, v{R+row}, v{R+row} row_ror:{sh} row_mask:0xf bank_mask:0xf")
        for sw in ("v_permlane32_swap_b32", "v_permlane16_swap_b32"):
            for row in range(4): a(f"v_mov_b32 v{P+row}, v{R+row}")
            for row in range(4): a(f"{sw} v{R+row}, v{P+row}")
            for row in range(4): a(f"v_add_f32 v{R+row}, v{R+row}, v{P+row}")
        def rnd():
            for h in range(2):
                a(f"v_cvt_pk_bf16_f32 v{P+h}, v{R+2*h}, v{R+2*h+1}")
            for h in range(2):
                a(f"v_lshlrev_b32 v{R+2*h}, 16, v{P+h}"); a(f"v_and_b32 v{R+2*h+1}, 0xffff0000, v{P+h}")
        rnd()
        for row in range(4): a(f"v_mul_f32 v{R+row}, 0x{f32bits(-LOG2E):x}, v{R+row}")
        for row in range(4): a(f"v_exp_f32 v{R+row}, v{R+row}")
        for row in range(4): a(f"v_add_f32 v{R+row}, 1.0, v{R+row}")
        for row in range(4): a(f"v_rcp_f32 v{R+row}, v{R+row}")
        a.nop(1)
        rnd()
        a("v_cmp_eq_u32 vcc, 1, v0"); a(f"v_mov_b32 v{P+2}, s{TAG}"); a(f"v_mov_b32 v{P+3}, s{TAG+1}")
        a(f"v_cndmask_b32 v{P}, v{R}, v{R+2}, vcc"); a(f"v_cndmask_b32 v{P+1}, v{R+1}, v{R+3}, vcc")
        a("s_mov_b64 exec, 3")
        a(f"buffer_store_dwordx4 {vr(P,4)}, v{VL16}, {q(RWS)}, s78 offen sc1")
        a("s_mov_b64 exec, -1")
    ref = [9]
    def btr(j, regs):
        r = 3 if j < 4 else (7 if j < 8 else 9)
        out = []
        if r != ref[0]:
            d = ((ref[0] - r) * 16384) & 0xffffffff
            out.append("\n".join(f"v_add_u32 v{2+nt}, 0x{d:x}, v{2+nt}" for nt in range(2))); ref[0] = r
        for f in range(4):
            out.append("\n".join(f"ds_read_b64_tr_b16 {vr(regs[f]+2*e,2)}, v{2+(f&1)} offset:{(r-j)*16384 + (f>>1)*2048 + e*512}" for e in range(2)))
        return out
    gq = opt.get("gq", 1)
    if opt.get("lp", 2) != 2: a(f"s_setprio {opt.get('lp')}")
    bdma(E + 7, 7)
    stage_upto(5)
    if opt.get("sb", 1): a(f"s_cmp_eq_u32 {sT}, 0"); a("s_cbranch_scc1 KL_NOSB"); a("s_barrier"); a.label("KL_NOSB")
    bdma(E + 8, 8)
    a(f"s_cmp_eq_u32 {sW}, 0"); a("s_cbranch_scc1 KL_SK9")
    bdma(E + 9, 9, False)
    a.label("KL_SK9")
    tl = list(range(10, 19 - E))
    assert len(tl) >= 2
    freed = 0
    did_misc = False
    def misc():
        if gq == 1:
            a(f"s_cmp_lg_u32 {sT}, 0"); a("s_cbranch_scc1 KL_NOG1"); gate_loads(); a.label("KL_NOG1")
        a(f"global_load_dwordx2 v[10:11], v{VZ}, s[{PDBG}:{PDBG+1}] sc1"); vm.append(("T", 0))
    for t in tl[:-2]:
        if t - 10 >= freed:
            a("s_waitcnt lgkmcnt(0)"); freed = staged
            stage_upto(staged + 2)
        if t == tl[max(0, len(tl) - 4)]: misc(); did_misc = True
        bdma(E + t, t - 10)
    stage_upto(9)
    if not did_misc: misc()
    a(f"s_mov_b64 exec, s[{RR}:{RR+1}]")
    a(f"buffer_load_dwordx2 v[8:9], v57, {q(RWS)}, s68 offen sc1")
    a("s_mov_b64 exec, -1")
    a("s_waitcnt lgkmcnt(0)")
    a(f"s_cmp_eq_u32 {sW}, 0"); a("s_cbranch_scc1 KL_W0")
    bdma(0, tl[-2] - 10, False)
    a(f"s_cmp_eq_u32 {sW}, 3"); a("s_cbranch_scc1 KL_W1")
    bdma(0, tl[-1] - 10, False)
    a("s_waitcnt vmcnt(8)"); a("s_branch KL_W2")
    a.label("KL_W0"); a("s_waitcnt vmcnt(0)")
    a.label("KL_W1"); a("s_waitcnt vmcnt(4)")
    a.label("KL_W2")
    stamp(a, opt, 3)
    tag_check(a, 10, VZ)
    a("v_mov_b32 v2, v62"); a("v_mov_b32 v3, v63")
    a(f"s_cmp_lg_u32 {sT}, 0"); a("s_cbranch_scc1 KL_NOG")
    if gq == 0: gate_loads(); a("s_waitcnt vmcnt(0)")
    gate_math()
    a.label("KL_NOG")
    a("v_lshrrev_b32 v7, 4, v0"); a("v_lshlrev_b32 v7, 4, v7")
    a(f"s_mov_b64 exec, s[{RR}:{RR+1}]")
    poll(a, 8, 57, "s68", f"s[{RR}:{RR+1}]", first_loaded=True)
    a("s_mov_b64 exec, -1")
    a("s_waitcnt lgkmcnt(0)")
    stamp(a, opt, 4)
    ref0 = ref[0]
    a(f"s_lshr_b32 s64, {sU}, 1"); a("s_lshl_b32 s64, s64, 7"); a(f"s_lshl_b32 s65, {sW}, 5"); a("s_add_u32 s64, s64, s65"); a(f"s_and_b32 s65, {sU}, 1"); a("s_add_u32 s64, s64, s65")
    a(f"s_cmp_eq_u32 {sW}, 0"); a("s_cbranch_scc1 KL_V16")
    a(f"s_cmp_eq_u32 {sW}, 3"); a("s_cbranch_scc1 KL_V18")
    def acc(tp, np_): return ACC + 16 * (2 * tp + np_)
    DM = opt.get("dmax", 12)
    WA = 80; RA_ = 88; OV = 92
    fill = [
        "s_lshl_b32 s64, s64, 10", f"s_lshl_b32 s65, {sCT}, 7", "s_add_u32 s70, s64, s65", "s_add_u32 s71, s70, 16384",
        f"s_sub_u32 s72, s79, {2*16384}", f"s_lshl_b32 s73, {sW}, 14", f"s_sub_u32 s73, {TOP-32768}, s73",
        "v_and_b32 v93, 15, v0", "v_lshrrev_b32 v94, 5, v0", "v_xor_b32 v94, v94, v93", "v_lshlrev_b32 v94, 4, v94",
        "v_lshlrev_b32 v95, 8, v93", "v_add_u32 v94, v94, v95", "v_bfe_u32 v95, v0, 4, 1", "v_lshlrev_b32 v95, 14, v95", "v_sub_u32 v94, v94, v95",
        f"v_add_u32 v{WA}, s72, v94"] + [f"v_xor_b32 v{WA+k}, {32*k}, v{WA}" for k in range(1, 8)] + [
        "v_lshrrev_b32 v93, 3, v0", "v_and_b32 v94, 7, v0", f"v_lshlrev_b32 v{OV}, 11, v93", "v_lshlrev_b32 v95, 4, v94", f"v_add_u32 v{OV}, v{OV}, v95",
        "v_lshlrev_b32 v95, 1, v94", "v_xor_b32 v95, v95, v93", "v_lshlrev_b32 v95, 4, v95", "v_lshlrev_b32 v93, 8, v93", "v_add_u32 v95, v95, v93",
        f"v_add_u32 v{RA_}, s73, v95", f"v_xor_b32 v{RA_+1}, 16, v{RA_}", f"v_xor_b32 v{RA_+2}, 128, v{RA_}", f"v_xor_b32 v{RA_+3}, 144, v{RA_}",
        "v_and_b32 v93, 8, v0", "v_cmp_ne_u32 s[74:75], 0, v93"]
    for nst, lab in ((19, None), (18, "KL_V18"), (16, "KL_V16")):
        a(".p2align 3")
        if lab: a.label(lab)
        free = list(range(BR + 16 * NBR, 256, 4)); ref[0] = ref0
        pend = [("A", i, b) for i in range(nst) for b in range(4)]
        gi = 4 * opt.get("gstep", 10)
        pend[gi:gi] = [("G", 0, 0), ("G", 1, 0)]
        loc = {}; issued = []; cur_soff = [None]
        done_loads = [0]
        fl = list(fill)
        def issue():
            if not pend: return False
            if len(issued) - done_loads[0] >= DM: return False
            if pend[0][0] == "A" and not free: return False
            k = pend.pop(0); issued.append(k)
            if k[0] == "A":
                r = free.pop(0); loc[k] = r
                if cur_soff[0] != k[1] and k[1]:
                    a("s_add_u32 s77, s77, 4096"); a("s_cmp_ge_u32 s77, s101"); a("s_cselect_b32 s77, 0, s77"); cur_soff[0] = k[1]
                a(f"buffer_load_dwordx4 {vr(r,4)}, v{VL16}, {q(RA)}, s77 offen offset:{k[2]*1024} {opt.get('ald', 'sc1')}")
            else:
                a(f"buffer_load_dwordx4 {vr(72+4*k[1],4)}, v7, {q(RWS)}, s69 offen offset:{k[1]*64} sc1")
            return True
        while issue(): pass
        bl = {}
        ldsq = []
        for i in range(nst):
            Bv = [BR + 16 * i + 4 * n for n in range(4)] if i < NBR else bl[i]
            needb = NBR <= i + 2 < nst
            if needb:
                tt = i + 2 - E; md = 10 if nst > 16 else 9
                tr = btr(tt if tt < md else tt - md, Bv)
                if len(tr) == 5: a(tr.pop(0))
                bl[i + 2] = Bv
            if i == nst - 1:
                assert not pend and not fl
                a("s_waitcnt vmcnt(0) lgkmcnt(0)"); a("s_nop 0")
                L_ = []
                for tp in range(2):
                    for np_ in range(2):
                        for half in range(2):
                            L_.append(f"v_mfma_f32_32x32x16_bf16 {vr(acc(tp,np_),16)}, {vr(Bv[2*half+np_],4)}, {vr(loc[('A', i, 2*half+tp)],4)}, {vr(acc(tp,np_),16)}")
                L_ += ["v_cndmask_b32 v96, v72, v73, s[74:75]", "v_cndmask_b32 v98, v76, v77, s[74:75]", "v_sub_f32 v100, 1.0, v96", "v_sub_f32 v101, 1.0, v98",
                       "v_cvt_pk_bf16_f32 v100, v100, v101", "v_and_b32 v102, 0xffff0000, v100", "v_lshlrev_b32 v100, 16, v100",
                       f"v_cmp_eq_u64 vcc, s[{TAG}:{TAG+1}], v[74:75]", f"v_cmp_eq_u64 s[64:65], s[{TAG}:{TAG+1}], v[78:79]"]
                for tp in range(2):
                    for np_ in range(2):
                        for j in range(4):
                            L_.append(f"ds_write_b128 v{WA+4*np_+j}, {vr(acc(tp,np_)+4*j,4)} offset:{(1-tp)*32768}")
                M_ = L_[:8]; V_ = L_[8:17]; W_ = L_[17:]
                seq = [M_[0], M_[1], M_[2]] + V_[:5] + [M_[3]] + V_[5:] + [M_[4]] + W_[0:4] + [M_[5], "s_nop 1"] + W_[4:6] + [M_[6]] + W_[6:8] + [M_[7], "s_nop 3"] + W_[8:12] + ["s_nop 3"] + W_[12:]
                for x in seq: a(x)
                break
            for half in range(2):
                for tp in range(2):
                    blk = 2 * half + tp
                    idx = issued.index(("A", i, blk)); done_loads[0] = idx + 1
                    w = f"s_waitcnt vmcnt({len(issued) - idx - 1})"
                    if i >= NBR and tp == 0:
                        li = ldsq.index((i, 2 * half + 1))
                        w += f" lgkmcnt({min(15, 2 * (len(ldsq) - li - 1))})"
                    a(w); a("s_nop 0")
                    A = loc[("A", i, blk)]
                    for np_ in range(2):
                        c = vr(acc(tp, np_), 16) if (i > 0 or half > 0) else "0"
                        f = 2 * half + np_
                        a(f"v_mfma_f32_32x32x16_bf16 {vr(acc(tp,np_),16)}, {vr(Bv[f],4)}, {vr(A,4)}, {c}")
                        if np_ == 1: free.append(A)
                        if tp == 1:
                            if needb: a(tr[f]); ldsq.append((i + 2, f))
                            elif i >= 2: free.append(Bv[f])
                        got = issue()
                        if i >= 2 and fl and not got:
                            for _ in range(min(3, len(fl))): a(fl.pop(0))
                            a(".p2align 3")
        if nst != 16: a("s_branch KL_FIN")
    a.label("KL_FIN")
    stamp(a, opt, 5)
    L = newlab("GL"); D = newlab("GD")
    a("s_and_b64 s[64:65], s[64:65], vcc"); a("s_andn2_b64 s[64:65], exec, s[64:65]"); a(f"s_cbranch_scc0 {D}")
    a("s_mov_b32 s66, 0x40000")
    a.label(L)
    a("s_sleep 1")
    a(f"buffer_load_dwordx4 v[72:75], v7, {q(RWS)}, s69 offen sc1"); a(f"buffer_load_dwordx4 v[76:79], v7, {q(RWS)}, s69 offen offset:64 sc1")
    a("s_waitcnt vmcnt(0)")
    for x in ["v_cndmask_b32 v96, v72, v73, s[74:75]", "v_cndmask_b32 v98, v76, v77, s[74:75]", "v_sub_f32 v100, 1.0, v96", "v_sub_f32 v101, 1.0, v98",
              "v_cvt_pk_bf16_f32 v100, v100, v101", "v_and_b32 v102, 0xffff0000, v100", "v_lshlrev_b32 v100, 16, v100",
              f"v_cmp_eq_u64 vcc, s[{TAG}:{TAG+1}], v[74:75]", f"v_cmp_eq_u64 s[64:65], s[{TAG}:{TAG+1}], v[78:79]", "s_nop 0"]: a(x)
    a("s_and_b64 s[64:65], s[64:65], vcc"); a("s_andn2_b64 s[64:65], exec, s[64:65]"); a(f"s_cbranch_scc0 {D}")
    a("s_sub_u32 s66, s66, 1"); a("s_cmp_lg_u32 s66, 0"); a(f"s_cbranch_scc1 {L}")
    a.label(D)
    a("s_waitcnt lgkmcnt(0)"); a("s_barrier"); stamp(a, opt, 6, True)
    T = 104
    def P(h, src): return T + 32 * h + 8 * src
    for h in range(2):
        for src in (0, 1, 2, 3):
            for e in range(2):
                off = (3 - src) * 4096 + h * 2048 + (16384 if src else 0)
                a(f"ds_read_b128 {vr(P(h,src)+4*e,4)}, v{RA_+2*h+e} offset:{off}")
    for h in range(2):
        a(f"s_waitcnt lgkmcnt({8*(1-h)+6})")
        for i in range(0, 8, 2): a(f"v_pk_mul_f32 {vr(P(h,0)+i,2)}, {vr(P(h,0)+i,2)}, {vr(96+2*h,2)} op_sel_hi:[1,0]")
        a(f"s_waitcnt lgkmcnt({8*(1-h)+2})")
        for i in range(0, 8, 2): a(f"v_pk_add_f32 {vr(P(h,1)+i,2)}, {vr(P(h,1)+i,2)}, {vr(P(h,2)+i,2)}")
        a(f"s_waitcnt lgkmcnt({8*(1-h)})")
        for i in range(0, 8, 2): a(f"v_pk_add_f32 {vr(P(h,1)+i,2)}, {vr(P(h,1)+i,2)}, {vr(P(h,3)+i,2)}")
        for i in range(0, 8, 2): a(f"v_pk_fma_f32 {vr(P(h,0)+i,2)}, {vr(P(h,1)+i,2)}, {vr(100+2*h,2)}, {vr(P(h,0)+i,2)} op_sel_hi:[1,0,1]")
        for i in range(4): a(f"v_cvt_pk_bf16_f32 v{P(h,2)+i}, v{P(h,0)+2*i}, v{P(h,0)+2*i+1}")
        a(f"buffer_store_dwordx4 {vr(P(h,2),4)}, v{OV}, {q(RAUX)}, s{70+h} offen {opt.get('ost', '')}")
    stamp(a, opt, 7)
    if so.get("stamps"): a(f"s_add_u32 s100, {sW}, 40")
    if so.get("stamps"): a(f"s_lshl_b32 s64, {sT}, 2"); a("s_add_u32 s100, s100, s64")
    stamp_end(a, so, "s100")

def generate(opt):
    a = Asm()
    post = opt.get("post")
    if post is None:
        a(f"; @launch grid=(256,1,1) block=(512,1,1) lds={LDS_BYTES}")
    else:
        a(f"; @launch kernel={NAME}_kernel grid=(256,1,1) block=(512,1,1) lds={LDS_BYTES}")
        a(f"; @launch kernel=k3_kernel grid=(1,1,1) block=(64,1,1) lds=0")
    a('.amdgcn_target "amdgcn-amd-amdhsa--gfx950"'); a(".text")
    gen(a, opt)
    if post is not None:
        wg, wv, idx, rf, sh = [int(x) for x in post.split(",")]
        a(".globl k3_kernel"); a(".p2align 8"); a(".type k3_kernel,@function"); a.label("k3_kernel")
        a("s_load_dwordx2 s[8:9], s[0:1], 72"); a("s_waitcnt lgkmcnt(0)")
        a(f"s_add_u32 s8, s8, {STAMP_OFF}"); a("s_addc_u32 s9, s9, 0")
        off = (wg * 8 + wv) * 64
        a("s_load_dword s4, s[8:9], 0"); a(f"s_load_dword s12, s[8:9], {off + 4*idx}"); a(f"s_load_dword s13, s[8:9], {off + 4*rf}"); a("s_memrealtime s[10:11]"); a("s_waitcnt lgkmcnt(0)")
        a("s_sub_u32 s12, s12, s13")
        a(f"s_lshr_b32 s12, s12, {sh}") if sh >= 0 else a(f"s_lshl_b32 s12, s12, {-sh}")
        a("s_min_u32 s12, s12, 20000"); a("s_add_u32 s12, s12, 6000")
        a.label("K3_L"); a("s_memrealtime s[6:7]"); a("s_waitcnt lgkmcnt(0)")
        a("s_sub_u32 s7, s6, s10"); a("s_cmp_gt_u32 s7, 30000"); a("s_cbranch_scc1 K3_E")
        a("s_sub_u32 s6, s6, s4"); a("s_cmp_lt_u32 s6, s12"); a("s_cbranch_scc1 K3_L")
        a.label("K3_E"); a("s_endpgm")
    a('.section .rodata,"a"'); a(".p2align 6")
    a(f".amdhsa_kernel {NAME}_kernel")
    a("  .amdhsa_next_free_vgpr 256"); a("  .amdhsa_next_free_sgpr 102"); a("  .amdhsa_accum_offset 256")
    a("  .amdhsa_group_segment_fixed_size 0"); a("  .amdhsa_kernarg_size 80"); a("  .amdhsa_user_sgpr_count 2")
    a("  .amdhsa_user_sgpr_kernarg_segment_ptr 1"); a("  .amdhsa_system_sgpr_workgroup_id_x 1"); a(".end_amdhsa_kernel")
    if post is not None:
        a(".p2align 6"); a(".amdhsa_kernel k3_kernel")
        a("  .amdhsa_next_free_vgpr 8"); a("  .amdhsa_next_free_sgpr 102"); a("  .amdhsa_accum_offset 8")
        a("  .amdhsa_group_segment_fixed_size 0"); a("  .amdhsa_kernarg_size 80"); a("  .amdhsa_user_sgpr_count 2")
        a("  .amdhsa_user_sgpr_kernarg_segment_ptr 1"); a("  .amdhsa_system_sgpr_workgroup_id_x 1"); a(".end_amdhsa_kernel")
    errs = check(a.lines)
    for e in errs: print(e, file=sys.stderr)
    assert not errs
    return a.text()

if __name__ == "__main__":
    opt = {}
    for kv in sys.argv[2:]:
        k, v = kv.split("=")
        try: v = int(v)
        except: pass
        opt[k] = v
    open(sys.argv[1], "w").write(generate(opt))
```

```python
import sys, struct
from asmlib import *

NAME = "gated_mix__sliding_local_dilated__dense_activation_relu__prompt"
A2_OFF = 0
W2_OFF = 0xA00000
G_OFF = 0xD00000
FW_OFF = 0xD10000
FA_OFF = 0xD20000
WS_USED = 0xD80000
FSTR = 1152
STAMP_OFF = 128 << 20
SLOT = 45056
XOFF, WOFF, EOFF = 0, 16384, 40960
SCR = 3 * SLOT
LDS_BYTES = 163840
TOP = LDS_BYTES
def slot_of(s): return ((7 - s) % 3) * SLOT
BIG = 0xF149F2CA
LOG2E = 1.4426950408889634
KS0 = [0, 16, 35, 54]; NST = [16, 19, 19, 18]
NBR = 9
BL_BASE = [0, 28672, 69632, 110592]
PX, PWQKV, PWO, PW1, PW2, PGATE, POUT, PDBG, PWS = 4, 6, 8, 12, 14, 16, 18, 20, 22
sB, sT, sG, sW, sU, sCT, TAG = "s24", "s25", "s26", "s27", "s28", "s29", 30
RX, RW, RE, RWS, RR, RAUX, RA, RB = 32, 36, 40, 44, 48, 52, 56, 60

def f32bits(x): return struct.unpack("<I", struct.pack("<f", x))[0]
def q(r): return f"s[{r}:{r+3}]"

def srd(a, d, base, size, add=0):
    if add == 0:
        a(f"s_mov_b32 s{d}, s{base}"); a(f"s_mov_b32 s{d+1}, s{base+1}")
    else:
        a(f"s_add_u32 s{d}, s{base}, {add}"); a(f"s_addc_u32 s{d+1}, s{base+1}, 0")
    a(f"s_mov_b32 s{d+2}, {size}"); a(f"s_mov_b32 s{d+3}, 0x20000")

def csel(a, d, x, y):
    a(f"s_mov_b32 {d}, {y}"); a(f"s_cselect_b32 {d}, {x}, {d}")

def spread(a, mf, other, last=4):
    n = len(mf) - last; other = list(other); k = 0
    for i, m in enumerate(mf):
        a(m)
        while k < len(other) and k * n <= i * len(other): a(other[k]); k += 1
    while k < len(other): a(other[k]); k += 1

def mix(xs, ws):
    out = []; i = j = 0
    while i < len(xs) or j < len(ws):
        if j >= len(ws) or (i < len(xs) and i * len(ws) <= j * len(xs)): out.append(xs[i]); i += 1
        else: out.append(ws[j]); j += 1
    return out

def interleave(a, mf, other, start=0, per=1):
    other = list(other)
    for i, m in enumerate(mf):
        a(m)
        if i >= start:
            for _ in range(per):
                if other: a(other.pop(0))
    for o in other: a(o)

def stamp_begin(a, opt):
    if opt.get("stamps"):
        a("s_memrealtime s[80:81]"); a("s_memtime s[82:83]")
        for k in range(8): a(f"s_mov_b32 s{84+2*k}, 0")

def stamp(a, opt, k, wait=False):
    if opt.get("stamps"):
        a(f"s_memtime s[{84+2*k}:{85+2*k}]")
        if wait: a("s_waitcnt lgkmcnt(0)")

def stamp_end(a, opt, tag):
    if not opt.get("stamps"): return
    a("s_waitcnt vmcnt(0) lgkmcnt(0)")
    a("s_memrealtime s[64:65]"); a("s_memtime s[66:67]")
    a("s_waitcnt lgkmcnt(0)")
    srd(a, RAUX, PWS, 1 << 20, STAMP_OFF)
    a("s_lshl_b32 s68, s2, 3"); a("s_add_u32 s68, s68, s3"); a("s_lshl_b32 s68, s68, 6")
    a("s_getreg_b32 s69, hwreg(HW_REG_XCC_ID)")
    a(f"s_mov_b32 s65, {tag}")
    for i, s in enumerate((80, 64, 82, 84, 86, 88, 90, 92, 94, 96, 98, 66, 69, 65, 65, 65)):
        a(f"v_mov_b32 v{8+i}, s{s}")
    a("v_mov_b32 v6, s68")
    a("s_mov_b64 exec, 1")
    for k in range(4):
        a(f"buffer_store_dwordx4 v[{8+4*k}:{11+4*k}], v6, {q(RAUX)}, 0 offen offset:{16*k}")
    a("s_waitcnt vmcnt(0)")

_lab = [0]
def newlab(p):
    _lab[0] += 1; return f"{p}_{_lab[0]}"

def tag_check(a, vt, vz):
    L = newlab("TAGL"); D = newlab("TAGD")
    a("s_mov_b32 s64, 0x40000")
    a.label(L)
    a(f"v_readfirstlane_b32 s{TAG}, v{vt}"); a(f"v_readfirstlane_b32 s{TAG+1}, v{vt+1}"); a("s_nop 0")
    a(f"s_cmp_lg_u32 s{TAG}, 0"); a(f"s_cbranch_scc1 {D}")
    a("s_sub_u32 s64, s64, 1"); a("s_cmp_eq_u32 s64, 0"); a(f"s_cbranch_scc1 {D}")
    a("s_sleep 2")
    a(f"global_load_dwordx2 v[{vt}:{vt+1}], v{vz}, s[{PDBG}:{PDBG+1}] sc1"); a("s_waitcnt vmcnt(0)")
    a(f"s_branch {L}")
    a.label(D)

PSL = [1]
def poll(a, vt, voff, soff, need, first_loaded=False):
    L = newlab("POLL"); C = newlab("POLC"); D = newlab("POLD")
    a("s_mov_b32 s66, 0x40000")
    if first_loaded: a(f"s_branch {C}")
    a.label(L)
    a(f"buffer_load_dwordx2 v[{vt}:{vt+1}], v{voff}, {q(RWS)}, {soff} offen sc1")
    a("s_waitcnt vmcnt(0)")
    a.label(C)
    a(f"v_cmp_eq_u64 vcc, s[{TAG}:{TAG+1}], v[{vt}:{vt+1}]"); a("s_nop 0")
    a(f"s_andn2_b64 s[64:65], {need}, vcc"); a(f"s_cbranch_scc0 {D}")
    a("s_sub_u32 s66, s66, 1"); a("s_cmp_eq_u32 s66, 0"); a(f"s_cbranch_scc1 {D}")
    a(f"s_sleep {PSL[0]}"); a(f"s_branch {L}")
    a.label(D)

def gen(a, opt):
    global FSTR
    PSL[0] = opt.get("psl", 1); FSTR = opt.get("fstr", 1152)
    kn = NAME + "_kernel"
    a(f".globl {kn}"); a(".p2align 8"); a(f".type {kn},@function"); a.label(kn)
    a("s_cmp_ge_u32 s2, 256"); a("s_cbranch_scc1 K_END")
    a("s_load_dwordx16 s[4:19], s[0:1], 0")
    a("s_load_dwordx4 s[20:23], s[0:1], 64")
    stamp_begin(a, opt)
    a("v_lshrrev_b32 v1, 6, v0"); a("v_and_b32 v0, 63, v0")
    a("v_readfirstlane_b32 s3, v1")
    if opt.get("lw", 1): a("s_nop 0"); a("s_xor_b32 s3, s3, 4")
    if opt.get("cpf", 2) == 2:
        L = newlab("CS")
        a("s_cmp_ge_u32 s2, 32"); a(f"s_cbranch_scc1 {L}"); a("s_cmp_lg_u32 s3, 1"); a(f"s_cbranch_scc1 {L}")
        a("s_getpc_b64 s[64:65]")
        G = newlab("GP"); a.label(G)
        a("s_lshr_b32 s66, s2, 3"); a("s_lshl_b32 s66, s66, 13")
        a("v_lshlrev_b32 v10, 7, v0"); a("v_add_u32 v10, s66, v10")
        a(f"s_mov_b32 s66, K_CODE_END-{G}-4")
        a("v_min_u32 v10, s66, v10"); a("global_load_dword v255, v10, s[64:65]")
        a.label(L)
    a("s_and_b32 s64, s2, 7"); a("s_lshr_b32 s65, s2, 3")
    m = opt.get("map", "Y")
    if m == "Z":
        a(f"s_lshr_b32 {sB}, s64, 1"); a(f"s_lshl_b32 {sB}, {sB}, 2"); a("s_and_b32 s66, s65, 3"); a(f"s_add_u32 {sB}, {sB}, s66")
        a("s_lshr_b32 s66, s65, 2")
        a(f"s_and_b32 {sT}, s66, 1")
        a("s_and_b32 s67, s64, 1"); a(f"s_lshl_b32 {sG}, s67, 2"); a("s_lshr_b32 s68, s66, 1"); a(f"s_add_u32 {sG}, {sG}, s68")
        if opt.get("p2map", 0) == 0:
            a(f"s_lshl_b32 {sU}, {sB}, 1"); a(f"s_add_u32 {sU}, {sU}, s67"); a(f"s_mov_b32 {sCT}, s66")
        else:
            a(f"s_lshl_b32 {sU}, {sB}, 1"); a(f"s_add_u32 {sU}, {sU}, {sT}"); a(f"s_mov_b32 {sCT}, {sG}")
    elif m == "X":
        a(f"s_lshl_b32 {sB}, s64, 1"); a("s_and_b32 s66, s65, 1"); a(f"s_add_u32 {sB}, {sB}, s66")
        a("s_lshr_b32 s66, s65, 1")
        a(f"s_and_b32 {sT}, s66, 1"); a(f"s_lshr_b32 {sG}, s66, 1")
        a(f"s_lshl_b32 {sU}, {sB}, 1"); a(f"s_add_u32 {sU}, {sU}, {sT}"); a(f"s_mov_b32 {sCT}, {sG}")
    elif m == "Y":
        a(f"s_lshr_b32 {sB}, s64, 2"); a(f"s_lshl_b32 {sB}, {sB}, 3"); a("s_and_b32 s66, s65, 7"); a(f"s_add_u32 {sB}, {sB}, s66")
        a("s_lshr_b32 s66, s65, 3")
        a(f"s_and_b32 {sT}, s66, 1")
        a("s_and_b32 s67, s64, 3"); a(f"s_lshl_b32 {sG}, s67, 1"); a("s_lshr_b32 s68, s66, 1"); a(f"s_add_u32 {sG}, {sG}, s68")
        a("s_and_b32 s68, s64, 1"); a(f"s_lshl_b32 {sU}, {sB}, 1"); a(f"s_add_u32 {sU}, {sU}, s68")
        a("s_and_b32 s68, s64, 2"); a("s_lshl_b32 s68, s68, 1"); a(f"s_add_u32 {sCT}, s68, s66")
        if opt.get("p2alt", 0):
            a(f"s_lshl_b32 {sU}, s64, 2"); a("s_and_b32 s68, s65, 3"); a(f"s_add_u32 {sU}, {sU}, s68"); a(f"s_lshr_b32 {sCT}, s65, 2")
    a(f"s_and_b32 {sW}, s3, 3")
    a("s_cmp_ge_u32 s3, 4"); a("s_cbranch_scc1 K_LOADER")
    if opt.get("duty", 1) == 3:
        Lx = newlab("DU"); Lc = newlab("DU"); Ld = newlab("DU")
        dl_ = opt.get("dlead", 1); dsh = opt.get("dsh", 0)
        a("s_lshr_b32 s64, s2, 7"); a("s_lshl_b32 s64, s64, 6"); a("s_and_b32 s65, s2, 63"); a("s_add_u32 s64, s64, s65")
        a("s_lshl_b32 s64, s64, 2"); a(f"s_add_u32 s64, s64, {sW}")
        a("v_lshlrev_b32 v254, 7, v0"); a("v_lshlrev_b32 v253, 7, v0")
        a(f"s_mov_b32 s{RR+3}, 0x20000"); a(f"s_mov_b32 s{RA+3}, 0x20000")
        a("s_cmp_ge_u32 s64, 144"); a("s_cselect_b32 s63, 1, 0"); a(f"s_add_u32 s63, s63, {opt.get('dbs', 2)}")
        a("s_cmp_ge_u32 s64, 288"); a("s_cselect_b32 s63, 255, s63")
        a("s_mul_i32 s65, s64, 781"); a("s_lshr_b32 s65, s65, 16"); a("s_mul_i32 s66, s65, 84"); a("s_sub_u32 s66, s64, s66")
        a(f"s_max_u32 s101, s65, {dl_}"); a(f"s_sub_u32 s101, s101, {dl_}")
        if dsh: a(f"s_add_u32 s101, s101, {(1 << dsh) - 1}"); a(f"s_lshr_b32 s101, s101, {dsh}")
        a("s_cmp_ge_u32 s64, 504"); a("s_cselect_b32 s101, 255, s101")
        a(f"s_cmp_lg_u32 {sT}, 0"); a("s_cselect_b32 s101, 255, s101"); a("s_cselect_b32 s63, 255, s63")
        a("s_add_u32 s65, s65, 2")
        a("s_waitcnt lgkmcnt(0)")
        a("s_cmp_lt_u32 s64, 64")
        a(f"s_cselect_b32 s{RA}, s{PWO}, s{PW2}"); a(f"s_cselect_b32 s{RA+1}, s{PWO+1}, s{PW2+1}"); csel(a, f"s{RA+2}", 512*1024, 1792*1024)
        a("s_cselect_b32 s67, 0, 64"); a("s_sub_u32 s62, s64, s67"); a("s_lshl_b32 s62, s62, 13")
        a("s_cmp_lt_u32 s66, 52"); a(f"s_cbranch_scc1 {Lx}")
        a(f"s_mov_b32 s{RR}, s{PX}"); a(f"s_mov_b32 s{RR+1}, s{PX+1}"); a(f"s_mov_b32 s{RR+2}, {2048*1024}")
        a("v_lshlrev_b32 v254, 10, v0")
        a("s_sub_u32 s66, s66, 52"); a("s_lshl_b32 s100, s66, 16"); a("s_lshl_b32 s65, s65, 7"); a("s_add_u32 s100, s100, s65")
        a(f"s_branch {Lc}")
        a.label(Lx)
        a("s_cmp_lt_u32 s66, 24")
        a(f"s_cselect_b32 s{RR}, s{PWQKV}, s{PW1}"); a(f"s_cselect_b32 s{RR+1}, s{PWQKV+1}, s{PW1+1}"); csel(a, f"s{RR+2}", 512*3072, 512*3584)
        a("s_cselect_b32 s64, 24, 28"); a("s_cselect_b32 s67, 0, 24"); a("s_mul_i32 s65, s65, s64"); a("s_add_u32 s66, s66, s65"); a("s_sub_u32 s66, s66, s67"); a("s_lshl_b32 s100, s66, 13")
        a.label(Lc)
        a("s_cmp_lg_u32 s101, 0"); a(f"s_cbranch_scc1 {Ld}"); a(f"buffer_load_dword v255, v254, {q(RR)}, s100 offen"); a.label(Ld)
    elif opt.get("duty", 1):
        Lb = newlab("DU"); Lc = newlab("DU"); Ld = newlab("DU")
        a("s_waitcnt lgkmcnt(0)")
        a("v_lshlrev_b32 v254, 7, v0")
        a(f"s_mov_b32 s{RR+3}, 0x20000")
        if opt.get("duty", 1) == 2:
            a("s_lshr_b32 s64, s2, 7"); a("s_lshl_b32 s64, s64, 6"); a("s_and_b32 s65, s2, 63"); a("s_add_u32 s64, s64, s65")
            a(f"s_cmp_eq_u32 {sT}, 0"); a("s_cselect_b32 s64, s64, 128")
            a(f"s_branch {Lb}X")
        a("s_cmp_ge_u32 s2, 156"); a(f"s_cbranch_scc1 {Lb}")
        a("s_lshl_b32 s64, s2, 1"); a(f"s_and_b32 s65, {sW}, 1"); a("s_add_u32 s64, s64, s65")
        a("s_mul_i32 s65, s64, 1261"); a("s_lshr_b32 s65, s65, 16"); a("s_mul_i32 s66, s65, 52"); a("s_sub_u32 s64, s64, s66")
        a(f"s_max_u32 s101, s65, {opt.get('dlead', 1)}"); a(f"s_sub_u32 s101, s101, {opt.get('dlead', 1)}")
        a("s_add_u32 s65, s65, 2")
        if opt.get("xduty", 1):
            Le = newlab("DU")
            a(f"s_cmp_lt_u32 {sW}, 2"); a(f"s_cbranch_scc1 {Le}")
            a(f"s_mov_b32 s{RR}, s{PX}"); a(f"s_mov_b32 s{RR+1}, s{PX+1}"); a(f"s_mov_b32 s{RR+2}, {2048*1024}")
            a("v_lshlrev_b32 v254, 10, v0")
            a("s_lshl_b32 s100, s64, 16"); a("s_lshl_b32 s65, s65, 7"); a("s_add_u32 s100, s100, s65")
            a("s_cmp_ge_u32 s64, 32"); a("s_cselect_b32 s101, 255, s101")
            a(f"s_branch {Lc}")
            a.label(Le)
        a("s_cmp_lt_u32 s64, 24")
        a(f"s_cselect_b32 s{RR}, s{PWQKV}, s{PW1}"); a(f"s_cselect_b32 s{RR+1}, s{PWQKV+1}, s{PW1+1}"); csel(a, f"s{RR+2}", 512*3072, 512*3584)
        a("s_cselect_b32 s66, 24, 28"); a("s_cselect_b32 s67, 0, 24"); a("s_mul_i32 s65, s65, s66"); a("s_add_u32 s64, s64, s65"); a("s_sub_u32 s64, s64, s67"); a("s_lshl_b32 s100, s64, 13")
        a(f"s_cmp_ge_u32 {sW}, 2"); a("s_cselect_b32 s101, 255, s101")
        a(f"s_branch {Lc}")
        a.label(Lb)
        a("s_sub_u32 s64, s2, 156")
        a.label(Lb + "X")
        a("s_mul_i32 s64, s64, 3"); a(f"s_add_u32 s64, s64, {sW}")
        a("s_mul_i32 s101, s64, 911"); a(f"s_lshr_b32 s101, s101, {16 + opt.get('dbw', 0)}"); a(f"s_add_u32 s101, s101, {opt.get('dbs', 1)}")
        a(f"s_cmp_ge_u32 {sW}, 3"); a("s_cselect_b32 s101, 255, s101"); a("s_cmp_ge_u32 s64, 288"); a("s_cselect_b32 s101, 255, s101")
        a("s_cmp_lt_u32 s64, 64")
        a(f"s_cselect_b32 s{RR}, s{PWO}, s{PW2}"); a(f"s_cselect_b32 s{RR+1}, s{PWO+1}, s{PW2+1}"); csel(a, f"s{RR+2}", 512*1024, 1792*1024)
        a("s_cselect_b32 s67, 0, 64"); a("s_sub_u32 s64, s64, s67"); a("s_lshl_b32 s100, s64, 13")
        a.label(Lc)
        a("s_cmp_lg_u32 s101, 0"); a(f"s_cbranch_scc1 {Ld}"); a(f"buffer_load_dword v255, v254, {q(RR)}, s100 offen"); a.label(Ld)
    a("s_branch K_COMPUTE")
    gen_loader(a, opt)
    a.label("K_END"); a("s_endpgm")
    a.label("K_COMPUTE")
    a(f"s_cmp_eq_u32 {sT}, 0"); a("s_cbranch_scc1 K_ATTN")
    gen_ffn(a, opt)
    gen_attn(a, opt)
    a.label("K_CODE_END")

def compute_common_setup(a, opt):
    L = newlab("CS")
    a("v_mov_b32 v1, 0")
    a("s_or_b32 s64, s2, s3"); a("s_cmp_lg_u32 s64, 0"); a(f"s_cbranch_scc1 {L}")
    a("s_memrealtime s[64:65]"); a("s_waitcnt lgkmcnt(0)")
    a("s_or_b32 s64, s64, 1"); a("s_xor_b32 s65, s65, 0x5bd1e995")
    a("v_mov_b32 v10, s64"); a("v_mov_b32 v11, s65")
    a("s_mov_b64 exec, 1")
    a(f"global_store_dwordx2 v1, v[10:11], s[{PDBG}:{PDBG+1}] sc1")
    a("s_mov_b64 exec, -1")
    a.label(L)
    if opt.get("cpf", 2) == 1:
        L = newlab("CS")
        a("s_cmp_ge_u32 s2, 8"); a(f"s_cbranch_scc1 {L}"); a("s_cmp_lg_u32 s3, 1"); a(f"s_cbranch_scc1 {L}")
        a("s_getpc_b64 s[64:65]")
        G = newlab("GP"); a.label(G)
        a(f"s_sub_u32 s64, s64, {G}-{NAME}_kernel"); a("s_subb_u32 s65, s65, 0")
        a("v_lshlrev_b32 v10, 7, v0")
        a(f"s_mov_b32 s66, K_CODE_END-{NAME}_kernel-4")
        for r in range(opt.get("cpfn", 4)):
            a("v_min_u32 v11, s66, v10"); a("global_load_dword v255, v11, s[64:65]"); a("v_add_u32 v10, 8192, v10")
        a.label(L)
    srd(a, RWS, PWS, WS_USED)
    if opt.get("tlb", 0):
        Lt = newlab("TLB")
        a(f"s_cmp_lg_u32 {sW}, 2"); a(f"s_cbranch_scc1 {Lt}")
        a("v_lshlrev_b32 v13, 21, v0"); a("s_mov_b64 exec, 0x7f")
        a(f"buffer_load_dword v12, v13, {q(RWS)}, 0 offen")
        a("s_mov_b64 exec, 1")
        for p in (PW2, PWO, POUT, PGATE, PDBG):
            a(f"global_load_dword v12, v1, s[{p}:{p+1}]")
        a("s_mov_b64 exec, -1")
        a.label(Lt)
    a(f"s_lshl_b32 s78, {sB}, 4"); a(f"s_lshl_b32 s64, {sT}, 3"); a("s_add_u32 s78, s78, s64"); a(f"s_add_u32 s78, s78, {sG}")
    a(f"s_mul_i32 s78, s78, {FSTR}"); a(f"s_add_u32 s78, s78, {FA_OFF}")

def compute_publish(a, opt, vt, nst):
    L = newlab("NOPUB")
    a("s_mov_b64 exec, 1")
    a(f"v_mov_b32 v12, {TOP-4096}"); a("v_mov_b32 v13, 1")
    a(f"s_waitcnt vmcnt({nst})")
    tag_check(a, vt, 1)
    a("s_waitcnt vmcnt(0)")
    stamp(a, opt, 6)
    a("ds_add_rtn_u32 v13, v12, v13"); a("s_waitcnt lgkmcnt(0)")
    a("v_cmp_eq_u32 vcc, 3, v13"); a("s_nop 0"); a(f"s_cbranch_vccz {L}")
    a(f"buffer_store_dwordx2 v[{vt}:{vt+1}], v1, {q(RWS)}, s78 offen sc1")
    a.label(L)

def gate_loads(a, VL16):
    a(f"s_lshl_b32 s64, {sB}, 7"); a(f"s_and_b32 s65, {sG}, 3"); a("s_lshl_b32 s65, s65, 5"); a("s_add_u32 s65, s65, s64")
    a(f"s_lshl_b32 s66, {sW}, 3"); a("s_add_u32 s65, s65, s66"); a(f"s_lshr_b32 s66, {sG}, 2"); a("s_add_u32 s65, s65, s66"); a("s_lshl_b32 s65, s65, 10")
    a(f"s_lshl_b32 s66, {sG}, 4"); a("s_add_u32 s64, s64, s66"); a(f"s_lshl_b32 s66, {sW}, 2"); a("s_add_u32 s64, s64, s66")
    a("s_lshl_b32 s78, s64, 3"); a(f"s_add_u32 s78, s78, {G_OFF}")
    a(f"global_load_dwordx4 v[32:35], v{VL16}, s[{PGATE}:{PGATE+1}]")
    a(f"buffer_load_dwordx4 v[16:19], v{VL16}, {q(RX)}, s65 offen"); a(f"buffer_load_dwordx4 v[20:23], v{VL16}, {q(RX)}, s65 offen offset:2048")
    a("s_add_u32 s65, s65, 4096")
    a(f"buffer_load_dwordx4 v[24:27], v{VL16}, {q(RX)}, s65 offen"); a(f"buffer_load_dwordx4 v[28:31], v{VL16}, {q(RX)}, s65 offen offset:2048")
def gate_math(a, VL16):
    GU = 36; P = 44; R = 52
    for k in range(4):
        a(f"v_lshlrev_b32 v{GU+2*k}, 16, v{32+k}"); a(f"v_and_b32 v{GU+1+2*k}, 0xffff0000, v{32+k}")
    for row in range(4):
        xb = 16 + 4 * row
        for k in range(4):
            a(f"v_lshlrev_b32 v{P+2*k}, 16, v{xb+k}"); a(f"v_and_b32 v{P+2*k+1}, 0xffff0000, v{xb+k}")
        for i in range(0, 8, 2): a(f"v_pk_mul_f32 {vr(P+i,2)}, {vr(P+i,2)}, {vr(GU+i,2)}")
        for k in range(4): a(f"v_cvt_pk_bf16_f32 v{xb+k}, v{P+2*k}, v{P+2*k+1}")
        for k in range(4):
            a(f"v_lshlrev_b32 v{P+2*k}, 16, v{xb+k}"); a(f"v_and_b32 v{P+2*k+1}, 0xffff0000, v{xb+k}")
        a(f"v_pk_add_f32 {vr(P,2)}, {vr(P,2)}, {vr(P+4,2)}"); a(f"v_pk_add_f32 {vr(P+2,2)}, {vr(P+2,2)}, {vr(P+6,2)}")
        a(f"v_pk_add_f32 {vr(P,2)}, {vr(P,2)}, {vr(P+2,2)}")
        a(f"v_add_f32 v{R+row}, v{P}, v{P+1}")
    a.nop(1)
    for sh in (8, 4, 2, 1):
        for row in range(4): a(f"v_add_f32_dpp v{R+row}, v{R+row}, v{R+row} row_ror:{sh} row_mask:0xf bank_mask:0xf")
    for sw in ("v_permlane32_swap_b32", "v_permlane16_swap_b32"):
        for row in range(4): a(f"v_mov_b32 v{P+row}, v{R+row}")
        for row in range(4): a(f"{sw} v{R+row}, v{P+row}")
        for row in range(4): a(f"v_add_f32 v{R+row}, v{R+row}, v{P+row}")
    def rnd():
        for h in range(2):
            a(f"v_cvt_pk_bf16_f32 v{P+h}, v{R+2*h}, v{R+2*h+1}")
        for h in range(2):
            a(f"v_lshlrev_b32 v{R+2*h}, 16, v{P+h}"); a(f"v_and_b32 v{R+2*h+1}, 0xffff0000, v{P+h}")
    rnd()
    for row in range(4): a(f"v_mul_f32 v{R+row}, 0x{f32bits(-LOG2E):x}, v{R+row}")
    for row in range(4): a(f"v_exp_f32 v{R+row}, v{R+row}")
    for row in range(4): a(f"v_add_f32 v{R+row}, 1.0, v{R+row}")
    for row in range(4): a(f"v_rcp_f32 v{R+row}, v{R+row}")
    a.nop(1)
    rnd()
    a("v_cmp_eq_u32 vcc, 1, v0"); a(f"v_mov_b32 v{P+2}, s{TAG}"); a(f"v_mov_b32 v{P+3}, s{TAG+1}")
    a(f"v_cndmask_b32 v{P}, v{R}, v{R+2}, vcc"); a(f"v_cndmask_b32 v{P+1}, v{R+1}, v{R+3}, vcc")
    a("s_mov_b64 exec, 3")
    a(f"buffer_store_dwordx4 {vr(P,4)}, v{VL16}, {q(RWS)}, s78 offen sc1")
    a("s_mov_b64 exec, -1")

def mainloop(a, opt, pre, addr_regs, reads, mfmas):
    a("s_mov_b32 s70, 1"); a("s_mov_b32 s72, 0"); a(f"s_mov_b32 s73, {(-SLOT) & 0xffffffff}"); a(f"s_mov_b32 s79, {2*SLOT}")
    for r in addr_regs: a(f"v_add_u32 v{r}, {slot_of(0)}, v{r}")
    if opt.get("prio", 2) == 1: a("s_setprio 1")
    du = opt.get("duty", 1)
    if du == 3 and pre == "KF": du = 0
    dl = f"buffer_load_dword v255, v254, {q(RR)}, s100 offen"
    stamp(a, opt, 0)
    a("s_barrier")
    stamp(a, opt, 1)
    for r in reads(0, 0): a(r)
    a(".p2align 3")
    a.label(pre + "_LOOP")
    a("s_waitcnt lgkmcnt(0)")
    a("s_add_u32 s70, s70, 1")
    last = opt.get("last", 6)
    sal = ["s_cmp_eq_u32 s70, 3\ns_cselect_b32 s71, s79, s73", "s_cselect_b32 s70, 0, s70\ns_add_u32 s72, s72, 1"]
    if du: sal.append(f"s_cmp_eq_u32 s72, s101\ns_cbranch_scc1 {pre}_DUTY\n{pre}_DBACK:")
    if du == 3: sal.append(f"s_cmp_eq_u32 s72, s63\ns_cbranch_scc1 {pre}_DUTY2\n{pre}_DBACK2:")
    sal.append("s_cmp_eq_u32 s72, 8\ns_nop 0")
    mf = mfmas(0)
    spread(a, mf[:-last], reads(1, 1), 0)
    interleave(a, mf[-last:], sal)
    a("s_waitcnt lgkmcnt(0)")
    a("s_barrier")
    a(f"s_cbranch_scc1 {pre}_DONE"); a("s_nop 0")
    for _ in range(opt.get("slow", 0)): a("s_nop 15"); a("s_nop 15")
    adv = [f"v_add_u32 v{r}, s71, v{r}" for r in addr_regs]
    if len(adv) % 2: adv.append("s_nop 0")
    adv = [adv[i] + "\n" + adv[i+1] for i in range(0, len(adv), 2)]
    mf = mfmas(1)
    interleave(a, mf[:len(adv)], adv)
    spread(a, mf[len(adv):], reads(0, 0), opt.get("last2", 2))
    a(f"s_branch {pre}_LOOP")
    if du:
        a.label(pre + "_DUTY"); a(dl); a(f"s_branch {pre}_DBACK")
    if du == 3:
        a.label(pre + "_DUTY2"); a(f"buffer_load_dword v255, v253, {q(RA)}, s62 offen"); a(f"s_branch {pre}_DBACK2")
    a(".p2align 3")
    a.label(pre + "_DONE")
    if opt.get("prio", 2) == 2: a("s_setprio 3"); a("s_nop 0")
    stamp(a, opt, 2)

def gen_ffn(a, opt):
    ACC = 16; FR = 128
    def acc(t, n): return ACC + 4 * (t * 7 + n)
    def xf(s, t): return FR + 44 * s + 4 * t
    def wf(s, n): return FR + 44 * s + 16 + 4 * n
    XA = [2, 3]; WA = [4, 5, 6, 7]; SA = 8
    a(f"s_lshr_b32 s68, {sW}, 1")
    a(f"s_and_b32 s69, {sW}, 1")
    a("v_and_b32 v10, 15, v0"); a("v_lshrrev_b32 v11, 4, v0")
    a("v_lshrrev_b32 v12, 1, v10"); a("v_xor_b32 v12, v12, v11"); a("v_lshlrev_b32 v12, 4, v12")
    a("v_lshlrev_b32 v13, 7, v10"); a("v_add_u32 v12, v12, v13")
    a("s_lshl_b32 s64, s68, 13"); a(f"v_add_u32 v{XA[0]}, s64, v12"); a(f"v_xor_b32 v{XA[1]}, 64, v{XA[0]}")
    a("v_bfe_u32 v12, v0, 2, 2")
    a("v_lshlrev_b32 v13, 3, v11"); a("v_add_u32 v13, v13, v12")
    a("v_lshrrev_b32 v14, 1, v12"); a("v_and_b32 v15, 1, v11"); a("v_lshlrev_b32 v9, 1, v15"); a("v_or_b32 v14, v14, v9")
    a("v_and_b32 v9, 3, v0"); a("v_lshlrev_b32 v9, 3, v9")
    a("v_lshlrev_b32 v12, 7, v13"); a("v_add_u32 v12, v12, v9")
    for j in range(4):
        a("s_mul_i32 s64, s69, 6"); a(f"s_add_u32 s64, s64, {j}")
        a("s_and_b32 s65, s64, 3"); a("s_lshr_b32 s64, s64, 2"); a("s_lshl_b32 s64, s64, 13"); a(f"s_add_u32 s64, s64, {WOFF}")
        a(f"v_xor_b32 v{WA[j]}, s65, v14"); a(f"v_lshlrev_b32 v{WA[j]}, 5, v{WA[j]}"); a(f"v_add_u32 v{WA[j]}, v{WA[j]}, v12"); a(f"v_add_u32 v{WA[j]}, s64, v{WA[j]}")
    a(f"v_xor_b32 v{SA}, s69, v15"); a(f"v_lshlrev_b32 v{SA}, 5, v{SA}"); a(f"v_add_u32 v{SA}, v{SA}, v9")
    a("v_lshlrev_b32 v12, 6, v13"); a(f"v_add_u32 v{SA}, v{SA}, v12"); a(f"v_add_u32 v{SA}, {EOFF}, v{SA}")
    a(f"s_lshl_b32 s64, {sB}, 1"); a("s_add_u32 s64, s64, s68"); a("s_mul_i32 s64, s64, 72")
    a(f"s_mul_i32 s65, {sG}, 7"); a("s_add_u32 s64, s64, s65"); a("s_add_u32 s64, s64, 16")
    a(f"s_and_b32 s65, {sG}, 1")
    a("s_mul_i32 s66, s69, 3"); a("s_add_u32 s66, s66, s65"); a("s_add_u32 s66, s66, s64"); a("s_lshl_b32 s74, s66, 12")
    a("s_add_u32 s75, s74, 4096"); a("s_add_u32 s76, s74, 8192")
    a("s_cmp_eq_u32 s65, 0"); a("s_cselect_b32 s66, 6, 0"); a("s_add_u32 s66, s66, s64"); a("s_lshl_b32 s77, s66, 12")
    a("s_lshl_b32 s65, s69, 11"); a("s_add_u32 s77, s77, s65")
    a("v_lshlrev_b32 v9, 4, v0")
    a("s_waitcnt lgkmcnt(0)")
    compute_common_setup(a, opt)
    for i in range(112): a(f"v_mov_b32 v{ACC+i}, 0")
    def reads(kk, s):
        xs = [f"ds_read_b128 {vr(xf(s,t),4)}, v{XA[kk]} offset:{t*2048}" for t in range(4)]
        ws = []
        for n in range(6):
            for h in range(2):
                ws.append(f"ds_read_b64_tr_b16 {vr(wf(s,n)+2*h,2)}, v{WA[n&3]} offset:{(n>>2)*8192 + kk*4096 + h*512}")
        for h in range(2):
            ws.append(f"ds_read_b64_tr_b16 {vr(wf(s,6)+2*h,2)}, v{SA} offset:{kk*2048 + h*256}")
        return mix(xs, ws)
    def mfmas(s):
        return [f"v_mfma_f32_16x16x32_bf16 {vr(acc(t,n),4)}, {vr(wf(s,n),4)}, {vr(xf(s,t),4)}, {vr(acc(t,n),4)}" for n in range(7) for t in range(4)]
    mainloop(a, opt, "KF", XA + WA + [SA], reads, mfmas)
    E = [f"global_load_dwordx2 v[10:11], v1, s[{PDBG}:{PDBG+1}] sc1"] + mfmas(1)
    tmp = [FR + 4 * k for k in range(11)] + [216 + 4 * k for k in range(3)]
    k = 0
    for n in range(7):
        for tp in range(2):
            d = tmp[k]; k += 1
            for hh in range(2):
                sx = acc(2 * tp + hh, n)
                E.append(f"v_cvt_pk_bf16_f32 v{d+2*hh}, v{sx}, v{sx+1}"); E.append(f"v_cvt_pk_bf16_f32 v{d+2*hh+1}, v{sx+2}, v{sx+3}")
            for i in (0, 2, 1, 3): E.append(f"v_pk_max_i16 v{d+i}, v{d+i}, 0")
            E.append(f"v_permlane16_swap_b32 v{d}, v{d+2}"); E.append(f"v_permlane16_swap_b32 v{d+1}, v{d+3}")
            off = ((n & 1) * 2048 if n < 6 else 0) + tp * 1024
            E.append(f"buffer_store_dwordx4 {vr(d,4)}, v9, {q(RWS)}, s{74+(n>>1)} offen offset:{off} sc1")
    o, t = schedule(E, 40)
    print("ffn epilogue est", t, len(o), file=sys.stderr)
    wn = opt.get("wn", 0); ns = 0
    for x in o:
        if x.startswith("buffer_store") and opt.get("nostore"): continue
        if x.startswith("buffer_store"):
            if wn and ns >= wn: a(f"s_waitcnt vmcnt({wn-1})")
            ns += 1
        a(x)
    if opt.get("sb", 1) == 1: a("s_barrier")
    stamp(a, opt, 3)
    compute_publish(a, opt, 10, 14)
    if opt.get("sb", 1) == 2: a("s_barrier")
    stamp(a, opt, 5)
    stamp_end(a, opt, 1)
    a("s_endpgm")

def gen_attn(a, opt):
    a.label("K_ATTN")
    ACC = 36; FR = 140
    def Q(t): return ACC + 4 * t
    def K(t): return ACC + 32 + 4 * t
    def V(t): return ACC + 68 + 4 * t
    def xf(s, t): return FR + 48 * s + 4 * t
    def wf(s, p): return FR + 48 * s + 36 + 4 * p
    XA = [2, 3]; WA = 4
    BC, BP, BP0, BP4, MC = 16, 20, 24, 28, 32
    a("v_and_b32 v10, 15, v0"); a("v_lshrrev_b32 v11, 4, v0")
    a("v_lshrrev_b32 v12, 1, v10"); a("v_xor_b32 v12, v12, v11"); a("v_lshlrev_b32 v12, 4, v12")
    a("v_lshlrev_b32 v13, 7, v10"); a(f"v_add_u32 v{XA[0]}, v12, v13"); a(f"v_xor_b32 v{XA[1]}, 64, v{XA[0]}")
    a("v_bfe_u32 v12, v0, 2, 2")
    a("v_lshlrev_b32 v13, 3, v11"); a("v_add_u32 v13, v13, v12")
    a("v_lshrrev_b32 v14, 1, v12"); a("v_and_b32 v15, 1, v11"); a("v_lshlrev_b32 v9, 1, v15"); a("v_or_b32 v14, v14, v9")
    a("v_and_b32 v9, 3, v0"); a("v_lshlrev_b32 v9, 3, v9")
    a("v_lshlrev_b32 v12, 7, v13"); a("v_add_u32 v12, v12, v9")
    a(f"v_xor_b32 v{WA}, {sW}, v14"); a(f"v_lshlrev_b32 v{WA}, 5, v{WA}"); a(f"v_add_u32 v{WA}, v{WA}, v12"); a(f"v_add_u32 v{WA}, {WOFF}, v{WA}")
    a("v_lshlrev_b32 v5, 2, v11"); a("v_sub_u32 v6, v5, v10")
    a(f"s_mul_i32 s64, {sB}, 144"); a(f"s_lshl_b32 s65, {sG}, 1"); a("s_add_u32 s64, s64, s65"); a(f"s_lshr_b32 s65, {sW}, 1"); a("s_add_u32 s64, s64, s65")
    a("s_lshl_b32 s74, s64, 12"); a(f"s_and_b32 s65, {sW}, 1"); a("s_lshl_b32 s65, s65, 11"); a("s_add_u32 s74, s74, s65")
    a(f"s_add_u32 s75, s74, {72*4096}")
    a(f"s_mov_b32 s76, 0x{f32bits(0.25*LOG2E):x}"); a("s_mov_b32 s77, s76")
    a("v_lshlrev_b32 v9, 4, v0")
    a("s_waitcnt lgkmcnt(0)")
    compute_common_setup(a, opt)
    a(f"v_mov_b32 v7, 0x{BIG:x}")
    a(f"s_cmp_eq_u32 {sB}, 0"); a(f"s_cselect_b32 s64, 0x{BIG:x}, 0"); a("v_mov_b32 v8, s64")
    a(f"v_mov_b32 v{MC}, 0"); a(f"v_mov_b32 v{MC+1}, 0")
    for r in range(4):
        a(f"v_add_u32 v14, {r+7}, v6")
        a("v_cmp_gt_u32 vcc, 8, v14")
        a(f"v_mov_b32 v15, {'0xffff' if r % 2 == 0 else '0xffff0000'}")
        a(f"v_add_u32 v14, {r}, v6")
        a(f"v_cndmask_b32 v{BC+r}, v7, v1, vcc")
        a("v_cndmask_b32 v15, v1, v15, vcc")
        a(f"v_or_b32 v{MC+(r>>1)}, v{MC+(r>>1)}, v15")
        a("v_cmp_le_i32 vcc, 9, v14")
        a(f"v_add_u32 v15, {r}, v5")
        a("v_cmp_gt_u32 s[64:65], 8, v15")
        a(f"v_cndmask_b32 v{BP+r}, v7, v1, vcc")
        a(f"v_cndmask_b32 v{BP0+r}, v7, v8, vcc")
        a("v_cmp_le_i32 vcc, 1, v14"); a("s_nop 0")
        a("s_and_b64 vcc, vcc, s[64:65]")
        a(f"v_cndmask_b32 v{BP4+r}, v7, v8, vcc")
    for i in range(104): a(f"v_mov_b32 v{ACC+i}, 0")
    def reads(kk, s):
        ws = []
        for p in range(3):
            for h in range(2):
                ws.append(f"ds_read_b64_tr_b16 {vr(wf(s,p)+2*h,2)}, v{WA} offset:{p*8192 + kk*4096 + h*512}")
        xs = [f"ds_read_b128 {vr(xf(s,t),4)}, v{XA[kk]} offset:{t*2048 if t < 8 else EOFF}" for t in range(9)]
        return mix(xs, ws)
    def mfmas(s):
        r = []
        for t in range(9):
            if t < 8: r.append(f"v_mfma_f32_16x16x32_bf16 {vr(Q(t),4)}, {vr(wf(s,0),4)}, {vr(xf(s,t),4)}, {vr(Q(t),4)}")
            r.append(f"v_mfma_f32_16x16x32_bf16 {vr(K(t),4)}, {vr(wf(s,1),4)}, {vr(xf(s,t),4)}, {vr(K(t),4)}")
            r.append(f"v_mfma_f32_16x16x32_bf16 {vr(V(t),4)}, {vr(xf(s,t),4)}, {vr(wf(s,2),4)}, {vr(V(t),4)}")
        return r
    a("s_mov_b32 s66, 0x3f803f80")
    mainloop(a, opt, "KA", XA + [WA], reads, mfmas)
    QB = FR; KB = FR + 16; M = FR + 34; ONES = FR + 44; VB = FR + 48; PB = FR + 68; TM = FR + 100
    E = [f"global_load_dwordx2 v[10:11], v1, s[{PDBG}:{PDBG+1}] sc1"] + mfmas(1)
    e = E.append
    def cvt(d, s): e(f"v_cvt_pk_bf16_f32 v{d}, v{s}, v{s+1}"); e(f"v_cvt_pk_bf16_f32 v{d+1}, v{s+2}, v{s+3}")
    for i in range(4): e(f"v_mov_b32 v{ONES+i}, s66")
    for t in range(8): cvt(QB + 2 * t, Q(t))
    for t in range(9): cvt(KB + 2 * t, K(t))
    def vslot(t): return (1 + t) if t < 4 else (2 + t)
    for t in range(8): cvt(VB + 2 * vslot(t), V(t))
    for d in (VB, VB + 10): cvt(d, V(8))
    for t in range(8):
        prev = 8 if t in (0, 4) else t - 1
        bp = BP0 if t == 0 else (BP4 if t == 4 else BP)
        e(f"v_mfma_f32_16x16x16_bf16 {vr(Q(t),4)}, {vr(KB+2*t,2)}, {vr(QB+2*t,2)}, {vr(BC,4)}")
        e(f"v_mfma_f32_16x16x16_bf16 {vr(K(t),4)}, {vr(KB+2*prev,2)}, {vr(QB+2*t,2)}, {vr(bp,4)}")
    for t in range(8):
        for r in range(4): e(f"v_max_f32 v{Q(t)+r}, v{Q(t)+r}, v{K(t)+r}")
        e(f"v_max3_f32 v{M+t}, v{Q(t)}, v{Q(t)+1}, v{Q(t)+2}")
        e(f"v_max_f32 v{M+t}, v{M+t}, v{Q(t)+3}")
    for b4 in (0, 4):
        m0, m1, m2, m3 = M + b4, M + b4 + 1, M + b4 + 2, M + b4 + 3
        e(f"v_permlane32_swap_b32 v{m0}, v{m1}"); e(f"v_max_f32 v{m0}, v{m0}, v{m1}")
        e(f"v_permlane32_swap_b32 v{m2}, v{m3}"); e(f"v_max_f32 v{m2}, v{m2}, v{m3}")
        e(f"v_permlane16_swap_b32 v{m0}, v{m2}"); e(f"v_max_f32 v{m0}, v{m0}, v{m2}")
        k0, k1, k2, k3 = K(b4), K(b4 + 1), K(b4 + 2), K(b4 + 3)
        e(f"v_mul_f32 v{k0}, s76, v{m0}"); e(f"v_mul_f32 v{k2}, s76, v{m0}")
        e(f"v_permlane16_swap_b32 v{k0}, v{k2}")
        e(f"v_mov_b32 v{k1}, v{k0}"); e(f"v_mov_b32 v{k3}, v{k2}")
        e(f"v_permlane32_swap_b32 v{k0}, v{k1}"); e(f"v_permlane32_swap_b32 v{k2}, v{k3}")
    pk = opt.get("pk", 1)
    for t in range(8):
        if pk:
            for r in (0, 2): e(f"v_pk_fma_f32 {vr(Q(t)+r,2)}, {vr(Q(t)+r,2)}, s[76:77], {vr(K(t),2)} op_sel_hi:[1,1,0] neg_lo:[0,0,1] neg_hi:[0,0,1]")
        else:
            for r in range(4): e(f"v_fma_f32 v{Q(t)+r}, v{Q(t)+r}, s76, -v{K(t)}")
        for r in range(4): e(f"v_exp_f32 v{Q(t)+r}, v{Q(t)+r}")
        cvt(PB + 4 * t + 2, Q(t))
        for h in range(2): e(f"v_bfi_b32 v{PB+4*t+h}, v{MC+h}, 0, v{PB+4*t+2+h}")
        for h in range(2): e(f"v_and_b32 v{PB+4*t+2+h}, v{MC+h}, v{PB+4*t+2+h}")
        e(f"v_mfma_f32_16x16x32_bf16 {vr(K(t),4)}, {vr(ONES,4)}, {vr(PB+4*t,4)}, 0")
        e(f"v_mfma_f32_16x16x32_bf16 {vr(Q(t),4)}, {vr(VB+2*(vslot(t)-1),4)}, {vr(PB+4*t,4)}, 0")
        e(f"v_rcp_f32 v{K(t)}, v{K(t)}")
        if pk:
            for r in (0, 2): e(f"v_pk_mul_f32 {vr(Q(t)+r,2)}, {vr(Q(t)+r,2)}, {vr(K(t),2)} op_sel_hi:[1,0]")
        else:
            for r in range(4): e(f"v_mul_f32 v{Q(t)+r}, v{Q(t)+r}, v{K(t)}")
        cvt(QB + 2 * t, Q(t))
        if t & 1:
            d = QB + 2 * t - 2
            e(f"v_permlane16_swap_b32 v{d}, v{d+2}"); e(f"v_permlane16_swap_b32 v{d+1}, v{d+3}")
            e(f"buffer_store_dwordx4 {vr(d,4)}, v9, {q(RWS)}, s{74+(t>>2)} offen offset:{((t>>1)&1)*1024} sc1")
    o, t = schedule(E, 0)
    print("attn epilogue est", t, len(o), file=sys.stderr)
    for x in o: a(x)
    if opt.get("sba", 0) and opt.get("sbl", 0) == 0: a("s_barrier")
    stamp(a, opt, 4)
    compute_publish(a, opt, 10, 4)
    if opt.get("sba", 0) and opt.get("sbl", 0) == 1: a("s_barrier")
    stamp(a, opt, 5)
    if opt.get("gq", 2) == 2:
        a("s_mov_b64 exec, -1")
        srd(a, RX, PX, 2048 * 1024)
        gate_loads(a, 9); a("s_waitcnt vmcnt(0)"); gate_math(a, 9)
    stamp_end(a, opt, 2)
    a("s_endpgm")

def gen_loader(a, opt):
    a.label("K_LOADER")
    if opt.get("prio", 2) == 2: a("s_setprio 2")
    VL16, VX0, VX1, VW, VE, VR, VZ = 1, 2, 3, 4, 5, 6, 7
    a("v_lshrrev_b32 v10, 3, v0"); a("v_and_b32 v11, 7, v0"); a("v_lshrrev_b32 v12, 4, v0")
    a(f"s_and_b32 s68, {sW}, 1"); a(f"s_lshr_b32 s69, {sW}, 1")
    a(f"s_lshl_b32 s64, {sB}, 7"); a("s_lshl_b32 s65, s68, 6"); a("s_add_u32 s64, s64, s65"); a("s_add_u32 s64, s64, s69"); a("s_lshl_b32 s64, s64, 10")
    a("v_xor_b32 v13, v11, v12"); a("v_lshlrev_b32 v13, 4, v13")
    a("v_lshlrev_b32 v14, 11, v10"); a("v_add_u32 v14, v14, v13")
    a(f"v_add_u32 v{VX0}, s64, v14"); a(f"v_xor_b32 v{VX1}, 64, v{VX0}")
    a(f"s_cmp_eq_u32 {sT}, 0")
    csel(a, "s74", 3072, 3584); csel(a, "s75", 1024, 128)
    csel(a, f"s{RW+2}", 512*3072, 512*3584); csel(a, f"s{RE+2}", 2048*1024, 512*3584)
    a(f"s_mul_i32 s66, {sG}, 448"); a(f"s_and_b32 s67, {sG}, 1"); a("s_lshl_b32 s64, s67, 6"); a("s_add_u32 s64, s64, s66")
    a(f"s_lshl_b32 s65, {sG}, 7")
    a(f"s_cmp_eq_u32 {sT}, 0"); a("s_cselect_b32 s64, s65, s64")
    a("v_and_b32 v15, 1, v12"); a("v_lshlrev_b32 v15, 1, v15"); a("v_xor_b32 v15, v15, v11"); a("s_lshl_b32 s65, s68, 2"); a("v_xor_b32 v15, s65, v15"); a("v_lshlrev_b32 v15, 4, v15")
    a(f"s_lshl_b32 s65, {sW}, 3"); a(f"v_add_u32 v{VW}, s65, v10"); a(f"v_mul_lo_u32 v{VW}, v{VW}, s74"); a(f"v_add_u32 v{VW}, v{VW}, v15"); a(f"v_add_u32 v{VW}, s64, v{VW}")
    a(f"s_cmp_eq_u32 {sT}, 0"); a("s_cbranch_scc1 KL_EA")
    a("s_cmp_eq_u32 s67, 0"); a("s_cselect_b32 s65, 384, 0"); a("s_add_u32 s66, s66, s65")
    a("v_lshrrev_b32 v15, 2, v0"); a(f"s_lshl_b32 s65, {sW}, 4"); a("v_add_u32 v15, s65, v15"); a(f"v_mul_u32_u24 v{VE}, 3584, v15")
    a("v_lshrrev_b32 v15, 5, v0"); a("v_lshlrev_b32 v15, 1, v15"); a("v_and_b32 v13, 3, v0"); a("v_xor_b32 v15, v15, v13"); a("v_lshlrev_b32 v15, 4, v15")
    a(f"v_add_u32 v{VE}, v{VE}, v15"); a(f"v_add_u32 v{VE}, s66, v{VE}")
    a(f"s_lshl_b32 s72, {sW}, 10"); a(f"s_mov_b32 s76, {64*3584}")
    a("s_branch KL_ED")
    a.label("KL_EA")
    a(f"s_lshl_b32 s64, {sB}, 7"); a(f"s_cmp_eq_u32 {sB}, 0"); a("s_cselect_b32 s65, 0, 16"); a(f"s_cselect_b32 s{RE+2}, 0, s{RE+2}"); a("s_sub_u32 s64, s64, s65")
    a("s_add_u32 s64, s64, 1"); a("s_sub_u32 s64, s64, s68"); a("s_lshl_b32 s64, s64, 10")
    a("s_lshl_b32 s65, s68, 6"); a(f"v_xor_b32 v{VE}, s65, v14"); a(f"v_add_u32 v{VE}, s64, v{VE}")
    a("s_lshl_b32 s72, s68, 10"); a("s_mov_b32 s76, 128")
    a.label("KL_ED")
    a(f"s_add_u32 s72, s72, {EOFF}")
    a(f"s_lshl_b32 s70, {sW}, 12")
    a(f"s_lshl_b32 s71, {sW}, 10"); a(f"s_add_u32 s71, s71, {WOFF}")
    a("s_lshl_b32 s73, s74, 6"); a("s_lshl_b32 s74, s74, 5")
    if opt.get("wrot", 1):
        if opt.get("wrot", 1) == 1:
            a(f"s_lshl_b32 s64, {sB}, 1"); a("s_lshr_b32 s64, 0x24924924, s64"); a("s_and_b32 s64, s64, 3"); a(f"s_and_b32 s65, {sB}, 1")
        else:
            a("s_mov_b32 s64, 0"); a("s_mov_b32 s65, 0")
        a("s_lshl_b32 s66, s64, 13"); a("s_add_u32 s71, s71, s66"); a("s_lshl_b32 s66, s65, 12"); a("s_add_u32 s71, s71, s66")
        a("s_mul_i32 s51, s64, s75"); a("s_mul_i32 s66, s65, s74"); a("s_add_u32 s51, s51, s66")
        a("s_cmp_eq_u32 s65, 0"); a("s_cselect_b32 s66, 1, -1"); a("s_lshl_b32 s48, s66, 12"); a("s_mul_i32 s49, s66, s74")
        a("s_cmp_eq_u32 s64, 2"); a("s_cselect_b32 s66, -2, 1"); a("s_lshl_b32 s68, s66, 13"); a("s_mul_i32 s69, s66, s75")
        a("s_cmp_eq_u32 s64, 1"); a("s_cselect_b32 s66, -2, 1"); a("s_lshl_b32 s74, s66, 13"); a("s_mul_i32 s75, s66, s75")
    rot = opt.get("rot", 0)
    win = opt.get("win")
    if win:
        wins = [int(c) for c in str(win)]
        assert sum(wins) == 8
        xm = opt.get("xm", 1)
        a("s_lshr_b32 s64, s2, 6"); a(f"s_mul_i32 s64, s64, {xm}"); a(f"s_and_b32 s65, {sB}, 7"); a("s_add_u32 s64, s64, s65")
        nr = 8 + 3 * xm
        for r in range(nr):
            t = 0; base = 0; k = 0
            for w_ in wins:
                for i in range(w_):
                    t |= (base + (i + r) % w_) << (4 * k); k += 1
                base += w_
            if r == 0: a(f"s_mov_b32 s78, 0x{t:x}")
            else: a(f"s_cmp_eq_u32 s64, {r}"); a(f"s_cselect_b32 s78, 0x{t:x}, s78")
        a("s_and_b32 s77, s78, 7")
    elif rot == 0: a("s_mov_b32 s77, 0")
    elif rot == 1: a(f"s_add_u32 s77, {sB}, {sG}"); a("s_and_b32 s77, s77, 7")
    elif rot == 2: a("s_lshr_b32 s77, s2, 6"); a("s_lshl_b32 s77, s77, 1"); a(f"s_add_u32 s77, s77, {sB}"); a("s_and_b32 s77, s77, 7")
    elif rot == 3:
        a("s_lshr_b32 s77, s2, 6"); a("s_lshl_b32 s77, s77, 1"); a(f"s_add_u32 s77, s77, {sB}"); a("s_and_b32 s64, s2, 1"); a("s_add_u32 s77, s77, s64"); a("s_and_b32 s77, s77, 7")
    a(f"s_mov_b32 s{RX+2}, {2048*1024}"); a(f"s_mov_b32 s{RX+3}, 0x20000"); a(f"s_mov_b32 s{RW+3}, 0x20000"); a(f"s_mov_b32 s{RE+3}, 0x20000")
    a(f"s_cmp_eq_u32 {sT}, 0")
    a("s_waitcnt lgkmcnt(0)")
    a(f"s_mov_b32 s{RX}, s{PX}"); a(f"s_mov_b32 s{RX+1}, s{PX+1}")
    a(f"s_cselect_b32 s{RW}, s{PWQKV}, s{PW1}"); a(f"s_cselect_b32 s{RW+1}, s{PWQKV+1}, s{PW1+1}")
    a(f"s_cselect_b32 s{RE}, s{PX}, s{PW1}"); a(f"s_cselect_b32 s{RE+1}, s{PX+1}, s{PW1+1}")
    def stage(s, lo=0, hi=11):
        base = slot_of(s)
        L = []
        for m in range(4):
            L.append([f"s_add_u32 m0, s70, {base + XOFF + m*1024}", f"s_add_u32 s67, s10, {m*16384}", f"buffer_load_dwordx4 v{VX0 if m % 2 == 0 else VX1}, {q(RX)}, s67 offen lds"])
        if opt.get("wrot", 1):
            W = []
            for k in range(6):
                if k == 0: pre = [f"s_add_u32 m0, s71, {base}", "s_add_u32 s50, s11, s51"]
                elif k == 3: pre = ["s_add_u32 m0, m0, s48", "s_add_u32 s50, s50, s49"]
                elif k < 3: pre = [f"s_add_u32 m0, m0, s{(68,74)[k-1]}", f"s_add_u32 s50, s50, s{(69,75)[k-1]}"]
                else: pre = [f"s_sub_u32 m0, m0, s{(68,74)[5-k]}", f"s_sub_u32 s50, s50, s{(69,75)[5-k]}"]
                W.append(pre + [f"buffer_load_dwordx4 v{VW}, {q(RW)}, s50 offen lds"])
            L = W + L if opt.get("wfirst", 1) else L + W
            assert lo in (0, 6, 7, 8, 9, 10) or not opt.get("wfirst", 1)
        else:
          for jj in range(2):
            for P in range(3):
                if P == 0: so_ = "s_mov_b32 s50, s11" if jj == 0 else "s_add_u32 s50, s11, s74"
                else: so_ = "s_add_u32 s50, s50, s75"
                L.append([f"s_add_u32 m0, s71, {base + P*8192 + jj*4096}", so_, f"buffer_load_dwordx4 v{VW}, {q(RW)}, s50 offen lds"])
        L.append([f"s_add_u32 m0, s72, {base}", "s_mul_i32 s67, s77, s76", f"buffer_load_dwordx4 v{VE}, {q(RE)}, s67 offen lds", "s_lshr_b32 s78, s78, 4" if win else "s_add_u32 s77, s77, 1", "s_and_b32 s77, s78, 7" if win else "s_and_b32 s77, s77, 7"])
        if lo == 0: a("s_lshl_b32 s10, s77, 7"); a("s_mul_i32 s11, s77, s73")
        for x in L[lo:hi]:
            for y in x: a(y)
    def bar(n, k):
        a(f"s_waitcnt vmcnt({n})"); a("s_barrier")
        if opt.get("lstamp") == 1: a(f"s_memtime s[{84+2*k}:{85+2*k}]")
    def st2(k):
        if opt.get("lstamp") == 2: a(f"s_memtime s[{84+2*k}:{85+2*k}]")
    if opt.get("lstamp"):
        opt = dict(opt); so = opt.copy(); opt["stamps"] = 0
    else: so = opt
    s1a = int(str(opt.get("split", "x7bbbbbb"))[1], 16)
    stage(0); stage(1, 0, s1a)
    a(f"v_lshlrev_b32 v{VL16}, 4, v0"); a(f"v_mov_b32 v{VZ}, 0")
    srd(a, RWS, PWS, WS_USED)
    a("v_and_b32 v15, 1, v12"); a("v_lshlrev_b32 v15, 2, v15"); a("v_xor_b32 v15, v15, v11"); a("v_lshlrev_b32 v15, 4, v15")
    a(f"v_lshlrev_b32 v{VR}, 10, v10"); a(f"v_add_u32 v{VR}, v{VR}, v15")
    a(f"s_mul_i32 s100, {sW}, 19"); a("s_sub_u32 s100, s100, 3"); a(f"s_cmp_eq_u32 {sW}, 0"); a("s_cselect_b32 s100, 0, s100"); a("s_cselect_b32 s101, 16, 19")
    a(f"s_cmp_eq_u32 {sW}, 3"); a("s_cselect_b32 s101, 18, s101"); a("s_lshl_b32 s101, s101, 12")
    a(f"s_mul_i32 s64, {sU}, 72"); a("s_add_u32 s64, s64, s100"); a("s_lshl_b32 s64, s64, 12")
    srd(a, RA, PWS, "s101", "s64")
    a("s_sub_u32 s64, s100, 16"); a("s_lshl_b32 s64, s64, 15")
    a(f"s_cmp_eq_u32 {sW}, 0"); a("s_cselect_b32 s64, 0, s64")
    a(f"s_cselect_b32 s66, s{PWO}, s{PW2}"); a(f"s_cselect_b32 s67, s{PWO+1}, s{PW2+1}")
    a(f"s_lshl_b32 s65, {sCT}, 7"); a("s_add_u32 s64, s64, s65")
    a(f"s_add_u32 s{RB}, s66, s64"); a(f"s_addc_u32 s{RB+1}, s67, 0")
    a(f"s_lshl_b32 s{RB+2}, s101, 3"); a(f"s_sub_u32 s{RB+2}, s{RB+2}, s65"); a(f"s_mov_b32 s{RB+3}, 0x20000")
    a(f"s_lshl_b32 s79, {sW}, 12"); a(f"s_sub_u32 s79, {TOP-4096}, s79")
    a(f"s_cmp_eq_u32 {sW}, 0"); a(f"s_cselect_b32 s79, {TOP-4096-16384}, s79")
    a(f"v_mov_b32 v13, {TOP-4096}"); a(f"ds_write_b32 v13, v{VZ}"); a("s_waitcnt lgkmcnt(0)")
    a("v_lshrrev_b32 v13, 5, v0"); a("v_lshlrev_b32 v13, 10, v13"); a("v_bfe_u32 v14, v0, 2, 2"); a("v_lshlrev_b32 v14, 7, v14"); a("v_add_u32 v13, v13, v14")
    a("v_bfe_u32 v14, v0, 3, 1"); a("v_lshlrev_b32 v14, 6, v14"); a("v_add_u32 v13, v13, v14")
    a("v_bfe_u32 v14, v0, 4, 1"); a("v_lshlrev_b32 v14, 5, v14"); a("v_add_u32 v13, v13, v14")
    a("v_and_b32 v14, 3, v0"); a("v_lshlrev_b32 v14, 3, v14"); a("v_add_u32 v13, v13, v14")
    a(f"s_sub_u32 s64, s79, {3*16384}"); a("v_add_u32 v58, s64, v13"); a("v_xor_b32 v59, 64, v58")
    for k, dr in ((60, 4), (62, 6)):
        a(f"v_subrev_u32 v{k}, {dr*16384}, v58"); a(f"v_subrev_u32 v{k+1}, {dr*16384}, v59")
    a(f"v_mul_u32_u24 v57, {FSTR}, v0")
    sp = [int(c, 16) for c in str(opt.get("split", "x7bbbbbb"))[1:]]
    assert sp[0] == s1a
    vm = [("S", 0)] * 11 + [("S", 1)] * s1a
    def younger(tag): return len(vm) - 1 - max(i for i, t in enumerate(vm) if t == tag)
    def stage_t(s_, lo=0, hi=11): stage(s_, lo, hi); vm.extend([("S", s_)] * (hi - lo))
    br = opt.get("brot", 1)
    mp = opt.get("map", "Y")
    if br == 0: a("s_mov_b32 s14, 0")
    elif mp == "Z" and opt.get("p2map", 0) == 0: a(f"s_and_b32 s14, {sB}, 3"); a("s_lshl_b32 s14, s14, 14")
    elif mp == "Z": a(f"s_and_b32 s14, {sU}, 7"); a("s_lshl_b32 s14, s14, 13")
    elif mp == "Y" and not opt.get("p2alt", 0): a(f"s_and_b32 s14, {sB}, 7"); a("s_lshl_b32 s14, s14, 13")
    else: a(f"s_and_b32 s14, {sU}, 3"); a("s_lshl_b32 s14, s14, 14")
    a("s_lshl_b32 s8, s14, 3"); a("s_lshl_b32 s9, s101, 3")
    ACC = 8; BR = 72
    def bdma(tag, j, certain=True):
        for k in range(4):
            a(f"s_sub_u32 m0, s79, {16384*j - 1024*k}") if 16384*j - 1024*k >= 0 else a(f"s_add_u32 m0, s79, {1024*k - 16384*j}")
            a("s_nop 0")
            a(f"buffer_load_dwordx4 v{VR}, {q(RB)}, s8 offen lds")
            a("s_add_u32 s8, s8, 8192")
        a("s_cmp_ge_u32 s8, s9"); a("s_cselect_b32 s8, 0, s8")
        if certain: vm.extend([("B", tag)] * 4)
    def stg(i, j):
        r = 3 if j < 4 else (7 if j < 8 else 9)
        va = {3: 58, 7: 60, 9: 62}[r]
        for f in range(4):
            for e in range(2):
                a(f"ds_read_b64_tr_b16 {vr(BR+16*i+4*f+2*e,2)}, v{va+(f&1)} offset:{(r-j)*16384 + (f>>1)*2048 + e*512}")
    if "ebi" in opt: ebi = [int(c) for c in str(opt["ebi"])[1:]]
    else: ebi = list(range(5 - opt.get("eb", 4), 5))
    E = len(ebi)
    ne = 0
    for s_ in range(6):
        bar(younger(("S", s_)), s_)
        if s_ == 0: stamp(a, opt, 0)
        if sp[s_] < 11: stage_t(s_ + 1, sp[s_], 11)
        stage_t(s_ + 2, 0, sp[s_ + 1])
        for _ in range(ebi.count(s_) + (s_ == 5)):
            if ne > 0:
                a(f"s_waitcnt vmcnt({younger(('B', ne - 1))})"); stg(ne - 1, 0); a("s_waitcnt lgkmcnt(0)")
            bdma(ne, 0); ne += 1
    assert sp[6] == 11 and ne == E + 1
    a("s_mov_b32 s77, s14")
    srd(a, RAUX, POUT, 2048 * 1024)
    a(f"s_lshr_b32 s68, {sU}, 1"); a(f"s_mul_i32 s68, s68, {16*FSTR}"); a(f"s_add_u32 s68, s68, {FA_OFF}")
    def fm(g0, g1): return sum(0x100 << g for g in range(g0, g1 + 1))
    a(f"s_mov_b32 s{RR}, 0x{fm(0,2):x}"); a(f"s_cmp_eq_u32 {sW}, 2"); a(f"s_cselect_b32 s{RR}, 0x{fm(2,5):x}, s{RR}")
    a(f"s_cmp_eq_u32 {sW}, 3"); a(f"s_cselect_b32 s{RR}, 0x{fm(5,7):x}, s{RR}")
    a(f"s_cmp_eq_u32 {sW}, 0"); a(f"s_cselect_b32 s{RR}, 0xff, s{RR}"); a(f"s_mov_b32 s{RR+1}, 0")
    a(f"s_lshl_b32 s69, {sU}, 9"); a(f"s_lshl_b32 s64, {sW}, 7"); a("s_add_u32 s69, s69, s64"); a(f"s_add_u32 s69, s69, {G_OFF}")
    bar(younger(("S", 6)), 6)
    stamp(a, opt, 1)
    for t in range(1, 4): bdma(E + t, t)
    bar(younger(("S", 7)), 7)
    for t in range(4, 7): bdma(E + t, t)
    NSG = 9 - E
    staged = 0
    def stage_upto(t_end):
        nonlocal staged
        t_end = min(t_end, NSG)
        if staged >= t_end: return
        a(f"s_waitcnt vmcnt({younger(('B', E + t_end - 1))})")
        for t in range(staged, t_end): stg(E + t, t)
        staged = t_end
    if opt.get("early", 1): stage_upto(3)
    a("s_barrier")
    stamp(a, opt, 2); st2(0)
    ref = [9]
    def btr(j, regs):
        r = 3 if j < 4 else (7 if j < 8 else 9)
        out = []
        if r != ref[0]:
            d = ((ref[0] - r) * 16384) & 0xffffffff
            out.append("\n".join(f"v_add_u32 v{2+nt}, 0x{d:x}, v{2+nt}" for nt in range(2))); ref[0] = r
        for f in range(4):
            out.append("\n".join(f"ds_read_b64_tr_b16 {vr(regs[f]+2*e,2)}, v{2+(f&1)} offset:{(r-j)*16384 + (f>>1)*2048 + e*512}" for e in range(2)))
        return out
    gq = opt.get("gq", 2)
    if opt.get("lp", 2) != 2: a(f"s_setprio {opt.get('lp')}")
    bdma(E + 7, 7)
    stage_upto(5); st2(1)
    def fpause():
        if opt.get("sb", 1): a(f"s_cmp_eq_u32 {sT}, 0"); a("s_cbranch_scc1 KL_NOSB"); a("s_barrier"); a.label("KL_NOSB")
    if opt.get("sbn", 1) == 1: fpause()
    st2(2)
    bdma(E + 8, 8)
    if opt.get("sbn", 1) == 2: fpause()
    a(f"s_cmp_eq_u32 {sW}, 0"); a("s_cbranch_scc1 KL_SK9")
    bdma(E + 9, 9, False)
    a.label("KL_SK9"); st2(3)
    def apause(t):
        if opt.get("sba", 0) == t:
            a(f"s_cmp_lg_u32 {sT}, 0"); a("s_cbranch_scc1 KL_NOSA"); a("s_barrier"); a.label("KL_NOSA")
    apause(9)
    tl = list(range(10, 19 - E))
    assert len(tl) >= 2
    freed = 0
    did_misc = False
    def misc():
        if gq == 1:
            a(f"s_cmp_lg_u32 {sT}, 0"); a("s_cbranch_scc1 KL_NOG1"); gate_loads(a, VL16); a.label("KL_NOG1")
        a(f"global_load_dwordx2 v[10:11], v{VZ}, s[{PDBG}:{PDBG+1}] sc1"); vm.append(("T", 0))
    for t in tl[:-2]:
        if t - 10 >= freed:
            a("s_waitcnt lgkmcnt(0)"); freed = staged
            stage_upto(staged + 2)
        if t == tl[max(0, len(tl) - 4)]: misc(); did_misc = True
        bdma(E + t, t - 10)
        apause(t)
        if t in (12, 14, 16): st2(4 + (t - 12) // 2)
    stage_upto(9)
    if not did_misc: misc()
    a(f"s_mov_b64 exec, s[{RR}:{RR+1}]")
    a(f"buffer_load_dwordx2 v[8:9], v57, {q(RWS)}, s68 offen sc1")
    a("s_mov_b64 exec, -1")
    a("s_waitcnt lgkmcnt(0)")
    a(f"s_cmp_eq_u32 {sW}, 0"); a("s_cbranch_scc1 KL_W0")
    bdma(0, tl[-2] - 10, False)
    a(f"s_cmp_eq_u32 {sW}, 3"); a("s_cbranch_scc1 KL_W1")
    bdma(0, tl[-1] - 10, False)
    a("s_waitcnt vmcnt(8)"); a("s_branch KL_W2")
    a.label("KL_W0"); a("s_waitcnt vmcnt(0)")
    a.label("KL_W1"); a("s_waitcnt vmcnt(4)")
    a.label("KL_W2")
    stamp(a, opt, 3); st2(7)
    tag_check(a, 10, VZ)
    a("v_mov_b32 v2, v62"); a("v_mov_b32 v3, v63")
    if gq < 2:
        a(f"s_cmp_lg_u32 {sT}, 0"); a("s_cbranch_scc1 KL_NOG")
        if gq == 0: gate_loads(a, VL16); a("s_waitcnt vmcnt(0)")
        gate_math(a, VL16)
        a.label("KL_NOG")
    a("v_lshrrev_b32 v7, 4, v0"); a("v_lshlrev_b32 v7, 4, v7")
    a(f"s_mov_b64 exec, s[{RR}:{RR+1}]")
    poll(a, 8, 57, "s68", f"s[{RR}:{RR+1}]", first_loaded=True)
    a("s_mov_b64 exec, -1")
    a("s_waitcnt lgkmcnt(0)")
    stamp(a, opt, 4)
    ref0 = ref[0]
    a(f"s_lshr_b32 s64, {sU}, 1"); a("s_lshl_b32 s64, s64, 7"); a(f"s_lshl_b32 s65, {sW}, 5"); a("s_add_u32 s64, s64, s65"); a(f"s_and_b32 s65, {sU}, 1"); a("s_add_u32 s64, s64, s65")
    a(f"s_cmp_eq_u32 {sW}, 0"); a("s_cbranch_scc1 KL_V16")
    a(f"s_cmp_eq_u32 {sW}, 3"); a("s_cbranch_scc1 KL_V18")
    def acc(tp, np_): return ACC + 16 * (2 * tp + np_)
    DM = opt.get("dmax", 12)
    WA = 80; RA_ = 88; OV = 92
    fill = [
        "s_lshl_b32 s64, s64, 10", f"s_lshl_b32 s65, {sCT}, 7", "s_add_u32 s70, s64, s65", "s_add_u32 s71, s70, 16384",
        f"s_sub_u32 s72, s79, {2*16384}", f"s_lshl_b32 s73, {sW}, 14", f"s_sub_u32 s73, {TOP-32768}, s73",
        "v_and_b32 v93, 15, v0", "v_lshrrev_b32 v94, 5, v0", "v_xor_b32 v94, v94, v93", "v_lshlrev_b32 v94, 4, v94",
        "v_lshlrev_b32 v95, 8, v93", "v_add_u32 v94, v94, v95", "v_bfe_u32 v95, v0, 4, 1", "v_lshlrev_b32 v95, 14, v95", "v_sub_u32 v94, v94, v95",
        f"v_add_u32 v{WA}, s72, v94"] + [f"v_xor_b32 v{WA+k}, {32*k}, v{WA}" for k in range(1, 8)] + [
        "v_lshrrev_b32 v93, 3, v0", "v_and_b32 v94, 7, v0", f"v_lshlrev_b32 v{OV}, 11, v93", "v_lshlrev_b32 v95, 4, v94", f"v_add_u32 v{OV}, v{OV}, v95",
        "v_lshlrev_b32 v95, 1, v94", "v_xor_b32 v95, v95, v93", "v_lshlrev_b32 v95, 4, v95", "v_lshlrev_b32 v93, 8, v93", "v_add_u32 v95, v95, v93",
        f"v_add_u32 v{RA_}, s73, v95", f"v_xor_b32 v{RA_+1}, 16, v{RA_}", f"v_xor_b32 v{RA_+2}, 128, v{RA_}", f"v_xor_b32 v{RA_+3}, 144, v{RA_}",
        "v_and_b32 v93, 8, v0", "v_cmp_ne_u32 s[74:75], 0, v93"]
    for nst, lab in ((19, None), (18, "KL_V18"), (16, "KL_V16")):
        a(".p2align 3")
        if lab: a.label(lab)
        free = list(range(BR + 16 * NBR, 256, 4)); ref[0] = ref0
        pend = [("A", i, b) for i in range(nst) for b in range(4)]
        gi = 4 * opt.get("gstep", 10)
        pend[gi:gi] = [("G", 0, 0), ("G", 1, 0)]
        loc = {}; issued = []; cur_soff = [None]
        done_loads = [0]
        fl = list(fill)
        def issue():
            if not pend: return False
            if len(issued) - done_loads[0] >= DM: return False
            if pend[0][0] == "A" and not free: return False
            k = pend.pop(0); issued.append(k)
            if k[0] == "A":
                r = free.pop(0); loc[k] = r
                if cur_soff[0] != k[1] and k[1]:
                    a("s_add_u32 s77, s77, 4096"); a("s_cmp_ge_u32 s77, s101"); a("s_cselect_b32 s77, 0, s77"); cur_soff[0] = k[1]
                a(f"buffer_load_dwordx4 {vr(r,4)}, v{VL16}, {q(RA)}, s77 offen offset:{k[2]*1024} {opt.get('ald', 'sc1')}")
            else:
                a(f"buffer_load_dwordx4 {vr(72+4*k[1],4)}, v7, {q(RWS)}, s69 offen offset:{k[1]*64} sc1")
            return True
        while issue(): pass
        bl = {}
        ldsq = []
        for i in range(nst):
            Bv = [BR + 16 * i + 4 * n for n in range(4)] if i < NBR else bl[i]
            needb = NBR <= i + 2 < nst
            if needb:
                tt = i + 2 - E; md = 10 if nst > 16 else 9
                tr = btr(tt if tt < md else tt - md, Bv)
                if len(tr) == 5: a(tr.pop(0))
                bl[i + 2] = Bv
            if i == nst - 1:
                assert not pend and not fl
                a("s_waitcnt vmcnt(0) lgkmcnt(0)"); a("s_nop 0")
                L_ = []
                for tp in range(2):
                    for np_ in range(2):
                        for half in range(2):
                            L_.append(f"v_mfma_f32_32x32x16_bf16 {vr(acc(tp,np_),16)}, {vr(Bv[2*half+np_],4)}, {vr(loc[('A', i, 2*half+tp)],4)}, {vr(acc(tp,np_),16)}")
                L_ += ["v_cndmask_b32 v96, v72, v73, s[74:75]", "v_cndmask_b32 v98, v76, v77, s[74:75]", "v_sub_f32 v100, 1.0, v96", "v_sub_f32 v101, 1.0, v98",
                       "v_cvt_pk_bf16_f32 v100, v100, v101", "v_and_b32 v102, 0xffff0000, v100", "v_lshlrev_b32 v100, 16, v100",
                       f"v_cmp_eq_u64 vcc, s[{TAG}:{TAG+1}], v[74:75]", f"v_cmp_eq_u64 s[64:65], s[{TAG}:{TAG+1}], v[78:79]"]
                for tp in range(2):
                    for np_ in range(2):
                        for j in range(4):
                            L_.append(f"ds_write_b128 v{WA+4*np_+j}, {vr(acc(tp,np_)+4*j,4)} offset:{(1-tp)*32768}")
                M_ = L_[:8]; V_ = L_[8:17]; W_ = L_[17:]
                seq = [M_[0], M_[1], M_[2]] + V_[:5] + [M_[3]] + V_[5:] + [M_[4]] + W_[0:4] + [M_[5], "s_nop 1"] + W_[4:6] + [M_[6]] + W_[6:8] + [M_[7], "s_nop 3"] + W_[8:12] + ["s_nop 3"] + W_[12:]
                for x in seq: a(x)
                break
            for half in range(2):
                for tp in range(2):
                    blk = 2 * half + tp
                    idx = issued.index(("A", i, blk)); done_loads[0] = idx + 1
                    w = f"s_waitcnt vmcnt({len(issued) - idx - 1})"
                    if i >= NBR and tp == 0:
                        li = ldsq.index((i, 2 * half + 1))
                        w += f" lgkmcnt({min(15, 2 * (len(ldsq) - li - 1))})"
                    a(w); a("s_nop 0")
                    A = loc[("A", i, blk)]
                    for np_ in range(2):
                        c = vr(acc(tp, np_), 16) if (i > 0 or half > 0) else "0"
                        f = 2 * half + np_
                        a(f"v_mfma_f32_32x32x16_bf16 {vr(acc(tp,np_),16)}, {vr(Bv[f],4)}, {vr(A,4)}, {c}")
                        if np_ == 1: free.append(A)
                        if tp == 1:
                            if needb: a(tr[f]); ldsq.append((i + 2, f))
                            elif i >= 2: free.append(Bv[f])
                        got = issue()
                        if i >= 2 and fl and not got:
                            for _ in range(min(3, len(fl))): a(fl.pop(0))
                            a(".p2align 3")
        if nst != 16: a("s_branch KL_FIN")
    a.label("KL_FIN")
    stamp(a, opt, 5)
    L = newlab("GL"); D = newlab("GD")
    a("s_and_b64 s[64:65], s[64:65], vcc"); a("s_andn2_b64 s[64:65], exec, s[64:65]"); a(f"s_cbranch_scc0 {D}")
    a("s_mov_b32 s66, 0x40000")
    a.label(L)
    a("s_sleep 1")
    a(f"buffer_load_dwordx4 v[72:75], v7, {q(RWS)}, s69 offen sc1"); a(f"buffer_load_dwordx4 v[76:79], v7, {q(RWS)}, s69 offen offset:64 sc1")
    a("s_waitcnt vmcnt(0)")
    for x in ["v_cndmask_b32 v96, v72, v73, s[74:75]", "v_cndmask_b32 v98, v76, v77, s[74:75]", "v_sub_f32 v100, 1.0, v96", "v_sub_f32 v101, 1.0, v98",
              "v_cvt_pk_bf16_f32 v100, v100, v101", "v_and_b32 v102, 0xffff0000, v100", "v_lshlrev_b32 v100, 16, v100",
              f"v_cmp_eq_u64 vcc, s[{TAG}:{TAG+1}], v[74:75]", f"v_cmp_eq_u64 s[64:65], s[{TAG}:{TAG+1}], v[78:79]", "s_nop 0"]: a(x)
    a("s_and_b64 s[64:65], s[64:65], vcc"); a("s_andn2_b64 s[64:65], exec, s[64:65]"); a(f"s_cbranch_scc0 {D}")
    a("s_sub_u32 s66, s66, 1"); a("s_cmp_lg_u32 s66, 0"); a(f"s_cbranch_scc1 {L}")
    a.label(D)
    a("s_waitcnt lgkmcnt(0)"); a("s_barrier"); stamp(a, opt, 6, True)
    T = 104
    def P(h, src): return T + 32 * h + 8 * src
    for h in range(2):
        for src in (0, 1, 2, 3):
            for e in range(2):
                off = (3 - src) * 4096 + h * 2048 + (16384 if src else 0)
                a(f"ds_read_b128 {vr(P(h,src)+4*e,4)}, v{RA_+2*h+e} offset:{off}")
    for h in range(2):
        a(f"s_waitcnt lgkmcnt({8*(1-h)+6})")
        for i in range(0, 8, 2): a(f"v_pk_mul_f32 {vr(P(h,0)+i,2)}, {vr(P(h,0)+i,2)}, {vr(96+2*h,2)} op_sel_hi:[1,0]")
        a(f"s_waitcnt lgkmcnt({8*(1-h)+2})")
        for i in range(0, 8, 2): a(f"v_pk_add_f32 {vr(P(h,1)+i,2)}, {vr(P(h,1)+i,2)}, {vr(P(h,2)+i,2)}")
        a(f"s_waitcnt lgkmcnt({8*(1-h)})")
        for i in range(0, 8, 2): a(f"v_pk_add_f32 {vr(P(h,1)+i,2)}, {vr(P(h,1)+i,2)}, {vr(P(h,3)+i,2)}")
        for i in range(0, 8, 2): a(f"v_pk_fma_f32 {vr(P(h,0)+i,2)}, {vr(P(h,1)+i,2)}, {vr(100+2*h,2)}, {vr(P(h,0)+i,2)} op_sel_hi:[1,0,1]")
        for i in range(4): a(f"v_cvt_pk_bf16_f32 v{P(h,2)+i}, v{P(h,0)+2*i}, v{P(h,0)+2*i+1}")
        a(f"buffer_store_dwordx4 {vr(P(h,2),4)}, v{OV}, {q(RAUX)}, s{70+h} offen {opt.get('ost', '')}")
    stamp(a, opt, 7)
    if so.get("stamps"): a(f"s_add_u32 s100, {sW}, 40")
    if so.get("stamps"): a(f"s_lshl_b32 s64, {sT}, 2"); a("s_add_u32 s100, s100, s64")
    stamp_end(a, so, "s100")

def generate(opt):
    a = Asm()
    post = opt.get("post")
    if post is None:
        a(f"; @launch grid=(256,1,1) block=(512,1,1) lds={LDS_BYTES}")
    else:
        a(f"; @launch kernel={NAME}_kernel grid=(256,1,1) block=(512,1,1) lds={LDS_BYTES}")
        a(f"; @launch kernel=k3_kernel grid=(1,1,1) block=(64,1,1) lds=0")
    a('.amdgcn_target "amdgcn-amd-amdhsa--gfx950"'); a(".text")
    gen(a, opt)
    if post is not None:
        wg, wv, idx, rf, sh = [int(x) for x in post.split(",")]
        a(".globl k3_kernel"); a(".p2align 8"); a(".type k3_kernel,@function"); a.label("k3_kernel")
        a("s_load_dwordx2 s[8:9], s[0:1], 72"); a("s_waitcnt lgkmcnt(0)")
        a(f"s_add_u32 s8, s8, {STAMP_OFF}"); a("s_addc_u32 s9, s9, 0")
        off = (wg * 8 + wv) * 64
        a("s_load_dword s4, s[8:9], 0"); a(f"s_load_dword s12, s[8:9], {off + 4*idx}"); a(f"s_load_dword s13, s[8:9], {off + 4*rf}"); a("s_memrealtime s[10:11]"); a("s_waitcnt lgkmcnt(0)")
        a("s_sub_u32 s12, s12, s13")
        a(f"s_lshr_b32 s12, s12, {sh}") if sh >= 0 else a(f"s_lshl_b32 s12, s12, {-sh}")
        a("s_min_u32 s12, s12, 20000"); a("s_add_u32 s12, s12, 6000")
        a.label("K3_L"); a("s_memrealtime s[6:7]"); a("s_waitcnt lgkmcnt(0)")
        a("s_sub_u32 s7, s6, s10"); a("s_cmp_gt_u32 s7, 30000"); a("s_cbranch_scc1 K3_E")
        a("s_sub_u32 s6, s6, s4"); a("s_cmp_lt_u32 s6, s12"); a("s_cbranch_scc1 K3_L")
        a.label("K3_E"); a("s_endpgm")
    a('.section .rodata,"a"'); a(".p2align 6")
    a(f".amdhsa_kernel {NAME}_kernel")
    a("  .amdhsa_next_free_vgpr 256"); a("  .amdhsa_next_free_sgpr 102"); a("  .amdhsa_accum_offset 256")
    a("  .amdhsa_group_segment_fixed_size 0"); a("  .amdhsa_kernarg_size 80"); a("  .amdhsa_user_sgpr_count 2")
    a("  .amdhsa_user_sgpr_kernarg_segment_ptr 1"); a("  .amdhsa_system_sgpr_workgroup_id_x 1"); a(".end_amdhsa_kernel")
    if post is not None:
        a(".p2align 6"); a(".amdhsa_kernel k3_kernel")
        a("  .amdhsa_next_free_vgpr 8"); a("  .amdhsa_next_free_sgpr 102"); a("  .amdhsa_accum_offset 8")
        a("  .amdhsa_group_segment_fixed_size 0"); a("  .amdhsa_kernarg_size 80"); a("  .amdhsa_user_sgpr_count 2")
        a("  .amdhsa_user_sgpr_kernarg_segment_ptr 1"); a("  .amdhsa_system_sgpr_workgroup_id_x 1"); a(".end_amdhsa_kernel")
    errs = check(a.lines)
    for e in errs: print(e, file=sys.stderr)
    assert not errs
    return a.text()

if __name__ == "__main__":
    opt = {}
    for kv in sys.argv[2:]:
        k, v = kv.split("=")
        try: v = int(v)
        except: pass
        opt[k] = v
    open(sys.argv[1], "w").write(generate(opt))
```

```python
import sys, struct
from asmlib import *

NAME = "gated_mix__sliding_local_dilated__dense_activation_relu__prompt"
A2_OFF = 0
W2_OFF = 0xA00000
G_OFF = 0xD00000
FW_OFF = 0xD10000
FA_OFF = 0xD20000
WS_USED = 0xD80000
FSTR = 1152
STAMP_OFF = 128 << 20
SLOT = 45056
XOFF, WOFF, EOFF = 0, 16384, 40960
SCR = 3 * SLOT
LDS_BYTES = 163840
TOP = LDS_BYTES
def slot_of(s): return ((7 - s) % 3) * SLOT
BIG = 0xF149F2CA
LOG2E = 1.4426950408889634
KS0 = [0, 16, 35, 54]; NST = [16, 19, 19, 18]
NBR = 9
BL_BASE = [0, 28672, 69632, 110592]
PX, PWQKV, PWO, PW1, PW2, PGATE, POUT, PDBG, PWS = 4, 6, 8, 12, 14, 16, 18, 20, 22
sB, sT, sG, sW, sU, sCT, TAG = "s24", "s25", "s26", "s27", "s28", "s29", 30
RX, RW, RE, RWS, RR, RAUX, RA, RB = 32, 36, 40, 44, 48, 52, 56, 60

def f32bits(x): return struct.unpack("<I", struct.pack("<f", x))[0]
def q(r): return f"s[{r}:{r+3}]"

def srd(a, d, base, size, add=0):
    if add == 0:
        a(f"s_mov_b32 s{d}, s{base}"); a(f"s_mov_b32 s{d+1}, s{base+1}")
    else:
        a(f"s_add_u32 s{d}, s{base}, {add}"); a(f"s_addc_u32 s{d+1}, s{base+1}, 0")
    a(f"s_mov_b32 s{d+2}, {size}"); a(f"s_mov_b32 s{d+3}, 0x20000")

def csel(a, d, x, y):
    a(f"s_mov_b32 {d}, {y}"); a(f"s_cselect_b32 {d}, {x}, {d}")

def spread(a, mf, other, last=4):
    n = len(mf) - last; other = list(other); k = 0
    for i, m in enumerate(mf):
        a(m)
        while k < len(other) and k * n <= i * len(other): a(other[k]); k += 1
    while k < len(other): a(other[k]); k += 1

def mix(xs, ws):
    out = []; i = j = 0
    while i < len(xs) or j < len(ws):
        if j >= len(ws) or (i < len(xs) and i * len(ws) <= j * len(xs)): out.append(xs[i]); i += 1
        else: out.append(ws[j]); j += 1
    return out

def interleave(a, mf, other, start=0, per=1):
    other = list(other)
    for i, m in enumerate(mf):
        a(m)
        if i >= start:
            for _ in range(per):
                if other: a(other.pop(0))
    for o in other: a(o)

def stamp_begin(a, opt):
    if opt.get("stamps"):
        a("s_memrealtime s[80:81]"); a("s_memtime s[82:83]")
        for k in range(8): a(f"s_mov_b32 s{84+2*k}, 0")

def stamp(a, opt, k, wait=False):
    if opt.get("stamps"):
        a(f"s_memtime s[{84+2*k}:{85+2*k}]")
        if wait: a("s_waitcnt lgkmcnt(0)")

def stamp_end(a, opt, tag):
    if not opt.get("stamps"): return
    a("s_waitcnt vmcnt(0) lgkmcnt(0)")
    a("s_memrealtime s[64:65]"); a("s_memtime s[66:67]")
    a("s_waitcnt lgkmcnt(0)")
    srd(a, RAUX, PWS, 1 << 20, STAMP_OFF)
    a("s_lshl_b32 s68, s2, 3"); a("s_add_u32 s68, s68, s3"); a("s_lshl_b32 s68, s68, 6")
    a("s_getreg_b32 s69, hwreg(HW_REG_XCC_ID)")
    a(f"s_mov_b32 s65, {tag}")
    for i, s in enumerate((80, 64, 82, 84, 86, 88, 90, 92, 94, 96, 98, 66, 69, 65, 65, 65)):
        a(f"v_mov_b32 v{8+i}, s{s}")
    a("v_mov_b32 v6, s68")
    a("s_mov_b64 exec, 1")
    for k in range(4):
        a(f"buffer_store_dwordx4 v[{8+4*k}:{11+4*k}], v6, {q(RAUX)}, 0 offen offset:{16*k}")
    a("s_waitcnt vmcnt(0)")

_lab = [0]
def newlab(p):
    _lab[0] += 1; return f"{p}_{_lab[0]}"

def tag_check(a, vt, vz):
    L = newlab("TAGL"); D = newlab("TAGD")
    a("s_mov_b32 s64, 0x40000")
    a.label(L)
    a(f"v_readfirstlane_b32 s{TAG}, v{vt}"); a(f"v_readfirstlane_b32 s{TAG+1}, v{vt+1}"); a("s_nop 0")
    a(f"s_cmp_lg_u32 s{TAG}, 0"); a(f"s_cbranch_scc1 {D}")
    a("s_sub_u32 s64, s64, 1"); a("s_cmp_eq_u32 s64, 0"); a(f"s_cbranch_scc1 {D}")
    a("s_sleep 2")
    a(f"global_load_dwordx2 v[{vt}:{vt+1}], v{vz}, s[{PDBG}:{PDBG+1}] sc1"); a("s_waitcnt vmcnt(0)")
    a(f"s_branch {L}")
    a.label(D)

PSL = [1]
def poll(a, vt, voff, soff, need, first_loaded=False):
    L = newlab("POLL"); C = newlab("POLC"); D = newlab("POLD")
    a("s_mov_b32 s66, 0x40000")
    if first_loaded: a(f"s_branch {C}")
    a.label(L)
    a(f"buffer_load_dwordx2 v[{vt}:{vt+1}], v{voff}, {q(RWS)}, {soff} offen sc1")
    a("s_waitcnt vmcnt(0)")
    a.label(C)
    a(f"v_cmp_eq_u64 vcc, s[{TAG}:{TAG+1}], v[{vt}:{vt+1}]"); a("s_nop 0")
    a(f"s_andn2_b64 s[64:65], {need}, vcc"); a(f"s_cbranch_scc0 {D}")
    a("s_sub_u32 s66, s66, 1"); a("s_cmp_eq_u32 s66, 0"); a(f"s_cbranch_scc1 {D}")
    a(f"s_sleep {PSL[0]}"); a(f"s_branch {L}")
    a.label(D)

def gen(a, opt):
    global FSTR
    PSL[0] = opt.get("psl", 1); FSTR = opt.get("fstr", 1152)
    kn = NAME + "_kernel"
    a(f".globl {kn}"); a(".p2align 8"); a(f".type {kn},@function"); a.label(kn)
    a("s_cmp_ge_u32 s2, 256"); a("s_cbranch_scc1 K_END")
    a("s_load_dwordx16 s[4:19], s[0:1], 0")
    a("s_load_dwordx4 s[20:23], s[0:1], 64")
    stamp_begin(a, opt)
    def decode():
        a("s_and_b32 s64, s2, 7"); a("s_lshr_b32 s65, s2, 3")
        a("s_lshr_b32 s66, s65, 3")
        a(f"s_and_b32 {sT}, s66, 1")
        a("s_and_b32 s67, s64, 3"); a(f"s_lshl_b32 {sG}, s67, 1"); a("s_lshr_b32 s67, s66, 1"); a(f"s_add_u32 {sG}, {sG}, s67")
    def decode2():
        a("s_and_b32 s64, s2, 1"); a(f"s_lshl_b32 {sU}, {sB}, 1"); a(f"s_add_u32 {sU}, {sU}, s64")
        a("s_and_b32 s64, s2, 2"); a("s_lshl_b32 s64, s64, 1"); a("s_lshr_b32 s65, s2, 6"); a(f"s_add_u32 {sCT}, s64, s65")
    opt["_decode"] = decode; opt["_decode2"] = decode2
    def cpre():
        a.label("K_CPRE")
        decode()
        if opt.get("duty", 1) == 3:
            Lx = newlab("DU"); Lc = newlab("DU"); Ld = newlab("DU")
            dl_ = opt.get("dlead", 1); dsh = opt.get("dsh", 0)
            a("s_lshr_b32 s64, s2, 7"); a("s_lshl_b32 s64, s64, 6"); a("s_and_b32 s65, s2, 63"); a("s_add_u32 s64, s64, s65")
            a("s_lshl_b32 s64, s64, 2"); a(f"s_add_u32 s64, s64, {sW}")
            a("v_lshlrev_b32 v254, 7, v0"); a("v_lshlrev_b32 v253, 7, v0")
            a(f"s_mov_b32 s{RR+3}, 0x20000"); a(f"s_mov_b32 s{RA+3}, 0x20000")
            a("s_cmp_ge_u32 s64, 144"); a("s_cselect_b32 s63, 1, 0"); a(f"s_add_u32 s63, s63, {opt.get('dbs', 2)}")
            a("s_cmp_ge_u32 s64, 288"); a("s_cselect_b32 s63, 255, s63")
            a("s_mul_i32 s65, s64, 781"); a("s_lshr_b32 s65, s65, 16"); a("s_mul_i32 s66, s65, 84"); a("s_sub_u32 s66, s64, s66")
            a(f"s_max_u32 s101, s65, {dl_}"); a(f"s_sub_u32 s101, s101, {dl_}")
            if dsh: a(f"s_add_u32 s101, s101, {(1 << dsh) - 1}"); a(f"s_lshr_b32 s101, s101, {dsh}")
            a("s_cmp_ge_u32 s64, 504"); a("s_cselect_b32 s101, 255, s101")
            a(f"s_cmp_lg_u32 {sT}, 0"); a("s_cselect_b32 s101, 255, s101"); a("s_cselect_b32 s63, 255, s63")
            a("s_add_u32 s65, s65, 2")
            a("s_waitcnt lgkmcnt(0)")
            a("s_cmp_lt_u32 s64, 64")
            a(f"s_cselect_b32 s{RA}, s{PWO}, s{PW2}"); a(f"s_cselect_b32 s{RA+1}, s{PWO+1}, s{PW2+1}"); csel(a, f"s{RA+2}", 512*1024, 1792*1024)
            a("s_cselect_b32 s67, 0, 64"); a("s_sub_u32 s62, s64, s67"); a("s_lshl_b32 s62, s62, 13")
            a("s_cmp_lt_u32 s66, 52"); a(f"s_cbranch_scc1 {Lx}")
            a(f"s_mov_b32 s{RR}, s{PX}"); a(f"s_mov_b32 s{RR+1}, s{PX+1}"); a(f"s_mov_b32 s{RR+2}, {2048*1024}")
            a("v_lshlrev_b32 v254, 10, v0")
            a("s_sub_u32 s66, s66, 52"); a("s_lshl_b32 s100, s66, 16"); a("s_lshl_b32 s65, s65, 7"); a("s_add_u32 s100, s100, s65")
            a(f"s_branch {Lc}")
            a.label(Lx)
            a("s_cmp_lt_u32 s66, 24")
            a(f"s_cselect_b32 s{RR}, s{PWQKV}, s{PW1}"); a(f"s_cselect_b32 s{RR+1}, s{PWQKV+1}, s{PW1+1}"); csel(a, f"s{RR+2}", 512*3072, 512*3584)
            a("s_cselect_b32 s64, 24, 28"); a("s_cselect_b32 s67, 0, 24"); a("s_mul_i32 s65, s65, s64"); a("s_add_u32 s66, s66, s65"); a("s_sub_u32 s66, s66, s67"); a("s_lshl_b32 s100, s66, 13")
            a.label(Lc)
            a("s_cmp_lg_u32 s101, 0"); a(f"s_cbranch_scc1 {Ld}"); a(f"buffer_load_dword v255, v254, {q(RR)}, s100 offen"); a.label(Ld)
        elif opt.get("duty", 1):
            Lb = newlab("DU"); Lc = newlab("DU"); Ld = newlab("DU")
            a("s_waitcnt lgkmcnt(0)")
            a("v_lshlrev_b32 v254, 7, v0")
            a(f"s_mov_b32 s{RR+3}, 0x20000")
            if opt.get("duty", 1) == 2:
                a("s_lshr_b32 s64, s2, 7"); a("s_lshl_b32 s64, s64, 6"); a("s_and_b32 s65, s2, 63"); a("s_add_u32 s64, s64, s65")
                a(f"s_cmp_eq_u32 {sT}, 0"); a("s_cselect_b32 s64, s64, 128")
                a(f"s_branch {Lb}X")
            a("s_cmp_ge_u32 s2, 156"); a(f"s_cbranch_scc1 {Lb}")
            a("s_lshl_b32 s64, s2, 1"); a(f"s_and_b32 s65, {sW}, 1"); a("s_add_u32 s64, s64, s65")
            a("s_mul_i32 s65, s64, 1261"); a("s_lshr_b32 s65, s65, 16"); a("s_mul_i32 s66, s65, 52"); a("s_sub_u32 s64, s64, s66")
            a(f"s_max_u32 s101, s65, {opt.get('dlead', 1)}"); a(f"s_sub_u32 s101, s101, {opt.get('dlead', 1)}")
            a("s_add_u32 s65, s65, 2")
            if opt.get("xduty", 1):
                Le = newlab("DU")
                a(f"s_cmp_lt_u32 {sW}, 2"); a(f"s_cbranch_scc1 {Le}")
                a(f"s_mov_b32 s{RR}, s{PX}"); a(f"s_mov_b32 s{RR+1}, s{PX+1}"); a(f"s_mov_b32 s{RR+2}, {2048*1024}")
                a("v_lshlrev_b32 v254, 10, v0")
                a("s_lshl_b32 s100, s64, 16"); a("s_lshl_b32 s65, s65, 7"); a("s_add_u32 s100, s100, s65")
                a("s_cmp_ge_u32 s64, 32"); a("s_cselect_b32 s101, 255, s101")
                a(f"s_branch {Lc}")
                a.label(Le)
            a("s_cmp_lt_u32 s64, 24")
            a(f"s_cselect_b32 s{RR}, s{PWQKV}, s{PW1}"); a(f"s_cselect_b32 s{RR+1}, s{PWQKV+1}, s{PW1+1}"); csel(a, f"s{RR+2}", 512*3072, 512*3584)
            a("s_cselect_b32 s66, 24, 28"); a("s_cselect_b32 s67, 0, 24"); a("s_mul_i32 s65, s65, s66"); a("s_add_u32 s64, s64, s65"); a("s_sub_u32 s64, s64, s67"); a("s_lshl_b32 s100, s64, 13")
            a(f"s_cmp_ge_u32 {sW}, 2"); a("s_cselect_b32 s101, 255, s101")
            a(f"s_branch {Lc}")
            a.label(Lb)
            a("s_sub_u32 s64, s2, 156")
            a.label(Lb + "X")
            a("s_mul_i32 s64, s64, 3"); a(f"s_add_u32 s64, s64, {sW}")
            a("s_mul_i32 s101, s64, 911"); a(f"s_lshr_b32 s101, s101, {16 + opt.get('dbw', 1)}"); a(f"s_add_u32 s101, s101, {opt.get('dbs', 0)}")
            a(f"s_cmp_ge_u32 {sW}, 3"); a("s_cselect_b32 s101, 255, s101"); a("s_cmp_ge_u32 s64, 288"); a("s_cselect_b32 s101, 255, s101")
            a("s_cmp_lt_u32 s64, 64")
            a(f"s_cselect_b32 s{RR}, s{PWO}, s{PW2}"); a(f"s_cselect_b32 s{RR+1}, s{PWO+1}, s{PW2+1}"); csel(a, f"s{RR+2}", 512*1024, 1792*1024)
            a("s_cselect_b32 s67, 0, 64"); a("s_sub_u32 s64, s64, s67"); a("s_lshl_b32 s100, s64, 13")
            a.label(Lc)
            a("s_cmp_lg_u32 s101, 0"); a(f"s_cbranch_scc1 {Ld}"); a(f"buffer_load_dword v255, v254, {q(RR)}, s100 offen"); a.label(Ld)
        a("s_branch K_COMPUTE")
    opt["_cpre"] = cpre
    a("v_lshrrev_b32 v1, 6, v0"); a("v_and_b32 v0, 63, v0")
    a("v_readfirstlane_b32 s3, v1")
    a("s_and_b32 s64, s2, 4"); a("s_lshr_b32 s65, s2, 3"); a("s_lshl_b32 s64, s64, 1"); a("s_and_b32 s65, s65, 7"); a(f"s_add_u32 {sB}, s64, s65")
    a(f"s_and_b32 {sW}, s3, 3"); a("s_xor_b32 s3, s3, 4")
    a("s_cmp_lt_u32 s3, 4"); a("s_cbranch_scc1 K_HOP")
    gen_loader(a, opt)
    a.label("K_END"); a("s_endpgm")
    a.label("K_COMPUTE")
    a(f"s_cmp_eq_u32 {sT}, 0"); a("s_cbranch_scc1 K_ATTN")
    gen_ffn(a, opt)
    gen_attn(a, opt)
    a.label("K_CODE_END")

def compute_common_setup(a, opt):
    L = newlab("CS")
    a("v_mov_b32 v1, 0")
    a("s_or_b32 s64, s2, s3"); a("s_cmp_lg_u32 s64, 0"); a(f"s_cbranch_scc1 {L}")
    a("s_memrealtime s[64:65]"); a("s_waitcnt lgkmcnt(0)")
    a("s_or_b32 s64, s64, 1"); a("s_xor_b32 s65, s65, 0x5bd1e995")
    a("v_mov_b32 v10, s64"); a("v_mov_b32 v11, s65")
    a("s_mov_b64 exec, 1")
    a(f"global_store_dwordx2 v1, v[10:11], s[{PDBG}:{PDBG+1}] sc1")
    a("s_mov_b64 exec, -1")
    a.label(L)
    if opt.get("cpf", 2) == 1:
        L = newlab("CS")
        a("s_cmp_ge_u32 s2, 8"); a(f"s_cbranch_scc1 {L}"); a("s_cmp_lg_u32 s3, 1"); a(f"s_cbranch_scc1 {L}")
        a("s_getpc_b64 s[64:65]")
        G = newlab("GP"); a.label(G)
        a(f"s_sub_u32 s64, s64, {G}-{NAME}_kernel"); a("s_subb_u32 s65, s65, 0")
        a("v_lshlrev_b32 v10, 7, v0")
        a(f"s_mov_b32 s66, K_CODE_END-{NAME}_kernel-4")
        for r in range(opt.get("cpfn", 4)):
            a("v_min_u32 v11, s66, v10"); a("global_load_dword v255, v11, s[64:65]"); a("v_add_u32 v10, 8192, v10")
        a.label(L)
    srd(a, RWS, PWS, WS_USED)
    if opt.get("tlb", 0):
        Lt = newlab("TLB")
        a(f"s_cmp_lg_u32 {sW}, 2"); a(f"s_cbranch_scc1 {Lt}")
        a("v_lshlrev_b32 v13, 21, v0"); a("s_mov_b64 exec, 0x7f")
        a(f"buffer_load_dword v12, v13, {q(RWS)}, 0 offen")
        a("s_mov_b64 exec, 1")
        for p in (PW2, PWO, POUT, PGATE, PDBG):
            a(f"global_load_dword v12, v1, s[{p}:{p+1}]")
        a("s_mov_b64 exec, -1")
        a.label(Lt)
    a(f"s_lshl_b32 s78, {sB}, 4"); a(f"s_lshl_b32 s64, {sT}, 3"); a("s_add_u32 s78, s78, s64"); a(f"s_add_u32 s78, s78, {sG}")
    a(f"s_mul_i32 s78, s78, {FSTR}"); a(f"s_add_u32 s78, s78, {FA_OFF}")

def compute_publish(a, opt, vt, nst):
    L = newlab("NOPUB")
    a("s_mov_b64 exec, 1")
    a(f"v_mov_b32 v12, {TOP-4096}"); a("v_mov_b32 v13, 1")
    a(f"s_waitcnt vmcnt({nst})")
    tag_check(a, vt, 1)
    a("s_waitcnt vmcnt(0)")
    stamp(a, opt, 6)
    a("ds_add_rtn_u32 v13, v12, v13"); a("s_waitcnt lgkmcnt(0)")
    a("v_cmp_eq_u32 vcc, 3, v13"); a("s_nop 0"); a(f"s_cbranch_vccz {L}")
    a(f"buffer_store_dwordx2 v[{vt}:{vt+1}], v1, {q(RWS)}, s78 offen sc1")
    a.label(L)

def gate_loads(a, VL16):
    a(f"s_lshl_b32 s64, {sB}, 7"); a(f"s_and_b32 s65, {sG}, 3"); a("s_lshl_b32 s65, s65, 5"); a("s_add_u32 s65, s65, s64")
    a(f"s_lshl_b32 s66, {sW}, 3"); a("s_add_u32 s65, s65, s66"); a(f"s_lshr_b32 s66, {sG}, 2"); a("s_add_u32 s65, s65, s66"); a("s_lshl_b32 s65, s65, 10")
    a(f"s_lshl_b32 s66, {sG}, 4"); a("s_add_u32 s64, s64, s66"); a(f"s_lshl_b32 s66, {sW}, 2"); a("s_add_u32 s64, s64, s66")
    a("s_lshl_b32 s78, s64, 3"); a(f"s_add_u32 s78, s78, {G_OFF}")
    a(f"global_load_dwordx4 v[32:35], v{VL16}, s[{PGATE}:{PGATE+1}]")
    a(f"buffer_load_dwordx4 v[16:19], v{VL16}, {q(RX)}, s65 offen"); a(f"buffer_load_dwordx4 v[20:23], v{VL16}, {q(RX)}, s65 offen offset:2048")
    a("s_add_u32 s65, s65, 4096")
    a(f"buffer_load_dwordx4 v[24:27], v{VL16}, {q(RX)}, s65 offen"); a(f"buffer_load_dwordx4 v[28:31], v{VL16}, {q(RX)}, s65 offen offset:2048")
def gate_math(a, VL16):
    GU = 36; P = 44; R = 52
    for k in range(4):
        a(f"v_lshlrev_b32 v{GU+2*k}, 16, v{32+k}"); a(f"v_and_b32 v{GU+1+2*k}, 0xffff0000, v{32+k}")
    for row in range(4):
        xb = 16 + 4 * row
        for k in range(4):
            a(f"v_lshlrev_b32 v{P+2*k}, 16, v{xb+k}"); a(f"v_and_b32 v{P+2*k+1}, 0xffff0000, v{xb+k}")
        for i in range(0, 8, 2): a(f"v_pk_mul_f32 {vr(P+i,2)}, {vr(P+i,2)}, {vr(GU+i,2)}")
        for k in range(4): a(f"v_cvt_pk_bf16_f32 v{xb+k}, v{P+2*k}, v{P+2*k+1}")
        for k in range(4):
            a(f"v_lshlrev_b32 v{P+2*k}, 16, v{xb+k}"); a(f"v_and_b32 v{P+2*k+1}, 0xffff0000, v{xb+k}")
        a(f"v_pk_add_f32 {vr(P,2)}, {vr(P,2)}, {vr(P+4,2)}"); a(f"v_pk_add_f32 {vr(P+2,2)}, {vr(P+2,2)}, {vr(P+6,2)}")
        a(f"v_pk_add_f32 {vr(P,2)}, {vr(P,2)}, {vr(P+2,2)}")
        a(f"v_add_f32 v{R+row}, v{P}, v{P+1}")
    a.nop(1)
    for sh in (8, 4, 2, 1):
        for row in range(4): a(f"v_add_f32_dpp v{R+row}, v{R+row}, v{R+row} row_ror:{sh} row_mask:0xf bank_mask:0xf")
    for sw in ("v_permlane32_swap_b32", "v_permlane16_swap_b32"):
        for row in range(4): a(f"v_mov_b32 v{P+row}, v{R+row}")
        for row in range(4): a(f"{sw} v{R+row}, v{P+row}")
        for row in range(4): a(f"v_add_f32 v{R+row}, v{R+row}, v{P+row}")
    def rnd():
        for h in range(2):
            a(f"v_cvt_pk_bf16_f32 v{P+h}, v{R+2*h}, v{R+2*h+1}")
        for h in range(2):
            a(f"v_lshlrev_b32 v{R+2*h}, 16, v{P+h}"); a(f"v_and_b32 v{R+2*h+1}, 0xffff0000, v{P+h}")
    rnd()
    for row in range(4): a(f"v_mul_f32 v{R+row}, 0x{f32bits(-LOG2E):x}, v{R+row}")
    for row in range(4): a(f"v_exp_f32 v{R+row}, v{R+row}")
    for row in range(4): a(f"v_add_f32 v{R+row}, 1.0, v{R+row}")
    for row in range(4): a(f"v_rcp_f32 v{R+row}, v{R+row}")
    a.nop(1)
    rnd()
    a("v_cmp_eq_u32 vcc, 1, v0"); a(f"v_mov_b32 v{P+2}, s{TAG}"); a(f"v_mov_b32 v{P+3}, s{TAG+1}")
    a(f"v_cndmask_b32 v{P}, v{R}, v{R+2}, vcc"); a(f"v_cndmask_b32 v{P+1}, v{R+1}, v{R+3}, vcc")
    a("s_mov_b64 exec, 3")
    a(f"buffer_store_dwordx4 {vr(P,4)}, v{VL16}, {q(RWS)}, s78 offen sc1")
    a("s_mov_b64 exec, -1")

def cpad(a, opt, n):
    if opt.get("pads", 0): a(f"s_branch {n}_S"); a.label(n); a("s_branch K_CPRE"); a.label(n + "_S")

def mainloop(a, opt, pre, addr_regs, reads, mfmas):
    a("s_mov_b32 s70, 1"); a("s_mov_b32 s72, 0"); a(f"s_mov_b32 s73, {(-SLOT) & 0xffffffff}"); a(f"s_mov_b32 s79, {2*SLOT}")
    for r in addr_regs: a(f"v_add_u32 v{r}, {slot_of(0)}, v{r}")
    if opt.get("prio", 2) == 1: a("s_setprio 1")
    du = opt.get("duty", 1)
    if du == 3 and pre == "KF": du = 0
    dl = f"buffer_load_dword v255, v254, {q(RR)}, s100 offen"
    stamp(a, opt, 0)
    a("s_barrier")
    stamp(a, opt, 1)
    for r in reads(0, 0): a(r)
    a(".p2align 3")
    a.label(pre + "_LOOP")
    a("s_waitcnt lgkmcnt(0)")
    a("s_add_u32 s70, s70, 1")
    last = opt.get("last", 6)
    sal = ["s_cmp_eq_u32 s70, 3\ns_cselect_b32 s71, s79, s73", "s_cselect_b32 s70, 0, s70\ns_add_u32 s72, s72, 1"]
    if du: sal.append(f"s_cmp_eq_u32 s72, s101\ns_cbranch_scc1 {pre}_DUTY\n{pre}_DBACK:")
    if du == 3: sal.append(f"s_cmp_eq_u32 s72, s63\ns_cbranch_scc1 {pre}_DUTY2\n{pre}_DBACK2:")
    sal.append("s_cmp_eq_u32 s72, 8\ns_nop 0")
    mf = mfmas(0)
    spread(a, mf[:-last], reads(1, 1), 0)
    interleave(a, mf[-last:], sal)
    a("s_waitcnt lgkmcnt(0)")
    a("s_barrier")
    a(f"s_cbranch_scc1 {pre}_DONE"); a("s_nop 0")
    for _ in range(opt.get("slow", 0)): a("s_nop 15"); a("s_nop 15")
    adv = [f"v_add_u32 v{r}, s71, v{r}" for r in addr_regs]
    if len(adv) % 2: adv.append("s_nop 0")
    adv = [adv[i] + "\n" + adv[i+1] for i in range(0, len(adv), 2)]
    mf = mfmas(1)
    interleave(a, mf[:len(adv)], adv)
    spread(a, mf[len(adv):], reads(0, 0), opt.get("last2", 2))
    a(f"s_branch {pre}_LOOP")
    if du:
        a.label(pre + "_DUTY"); a(dl); a(f"s_branch {pre}_DBACK")
    if du == 3:
        a.label(pre + "_DUTY2"); a(f"buffer_load_dword v255, v253, {q(RA)}, s62 offen"); a(f"s_branch {pre}_DBACK2")
    a(".p2align 3")
    a.label(pre + "_DONE")
    if opt.get("prio", 2) == 2: a("s_setprio 3"); a("s_nop 0")
    stamp(a, opt, 2)

def gen_ffn(a, opt):
    ACC = 16; FR = 128
    def acc(t, n): return ACC + 4 * (t * 7 + n)
    def xf(s, t): return FR + 44 * s + 4 * t
    def wf(s, n): return FR + 44 * s + 16 + 4 * n
    XA = [2, 3]; WA = [4, 5, 6, 7]; SA = 8
    cpad(a, opt, "KPF_0")
    a(f"s_lshr_b32 s68, {sW}, 1")
    a(f"s_and_b32 s69, {sW}, 1")
    a("v_and_b32 v10, 15, v0"); a("v_lshrrev_b32 v11, 4, v0")
    a("v_lshrrev_b32 v12, 1, v10"); a("v_xor_b32 v12, v12, v11"); a("v_lshlrev_b32 v12, 4, v12")
    a("v_lshlrev_b32 v13, 7, v10"); a("v_add_u32 v12, v12, v13")
    a("s_lshl_b32 s64, s68, 13"); a(f"v_add_u32 v{XA[0]}, s64, v12"); a(f"v_xor_b32 v{XA[1]}, 64, v{XA[0]}")
    a("v_bfe_u32 v12, v0, 2, 2")
    a("v_lshlrev_b32 v13, 3, v11"); a("v_add_u32 v13, v13, v12")
    a("v_lshrrev_b32 v14, 1, v12"); a("v_and_b32 v15, 1, v11"); a("v_lshlrev_b32 v9, 1, v15"); a("v_or_b32 v14, v14, v9")
    a("v_and_b32 v9, 3, v0"); a("v_lshlrev_b32 v9, 3, v9")
    a("v_lshlrev_b32 v12, 7, v13"); a("v_add_u32 v12, v12, v9")
    for j in range(4):
        a("s_mul_i32 s64, s69, 6"); a(f"s_add_u32 s64, s64, {j}")
        a("s_and_b32 s65, s64, 3"); a("s_lshr_b32 s64, s64, 2"); a("s_lshl_b32 s64, s64, 13"); a(f"s_add_u32 s64, s64, {WOFF}")
        a(f"v_xor_b32 v{WA[j]}, s65, v14"); a(f"v_lshlrev_b32 v{WA[j]}, 5, v{WA[j]}"); a(f"v_add_u32 v{WA[j]}, v{WA[j]}, v12"); a(f"v_add_u32 v{WA[j]}, s64, v{WA[j]}")
    a(f"v_xor_b32 v{SA}, s69, v15"); a(f"v_lshlrev_b32 v{SA}, 5, v{SA}"); a(f"v_add_u32 v{SA}, v{SA}, v9")
    a("v_lshlrev_b32 v12, 6, v13"); a(f"v_add_u32 v{SA}, v{SA}, v12"); a(f"v_add_u32 v{SA}, {EOFF}, v{SA}")
    a(f"s_lshl_b32 s64, {sB}, 1"); a("s_add_u32 s64, s64, s68"); a("s_mul_i32 s64, s64, 72")
    a(f"s_mul_i32 s65, {sG}, 7"); a("s_add_u32 s64, s64, s65"); a("s_add_u32 s64, s64, 16")
    a(f"s_and_b32 s65, {sG}, 1")
    a("s_mul_i32 s66, s69, 3"); a("s_add_u32 s66, s66, s65"); a("s_add_u32 s66, s66, s64"); a("s_lshl_b32 s74, s66, 12")
    a("s_add_u32 s75, s74, 4096"); a("s_add_u32 s76, s74, 8192")
    a("s_cmp_eq_u32 s65, 0"); a("s_cselect_b32 s66, 6, 0"); a("s_add_u32 s66, s66, s64"); a("s_lshl_b32 s77, s66, 12")
    a("s_lshl_b32 s65, s69, 11"); a("s_add_u32 s77, s77, s65")
    a("v_lshlrev_b32 v9, 4, v0")
    a("s_waitcnt lgkmcnt(0)")
    compute_common_setup(a, opt)
    cpad(a, opt, "KPF_1")
    for i in range(112): a(f"v_mov_b32 v{ACC+i}, 0")
    cpad(a, opt, "KPF_2")
    def reads(kk, s):
        xs = [f"ds_read_b128 {vr(xf(s,t),4)}, v{XA[kk]} offset:{t*2048}" for t in range(4)]
        ws = []
        for n in range(6):
            for h in range(2):
                ws.append(f"ds_read_b64_tr_b16 {vr(wf(s,n)+2*h,2)}, v{WA[n&3]} offset:{(n>>2)*8192 + kk*4096 + h*512}")
        for h in range(2):
            ws.append(f"ds_read_b64_tr_b16 {vr(wf(s,6)+2*h,2)}, v{SA} offset:{kk*2048 + h*256}")
        return mix(xs, ws)
    def mfmas(s):
        return [f"v_mfma_f32_16x16x32_bf16 {vr(acc(t,n),4)}, {vr(wf(s,n),4)}, {vr(xf(s,t),4)}, {vr(acc(t,n),4)}" for n in range(7) for t in range(4)]
    mainloop(a, opt, "KF", XA + WA + [SA], reads, mfmas)
    E = [f"global_load_dwordx2 v[10:11], v1, s[{PDBG}:{PDBG+1}] sc1"] + mfmas(1)
    tmp = [FR + 4 * k for k in range(11)] + [216 + 4 * k for k in range(3)]
    k = 0
    for n in range(7):
        for tp in range(2):
            d = tmp[k]; k += 1
            for hh in range(2):
                sx = acc(2 * tp + hh, n)
                E.append(f"v_cvt_pk_bf16_f32 v{d+2*hh}, v{sx}, v{sx+1}"); E.append(f"v_cvt_pk_bf16_f32 v{d+2*hh+1}, v{sx+2}, v{sx+3}")
            for i in (0, 2, 1, 3): E.append(f"v_pk_max_i16 v{d+i}, v{d+i}, 0")
            E.append(f"v_permlane16_swap_b32 v{d}, v{d+2}"); E.append(f"v_permlane16_swap_b32 v{d+1}, v{d+3}")
            off = ((n & 1) * 2048 if n < 6 else 0) + tp * 1024
            E.append(f"buffer_store_dwordx4 {vr(d,4)}, v9, {q(RWS)}, s{74+(n>>1)} offen offset:{off} sc1")
    o, t = schedule(E, 40)
    print("ffn epilogue est", t, len(o), file=sys.stderr)
    wn = opt.get("wn", 0); ns = 0
    for x in o:
        if x.startswith("buffer_store") and opt.get("nostore"): continue
        if x.startswith("buffer_store"):
            if wn and ns >= wn: a(f"s_waitcnt vmcnt({wn-1})")
            ns += 1
        a(x)
    if opt.get("sb", 2) == 1: a("s_barrier")
    stamp(a, opt, 3)
    compute_publish(a, opt, 10, 14)
    if opt.get("sb", 2) == 2: a("s_barrier")
    stamp(a, opt, 5)
    stamp_end(a, opt, 1)
    a("s_endpgm")

def gen_attn(a, opt):
    a.label("K_ATTN")
    ACC = 36; FR = 140
    def Q(t): return ACC + 4 * t
    def K(t): return ACC + 32 + 4 * t
    def V(t): return ACC + 68 + 4 * t
    def xf(s, t): return FR + 48 * s + 4 * t
    def wf(s, p): return FR + 48 * s + 36 + 4 * p
    XA = [2, 3]; WA = 4
    BC, BP, BP0, BP4, MC = 16, 20, 24, 28, 32
    cpad(a, opt, "KPA_0")
    a("v_and_b32 v10, 15, v0"); a("v_lshrrev_b32 v11, 4, v0")
    a("v_lshrrev_b32 v12, 1, v10"); a("v_xor_b32 v12, v12, v11"); a("v_lshlrev_b32 v12, 4, v12")
    a("v_lshlrev_b32 v13, 7, v10"); a(f"v_add_u32 v{XA[0]}, v12, v13"); a(f"v_xor_b32 v{XA[1]}, 64, v{XA[0]}")
    a("v_bfe_u32 v12, v0, 2, 2")
    a("v_lshlrev_b32 v13, 3, v11"); a("v_add_u32 v13, v13, v12")
    a("v_lshrrev_b32 v14, 1, v12"); a("v_and_b32 v15, 1, v11"); a("v_lshlrev_b32 v9, 1, v15"); a("v_or_b32 v14, v14, v9")
    a("v_and_b32 v9, 3, v0"); a("v_lshlrev_b32 v9, 3, v9")
    a("v_lshlrev_b32 v12, 7, v13"); a("v_add_u32 v12, v12, v9")
    a(f"v_xor_b32 v{WA}, {sW}, v14"); a(f"v_lshlrev_b32 v{WA}, 5, v{WA}"); a(f"v_add_u32 v{WA}, v{WA}, v12"); a(f"v_add_u32 v{WA}, {WOFF}, v{WA}")
    a("v_lshlrev_b32 v5, 2, v11"); a("v_sub_u32 v6, v5, v10")
    a(f"s_mul_i32 s64, {sB}, 144"); a(f"s_lshl_b32 s65, {sG}, 1"); a("s_add_u32 s64, s64, s65"); a(f"s_lshr_b32 s65, {sW}, 1"); a("s_add_u32 s64, s64, s65")
    a("s_lshl_b32 s74, s64, 12"); a(f"s_and_b32 s65, {sW}, 1"); a("s_lshl_b32 s65, s65, 11"); a("s_add_u32 s74, s74, s65")
    a(f"s_add_u32 s75, s74, {72*4096}")
    a(f"s_mov_b32 s76, 0x{f32bits(0.25*LOG2E):x}"); a("s_mov_b32 s77, s76")
    a("v_lshlrev_b32 v9, 4, v0")
    a("s_waitcnt lgkmcnt(0)")
    compute_common_setup(a, opt)
    cpad(a, opt, "KPA_1")
    a(f"v_mov_b32 v7, 0x{BIG:x}")
    a(f"s_cmp_eq_u32 {sB}, 0"); a(f"s_cselect_b32 s64, 0x{BIG:x}, 0"); a("v_mov_b32 v8, s64")
    a(f"v_mov_b32 v{MC}, 0"); a(f"v_mov_b32 v{MC+1}, 0")
    for r in range(4):
        a(f"v_add_u32 v14, {r+7}, v6")
        a("v_cmp_gt_u32 vcc, 8, v14")
        a(f"v_mov_b32 v15, {'0xffff' if r % 2 == 0 else '0xffff0000'}")
        a(f"v_add_u32 v14, {r}, v6")
        a(f"v_cndmask_b32 v{BC+r}, v7, v1, vcc")
        a("v_cndmask_b32 v15, v1, v15, vcc")
        a(f"v_or_b32 v{MC+(r>>1)}, v{MC+(r>>1)}, v15")
        a("v_cmp_le_i32 vcc, 9, v14")
        a(f"v_add_u32 v15, {r}, v5")
        a("v_cmp_gt_u32 s[64:65], 8, v15")
        a(f"v_cndmask_b32 v{BP+r}, v7, v1, vcc")
        a(f"v_cndmask_b32 v{BP0+r}, v7, v8, vcc")
        a("v_cmp_le_i32 vcc, 1, v14"); a("s_nop 0")
        a("s_and_b64 vcc, vcc, s[64:65]")
        a(f"v_cndmask_b32 v{BP4+r}, v7, v8, vcc")
    cpad(a, opt, "KPA_2")
    for i in range(104): a(f"v_mov_b32 v{ACC+i}, 0")
    def reads(kk, s):
        ws = []
        for p in range(3):
            for h in range(2):
                ws.append(f"ds_read_b64_tr_b16 {vr(wf(s,p)+2*h,2)}, v{WA} offset:{p*8192 + kk*4096 + h*512}")
        xs = [f"ds_read_b128 {vr(xf(s,t),4)}, v{XA[kk]} offset:{t*2048 if t < 8 else EOFF}" for t in range(9)]
        return mix(xs, ws)
    def mfmas(s):
        r = []
        for t in range(9):
            if t < 8: r.append(f"v_mfma_f32_16x16x32_bf16 {vr(Q(t),4)}, {vr(wf(s,0),4)}, {vr(xf(s,t),4)}, {vr(Q(t),4)}")
            r.append(f"v_mfma_f32_16x16x32_bf16 {vr(K(t),4)}, {vr(wf(s,1),4)}, {vr(xf(s,t),4)}, {vr(K(t),4)}")
            r.append(f"v_mfma_f32_16x16x32_bf16 {vr(V(t),4)}, {vr(xf(s,t),4)}, {vr(wf(s,2),4)}, {vr(V(t),4)}")
        return r
    a("s_mov_b32 s66, 0x3f803f80")
    mainloop(a, opt, "KA", XA + [WA], reads, mfmas)
    QB = FR; KB = FR + 16; M = FR + 34; ONES = FR + 44; VB = FR + 48; PB = FR + 68; TM = FR + 100
    E = [f"global_load_dwordx2 v[10:11], v1, s[{PDBG}:{PDBG+1}] sc1"] + mfmas(1)
    e = E.append
    def cvt(d, s): e(f"v_cvt_pk_bf16_f32 v{d}, v{s}, v{s+1}"); e(f"v_cvt_pk_bf16_f32 v{d+1}, v{s+2}, v{s+3}")
    for i in range(4): e(f"v_mov_b32 v{ONES+i}, s66")
    for t in range(8): cvt(QB + 2 * t, Q(t))
    for t in range(9): cvt(KB + 2 * t, K(t))
    def vslot(t): return (1 + t) if t < 4 else (2 + t)
    for t in range(8): cvt(VB + 2 * vslot(t), V(t))
    for d in (VB, VB + 10): cvt(d, V(8))
    for t in range(8):
        prev = 8 if t in (0, 4) else t - 1
        bp = BP0 if t == 0 else (BP4 if t == 4 else BP)
        e(f"v_mfma_f32_16x16x16_bf16 {vr(Q(t),4)}, {vr(KB+2*t,2)}, {vr(QB+2*t,2)}, {vr(BC,4)}")
        e(f"v_mfma_f32_16x16x16_bf16 {vr(K(t),4)}, {vr(KB+2*prev,2)}, {vr(QB+2*t,2)}, {vr(bp,4)}")
    for t in range(8):
        for r in range(4): e(f"v_max_f32 v{Q(t)+r}, v{Q(t)+r}, v{K(t)+r}")
        e(f"v_max3_f32 v{M+t}, v{Q(t)}, v{Q(t)+1}, v{Q(t)+2}")
        e(f"v_max_f32 v{M+t}, v{M+t}, v{Q(t)+3}")
    for b4 in (0, 4):
        m0, m1, m2, m3 = M + b4, M + b4 + 1, M + b4 + 2, M + b4 + 3
        e(f"v_permlane32_swap_b32 v{m0}, v{m1}"); e(f"v_max_f32 v{m0}, v{m0}, v{m1}")
        e(f"v_permlane32_swap_b32 v{m2}, v{m3}"); e(f"v_max_f32 v{m2}, v{m2}, v{m3}")
        e(f"v_permlane16_swap_b32 v{m0}, v{m2}"); e(f"v_max_f32 v{m0}, v{m0}, v{m2}")
        k0, k1, k2, k3 = K(b4), K(b4 + 1), K(b4 + 2), K(b4 + 3)
        e(f"v_mul_f32 v{k0}, s76, v{m0}"); e(f"v_mul_f32 v{k2}, s76, v{m0}")
        e(f"v_permlane16_swap_b32 v{k0}, v{k2}")
        e(f"v_mov_b32 v{k1}, v{k0}"); e(f"v_mov_b32 v{k3}, v{k2}")
        e(f"v_permlane32_swap_b32 v{k0}, v{k1}"); e(f"v_permlane32_swap_b32 v{k2}, v{k3}")
    pk = opt.get("pk", 1)
    for t in range(8):
        if pk:
            for r in (0, 2): e(f"v_pk_fma_f32 {vr(Q(t)+r,2)}, {vr(Q(t)+r,2)}, s[76:77], {vr(K(t),2)} op_sel_hi:[1,1,0] neg_lo:[0,0,1] neg_hi:[0,0,1]")
        else:
            for r in range(4): e(f"v_fma_f32 v{Q(t)+r}, v{Q(t)+r}, s76, -v{K(t)}")
        for r in range(4): e(f"v_exp_f32 v{Q(t)+r}, v{Q(t)+r}")
        cvt(PB + 4 * t + 2, Q(t))
        for h in range(2): e(f"v_bfi_b32 v{PB+4*t+h}, v{MC+h}, 0, v{PB+4*t+2+h}")
        for h in range(2): e(f"v_and_b32 v{PB+4*t+2+h}, v{MC+h}, v{PB+4*t+2+h}")
        e(f"v_mfma_f32_16x16x32_bf16 {vr(K(t),4)}, {vr(ONES,4)}, {vr(PB+4*t,4)}, 0")
        e(f"v_mfma_f32_16x16x32_bf16 {vr(Q(t),4)}, {vr(VB+2*(vslot(t)-1),4)}, {vr(PB+4*t,4)}, 0")
        e(f"v_rcp_f32 v{K(t)}, v{K(t)}")
        if pk:
            for r in (0, 2): e(f"v_pk_mul_f32 {vr(Q(t)+r,2)}, {vr(Q(t)+r,2)}, {vr(K(t),2)} op_sel_hi:[1,0]")
        else:
            for r in range(4): e(f"v_mul_f32 v{Q(t)+r}, v{Q(t)+r}, v{K(t)}")
        cvt(QB + 2 * t, Q(t))
        if t & 1:
            d = QB + 2 * t - 2
            e(f"v_permlane16_swap_b32 v{d}, v{d+2}"); e(f"v_permlane16_swap_b32 v{d+1}, v{d+3}")
            e(f"buffer_store_dwordx4 {vr(d,4)}, v9, {q(RWS)}, s{74+(t>>2)} offen offset:{((t>>1)&1)*1024} sc1")
    o, t = schedule(E, 0)
    print("attn epilogue est", t, len(o), file=sys.stderr)
    for x in o: a(x)
    if opt.get("sba", 10) and opt.get("sbl", 1) == 0: a("s_barrier")
    stamp(a, opt, 4)
    compute_publish(a, opt, 10, 4)
    if opt.get("sba", 10) and opt.get("sbl", 1) == 1: a("s_barrier")
    stamp(a, opt, 5)
    if opt.get("gq", 2) == 2:
        a("s_mov_b64 exec, -1")
        srd(a, RX, PX, 2048 * 1024)
        gate_loads(a, 9); a("s_waitcnt vmcnt(0)"); gate_math(a, 9)
    stamp_end(a, opt, 2)
    a("s_endpgm")

def gen_loader(a, opt):
    a("; ---- loader wave")
    VL16, VX0, VX1, VW, VE, VR, VZ = 1, 2, 3, 4, 5, 6, 7
    win = None
    npad = [0]
    def pad():
        return
        k = npad[0]; npad[0] += 1
        a(f"s_branch KP_{k}_S"); a.label(f"KP_{k}"); a("s_branch K_CPRE"); a.label(f"KP_{k}_S")
    b0 = slot_of(0)
    a("v_lshrrev_b32 v10, 3, v0"); a("v_and_b32 v11, 7, v0"); a("v_lshrrev_b32 v12, 4, v0")
    a(f"s_and_b32 s68, {sW}, 1"); a(f"s_lshr_b32 s69, {sW}, 1")
    a(f"s_lshl_b32 s64, {sB}, 1"); a("s_add_u32 s64, s64, s68"); a("s_lshl_b32 s64, s64, 6"); a("s_add_u32 s64, s64, s69"); a("s_lshl_b32 s64, s64, 10")
    a("v_xor_b32 v13, v11, v12"); a("v_lshlrev_b32 v14, 11, v10"); a("v_lshl_add_u32 v14, v13, 4, v14")
    a(f"v_add_u32 v{VX0}, s64, v14"); a(f"v_xor_b32 v{VX1}, 64, v{VX0}")
    a(f"s_mov_b32 s{RX+3}, 0x20000"); a(f"s_lshl_b32 s{RX+2}, s{RX+3}, 4")
    a(f"s_lshl_b32 s70, {sW}, 12"); a(f"s_add_u32 m0, s70, {b0}"); a("s_movk_i32 s67, 0x4000")
    if opt.get("lstamp") == 3: a("s_memtime s[84:85]")
    a("s_waitcnt lgkmcnt(0)")
    if opt.get("lstamp") == 3: a("s_memtime s[86:87]")
    a(f"s_mov_b64 s[{RX}:{RX+1}], s[{PX}:{PX+1}]")
    a(f"buffer_load_dwordx4 v{VX0}, {q(RX)}, 0 offen lds")
    for m in range(1, 4):
        a("s_addk_i32 m0, 0x400")
        if m > 1: a("s_addk_i32 s67, 0x4000")
        else: a("s_setprio 2")
        a(f"buffer_load_dwordx4 v{VX0 if m % 2 == 0 else VX1}, {q(RX)}, s67 offen lds")
    a("s_branch K_HOPS")
    a.label("K_HOP")
    if opt.get("cpf", 2) == 2:
        L = newlab("CS")
        a("s_cmp_ge_u32 s2, 32"); a(f"s_cbranch_scc1 {L}"); a("s_cmp_lg_u32 s3, 0"); a(f"s_cbranch_scc1 {L}")
        a("s_getpc_b64 s[64:65]")
        G = newlab("GP"); a.label(G)
        a(f"s_sub_u32 s64, s64, {G}-{NAME}_kernel"); a("s_subb_u32 s65, s65, 0")
        a("s_lshr_b32 s66, s2, 3"); a("s_lshl_b32 s66, s66, 13")
        a("v_lshlrev_b32 v10, 7, v0"); a("v_add_u32 v10, s66, v10")
        a(f"s_mov_b32 s66, K_CODE_END-{NAME}_kernel-4")
        a("v_min_u32 v10, s66, v10"); a("global_load_dword v255, v10, s[64:65]")
        a.label(L)
    if opt.get("pads", 0):
        a("s_bitcmp1_b32 s2, 6"); a("s_cbranch_scc0 K_HOPA")
        for k in range(3): a(f"s_cmp_eq_u32 s3, {k+1}"); a(f"s_cbranch_scc1 KPF_{k}")
        a("s_branch K_CPRE")
        a.label("K_HOPA")
        for k in range(3): a(f"s_cmp_eq_u32 s3, {k+1}"); a(f"s_cbranch_scc1 KPA_{k}")
    a("s_branch K_CPRE")
    a.label("K_HOPS")
    opt["_decode"]()
    a("s_movk_i32 s74, 3584"); a("s_movk_i32 s75, 128"); a("s_movk_i32 s66, 448")
    a(f"s_mul_i32 s66, s66, {sG}"); a(f"s_and_b32 s67, {sG}, 1"); a("s_lshl_b32 s64, s67, 6"); a("s_add_u32 s64, s64, s66"); a(f"s_lshl_b32 s65, {sG}, 7")
    a(f"s_cmp_eq_u32 {sT}, 0")
    a("s_cmovk_i32 s74, 3072"); a("s_cmovk_i32 s75, 1024"); a("s_cselect_b32 s64, s65, s64")
    a(f"s_cselect_b64 s[{RW}:{RW+1}], s[{PWQKV}:{PWQKV+1}], s[{PW1}:{PW1+1}]"); a(f"s_cselect_b64 s[{RE}:{RE+1}], s[{PX}:{PX+1}], s[{PW1}:{PW1+1}]")
    a(f"s_lshl_b32 s{RW+2}, s74, 9"); a(f"s_mov_b32 s{RW+3}, s{RX+3}"); a(f"s_mov_b32 s{RE+3}, s{RX+3}")
    a("v_and_b32 v15, 1, v12"); a("s_lshl_b32 s65, s68, 2"); a("v_xor_b32 v13, s65, v11"); a("v_lshlrev_b32 v15, 1, v15"); a("v_xor_b32 v15, v15, v13")
    a(f"s_lshl_b32 s65, {sW}, 3"); a(f"v_add_u32 v{VW}, s65, v10"); a(f"v_mul_u32_u24 v{VW}, s74, v{VW}"); a(f"v_lshl_add_u32 v{VW}, v15, 4, v{VW}"); a(f"v_add_u32 v{VW}, s64, v{VW}")
    a(f"s_lshl_b32 s71, {sW}, 10"); a(f"s_addk_i32 s71, {WOFF}")
    a("s_lshl_b32 s73, s74, 6"); a("s_lshl_b32 s74, s74, 5")
    a(f"s_add_u32 m0, s71, {b0}"); a("s_mov_b32 s50, 0")
    for k in range(6):
        if k == 3: a("s_addk_i32 m0, 0x1000"); a("s_add_u32 s50, s50, s74")
        elif 0 < k < 3: a("s_addk_i32 m0, 0x2000"); a("s_add_u32 s50, s50, s75")
        elif k > 3: a("s_addk_i32 m0, -0x2000"); a("s_sub_u32 s50, s50, s75")
        a(f"buffer_load_dwordx4 v{VW}, {q(RW)}, s50 offen lds")
        if k == 0: pad()
    a(f"s_cmp_eq_u32 {sT}, 0"); a("s_cbranch_scc1 KL_EA")
    a("s_cmp_eq_u32 s67, 0"); a("s_movk_i32 s65, 0"); a("s_cmovk_i32 s65, 384"); a("s_add_u32 s66, s66, s65")
    a("v_lshrrev_b32 v15, 2, v0"); a(f"s_lshl_b32 s65, {sW}, 4"); a("v_add_u32 v15, s65, v15"); a(f"v_mul_u32_u24 v{VE}, 3584, v15")
    a("v_lshrrev_b32 v15, 5, v0"); a("v_lshlrev_b32 v15, 1, v15"); a("v_and_b32 v13, 3, v0"); a("v_xor_b32 v15, v15, v13")
    a(f"v_lshl_add_u32 v{VE}, v15, 4, v{VE}"); a(f"v_add_u32 v{VE}, s66, v{VE}")
    a(f"s_lshl_b32 s72, {sW}, 10"); a("s_mov_b32 s76, s73"); a(f"s_mov_b32 s{RE+2}, s{RW+2}")
    a("s_branch KL_ED")
    a.label("KL_EA")
    a(f"s_lshl_b32 s64, {sB}, 7"); a(f"s_cmp_eq_u32 {sB}, 0"); a("s_cselect_b32 s65, -1, 15"); a(f"s_cselect_b32 s{RE+2}, 0, s{RX+2}"); a("s_sub_u32 s64, s64, s65")
    a("s_sub_u32 s64, s64, s68"); a("s_lshl_b32 s64, s64, 10")
    a("s_lshl_b32 s65, s68, 6"); a(f"v_xor_b32 v{VE}, s65, v14"); a(f"v_add_u32 v{VE}, s64, v{VE}")
    a("s_lshl_b32 s72, s68, 10"); a("s_movk_i32 s76, 128")
    a.label("KL_ED")
    a(f"s_add_u32 s72, s72, {EOFF}")
    a(f"s_add_u32 m0, s72, {b0}"); a("s_mov_b32 s77, 1")
    a(f"buffer_load_dwordx4 v{VE}, {q(RE)}, 0 offen lds")
    pad()
    def stage(s, lo=0, hi=11):
        base = slot_of(s)
        L = []
        for k in range(6):
            if k == 0: pre = [f"s_add_u32 m0, s71, {base}", "s_mul_i32 s50, s77, s73"]
            elif k == 3: pre = ["s_addk_i32 m0, 0x1000", "s_add_u32 s50, s50, s74"]
            elif k < 3: pre = ["s_addk_i32 m0, 0x2000", "s_add_u32 s50, s50, s75"]
            else: pre = ["s_addk_i32 m0, -0x2000", "s_sub_u32 s50, s50, s75"]
            L.append(pre + [f"buffer_load_dwordx4 v{VW}, {q(RW)}, s50 offen lds"])
        L.append([f"s_add_u32 m0, s72, {base}", "s_mul_i32 s50, s77, s76", f"buffer_load_dwordx4 v{VE}, {q(RE)}, s50 offen lds"])
        for m in range(4):
            pre = [f"s_add_u32 m0, s70, {base}", "s_lshl_b32 s50, s77, 7"] if m == 0 else ["s_addk_i32 m0, 0x400", "s_addk_i32 s50, 0x4000"]
            L.append(pre + [f"buffer_load_dwordx4 v{VX0 if m % 2 == 0 else VX1}, {q(RX)}, s50 offen lds"])
        L[-1].append("s_add_u32 s77, s77, 1")
        assert lo in (0, 6, 7, 11) and hi in (6, 7, 11)
        for x in L[lo:hi]:
            for y in x: a(y)
    def bar(n, k):
        a(f"s_waitcnt vmcnt({n})"); a("s_barrier")
        if opt.get("lstamp") == 1: a(f"s_memtime s[{84+2*k}:{85+2*k}]")
    def st2(k):
        if opt.get("lstamp") == 2: a(f"s_memtime s[{84+2*k}:{85+2*k}]")
    if opt.get("lstamp"):
        opt = dict(opt); so = opt.copy(); opt["stamps"] = 0
    else: so = opt
    s1a = int(str(opt.get("split", "x7bbbbbb"))[1], 16)
    if opt.get("lstamp") == 3: a("s_memtime s[88:89]")
    stage(1, 0, s1a)
    a("s_branch K_CPRE_S"); opt["_cpre"](); a.label("K_CPRE_S")
    opt["_decode2"]()
    if opt.get("lstamp") == 3:
        a("s_memtime s[90:91]"); a(f"s_waitcnt vmcnt({10 + s1a})"); a("s_memtime s[92:93]"); a(f"s_waitcnt vmcnt({s1a})"); a("s_memtime s[94:95]")
    a(f"v_lshlrev_b32 v{VL16}, 4, v0"); a(f"v_mov_b32 v{VZ}, 0")
    srd(a, RWS, PWS, WS_USED)
    a("v_and_b32 v15, 1, v12"); a("v_lshlrev_b32 v15, 2, v15"); a("v_xor_b32 v15, v15, v11"); a("v_lshlrev_b32 v15, 4, v15")
    a(f"v_lshlrev_b32 v{VR}, 10, v10"); a(f"v_add_u32 v{VR}, v{VR}, v15")
    a(f"s_mul_i32 s100, {sW}, 19"); a("s_sub_u32 s100, s100, 3"); a(f"s_cmp_eq_u32 {sW}, 0"); a("s_cselect_b32 s100, 0, s100"); a("s_cselect_b32 s101, 16, 19")
    a(f"s_cmp_eq_u32 {sW}, 3"); a("s_cselect_b32 s101, 18, s101"); a("s_lshl_b32 s101, s101, 12")
    a(f"s_mul_i32 s64, {sU}, 72"); a("s_add_u32 s64, s64, s100"); a("s_lshl_b32 s64, s64, 12")
    srd(a, RA, PWS, "s101", "s64")
    a("s_sub_u32 s64, s100, 16"); a("s_lshl_b32 s64, s64, 15")
    a(f"s_cmp_eq_u32 {sW}, 0"); a("s_cselect_b32 s64, 0, s64")
    a(f"s_cselect_b32 s66, s{PWO}, s{PW2}"); a(f"s_cselect_b32 s67, s{PWO+1}, s{PW2+1}")
    a(f"s_lshl_b32 s65, {sCT}, 7"); a("s_add_u32 s64, s64, s65")
    a(f"s_add_u32 s{RB}, s66, s64"); a(f"s_addc_u32 s{RB+1}, s67, 0")
    a(f"s_lshl_b32 s{RB+2}, s101, 3"); a(f"s_sub_u32 s{RB+2}, s{RB+2}, s65"); a(f"s_mov_b32 s{RB+3}, 0x20000")
    a(f"s_lshl_b32 s79, {sW}, 12"); a(f"s_sub_u32 s79, {TOP-4096}, s79")
    a(f"s_cmp_eq_u32 {sW}, 0"); a(f"s_cselect_b32 s79, {TOP-4096-16384}, s79")
    a(f"v_mov_b32 v13, {TOP-4096}"); a(f"ds_write_b32 v13, v{VZ}"); a("s_waitcnt lgkmcnt(0)")
    a("v_lshrrev_b32 v13, 5, v0"); a("v_lshlrev_b32 v13, 10, v13"); a("v_bfe_u32 v14, v0, 2, 2"); a("v_lshlrev_b32 v14, 7, v14"); a("v_add_u32 v13, v13, v14")
    a("v_bfe_u32 v14, v0, 3, 1"); a("v_lshlrev_b32 v14, 6, v14"); a("v_add_u32 v13, v13, v14")
    a("v_bfe_u32 v14, v0, 4, 1"); a("v_lshlrev_b32 v14, 5, v14"); a("v_add_u32 v13, v13, v14")
    a("v_and_b32 v14, 3, v0"); a("v_lshlrev_b32 v14, 3, v14"); a("v_add_u32 v13, v13, v14")
    a(f"s_sub_u32 s64, s79, {3*16384}"); a("v_add_u32 v58, s64, v13"); a("v_xor_b32 v59, 64, v58")
    for k, dr in ((60, 4), (62, 6)):
        a(f"v_subrev_u32 v{k}, {dr*16384}, v58"); a(f"v_subrev_u32 v{k+1}, {dr*16384}, v59")
    a(f"v_mul_u32_u24 v57, {FSTR}, v0")
    sp = [int(c, 16) for c in str(opt.get("split", "x7bbbbbb"))[1:]]
    assert sp[0] == s1a
    vm = [("S", 0)] * 11 + [("S", 1)] * s1a
    def younger(tag): return len(vm) - 1 - max(i for i, t in enumerate(vm) if t == tag)
    def stage_t(s_, lo=0, hi=11): stage(s_, lo, hi); vm.extend([("S", s_)] * (hi - lo))
    br = opt.get("brot", 1)
    mp = opt.get("map", "Y")
    if br == 0: a("s_mov_b32 s14, 0")
    elif mp == "Z" and opt.get("p2map", 0) == 0: a(f"s_and_b32 s14, {sB}, 3"); a("s_lshl_b32 s14, s14, 14")
    elif mp == "Z": a(f"s_and_b32 s14, {sU}, 7"); a("s_lshl_b32 s14, s14, 13")
    elif mp == "Y" and not opt.get("p2alt", 0): a(f"s_and_b32 s14, {sB}, 7"); a("s_lshl_b32 s14, s14, 13")
    else: a(f"s_and_b32 s14, {sU}, 3"); a("s_lshl_b32 s14, s14, 14")
    a("s_lshl_b32 s8, s14, 3"); a("s_lshl_b32 s9, s101, 3")
    ACC = 8; BR = 72
    def bdma(tag, j, certain=True):
        for k in range(4):
            a(f"s_sub_u32 m0, s79, {16384*j - 1024*k}") if 16384*j - 1024*k >= 0 else a(f"s_add_u32 m0, s79, {1024*k - 16384*j}")
            a("s_nop 0")
            a(f"buffer_load_dwordx4 v{VR}, {q(RB)}, s8 offen lds")
            a("s_add_u32 s8, s8, 8192")
        a("s_cmp_ge_u32 s8, s9"); a("s_cselect_b32 s8, 0, s8")
        if certain: vm.extend([("B", tag)] * 4)
    def stg(i, j):
        r = 3 if j < 4 else (7 if j < 8 else 9)
        va = {3: 58, 7: 60, 9: 62}[r]
        for f in range(4):
            for e in range(2):
                a(f"ds_read_b64_tr_b16 {vr(BR+16*i+4*f+2*e,2)}, v{va+(f&1)} offset:{(r-j)*16384 + (f>>1)*2048 + e*512}")
    if "ebi" in opt: ebi = [int(c) for c in str(opt["ebi"])[1:]]
    else: ebi = list(range(5 - opt.get("eb", 4), 5))
    E = len(ebi)
    ne = 0
    for s_ in range(6):
        bar(younger(("S", s_)), s_)
        if s_ == 0: stamp(a, opt, 0)
        if sp[s_] < 11: stage_t(s_ + 1, sp[s_], 11)
        nb = ebi.count(s_) + (s_ == 5)
        mid = opt.get("mid", 6)
        if nb and ne > 0 and mid < sp[s_ + 1] and s_ >= opt.get("midfrom", 0):
            stage_t(s_ + 2, 0, mid)
            a(f"s_waitcnt vmcnt({younger(('B', ne - 1))})"); stg(ne - 1, 0)
            stage_t(s_ + 2, mid, sp[s_ + 1])
            a("s_waitcnt lgkmcnt(0)")
            bdma(ne, 0); ne += 1; nb -= 1
        else:
            stage_t(s_ + 2, 0, sp[s_ + 1])
        for _ in range(nb):
            if ne > 0:
                a(f"s_waitcnt vmcnt({younger(('B', ne - 1))})"); stg(ne - 1, 0); a("s_waitcnt lgkmcnt(0)")
            bdma(ne, 0); ne += 1
    assert sp[6] == 11 and ne == E + 1
    a("s_mov_b32 s77, s14")
    srd(a, RAUX, POUT, 2048 * 1024)
    a(f"s_lshr_b32 s68, {sU}, 1"); a(f"s_mul_i32 s68, s68, {16*FSTR}"); a(f"s_add_u32 s68, s68, {FA_OFF}")
    def fm(g0, g1): return sum(0x100 << g for g in range(g0, g1 + 1))
    a(f"s_mov_b32 s{RR}, 0x{fm(0,2):x}"); a(f"s_cmp_eq_u32 {sW}, 2"); a(f"s_cselect_b32 s{RR}, 0x{fm(2,5):x}, s{RR}")
    a(f"s_cmp_eq_u32 {sW}, 3"); a(f"s_cselect_b32 s{RR}, 0x{fm(5,7):x}, s{RR}")
    a(f"s_cmp_eq_u32 {sW}, 0"); a(f"s_cselect_b32 s{RR}, 0xff, s{RR}"); a(f"s_mov_b32 s{RR+1}, 0")
    a(f"s_lshl_b32 s69, {sU}, 9"); a(f"s_lshl_b32 s64, {sW}, 7"); a("s_add_u32 s69, s69, s64"); a(f"s_add_u32 s69, s69, {G_OFF}")
    bar(younger(("S", 6)), 6)
    stamp(a, opt, 1)
    for t in range(1, 4): bdma(E + t, t)
    bar(younger(("S", 7)), 7)
    for t in range(4, 7): bdma(E + t, t)
    NSG = 9 - E
    staged = 0
    def stage_upto(t_end):
        nonlocal staged
        t_end = min(t_end, NSG)
        if staged >= t_end: return
        a(f"s_waitcnt vmcnt({younger(('B', E + t_end - 1))})")
        for t in range(staged, t_end): stg(E + t, t)
        staged = t_end
    if opt.get("early", 1): stage_upto(3)
    a("s_barrier")
    stamp(a, opt, 2); st2(0)
    ref = [9]
    def btr(j, regs):
        r = 3 if j < 4 else (7 if j < 8 else 9)
        out = []
        if r != ref[0]:
            d = ((ref[0] - r) * 16384) & 0xffffffff
            out.append("\n".join(f"v_add_u32 v{2+nt}, 0x{d:x}, v{2+nt}" for nt in range(2))); ref[0] = r
        for f in range(4):
            out.append("\n".join(f"ds_read_b64_tr_b16 {vr(regs[f]+2*e,2)}, v{2+(f&1)} offset:{(r-j)*16384 + (f>>1)*2048 + e*512}" for e in range(2)))
        return out
    gq = opt.get("gq", 2)
    if opt.get("lp", 2) != 2: a(f"s_setprio {opt.get('lp')}")
    bdma(E + 7, 7)
    stage_upto(5); st2(1)
    def fpause():
        if opt.get("sb", 2): a(f"s_cmp_eq_u32 {sT}, 0"); a("s_cbranch_scc1 KL_NOSB"); a("s_barrier"); a.label("KL_NOSB")
    if opt.get("sbn", 1) == 1: fpause()
    st2(2)
    bdma(E + 8, 8)
    if opt.get("sbn", 1) == 2: fpause()
    a(f"s_cmp_eq_u32 {sW}, 0"); a("s_cbranch_scc1 KL_SK9")
    bdma(E + 9, 9, False)
    a.label("KL_SK9"); st2(3)
    def apause(t):
        if opt.get("sba", 10) == t:
            a(f"s_cmp_lg_u32 {sT}, 0"); a("s_cbranch_scc1 KL_NOSA"); a("s_barrier"); a.label("KL_NOSA")
    apause(9)
    tl = list(range(10, 19 - E))
    assert len(tl) >= 2
    freed = 0
    did_misc = False
    def misc():
        if gq == 1:
            a(f"s_cmp_lg_u32 {sT}, 0"); a("s_cbranch_scc1 KL_NOG1"); gate_loads(a, VL16); a.label("KL_NOG1")
        a(f"global_load_dwordx2 v[10:11], v{VZ}, s[{PDBG}:{PDBG+1}] sc1"); vm.append(("T", 0))
    for t in tl[:-2]:
        if t - 10 >= freed:
            a("s_waitcnt lgkmcnt(0)"); freed = staged
            stage_upto(staged + 2)
        if t == tl[max(0, len(tl) - 4)]: misc(); did_misc = True
        bdma(E + t, t - 10)
        apause(t)
        if t in (12, 14, 16): st2(4 + (t - 12) // 2)
    stage_upto(9)
    if not did_misc: misc()
    a(f"s_mov_b64 exec, s[{RR}:{RR+1}]")
    a(f"buffer_load_dwordx2 v[8:9], v57, {q(RWS)}, s68 offen sc1")
    a("s_mov_b64 exec, -1")
    a("s_waitcnt lgkmcnt(0)")
    a(f"s_cmp_eq_u32 {sW}, 0"); a("s_cbranch_scc1 KL_W0")
    bdma(0, tl[-2] - 10, False)
    a(f"s_cmp_eq_u32 {sW}, 3"); a("s_cbranch_scc1 KL_W1")
    bdma(0, tl[-1] - 10, False)
    a("s_waitcnt vmcnt(8)"); a("s_branch KL_W2")
    a.label("KL_W0"); a("s_waitcnt vmcnt(0)")
    a.label("KL_W1"); a("s_waitcnt vmcnt(4)")
    a.label("KL_W2")
    stamp(a, opt, 3); st2(7)
    tag_check(a, 10, VZ)
    a("v_mov_b32 v2, v62"); a("v_mov_b32 v3, v63")
    if gq < 2:
        a(f"s_cmp_lg_u32 {sT}, 0"); a("s_cbranch_scc1 KL_NOG")
        if gq == 0: gate_loads(a, VL16); a("s_waitcnt vmcnt(0)")
        gate_math(a, VL16)
        a.label("KL_NOG")
    a("v_lshrrev_b32 v7, 4, v0"); a("v_lshlrev_b32 v7, 4, v7")
    a(f"s_mov_b64 exec, s[{RR}:{RR+1}]")
    poll(a, 8, 57, "s68", f"s[{RR}:{RR+1}]", first_loaded=True)
    a("s_mov_b64 exec, -1")
    a("s_waitcnt lgkmcnt(0)")
    stamp(a, opt, 4)
    ref0 = ref[0]
    a(f"s_lshr_b32 s64, {sU}, 1"); a("s_lshl_b32 s64, s64, 7"); a(f"s_lshl_b32 s65, {sW}, 5"); a("s_add_u32 s64, s64, s65"); a(f"s_and_b32 s65, {sU}, 1"); a("s_add_u32 s64, s64, s65")
    a(f"s_cmp_eq_u32 {sW}, 0"); a("s_cbranch_scc1 KL_V16")
    a(f"s_cmp_eq_u32 {sW}, 3"); a("s_cbranch_scc1 KL_V18")
    def acc(tp, np_): return ACC + 16 * (2 * tp + np_)
    DM = opt.get("dmax", 12)
    WA = 80; RA_ = 88; OV = 92
    fill = [
        "s_lshl_b32 s64, s64, 10", f"s_lshl_b32 s65, {sCT}, 7", "s_add_u32 s70, s64, s65", "s_add_u32 s71, s70, 16384",
        f"s_sub_u32 s72, s79, {2*16384}", f"s_lshl_b32 s73, {sW}, 14", f"s_sub_u32 s73, {TOP-32768}, s73",
        "v_and_b32 v93, 15, v0", "v_lshrrev_b32 v94, 5, v0", "v_xor_b32 v94, v94, v93", "v_lshlrev_b32 v94, 4, v94",
        "v_lshlrev_b32 v95, 8, v93", "v_add_u32 v94, v94, v95", "v_bfe_u32 v95, v0, 4, 1", "v_lshlrev_b32 v95, 14, v95", "v_sub_u32 v94, v94, v95",
        f"v_add_u32 v{WA}, s72, v94"] + [f"v_xor_b32 v{WA+k}, {32*k}, v{WA}" for k in range(1, 8)] + [
        "v_lshrrev_b32 v93, 3, v0", "v_and_b32 v94, 7, v0", f"v_lshlrev_b32 v{OV}, 11, v93", "v_lshlrev_b32 v95, 4, v94", f"v_add_u32 v{OV}, v{OV}, v95",
        "v_lshlrev_b32 v95, 1, v94", "v_xor_b32 v95, v95, v93", "v_lshlrev_b32 v95, 4, v95", "v_lshlrev_b32 v93, 8, v93", "v_add_u32 v95, v95, v93",
        f"v_add_u32 v{RA_}, s73, v95", f"v_xor_b32 v{RA_+1}, 16, v{RA_}", f"v_xor_b32 v{RA_+2}, 128, v{RA_}", f"v_xor_b32 v{RA_+3}, 144, v{RA_}",
        "v_and_b32 v93, 8, v0", "v_cmp_ne_u32 s[74:75], 0, v93"]
    for nst, lab in ((19, None), (18, "KL_V18"), (16, "KL_V16")):
        a(".p2align 3")
        if lab: a.label(lab)
        free = list(range(BR + 16 * NBR, 256, 4)); ref[0] = ref0
        pend = [("A", i, b) for i in range(nst) for b in range(4)]
        gi = 4 * opt.get("gstep", 13)
        pend[gi:gi] = [("G", 0, 0), ("G", 1, 0)]
        loc = {}; issued = []; cur_soff = [None]
        done_loads = [0]
        fl = list(fill)
        def issue():
            if not pend: return False
            if len(issued) - done_loads[0] >= DM: return False
            if pend[0][0] == "A" and not free: return False
            k = pend.pop(0); issued.append(k)
            if k[0] == "A":
                r = free.pop(0); loc[k] = r
                if cur_soff[0] != k[1] and k[1]:
                    a("s_add_u32 s77, s77, 4096"); a("s_cmp_ge_u32 s77, s101"); a("s_cselect_b32 s77, 0, s77"); cur_soff[0] = k[1]
                a(f"buffer_load_dwordx4 {vr(r,4)}, v{VL16}, {q(RA)}, s77 offen offset:{k[2]*1024} {opt.get('ald', 'sc1')}")
            else:
                a(f"buffer_load_dwordx4 {vr(72+4*k[1],4)}, v7, {q(RWS)}, s69 offen offset:{k[1]*64} sc1")
            return True
        while issue(): pass
        bl = {}
        ldsq = []
        for i in range(nst):
            Bv = [BR + 16 * i + 4 * n for n in range(4)] if i < NBR else bl[i]
            needb = NBR <= i + 2 < nst
            if needb:
                tt = i + 2 - E; md = 10 if nst > 16 else 9
                tr = btr(tt if tt < md else tt - md, Bv)
                if len(tr) == 5: a(tr.pop(0))
                bl[i + 2] = Bv
            if i == nst - 1:
                assert not pend and not fl
                a("s_waitcnt vmcnt(0) lgkmcnt(0)"); a("s_nop 0")
                L_ = []
                for tp in range(2):
                    for np_ in range(2):
                        for half in range(2):
                            L_.append(f"v_mfma_f32_32x32x16_bf16 {vr(acc(tp,np_),16)}, {vr(Bv[2*half+np_],4)}, {vr(loc[('A', i, 2*half+tp)],4)}, {vr(acc(tp,np_),16)}")
                L_ += ["v_cndmask_b32 v96, v72, v73, s[74:75]", "v_cndmask_b32 v98, v76, v77, s[74:75]", "v_sub_f32 v100, 1.0, v96", "v_sub_f32 v101, 1.0, v98",
                       "v_cvt_pk_bf16_f32 v100, v100, v101", "v_and_b32 v102, 0xffff0000, v100", "v_lshlrev_b32 v100, 16, v100",
                       f"v_cmp_eq_u64 vcc, s[{TAG}:{TAG+1}], v[74:75]", f"v_cmp_eq_u64 s[64:65], s[{TAG}:{TAG+1}], v[78:79]"]
                for tp in range(2):
                    for np_ in range(2):
                        for j in range(4):
                            L_.append(f"ds_write_b128 v{WA+4*np_+j}, {vr(acc(tp,np_)+4*j,4)} offset:{(1-tp)*32768}")
                M_ = L_[:8]; V_ = L_[8:17]; W_ = L_[17:]
                seq = [M_[0], M_[1], M_[2]] + V_[:5] + [M_[3]] + V_[5:] + [M_[4]] + W_[0:4] + [M_[5], "s_nop 1"] + W_[4:6] + [M_[6]] + W_[6:8] + [M_[7], "s_nop 3"] + W_[8:12] + ["s_nop 3"] + W_[12:]
                for x in seq: a(x)
                break
            for half in range(2):
                for tp in range(2):
                    blk = 2 * half + tp
                    idx = issued.index(("A", i, blk)); done_loads[0] = idx + 1
                    w = f"s_waitcnt vmcnt({len(issued) - idx - 1})"
                    if i >= NBR and tp == 0:
                        li = ldsq.index((i, 2 * half + 1))
                        w += f" lgkmcnt({min(15, 2 * (len(ldsq) - li - 1))})"
                    a(w); a("s_nop 0")
                    A = loc[("A", i, blk)]
                    for np_ in range(2):
                        c = vr(acc(tp, np_), 16) if (i > 0 or half > 0) else "0"
                        f = 2 * half + np_
                        a(f"v_mfma_f32_32x32x16_bf16 {vr(acc(tp,np_),16)}, {vr(Bv[f],4)}, {vr(A,4)}, {c}")
                        if np_ == 1: free.append(A)
                        if tp == 1:
                            if needb: a(tr[f]); ldsq.append((i + 2, f))
                            elif i >= 2: free.append(Bv[f])
                        got = issue()
                        if i >= 2 and fl and not got:
                            for _ in range(min(3, len(fl))): a(fl.pop(0))
                            a(".p2align 3")
        if nst != 16: a("s_branch KL_FIN")
    a.label("KL_FIN")
    stamp(a, opt, 5)
    L = newlab("GL"); D = newlab("GD")
    a("s_and_b64 s[64:65], s[64:65], vcc"); a("s_andn2_b64 s[64:65], exec, s[64:65]"); a(f"s_cbranch_scc0 {D}")
    a("s_mov_b32 s66, 0x40000")
    a.label(L)
    a("s_sleep 1")
    a(f"buffer_load_dwordx4 v[72:75], v7, {q(RWS)}, s69 offen sc1"); a(f"buffer_load_dwordx4 v[76:79], v7, {q(RWS)}, s69 offen offset:64 sc1")
    a("s_waitcnt vmcnt(0)")
    for x in ["v_cndmask_b32 v96, v72, v73, s[74:75]", "v_cndmask_b32 v98, v76, v77, s[74:75]", "v_sub_f32 v100, 1.0, v96", "v_sub_f32 v101, 1.0, v98",
              "v_cvt_pk_bf16_f32 v100, v100, v101", "v_and_b32 v102, 0xffff0000, v100", "v_lshlrev_b32 v100, 16, v100",
              f"v_cmp_eq_u64 vcc, s[{TAG}:{TAG+1}], v[74:75]", f"v_cmp_eq_u64 s[64:65], s[{TAG}:{TAG+1}], v[78:79]", "s_nop 0"]: a(x)
    a("s_and_b64 s[64:65], s[64:65], vcc"); a("s_andn2_b64 s[64:65], exec, s[64:65]"); a(f"s_cbranch_scc0 {D}")
    a("s_sub_u32 s66, s66, 1"); a("s_cmp_lg_u32 s66, 0"); a(f"s_cbranch_scc1 {L}")
    a.label(D)
    a("s_waitcnt lgkmcnt(0)"); a("s_barrier"); stamp(a, opt, 6, True)
    T = 104
    def P(h, src): return T + 32 * h + 8 * src
    for h in range(2):
        for src in (0, 1, 2, 3):
            for e in range(2):
                off = (3 - src) * 4096 + h * 2048 + (16384 if src else 0)
                a(f"ds_read_b128 {vr(P(h,src)+4*e,4)}, v{RA_+2*h+e} offset:{off}")
    for h in range(2):
        a(f"s_waitcnt lgkmcnt({8*(1-h)+6})")
        for i in range(0, 8, 2): a(f"v_pk_mul_f32 {vr(P(h,0)+i,2)}, {vr(P(h,0)+i,2)}, {vr(96+2*h,2)} op_sel_hi:[1,0]")
        a(f"s_waitcnt lgkmcnt({8*(1-h)+2})")
        for i in range(0, 8, 2): a(f"v_pk_add_f32 {vr(P(h,1)+i,2)}, {vr(P(h,1)+i,2)}, {vr(P(h,2)+i,2)}")
        a(f"s_waitcnt lgkmcnt({8*(1-h)})")
        for i in range(0, 8, 2): a(f"v_pk_add_f32 {vr(P(h,1)+i,2)}, {vr(P(h,1)+i,2)}, {vr(P(h,3)+i,2)}")
        for i in range(0, 8, 2): a(f"v_pk_fma_f32 {vr(P(h,0)+i,2)}, {vr(P(h,1)+i,2)}, {vr(100+2*h,2)}, {vr(P(h,0)+i,2)} op_sel_hi:[1,0,1]")
        for i in range(4): a(f"v_cvt_pk_bf16_f32 v{P(h,2)+i}, v{P(h,0)+2*i}, v{P(h,0)+2*i+1}")
        a(f"buffer_store_dwordx4 {vr(P(h,2),4)}, v{OV}, {q(RAUX)}, s{70+h} offen {opt.get('ost', '')}")
    stamp(a, opt, 7)
    if so.get("stamps"): a(f"s_add_u32 s100, {sW}, 40")
    if so.get("stamps"): a(f"s_lshl_b32 s64, {sT}, 2"); a("s_add_u32 s100, s100, s64")
    stamp_end(a, so, "s100")

def generate(opt):
    a = Asm()
    post = opt.get("post")
    if post is None:
        a(f"; @launch grid=(256,1,1) block=(512,1,1) lds={LDS_BYTES}")
    else:
        a(f"; @launch kernel={NAME}_kernel grid=(256,1,1) block=(512,1,1) lds={LDS_BYTES}")
        a(f"; @launch kernel=k3_kernel grid=(1,1,1) block=(64,1,1) lds=0")
    a('.amdgcn_target "amdgcn-amd-amdhsa--gfx950"'); a(".text")
    gen(a, opt)
    if post is not None:
        wg, wv, idx, rf, sh = [int(x) for x in post.split(",")]
        a(".globl k3_kernel"); a(".p2align 8"); a(".type k3_kernel,@function"); a.label("k3_kernel")
        a("s_load_dwordx2 s[8:9], s[0:1], 72"); a("s_waitcnt lgkmcnt(0)")
        a(f"s_add_u32 s8, s8, {STAMP_OFF}"); a("s_addc_u32 s9, s9, 0")
        off = (wg * 8 + wv) * 64
        a("s_load_dword s4, s[8:9], 0"); a(f"s_load_dword s12, s[8:9], {off + 4*idx}"); a(f"s_load_dword s13, s[8:9], {off + 4*rf}"); a("s_memrealtime s[10:11]"); a("s_waitcnt lgkmcnt(0)")
        a("s_sub_u32 s12, s12, s13")
        a(f"s_lshr_b32 s12, s12, {sh}") if sh >= 0 else a(f"s_lshl_b32 s12, s12, {-sh}")
        a("s_min_u32 s12, s12, 20000"); a("s_add_u32 s12, s12, 6000")
        a.label("K3_L"); a("s_memrealtime s[6:7]"); a("s_waitcnt lgkmcnt(0)")
        a("s_sub_u32 s7, s6, s10"); a("s_cmp_gt_u32 s7, 30000"); a("s_cbranch_scc1 K3_E")
        a("s_sub_u32 s6, s6, s4"); a("s_cmp_lt_u32 s6, s12"); a("s_cbranch_scc1 K3_L")
        a.label("K3_E"); a("s_endpgm")
    a('.section .rodata,"a"'); a(".p2align 6")
    a(f".amdhsa_kernel {NAME}_kernel")
    a("  .amdhsa_next_free_vgpr 256"); a("  .amdhsa_next_free_sgpr 102"); a("  .amdhsa_accum_offset 256")
    a("  .amdhsa_group_segment_fixed_size 0"); a("  .amdhsa_kernarg_size 80"); a("  .amdhsa_user_sgpr_count 2")
    a("  .amdhsa_user_sgpr_kernarg_segment_ptr 1"); a("  .amdhsa_system_sgpr_workgroup_id_x 1"); a(".end_amdhsa_kernel")
    if post is not None:
        a(".p2align 6"); a(".amdhsa_kernel k3_kernel")
        a("  .amdhsa_next_free_vgpr 8"); a("  .amdhsa_next_free_sgpr 102"); a("  .amdhsa_accum_offset 8")
        a("  .amdhsa_group_segment_fixed_size 0"); a("  .amdhsa_kernarg_size 80"); a("  .amdhsa_user_sgpr_count 2")
        a("  .amdhsa_user_sgpr_kernarg_segment_ptr 1"); a("  .amdhsa_system_sgpr_workgroup_id_x 1"); a(".end_amdhsa_kernel")
    errs = check(a.lines)
    for e in errs: print(e, file=sys.stderr)
    assert not errs
    return a.text()

if __name__ == "__main__":
    opt = {}
    for kv in sys.argv[2:]:
        k, v = kv.split("=")
        try: v = int(v)
        except: pass
        opt[k] = v
    open(sys.argv[1], "w").write(generate(opt))
```

```python
import sys, struct
from asmlib import *

NAME = "gated_mix__sliding_local_dilated__dense_activation_relu__prompt"
A2_OFF = 0
W2_OFF = 0xA00000
G_OFF = 0xD00000
FW_OFF = 0xD10000
FA_OFF = 0xD20000
WS_USED = 0xD80000
FSTR = 1152
STAMP_OFF = 128 << 20
SLOT = 45056
XOFF, WOFF, EOFF = 0, 16384, 40960
SCR = 3 * SLOT
LDS_BYTES = 163840
TOP = LDS_BYTES
def slot_of(s): return ((7 - s) % 3) * SLOT
BIG = 0xF149F2CA
LOG2E = 1.4426950408889634
KS0 = [0, 16, 35, 54]; NST = [16, 19, 19, 18]
NBR = 9
BL_BASE = [0, 28672, 69632, 110592]
PX, PWQKV, PWO, PW1, PW2, PGATE, POUT, PDBG, PWS = 4, 6, 8, 12, 14, 16, 18, 20, 22
sB, sT, sG, sW, sU, sCT, TAG = "s24", "s25", "s26", "s27", "s28", "s29", 30
RX, RW, RE, RWS, RR, RAUX, RA, RB = 32, 36, 40, 44, 48, 52, 56, 60

def f32bits(x): return struct.unpack("<I", struct.pack("<f", x))[0]
def q(r): return f"s[{r}:{r+3}]"

def srd(a, d, base, size, add=0):
    if add == 0:
        a(f"s_mov_b32 s{d}, s{base}"); a(f"s_mov_b32 s{d+1}, s{base+1}")
    else:
        a(f"s_add_u32 s{d}, s{base}, {add}"); a(f"s_addc_u32 s{d+1}, s{base+1}, 0")
    a(f"s_mov_b32 s{d+2}, {size}"); a(f"s_mov_b32 s{d+3}, 0x20000")

def csel(a, d, x, y):
    a(f"s_mov_b32 {d}, {y}"); a(f"s_cselect_b32 {d}, {x}, {d}")

def spread(a, mf, other, last=4):
    n = len(mf) - last; other = list(other); k = 0
    for i, m in enumerate(mf):
        a(m)
        while k < len(other) and k * n <= i * len(other): a(other[k]); k += 1
    while k < len(other): a(other[k]); k += 1

def mix(xs, ws):
    out = []; i = j = 0
    while i < len(xs) or j < len(ws):
        if j >= len(ws) or (i < len(xs) and i * len(ws) <= j * len(xs)): out.append(xs[i]); i += 1
        else: out.append(ws[j]); j += 1
    return out

def interleave(a, mf, other, start=0, per=1):
    other = list(other)
    for i, m in enumerate(mf):
        a(m)
        if i >= start:
            for _ in range(per):
                if other: a(other.pop(0))
    for o in other: a(o)

def stamp_begin(a, opt):
    if opt.get("stamps"):
        a("s_memrealtime s[80:81]"); a("s_memtime s[82:83]")
        for k in range(8): a(f"s_mov_b32 s{84+2*k}, 0")

def stamp(a, opt, k, wait=False):
    if opt.get("stamps"):
        a(f"s_memtime s[{84+2*k}:{85+2*k}]")
        if wait: a("s_waitcnt lgkmcnt(0)")

def stamp_end(a, opt, tag):
    if not opt.get("stamps"): return
    a("s_waitcnt vmcnt(0) lgkmcnt(0)")
    a("s_memrealtime s[64:65]"); a("s_memtime s[66:67]")
    a("s_waitcnt lgkmcnt(0)")
    srd(a, RAUX, PWS, 1 << 20, STAMP_OFF)
    a("s_lshl_b32 s68, s2, 3"); a("s_add_u32 s68, s68, s3"); a("s_lshl_b32 s68, s68, 6")
    a("s_getreg_b32 s69, hwreg(HW_REG_XCC_ID)")
    a(f"s_mov_b32 s65, {tag}")
    for i, s in enumerate((80, 64, 82, 84, 86, 88, 90, 92, 94, 96, 98, 66, 69, 65, 65, 65)):
        a(f"v_mov_b32 v{8+i}, s{s}")
    a("v_mov_b32 v6, s68")
    a("s_mov_b64 exec, 1")
    for k in range(4):
        a(f"buffer_store_dwordx4 v[{8+4*k}:{11+4*k}], v6, {q(RAUX)}, 0 offen offset:{16*k}")
    a("s_waitcnt vmcnt(0)")

_lab = [0]
def newlab(p):
    _lab[0] += 1; return f"{p}_{_lab[0]}"

def tag_check(a, vt, vz):
    L = newlab("TAGL"); D = newlab("TAGD")
    a("s_mov_b32 s64, 0x40000")
    a.label(L)
    a(f"v_readfirstlane_b32 s{TAG}, v{vt}"); a(f"v_readfirstlane_b32 s{TAG+1}, v{vt+1}"); a("s_nop 0")
    a(f"s_cmp_lg_u32 s{TAG}, 0"); a(f"s_cbranch_scc1 {D}")
    a("s_sub_u32 s64, s64, 1"); a("s_cmp_eq_u32 s64, 0"); a(f"s_cbranch_scc1 {D}")
    a("s_sleep 2")
    a(f"global_load_dwordx2 v[{vt}:{vt+1}], v{vz}, s[{PDBG}:{PDBG+1}] sc1"); a("s_waitcnt vmcnt(0)")
    a(f"s_branch {L}")
    a.label(D)

PSL = [1]
def poll(a, vt, voff, soff, need, first_loaded=False):
    L = newlab("POLL"); C = newlab("POLC"); D = newlab("POLD")
    a("s_mov_b32 s66, 0x40000")
    if first_loaded: a(f"s_branch {C}")
    a.label(L)
    a(f"buffer_load_dwordx2 v[{vt}:{vt+1}], v{voff}, {q(RWS)}, {soff} offen sc1")
    a("s_waitcnt vmcnt(0)")
    a.label(C)
    a(f"v_cmp_eq_u64 vcc, s[{TAG}:{TAG+1}], v[{vt}:{vt+1}]"); a("s_nop 0")
    a(f"s_andn2_b64 s[64:65], {need}, vcc"); a(f"s_cbranch_scc0 {D}")
    a("s_sub_u32 s66, s66, 1"); a("s_cmp_eq_u32 s66, 0"); a(f"s_cbranch_scc1 {D}")
    a(f"s_sleep {PSL[0]}"); a(f"s_branch {L}")
    a.label(D)

def gen(a, opt):
    global FSTR
    PSL[0] = opt.get("psl", 1); FSTR = opt.get("fstr", 1152)
    kn = NAME + "_kernel"
    a(f".globl {kn}"); a(".p2align 8"); a(f".type {kn},@function"); a.label(kn)
    a("s_cmp_ge_u32 s2, 256"); a("s_cbranch_scc1 K_END")
    a("s_load_dwordx16 s[4:19], s[0:1], 0")
    a("s_load_dwordx4 s[20:23], s[0:1], 64")
    stamp_begin(a, opt)
    def decode():
        a("s_and_b32 s64, s2, 7"); a("s_lshr_b32 s65, s2, 3")
        a("s_lshr_b32 s66, s65, 3")
        a(f"s_and_b32 {sT}, s66, 1")
        a("s_and_b32 s67, s64, 3"); a(f"s_lshl_b32 {sG}, s67, 1"); a("s_lshr_b32 s67, s66, 1"); a(f"s_add_u32 {sG}, {sG}, s67")
    def decode2():
        a("s_and_b32 s64, s2, 1"); a(f"s_lshl_b32 {sU}, {sB}, 1"); a(f"s_add_u32 {sU}, {sU}, s64")
        a("s_and_b32 s64, s2, 2"); a("s_lshl_b32 s64, s64, 1"); a("s_lshr_b32 s65, s2, 6")
        if opt.get("ctmix", 0): a(f"s_add_u32 s65, s65, {sB}"); a("s_and_b32 s65, s65, 3")
        a(f"s_add_u32 {sCT}, s64, s65")
    opt["_decode"] = decode; opt["_decode2"] = decode2
    def cpre():
        a.label("K_CPRE")
        decode()
        if opt.get("duty", 1) == 3:
            Lx = newlab("DU"); Lc = newlab("DU"); Ld = newlab("DU")
            dl_ = opt.get("dlead", 1); dsh = opt.get("dsh", 0)
            a("s_lshr_b32 s64, s2, 7"); a("s_lshl_b32 s64, s64, 6"); a("s_and_b32 s65, s2, 63"); a("s_add_u32 s64, s64, s65")
            a("s_lshl_b32 s64, s64, 2"); a(f"s_add_u32 s64, s64, {sW}")
            a("v_lshlrev_b32 v254, 7, v0"); a("v_lshlrev_b32 v253, 7, v0")
            a(f"s_mov_b32 s{RR+3}, 0x20000"); a(f"s_mov_b32 s{RA+3}, 0x20000")
            a("s_cmp_ge_u32 s64, 144"); a("s_cselect_b32 s63, 1, 0"); a(f"s_add_u32 s63, s63, {opt.get('dbs', 2)}")
            a("s_cmp_ge_u32 s64, 288"); a("s_cselect_b32 s63, 255, s63")
            a("s_mul_i32 s65, s64, 781"); a("s_lshr_b32 s65, s65, 16"); a("s_mul_i32 s66, s65, 84"); a("s_sub_u32 s66, s64, s66")
            a(f"s_max_u32 s101, s65, {dl_}"); a(f"s_sub_u32 s101, s101, {dl_}")
            if dsh: a(f"s_add_u32 s101, s101, {(1 << dsh) - 1}"); a(f"s_lshr_b32 s101, s101, {dsh}")
            a("s_cmp_ge_u32 s64, 504"); a("s_cselect_b32 s101, 255, s101")
            a(f"s_cmp_lg_u32 {sT}, 0"); a("s_cselect_b32 s101, 255, s101"); a("s_cselect_b32 s63, 255, s63")
            a("s_add_u32 s65, s65, 2")
            a("s_waitcnt lgkmcnt(0)")
            a("s_cmp_lt_u32 s64, 64")
            a(f"s_cselect_b32 s{RA}, s{PWO}, s{PW2}"); a(f"s_cselect_b32 s{RA+1}, s{PWO+1}, s{PW2+1}"); csel(a, f"s{RA+2}", 512*1024, 1792*1024)
            a("s_cselect_b32 s67, 0, 64"); a("s_sub_u32 s62, s64, s67"); a("s_lshl_b32 s62, s62, 13")
            a("s_cmp_lt_u32 s66, 52"); a(f"s_cbranch_scc1 {Lx}")
            a(f"s_mov_b32 s{RR}, s{PX}"); a(f"s_mov_b32 s{RR+1}, s{PX+1}"); a(f"s_mov_b32 s{RR+2}, {2048*1024}")
            a("v_lshlrev_b32 v254, 10, v0")
            a("s_sub_u32 s66, s66, 52"); a("s_lshl_b32 s100, s66, 16"); a("s_lshl_b32 s65, s65, 7"); a("s_add_u32 s100, s100, s65")
            a(f"s_branch {Lc}")
            a.label(Lx)
            a("s_cmp_lt_u32 s66, 24")
            a(f"s_cselect_b32 s{RR}, s{PWQKV}, s{PW1}"); a(f"s_cselect_b32 s{RR+1}, s{PWQKV+1}, s{PW1+1}"); csel(a, f"s{RR+2}", 512*3072, 512*3584)
            a("s_cselect_b32 s64, 24, 28"); a("s_cselect_b32 s67, 0, 24"); a("s_mul_i32 s65, s65, s64"); a("s_add_u32 s66, s66, s65"); a("s_sub_u32 s66, s66, s67"); a("s_lshl_b32 s100, s66, 13")
            a.label(Lc)
            a("s_cmp_lg_u32 s101, 0"); a(f"s_cbranch_scc1 {Ld}"); a(f"buffer_load_dword v255, v254, {q(RR)}, s100 offen"); a.label(Ld)
        elif opt.get("duty", 1):
            Lb = newlab("DU"); Lc = newlab("DU"); Ld = newlab("DU")
            a("s_waitcnt lgkmcnt(0)")
            a("v_lshlrev_b32 v254, 7, v0")
            a(f"s_mov_b32 s{RR+3}, 0x20000")
            if opt.get("duty", 1) == 2:
                a("s_lshr_b32 s64, s2, 7"); a("s_lshl_b32 s64, s64, 6"); a("s_and_b32 s65, s2, 63"); a("s_add_u32 s64, s64, s65")
                a(f"s_cmp_eq_u32 {sT}, 0"); a("s_cselect_b32 s64, s64, 128")
                a(f"s_branch {Lb}X")
            a("s_cmp_ge_u32 s2, 156"); a(f"s_cbranch_scc1 {Lb}")
            a("s_lshl_b32 s64, s2, 1"); a(f"s_and_b32 s65, {sW}, 1"); a("s_add_u32 s64, s64, s65")
            a("s_mul_i32 s65, s64, 1261"); a("s_lshr_b32 s65, s65, 16"); a("s_mul_i32 s66, s65, 52"); a("s_sub_u32 s64, s64, s66")
            a(f"s_max_u32 s101, s65, {opt.get('dlead', 1)}"); a(f"s_sub_u32 s101, s101, {opt.get('dlead', 1)}")
            a("s_add_u32 s65, s65, 2")
            if opt.get("xduty", 1):
                Le = newlab("DU")
                a(f"s_cmp_lt_u32 {sW}, 2"); a(f"s_cbranch_scc1 {Le}")
                a(f"s_mov_b32 s{RR}, s{PX}"); a(f"s_mov_b32 s{RR+1}, s{PX+1}"); a(f"s_mov_b32 s{RR+2}, {2048*1024}")
                a("v_lshlrev_b32 v254, 10, v0")
                a("s_lshl_b32 s100, s64, 16"); a("s_lshl_b32 s65, s65, 7"); a("s_add_u32 s100, s100, s65")
                a("s_cmp_ge_u32 s64, 32"); a("s_cselect_b32 s101, 255, s101")
                a(f"s_branch {Lc}")
                a.label(Le)
            a("s_cmp_lt_u32 s64, 24")
            a(f"s_cselect_b32 s{RR}, s{PWQKV}, s{PW1}"); a(f"s_cselect_b32 s{RR+1}, s{PWQKV+1}, s{PW1+1}"); csel(a, f"s{RR+2}", 512*3072, 512*3584)
            a("s_cselect_b32 s66, 24, 28"); a("s_cselect_b32 s67, 0, 24"); a("s_mul_i32 s65, s65, s66"); a("s_add_u32 s64, s64, s65"); a("s_sub_u32 s64, s64, s67"); a("s_lshl_b32 s100, s64, 13")
            a(f"s_cmp_ge_u32 {sW}, 2"); a("s_cselect_b32 s101, 255, s101")
            a(f"s_branch {Lc}")
            a.label(Lb)
            a("s_sub_u32 s64, s2, 156")
            a.label(Lb + "X")
            a("s_mul_i32 s64, s64, 3"); a(f"s_add_u32 s64, s64, {sW}")
            a("s_mul_i32 s101, s64, 911"); a(f"s_lshr_b32 s101, s101, {16 + opt.get('dbw', 1)}"); a(f"s_add_u32 s101, s101, {opt.get('dbs', 0)}")
            a(f"s_cmp_ge_u32 {sW}, 3"); a("s_cselect_b32 s101, 255, s101"); a("s_cmp_ge_u32 s64, 288"); a("s_cselect_b32 s101, 255, s101")
            a("s_cmp_lt_u32 s64, 64")
            a(f"s_cselect_b32 s{RR}, s{PWO}, s{PW2}"); a(f"s_cselect_b32 s{RR+1}, s{PWO+1}, s{PW2+1}"); csel(a, f"s{RR+2}", 512*1024, 1792*1024)
            a("s_cselect_b32 s67, 0, 64"); a("s_sub_u32 s64, s64, s67"); a("s_lshl_b32 s100, s64, 13")
            a.label(Lc)
            a("s_cmp_lg_u32 s101, 0"); a(f"s_cbranch_scc1 {Ld}"); a(f"buffer_load_dword v255, v254, {q(RR)}, s100 offen"); a.label(Ld)
        a("s_branch K_COMPUTE")
    opt["_cpre"] = cpre
    a("v_lshrrev_b32 v1, 6, v0"); a("v_and_b32 v0, 63, v0")
    a("v_readfirstlane_b32 s3, v1")
    a("s_and_b32 s64, s2, 4"); a("s_lshr_b32 s65, s2, 3"); a("s_lshl_b32 s64, s64, 1"); a("s_and_b32 s65, s65, 7"); a(f"s_add_u32 {sB}, s64, s65")
    a(f"s_and_b32 {sW}, s3, 3"); a("s_xor_b32 s3, s3, 4")
    a("s_cmp_lt_u32 s3, 4"); a("s_cbranch_scc1 K_HOP")
    gen_loader(a, opt)
    a.label("K_END"); a("s_endpgm")
    a.label("K_COMPUTE")
    a(f"s_cmp_eq_u32 {sT}, 0"); a("s_cbranch_scc1 K_ATTN")
    gen_ffn(a, opt)
    gen_attn(a, opt)
    a.label("K_CODE_END")

def compute_common_setup(a, opt):
    L = newlab("CS")
    a("v_mov_b32 v1, 0")
    a("s_or_b32 s64, s2, s3"); a("s_cmp_lg_u32 s64, 0"); a(f"s_cbranch_scc1 {L}")
    a("s_memrealtime s[64:65]"); a("s_waitcnt lgkmcnt(0)")
    a("s_or_b32 s64, s64, 1"); a("s_xor_b32 s65, s65, 0x5bd1e995")
    a("v_mov_b32 v10, s64"); a("v_mov_b32 v11, s65")
    a("s_mov_b64 exec, 1")
    a(f"global_store_dwordx2 v1, v[10:11], s[{PDBG}:{PDBG+1}] sc1")
    a("s_mov_b64 exec, -1")
    a.label(L)
    if opt.get("cpf", 2) == 1:
        L = newlab("CS")
        a("s_cmp_ge_u32 s2, 8"); a(f"s_cbranch_scc1 {L}"); a("s_cmp_lg_u32 s3, 1"); a(f"s_cbranch_scc1 {L}")
        a("s_getpc_b64 s[64:65]")
        G = newlab("GP"); a.label(G)
        a(f"s_sub_u32 s64, s64, {G}-{NAME}_kernel"); a("s_subb_u32 s65, s65, 0")
        a("v_lshlrev_b32 v10, 7, v0")
        a(f"s_mov_b32 s66, K_CODE_END-{NAME}_kernel-4")
        for r in range(opt.get("cpfn", 4)):
            a("v_min_u32 v11, s66, v10"); a("global_load_dword v255, v11, s[64:65]"); a("v_add_u32 v10, 8192, v10")
        a.label(L)
    srd(a, RWS, PWS, WS_USED)
    if opt.get("tlb", 0):
        Lt = newlab("TLB")
        a(f"s_cmp_lg_u32 {sW}, 2"); a(f"s_cbranch_scc1 {Lt}")
        a("v_lshlrev_b32 v13, 21, v0"); a("s_mov_b64 exec, 0x7f")
        a(f"buffer_load_dword v12, v13, {q(RWS)}, 0 offen")
        a("s_mov_b64 exec, 1")
        for p in (PW2, PWO, POUT, PGATE, PDBG):
            a(f"global_load_dword v12, v1, s[{p}:{p+1}]")
        a("s_mov_b64 exec, -1")
        a.label(Lt)
    a(f"s_lshl_b32 s78, {sB}, 4"); a(f"s_lshl_b32 s64, {sT}, 3"); a("s_add_u32 s78, s78, s64"); a(f"s_add_u32 s78, s78, {sG}")
    a(f"s_mul_i32 s78, s78, {FSTR}"); a(f"s_add_u32 s78, s78, {FA_OFF}")

def compute_publish(a, opt, vt, nst):
    L = newlab("NOPUB")
    a("s_mov_b64 exec, 1")
    a(f"v_mov_b32 v12, {TOP-4096}"); a("v_mov_b32 v13, 1")
    a(f"s_waitcnt vmcnt({nst})")
    tag_check(a, vt, 1)
    a("s_waitcnt vmcnt(0)")
    stamp(a, opt, 6)
    a("ds_add_rtn_u32 v13, v12, v13"); a("s_waitcnt lgkmcnt(0)")
    a("v_cmp_eq_u32 vcc, 3, v13"); a("s_nop 0"); a(f"s_cbranch_vccz {L}")
    a(f"buffer_store_dwordx2 v[{vt}:{vt+1}], v1, {q(RWS)}, s78 offen sc1")
    a.label(L)

def gate_loads(a, VL16):
    a(f"s_lshl_b32 s64, {sB}, 7"); a(f"s_and_b32 s65, {sG}, 3"); a("s_lshl_b32 s65, s65, 5"); a("s_add_u32 s65, s65, s64")
    a(f"s_lshl_b32 s66, {sW}, 3"); a("s_add_u32 s65, s65, s66"); a(f"s_lshr_b32 s66, {sG}, 2"); a("s_add_u32 s65, s65, s66"); a("s_lshl_b32 s65, s65, 10")
    a(f"s_lshl_b32 s66, {sG}, 4"); a("s_add_u32 s64, s64, s66"); a(f"s_lshl_b32 s66, {sW}, 2"); a("s_add_u32 s64, s64, s66")
    a("s_lshl_b32 s78, s64, 3"); a(f"s_add_u32 s78, s78, {G_OFF}")
    a(f"global_load_dwordx4 v[32:35], v{VL16}, s[{PGATE}:{PGATE+1}]")
    a(f"buffer_load_dwordx4 v[16:19], v{VL16}, {q(RX)}, s65 offen"); a(f"buffer_load_dwordx4 v[20:23], v{VL16}, {q(RX)}, s65 offen offset:2048")
    a("s_add_u32 s65, s65, 4096")
    a(f"buffer_load_dwordx4 v[24:27], v{VL16}, {q(RX)}, s65 offen"); a(f"buffer_load_dwordx4 v[28:31], v{VL16}, {q(RX)}, s65 offen offset:2048")
def gate_math(a, VL16):
    GU = 36; P = 44; R = 52
    for k in range(4):
        a(f"v_lshlrev_b32 v{GU+2*k}, 16, v{32+k}"); a(f"v_and_b32 v{GU+1+2*k}, 0xffff0000, v{32+k}")
    for row in range(4):
        xb = 16 + 4 * row
        for k in range(4):
            a(f"v_lshlrev_b32 v{P+2*k}, 16, v{xb+k}"); a(f"v_and_b32 v{P+2*k+1}, 0xffff0000, v{xb+k}")
        for i in range(0, 8, 2): a(f"v_pk_mul_f32 {vr(P+i,2)}, {vr(P+i,2)}, {vr(GU+i,2)}")
        for k in range(4): a(f"v_cvt_pk_bf16_f32 v{xb+k}, v{P+2*k}, v{P+2*k+1}")
        for k in range(4):
            a(f"v_lshlrev_b32 v{P+2*k}, 16, v{xb+k}"); a(f"v_and_b32 v{P+2*k+1}, 0xffff0000, v{xb+k}")
        a(f"v_pk_add_f32 {vr(P,2)}, {vr(P,2)}, {vr(P+4,2)}"); a(f"v_pk_add_f32 {vr(P+2,2)}, {vr(P+2,2)}, {vr(P+6,2)}")
        a(f"v_pk_add_f32 {vr(P,2)}, {vr(P,2)}, {vr(P+2,2)}")
        a(f"v_add_f32 v{R+row}, v{P}, v{P+1}")
    a.nop(1)
    for sh in (8, 4, 2, 1):
        for row in range(4): a(f"v_add_f32_dpp v{R+row}, v{R+row}, v{R+row} row_ror:{sh} row_mask:0xf bank_mask:0xf")
    for sw in ("v_permlane32_swap_b32", "v_permlane16_swap_b32"):
        for row in range(4): a(f"v_mov_b32 v{P+row}, v{R+row}")
        for row in range(4): a(f"{sw} v{R+row}, v{P+row}")
        for row in range(4): a(f"v_add_f32 v{R+row}, v{R+row}, v{P+row}")
    def rnd():
        for h in range(2):
            a(f"v_cvt_pk_bf16_f32 v{P+h}, v{R+2*h}, v{R+2*h+1}")
        for h in range(2):
            a(f"v_lshlrev_b32 v{R+2*h}, 16, v{P+h}"); a(f"v_and_b32 v{R+2*h+1}, 0xffff0000, v{P+h}")
    rnd()
    for row in range(4): a(f"v_mul_f32 v{R+row}, 0x{f32bits(-LOG2E):x}, v{R+row}")
    for row in range(4): a(f"v_exp_f32 v{R+row}, v{R+row}")
    for row in range(4): a(f"v_add_f32 v{R+row}, 1.0, v{R+row}")
    for row in range(4): a(f"v_rcp_f32 v{R+row}, v{R+row}")
    a.nop(1)
    rnd()
    a("v_cmp_eq_u32 vcc, 1, v0"); a(f"v_mov_b32 v{P+2}, s{TAG}"); a(f"v_mov_b32 v{P+3}, s{TAG+1}")
    a(f"v_cndmask_b32 v{P}, v{R}, v{R+2}, vcc"); a(f"v_cndmask_b32 v{P+1}, v{R+1}, v{R+3}, vcc")
    a("s_mov_b64 exec, 3")
    a(f"buffer_store_dwordx4 {vr(P,4)}, v{VL16}, {q(RWS)}, s78 offen sc1")
    a("s_mov_b64 exec, -1")

def cpad(a, opt, n):
    if opt.get("pads", 0): a(f"s_branch {n}_S"); a.label(n); a("s_branch K_CPRE"); a.label(n + "_S")

def mainloop(a, opt, pre, addr_regs, reads, mfmas):
    a("s_mov_b32 s70, 1"); a("s_mov_b32 s72, 0"); a(f"s_mov_b32 s73, {(-SLOT) & 0xffffffff}"); a(f"s_mov_b32 s79, {2*SLOT}")
    for r in addr_regs: a(f"v_add_u32 v{r}, {slot_of(0)}, v{r}")
    if opt.get("prio", 2) == 1: a("s_setprio 1")
    du = opt.get("duty", 1)
    if du == 3 and pre == "KF": du = 0
    dl = f"buffer_load_dword v255, v254, {q(RR)}, s100 offen"
    if opt.get("cp0", 0): a("s_setprio 0")
    stamp(a, opt, 0)
    a("s_barrier")
    stamp(a, opt, 1)
    for r in reads(0, 0): a(r)
    a(".p2align 3")
    a.label(pre + "_LOOP")
    a("s_waitcnt lgkmcnt(0)")
    a("s_add_u32 s70, s70, 1")
    last = opt.get("last", 6)
    sal = ["s_cmp_eq_u32 s70, 3\ns_cselect_b32 s71, s79, s73", "s_cselect_b32 s70, 0, s70\ns_add_u32 s72, s72, 1"]
    if du: sal.append(f"s_cmp_eq_u32 s72, s101\ns_cbranch_scc1 {pre}_DUTY\n{pre}_DBACK:")
    if du == 3: sal.append(f"s_cmp_eq_u32 s72, s63\ns_cbranch_scc1 {pre}_DUTY2\n{pre}_DBACK2:")
    sal.append("s_cmp_eq_u32 s72, 8\ns_nop 0")
    mf = mfmas(0)
    spread(a, mf[:-last], reads(1, 1), 0)
    interleave(a, mf[-last:], sal)
    a("s_waitcnt lgkmcnt(0)")
    a("s_barrier")
    a(f"s_cbranch_scc1 {pre}_DONE"); a("s_nop 0")
    for _ in range(opt.get("slow", 0)): a("s_nop 15"); a("s_nop 15")
    adv = [f"v_add_u32 v{r}, s71, v{r}" for r in addr_regs]
    if len(adv) % 2: adv.append("s_nop 0")
    adv = [adv[i] + "\n" + adv[i+1] for i in range(0, len(adv), 2)]
    mf = mfmas(1)
    interleave(a, mf[:len(adv)], adv)
    spread(a, mf[len(adv):], reads(0, 0), opt.get("last2", 2))
    a(f"s_branch {pre}_LOOP")
    if du:
        a.label(pre + "_DUTY"); a(dl); a(f"s_branch {pre}_DBACK")
    if du == 3:
        a.label(pre + "_DUTY2"); a(f"buffer_load_dword v255, v253, {q(RA)}, s62 offen"); a(f"s_branch {pre}_DBACK2")
    a(".p2align 3")
    a.label(pre + "_DONE")
    if opt.get("prio", 2) == 2: a("s_setprio 3"); a("s_nop 0")
    stamp(a, opt, 2)

def gen_ffn(a, opt):
    ACC = 16; FR = 128
    def acc(t, n): return ACC + 4 * (t * 7 + n)
    def xf(s, t): return FR + 44 * s + 4 * t
    def wf(s, n): return FR + 44 * s + 16 + 4 * n
    XA = [2, 3]; WA = [4, 5, 6, 7]; SA = 8
    cpad(a, opt, "KPF_0")
    a(f"s_lshr_b32 s68, {sW}, 1")
    a(f"s_and_b32 s69, {sW}, 1")
    a("v_and_b32 v10, 15, v0"); a("v_lshrrev_b32 v11, 4, v0")
    a("v_lshrrev_b32 v12, 1, v10"); a("v_xor_b32 v12, v12, v11"); a("v_lshlrev_b32 v12, 4, v12")
    a("v_lshlrev_b32 v13, 7, v10"); a("v_add_u32 v12, v12, v13")
    a("s_lshl_b32 s64, s68, 13"); a(f"v_add_u32 v{XA[0]}, s64, v12"); a(f"v_xor_b32 v{XA[1]}, 64, v{XA[0]}")
    a("v_bfe_u32 v12, v0, 2, 2")
    a("v_lshlrev_b32 v13, 3, v11"); a("v_add_u32 v13, v13, v12")
    a("v_lshrrev_b32 v14, 1, v12"); a("v_and_b32 v15, 1, v11"); a("v_lshlrev_b32 v9, 1, v15"); a("v_or_b32 v14, v14, v9")
    a("v_and_b32 v9, 3, v0"); a("v_lshlrev_b32 v9, 3, v9")
    a("v_lshlrev_b32 v12, 7, v13"); a("v_add_u32 v12, v12, v9")
    for j in range(4):
        a("s_mul_i32 s64, s69, 6"); a(f"s_add_u32 s64, s64, {j}")
        a("s_and_b32 s65, s64, 3"); a("s_lshr_b32 s64, s64, 2"); a("s_lshl_b32 s64, s64, 13"); a(f"s_add_u32 s64, s64, {WOFF}")
        a(f"v_xor_b32 v{WA[j]}, s65, v14"); a(f"v_lshlrev_b32 v{WA[j]}, 5, v{WA[j]}"); a(f"v_add_u32 v{WA[j]}, v{WA[j]}, v12"); a(f"v_add_u32 v{WA[j]}, s64, v{WA[j]}")
    a(f"v_xor_b32 v{SA}, s69, v15"); a(f"v_lshlrev_b32 v{SA}, 5, v{SA}"); a(f"v_add_u32 v{SA}, v{SA}, v9")
    a("v_lshlrev_b32 v12, 6, v13"); a(f"v_add_u32 v{SA}, v{SA}, v12"); a(f"v_add_u32 v{SA}, {EOFF}, v{SA}")
    a(f"s_lshl_b32 s64, {sB}, 1"); a("s_add_u32 s64, s64, s68"); a("s_mul_i32 s64, s64, 72")
    a(f"s_mul_i32 s65, {sG}, 7"); a("s_add_u32 s64, s64, s65"); a("s_add_u32 s64, s64, 16")
    a(f"s_and_b32 s65, {sG}, 1")
    a("s_mul_i32 s66, s69, 3"); a("s_add_u32 s66, s66, s65"); a("s_add_u32 s66, s66, s64"); a("s_lshl_b32 s74, s66, 12")
    a("s_add_u32 s75, s74, 4096"); a("s_add_u32 s76, s74, 8192")
    a("s_cmp_eq_u32 s65, 0"); a("s_cselect_b32 s66, 6, 0"); a("s_add_u32 s66, s66, s64"); a("s_lshl_b32 s77, s66, 12")
    a("s_lshl_b32 s65, s69, 11"); a("s_add_u32 s77, s77, s65")
    a("v_lshlrev_b32 v9, 4, v0")
    a("s_waitcnt lgkmcnt(0)")
    compute_common_setup(a, opt)
    cpad(a, opt, "KPF_1")
    for i in range(112): a(f"v_mov_b32 v{ACC+i}, 0")
    cpad(a, opt, "KPF_2")
    def reads(kk, s):
        xs = [f"ds_read_b128 {vr(xf(s,t),4)}, v{XA[kk]} offset:{t*2048}" for t in range(4)]
        ws = []
        for n in range(6):
            for h in range(2):
                ws.append(f"ds_read_b64_tr_b16 {vr(wf(s,n)+2*h,2)}, v{WA[n&3]} offset:{(n>>2)*8192 + kk*4096 + h*512}")
        for h in range(2):
            ws.append(f"ds_read_b64_tr_b16 {vr(wf(s,6)+2*h,2)}, v{SA} offset:{kk*2048 + h*256}")
        return mix(xs, ws)
    def mfmas(s):
        return [f"v_mfma_f32_16x16x32_bf16 {vr(acc(t,n),4)}, {vr(wf(s,n),4)}, {vr(xf(s,t),4)}, {vr(acc(t,n),4)}" for n in range(7) for t in range(4)]
    mainloop(a, opt, "KF", XA + WA + [SA], reads, mfmas)
    E = [f"global_load_dwordx2 v[10:11], v1, s[{PDBG}:{PDBG+1}] sc1"] + mfmas(1)
    tmp = [FR + 4 * k for k in range(11)] + [216 + 4 * k for k in range(3)]
    k = 0
    for n in range(7):
        for tp in range(2):
            d = tmp[k]; k += 1
            for hh in range(2):
                sx = acc(2 * tp + hh, n)
                E.append(f"v_cvt_pk_bf16_f32 v{d+2*hh}, v{sx}, v{sx+1}"); E.append(f"v_cvt_pk_bf16_f32 v{d+2*hh+1}, v{sx+2}, v{sx+3}")
            for i in (0, 2, 1, 3): E.append(f"v_pk_max_i16 v{d+i}, v{d+i}, 0")
            E.append(f"v_permlane16_swap_b32 v{d}, v{d+2}"); E.append(f"v_permlane16_swap_b32 v{d+1}, v{d+3}")
            off = ((n & 1) * 2048 if n < 6 else 0) + tp * 1024
            E.append(f"buffer_store_dwordx4 {vr(d,4)}, v9, {q(RWS)}, s{74+(n>>1)} offen offset:{off} sc1")
    o, t = schedule(E, 40)
    print("ffn epilogue est", t, len(o), file=sys.stderr)
    wn = opt.get("wn", 0); ns = 0
    for x in o:
        if x.startswith("buffer_store") and opt.get("nostore"): continue
        if x.startswith("buffer_store"):
            if wn and ns >= wn: a(f"s_waitcnt vmcnt({wn-1})")
            ns += 1
        a(x)
    if opt.get("sb", 2) == 1: a("s_barrier")
    stamp(a, opt, 3)
    compute_publish(a, opt, 10, 14)
    if opt.get("sb", 2) == 2: a("s_barrier")
    stamp(a, opt, 5)
    stamp_end(a, opt, 1)
    a("s_endpgm")

def gen_attn(a, opt):
    a.label("K_ATTN")
    ACC = 36; FR = 140
    def Q(t): return ACC + 4 * t
    def K(t): return ACC + 32 + 4 * t
    def V(t): return ACC + 68 + 4 * t
    def xf(s, t): return FR + 48 * s + 4 * t
    def wf(s, p): return FR + 48 * s + 36 + 4 * p
    XA = [2, 3]; WA = 4
    BC, BP, BP0, BP4, MC = 16, 20, 24, 28, 32
    cpad(a, opt, "KPA_0")
    a("v_and_b32 v10, 15, v0"); a("v_lshrrev_b32 v11, 4, v0")
    a("v_lshrrev_b32 v12, 1, v10"); a("v_xor_b32 v12, v12, v11"); a("v_lshlrev_b32 v12, 4, v12")
    a("v_lshlrev_b32 v13, 7, v10"); a(f"v_add_u32 v{XA[0]}, v12, v13"); a(f"v_xor_b32 v{XA[1]}, 64, v{XA[0]}")
    a("v_bfe_u32 v12, v0, 2, 2")
    a("v_lshlrev_b32 v13, 3, v11"); a("v_add_u32 v13, v13, v12")
    a("v_lshrrev_b32 v14, 1, v12"); a("v_and_b32 v15, 1, v11"); a("v_lshlrev_b32 v9, 1, v15"); a("v_or_b32 v14, v14, v9")
    a("v_and_b32 v9, 3, v0"); a("v_lshlrev_b32 v9, 3, v9")
    a("v_lshlrev_b32 v12, 7, v13"); a("v_add_u32 v12, v12, v9")
    a(f"v_xor_b32 v{WA}, {sW}, v14"); a(f"v_lshlrev_b32 v{WA}, 5, v{WA}"); a(f"v_add_u32 v{WA}, v{WA}, v12"); a(f"v_add_u32 v{WA}, {WOFF}, v{WA}")
    a("v_lshlrev_b32 v5, 2, v11"); a("v_sub_u32 v6, v5, v10")
    a(f"s_mul_i32 s64, {sB}, 144"); a(f"s_lshl_b32 s65, {sG}, 1"); a("s_add_u32 s64, s64, s65"); a(f"s_lshr_b32 s65, {sW}, 1"); a("s_add_u32 s64, s64, s65")
    a("s_lshl_b32 s74, s64, 12"); a(f"s_and_b32 s65, {sW}, 1"); a("s_lshl_b32 s65, s65, 11"); a("s_add_u32 s74, s74, s65")
    a(f"s_add_u32 s75, s74, {72*4096}")
    a(f"s_mov_b32 s76, 0x{f32bits(0.25*LOG2E):x}"); a("s_mov_b32 s77, s76")
    a("v_lshlrev_b32 v9, 4, v0")
    a("s_waitcnt lgkmcnt(0)")
    compute_common_setup(a, opt)
    cpad(a, opt, "KPA_1")
    a(f"v_mov_b32 v7, 0x{BIG:x}")
    a(f"s_cmp_eq_u32 {sB}, 0"); a(f"s_cselect_b32 s64, 0x{BIG:x}, 0"); a("v_mov_b32 v8, s64")
    a(f"v_mov_b32 v{MC}, 0"); a(f"v_mov_b32 v{MC+1}, 0")
    for r in range(4):
        a(f"v_add_u32 v14, {r+7}, v6")
        a("v_cmp_gt_u32 vcc, 8, v14")
        a(f"v_mov_b32 v15, {'0xffff' if r % 2 == 0 else '0xffff0000'}")
        a(f"v_add_u32 v14, {r}, v6")
        a(f"v_cndmask_b32 v{BC+r}, v7, v1, vcc")
        a("v_cndmask_b32 v15, v1, v15, vcc")
        a(f"v_or_b32 v{MC+(r>>1)}, v{MC+(r>>1)}, v15")
        a("v_cmp_le_i32 vcc, 9, v14")
        a(f"v_add_u32 v15, {r}, v5")
        a("v_cmp_gt_u32 s[64:65], 8, v15")
        a(f"v_cndmask_b32 v{BP+r}, v7, v1, vcc")
        a(f"v_cndmask_b32 v{BP0+r}, v7, v8, vcc")
        a("v_cmp_le_i32 vcc, 1, v14"); a("s_nop 0")
        a("s_and_b64 vcc, vcc, s[64:65]")
        a(f"v_cndmask_b32 v{BP4+r}, v7, v8, vcc")
    cpad(a, opt, "KPA_2")
    for i in range(104): a(f"v_mov_b32 v{ACC+i}, 0")
    def reads(kk, s):
        ws = []
        for p in range(3):
            for h in range(2):
                ws.append(f"ds_read_b64_tr_b16 {vr(wf(s,p)+2*h,2)}, v{WA} offset:{p*8192 + kk*4096 + h*512}")
        xs = [f"ds_read_b128 {vr(xf(s,t),4)}, v{XA[kk]} offset:{t*2048 if t < 8 else EOFF}" for t in range(9)]
        return mix(xs, ws)
    def mfmas(s):
        r = []
        for t in range(9):
            if t < 8: r.append(f"v_mfma_f32_16x16x32_bf16 {vr(Q(t),4)}, {vr(wf(s,0),4)}, {vr(xf(s,t),4)}, {vr(Q(t),4)}")
            r.append(f"v_mfma_f32_16x16x32_bf16 {vr(K(t),4)}, {vr(wf(s,1),4)}, {vr(xf(s,t),4)}, {vr(K(t),4)}")
            r.append(f"v_mfma_f32_16x16x32_bf16 {vr(V(t),4)}, {vr(xf(s,t),4)}, {vr(wf(s,2),4)}, {vr(V(t),4)}")
        return r
    a("s_mov_b32 s66, 0x3f803f80")
    mainloop(a, opt, "KA", XA + [WA], reads, mfmas)
    QB = FR; KB = FR + 16; M = FR + 34; ONES = FR + 44; VB = FR + 48; PB = FR + 68; TM = FR + 100
    E = [f"global_load_dwordx2 v[10:11], v1, s[{PDBG}:{PDBG+1}] sc1"] + mfmas(1)
    e = E.append
    def cvt(d, s): e(f"v_cvt_pk_bf16_f32 v{d}, v{s}, v{s+1}"); e(f"v_cvt_pk_bf16_f32 v{d+1}, v{s+2}, v{s+3}")
    for i in range(4): e(f"v_mov_b32 v{ONES+i}, s66")
    for t in range(8): cvt(QB + 2 * t, Q(t))
    for t in range(9): cvt(KB + 2 * t, K(t))
    def vslot(t): return (1 + t) if t < 4 else (2 + t)
    for t in range(8): cvt(VB + 2 * vslot(t), V(t))
    for d in (VB, VB + 10): cvt(d, V(8))
    for t in range(8):
        prev = 8 if t in (0, 4) else t - 1
        bp = BP0 if t == 0 else (BP4 if t == 4 else BP)
        e(f"v_mfma_f32_16x16x16_bf16 {vr(Q(t),4)}, {vr(KB+2*t,2)}, {vr(QB+2*t,2)}, {vr(BC,4)}")
        e(f"v_mfma_f32_16x16x16_bf16 {vr(K(t),4)}, {vr(KB+2*prev,2)}, {vr(QB+2*t,2)}, {vr(bp,4)}")
    for t in range(8):
        for r in range(4): e(f"v_max_f32 v{Q(t)+r}, v{Q(t)+r}, v{K(t)+r}")
        e(f"v_max3_f32 v{M+t}, v{Q(t)}, v{Q(t)+1}, v{Q(t)+2}")
        e(f"v_max_f32 v{M+t}, v{M+t}, v{Q(t)+3}")
    for b4 in (0, 4):
        m0, m1, m2, m3 = M + b4, M + b4 + 1, M + b4 + 2, M + b4 + 3
        e(f"v_permlane32_swap_b32 v{m0}, v{m1}"); e(f"v_max_f32 v{m0}, v{m0}, v{m1}")
        e(f"v_permlane32_swap_b32 v{m2}, v{m3}"); e(f"v_max_f32 v{m2}, v{m2}, v{m3}")
        e(f"v_permlane16_swap_b32 v{m0}, v{m2}"); e(f"v_max_f32 v{m0}, v{m0}, v{m2}")
        k0, k1, k2, k3 = K(b4), K(b4 + 1), K(b4 + 2), K(b4 + 3)
        e(f"v_mul_f32 v{k0}, s76, v{m0}"); e(f"v_mul_f32 v{k2}, s76, v{m0}")
        e(f"v_permlane16_swap_b32 v{k0}, v{k2}")
        e(f"v_mov_b32 v{k1}, v{k0}"); e(f"v_mov_b32 v{k3}, v{k2}")
        e(f"v_permlane32_swap_b32 v{k0}, v{k1}"); e(f"v_permlane32_swap_b32 v{k2}, v{k3}")
    pk = opt.get("pk", 1)
    for t in range(8):
        if pk:
            for r in (0, 2): e(f"v_pk_fma_f32 {vr(Q(t)+r,2)}, {vr(Q(t)+r,2)}, s[76:77], {vr(K(t),2)} op_sel_hi:[1,1,0] neg_lo:[0,0,1] neg_hi:[0,0,1]")
        else:
            for r in range(4): e(f"v_fma_f32 v{Q(t)+r}, v{Q(t)+r}, s76, -v{K(t)}")
        for r in range(4): e(f"v_exp_f32 v{Q(t)+r}, v{Q(t)+r}")
        cvt(PB + 4 * t + 2, Q(t))
        for h in range(2): e(f"v_bfi_b32 v{PB+4*t+h}, v{MC+h}, 0, v{PB+4*t+2+h}")
        for h in range(2): e(f"v_and_b32 v{PB+4*t+2+h}, v{MC+h}, v{PB+4*t+2+h}")
        e(f"v_mfma_f32_16x16x32_bf16 {vr(K(t),4)}, {vr(ONES,4)}, {vr(PB+4*t,4)}, 0")
        e(f"v_mfma_f32_16x16x32_bf16 {vr(Q(t),4)}, {vr(VB+2*(vslot(t)-1),4)}, {vr(PB+4*t,4)}, 0")
        e(f"v_rcp_f32 v{K(t)}, v{K(t)}")
        if pk:
            for r in (0, 2): e(f"v_pk_mul_f32 {vr(Q(t)+r,2)}, {vr(Q(t)+r,2)}, {vr(K(t),2)} op_sel_hi:[1,0]")
        else:
            for r in range(4): e(f"v_mul_f32 v{Q(t)+r}, v{Q(t)+r}, v{K(t)}")
        cvt(QB + 2 * t, Q(t))
        if t & 1:
            d = QB + 2 * t - 2
            e(f"v_permlane16_swap_b32 v{d}, v{d+2}"); e(f"v_permlane16_swap_b32 v{d+1}, v{d+3}")
            e(f"buffer_store_dwordx4 {vr(d,4)}, v9, {q(RWS)}, s{74+(t>>2)} offen offset:{((t>>1)&1)*1024} sc1")
    o, t = schedule(E, 0)
    print("attn epilogue est", t, len(o), file=sys.stderr)
    for x in o: a(x)
    if opt.get("sba", 10) and opt.get("sbl", 1) == 0: a("s_barrier")
    stamp(a, opt, 4)
    compute_publish(a, opt, 10, 4)
    if opt.get("sba", 10) and opt.get("sbl", 1) == 1: a("s_barrier")
    stamp(a, opt, 5)
    if opt.get("gq", 2) == 2:
        a("s_mov_b64 exec, -1")
        srd(a, RX, PX, 2048 * 1024)
        gate_loads(a, 9); a("s_waitcnt vmcnt(0)"); gate_math(a, 9)
    stamp_end(a, opt, 2)
    a("s_endpgm")

def gen_loader(a, opt):
    a("; ---- loader wave")
    VL16, VX0, VX1, VW, VE, VR, VZ = 1, 2, 3, 4, 5, 6, 7
    win = None
    npad = [0]
    def pad():
        return
        k = npad[0]; npad[0] += 1
        a(f"s_branch KP_{k}_S"); a.label(f"KP_{k}"); a("s_branch K_CPRE"); a.label(f"KP_{k}_S")
    b0 = slot_of(0)
    if opt.get("cpf", 2) == 2:
        L = newlab("CS")
        a("s_cmp_ge_u32 s2, 8"); a(f"s_cbranch_scc1 {L}")
        a("s_getpc_b64 s[64:65]")
        G = newlab("GP"); a.label(G)
        a(f"s_lshl_b32 s66, {sW}, 13"); a("v_lshlrev_b32 v10, 7, v0"); a("v_add_u32 v10, s66, v10")
        a(f"s_mov_b32 s66, K_CODE_END-{G}-4")
        a("v_min_u32 v10, s66, v10"); a("global_load_dword v255, v10, s[64:65]")
        a.label(L)
    a("v_lshrrev_b32 v10, 3, v0"); a("v_and_b32 v11, 7, v0"); a("v_lshrrev_b32 v12, 4, v0")
    a(f"s_and_b32 s68, {sW}, 1"); a(f"s_lshr_b32 s69, {sW}, 1")
    a(f"s_lshl_b32 s64, {sB}, 1"); a("s_add_u32 s64, s64, s68"); a("s_lshl_b32 s64, s64, 6"); a("s_add_u32 s64, s64, s69"); a("s_lshl_b32 s64, s64, 10")
    a("v_xor_b32 v13, v11, v12"); a("v_lshlrev_b32 v14, 11, v10"); a("v_lshl_add_u32 v14, v13, 4, v14")
    a(f"v_add_u32 v{VX0}, s64, v14"); a(f"v_xor_b32 v{VX1}, 64, v{VX0}")
    a(f"s_mov_b32 s{RX+3}, 0x20000"); a(f"s_lshl_b32 s{RX+2}, s{RX+3}, 4")
    a(f"s_lshl_b32 s70, {sW}, 12"); a(f"s_add_u32 m0, s70, {b0}"); a("s_movk_i32 s67, 0x4000")
    if opt.get("lstamp") == 3: a("s_memtime s[84:85]")
    a("s_waitcnt lgkmcnt(0)")
    if opt.get("lstamp") == 3: a("s_memtime s[86:87]")
    a(f"s_mov_b64 s[{RX}:{RX+1}], s[{PX}:{PX+1}]")
    a(f"buffer_load_dwordx4 v{VX0}, {q(RX)}, 0 offen lds")
    for m in range(1, 4):
        a("s_addk_i32 m0, 0x400")
        if m > 1: a("s_addk_i32 s67, 0x4000")
        else: a("s_setprio 2" if opt.get("pearly", 0) else "s_nop 0")
        a(f"buffer_load_dwordx4 v{VX0 if m % 2 == 0 else VX1}, {q(RX)}, s67 offen lds")
    a("s_branch K_HOPS")
    a.label("K_HOP")
    if opt.get("cp0", 0): a("s_setprio 3")
    if opt.get("pads", 0):
        a("s_bitcmp1_b32 s2, 6"); a("s_cbranch_scc0 K_HOPA")
        for k in range(3): a(f"s_cmp_eq_u32 s3, {k+1}"); a(f"s_cbranch_scc1 KPF_{k}")
        a("s_branch K_CPRE")
        a.label("K_HOPA")
        for k in range(3): a(f"s_cmp_eq_u32 s3, {k+1}"); a(f"s_cbranch_scc1 KPA_{k}")
    a("s_branch K_CPRE")
    a.label("K_HOPS")
    opt["_decode"]()
    a("s_movk_i32 s74, 3584"); a("s_movk_i32 s75, 128"); a("s_movk_i32 s66, 448")
    a(f"s_mul_i32 s66, s66, {sG}"); a(f"s_and_b32 s67, {sG}, 1"); a("s_lshl_b32 s64, s67, 6"); a("s_add_u32 s64, s64, s66"); a(f"s_lshl_b32 s65, {sG}, 7")
    a(f"s_cmp_eq_u32 {sT}, 0")
    a("s_cmovk_i32 s74, 3072"); a("s_cmovk_i32 s75, 1024"); a("s_cselect_b32 s64, s65, s64")
    a(f"s_cselect_b64 s[{RW}:{RW+1}], s[{PWQKV}:{PWQKV+1}], s[{PW1}:{PW1+1}]"); a(f"s_cselect_b64 s[{RE}:{RE+1}], s[{PX}:{PX+1}], s[{PW1}:{PW1+1}]")
    a(f"s_lshl_b32 s{RW+2}, s74, 9"); a(f"s_mov_b32 s{RW+3}, s{RX+3}"); a(f"s_mov_b32 s{RE+3}, s{RX+3}")
    a("v_and_b32 v15, 1, v12"); a("s_lshl_b32 s65, s68, 2"); a("v_xor_b32 v13, s65, v11"); a("v_lshlrev_b32 v15, 1, v15"); a("v_xor_b32 v15, v15, v13")
    a(f"s_lshl_b32 s65, {sW}, 3"); a(f"v_add_u32 v{VW}, s65, v10"); a(f"v_mul_u32_u24 v{VW}, s74, v{VW}"); a(f"v_lshl_add_u32 v{VW}, v15, 4, v{VW}"); a(f"v_add_u32 v{VW}, s64, v{VW}")
    a(f"s_lshl_b32 s71, {sW}, 10"); a(f"s_addk_i32 s71, {WOFF}")
    a("s_lshl_b32 s73, s74, 6"); a("s_lshl_b32 s74, s74, 5")
    a(f"s_add_u32 m0, s71, {b0}"); a("s_mov_b32 s50, 0")
    for k in range(6):
        if k == 3: a("s_addk_i32 m0, 0x1000"); a("s_add_u32 s50, s50, s74")
        elif 0 < k < 3: a("s_addk_i32 m0, 0x2000"); a("s_add_u32 s50, s50, s75")
        elif k > 3: a("s_addk_i32 m0, -0x2000"); a("s_sub_u32 s50, s50, s75")
        a(f"buffer_load_dwordx4 v{VW}, {q(RW)}, s50 offen lds")
        if k == 0: pad()
    a(f"s_cmp_eq_u32 {sT}, 0"); a("s_cbranch_scc1 KL_EA")
    a("s_cmp_eq_u32 s67, 0"); a("s_movk_i32 s65, 0"); a("s_cmovk_i32 s65, 384"); a("s_add_u32 s66, s66, s65")
    a("v_lshrrev_b32 v15, 2, v0"); a(f"s_lshl_b32 s65, {sW}, 4"); a("v_add_u32 v15, s65, v15"); a(f"v_mul_u32_u24 v{VE}, 3584, v15")
    a("v_lshrrev_b32 v15, 5, v0"); a("v_lshlrev_b32 v15, 1, v15"); a("v_and_b32 v13, 3, v0"); a("v_xor_b32 v15, v15, v13")
    a(f"v_lshl_add_u32 v{VE}, v15, 4, v{VE}"); a(f"v_add_u32 v{VE}, s66, v{VE}")
    a(f"s_lshl_b32 s72, {sW}, 10"); a("s_mov_b32 s76, s73"); a(f"s_mov_b32 s{RE+2}, s{RW+2}")
    a("s_branch KL_ED")
    a.label("KL_EA")
    a(f"s_lshl_b32 s64, {sB}, 7"); a(f"s_cmp_eq_u32 {sB}, 0"); a("s_cselect_b32 s65, -1, 15"); a(f"s_cselect_b32 s{RE+2}, 0, s{RX+2}"); a("s_sub_u32 s64, s64, s65")
    a("s_sub_u32 s64, s64, s68"); a("s_lshl_b32 s64, s64, 10")
    a("s_lshl_b32 s65, s68, 6"); a(f"v_xor_b32 v{VE}, s65, v14"); a(f"v_add_u32 v{VE}, s64, v{VE}")
    a("s_lshl_b32 s72, s68, 10"); a("s_movk_i32 s76, 128")
    a.label("KL_ED")
    a(f"s_add_u32 s72, s72, {EOFF}")
    a(f"s_add_u32 m0, s72, {b0}"); a("s_mov_b32 s77, 1")
    a(f"buffer_load_dwordx4 v{VE}, {q(RE)}, 0 offen lds")
    pad()
    def stage(s, lo=0, hi=11):
        base = slot_of(s)
        L = []
        for k in range(6):
            if k == 0: pre = [f"s_add_u32 m0, s71, {base}", "s_mul_i32 s50, s77, s73"]
            elif k == 3: pre = ["s_addk_i32 m0, 0x1000", "s_add_u32 s50, s50, s74"]
            elif k < 3: pre = ["s_addk_i32 m0, 0x2000", "s_add_u32 s50, s50, s75"]
            else: pre = ["s_addk_i32 m0, -0x2000", "s_sub_u32 s50, s50, s75"]
            L.append(pre + [f"buffer_load_dwordx4 v{VW}, {q(RW)}, s50 offen lds"])
        L.append([f"s_add_u32 m0, s72, {base}", "s_mul_i32 s50, s77, s76", f"buffer_load_dwordx4 v{VE}, {q(RE)}, s50 offen lds"])
        for m in range(4):
            pre = [f"s_add_u32 m0, s70, {base}", "s_lshl_b32 s50, s77, 7"] if m == 0 else ["s_addk_i32 m0, 0x400", "s_addk_i32 s50, 0x4000"]
            L.append(pre + [f"buffer_load_dwordx4 v{VX0 if m % 2 == 0 else VX1}, {q(RX)}, s50 offen lds"])
        L[-1].append("s_add_u32 s77, s77, 1")
        assert lo in (0, 6, 7, 11) and hi in (6, 7, 11)
        for x in L[lo:hi]:
            for y in x: a(y)
    def bar(n, k):
        a(f"s_waitcnt vmcnt({n})"); a("s_barrier")
        if opt.get("lstamp") == 1: a(f"s_memtime s[{84+2*k}:{85+2*k}]")
    def st2(k):
        if opt.get("lstamp") == 2: a(f"s_memtime s[{84+2*k}:{85+2*k}]")
    if opt.get("lstamp"):
        opt = dict(opt); so = opt.copy(); opt["stamps"] = 0
    else: so = opt
    s1a = int(str(opt.get("split", "x7bbbbbb"))[1], 16)
    if opt.get("lstamp") == 3: a("s_memtime s[88:89]")
    stage(1, 0, s1a)
    a("s_branch K_CPRE_S"); opt["_cpre"](); a.label("K_CPRE_S")
    opt["_decode2"]()
    if opt.get("lstamp") == 3:
        a("s_memtime s[90:91]"); a(f"s_waitcnt vmcnt({10 + s1a})"); a("s_memtime s[92:93]"); a(f"s_waitcnt vmcnt({s1a})"); a("s_memtime s[94:95]")
    a(f"v_lshlrev_b32 v{VL16}, 4, v0"); a(f"v_mov_b32 v{VZ}, 0")
    srd(a, RWS, PWS, WS_USED)
    a("v_and_b32 v15, 1, v12"); a("v_lshlrev_b32 v15, 2, v15"); a("v_xor_b32 v15, v15, v11"); a("v_lshlrev_b32 v15, 4, v15")
    a(f"v_lshlrev_b32 v{VR}, 10, v10"); a(f"v_add_u32 v{VR}, v{VR}, v15")
    a(f"s_mul_i32 s100, {sW}, 19"); a("s_sub_u32 s100, s100, 3"); a(f"s_cmp_eq_u32 {sW}, 0"); a("s_cselect_b32 s100, 0, s100"); a("s_cselect_b32 s101, 16, 19")
    a(f"s_cmp_eq_u32 {sW}, 3"); a("s_cselect_b32 s101, 18, s101"); a("s_lshl_b32 s101, s101, 12")
    a(f"s_mul_i32 s64, {sU}, 72"); a("s_add_u32 s64, s64, s100"); a("s_lshl_b32 s64, s64, 12")
    srd(a, RA, PWS, "s101", "s64")
    a("s_sub_u32 s64, s100, 16"); a("s_lshl_b32 s64, s64, 15")
    a(f"s_cmp_eq_u32 {sW}, 0"); a("s_cselect_b32 s64, 0, s64")
    a(f"s_cselect_b32 s66, s{PWO}, s{PW2}"); a(f"s_cselect_b32 s67, s{PWO+1}, s{PW2+1}")
    a(f"s_lshl_b32 s65, {sCT}, 7"); a("s_add_u32 s64, s64, s65")
    a(f"s_add_u32 s{RB}, s66, s64"); a(f"s_addc_u32 s{RB+1}, s67, 0")
    a(f"s_lshl_b32 s{RB+2}, s101, 3"); a(f"s_sub_u32 s{RB+2}, s{RB+2}, s65"); a(f"s_mov_b32 s{RB+3}, 0x20000")
    a(f"s_lshl_b32 s79, {sW}, 12"); a(f"s_sub_u32 s79, {TOP-4096}, s79")
    a(f"s_cmp_eq_u32 {sW}, 0"); a(f"s_cselect_b32 s79, {TOP-4096-16384}, s79")
    a(f"v_mov_b32 v13, {TOP-4096}"); a(f"ds_write_b32 v13, v{VZ}"); a("s_waitcnt lgkmcnt(0)")
    a("v_lshrrev_b32 v13, 5, v0"); a("v_lshlrev_b32 v13, 10, v13"); a("v_bfe_u32 v14, v0, 2, 2"); a("v_lshlrev_b32 v14, 7, v14"); a("v_add_u32 v13, v13, v14")
    a("v_bfe_u32 v14, v0, 3, 1"); a("v_lshlrev_b32 v14, 6, v14"); a("v_add_u32 v13, v13, v14")
    a("v_bfe_u32 v14, v0, 4, 1"); a("v_lshlrev_b32 v14, 5, v14"); a("v_add_u32 v13, v13, v14")
    a("v_and_b32 v14, 3, v0"); a("v_lshlrev_b32 v14, 3, v14"); a("v_add_u32 v13, v13, v14")
    a(f"s_sub_u32 s64, s79, {3*16384}"); a("v_add_u32 v58, s64, v13"); a("v_xor_b32 v59, 64, v58")
    for k, dr in ((60, 4), (62, 6)):
        a(f"v_subrev_u32 v{k}, {dr*16384}, v58"); a(f"v_subrev_u32 v{k+1}, {dr*16384}, v59")
    a(f"v_mul_u32_u24 v57, {FSTR}, v0")
    sp = [int(c, 16) for c in str(opt.get("split", "x7bbbbbb"))[1:]]
    assert sp[0] == s1a
    vm = [("S", 0)] * 11 + [("S", 1)] * s1a
    EA = opt.get("ea", 0)
    def skipA(t): return t[0] == "B" and t[1] < EA
    def younger(tag, attn=False):
        idx = max(i for i, t in enumerate(vm) if t == tag)
        return sum(1 for t in vm[idx+1:] if not (attn and skipA(t)))
    def vwait(tag):
        nf, na = younger(tag), younger(tag, True)
        if nf == na: a(f"s_waitcnt vmcnt({nf})"); return
        L1 = newlab("VW")
        a(f"s_waitcnt vmcnt({nf})"); a(f"s_cmp_lg_u32 {sT}, 0"); a(f"s_cbranch_scc1 {L1}"); a(f"s_waitcnt vmcnt({na})"); a.label(L1)
    class ffn_only:
        def __init__(self, on): self.on = on
        def __enter__(self):
            if self.on: self.L = newlab("FO"); a(f"s_cmp_eq_u32 {sT}, 0"); a(f"s_cbranch_scc1 {self.L}")
        def __exit__(self, *x):
            if self.on: a.label(self.L)
    def bar2(tag, k):
        vwait(tag); a("s_barrier")
        if opt.get("lstamp") == 1: a(f"s_memtime s[{84+2*k}:{85+2*k}]")
    def stage_t(s_, lo=0, hi=11): stage(s_, lo, hi); vm.extend([("S", s_)] * (hi - lo))
    br = opt.get("brot", 1)
    mp = opt.get("map", "Y")
    if br == 0: a("s_mov_b32 s14, 0")
    elif mp == "Z" and opt.get("p2map", 0) == 0: a(f"s_and_b32 s14, {sB}, 3"); a("s_lshl_b32 s14, s14, 14")
    elif mp == "Z": a(f"s_and_b32 s14, {sU}, 7"); a("s_lshl_b32 s14, s14, 13")
    elif mp == "Y" and not opt.get("p2alt", 0): a(f"s_and_b32 s14, {sB}, 7"); a("s_lshl_b32 s14, s14, 13")
    else: a(f"s_and_b32 s14, {sU}, 3"); a("s_lshl_b32 s14, s14, 14")
    a("s_lshl_b32 s8, s14, 3"); a("s_lshl_b32 s9, s101, 3")
    ACC = 8; BR = 72
    def bdma(tag, j, certain=True):
        for k in range(4):
            a(f"s_sub_u32 m0, s79, {16384*j - 1024*k}") if 16384*j - 1024*k >= 0 else a(f"s_add_u32 m0, s79, {1024*k - 16384*j}")
            a("s_nop 0")
            a(f"buffer_load_dwordx4 v{VR}, {q(RB)}, s8 offen lds")
            a("s_add_u32 s8, s8, 8192")
        a("s_cmp_ge_u32 s8, s9"); a("s_cselect_b32 s8, 0, s8")
        if certain: vm.extend([("B", tag)] * 4)
    def stg(i, j):
        r = 3 if j < 4 else (7 if j < 8 else 9)
        va = {3: 58, 7: 60, 9: 62}[r]
        for f in range(4):
            for e in range(2):
                a(f"ds_read_b64_tr_b16 {vr(BR+16*i+4*f+2*e,2)}, v{va+(f&1)} offset:{(r-j)*16384 + (f>>1)*2048 + e*512}")
    if "ebi" in opt: ebi = [int(c) for c in str(opt["ebi"])[1:]]
    else: ebi = list(range(5 - opt.get("eb", 4), 5))
    E = len(ebi)
    ne = 0
    if EA:
        assert E == 0 and EA <= 4
        a(f"s_cmp_lg_u32 {sT}, 0"); a("s_cbranch_scc1 KL_NOEA")
        for t in range(EA): bdma(t, t, False)
        for t in range(EA):
            a(f"s_waitcnt vmcnt({4*(EA-1-t)})"); stg(t, t)
        a("s_waitcnt lgkmcnt(0)")
        a.label("KL_NOEA")
    for s_ in range(6):
        bar(younger(("S", s_)), s_)
        if s_ == 0:
            stamp(a, opt, 0)
            if not opt.get("pearly", 0): a("s_setprio 2")
        if sp[s_] < 11: stage_t(s_ + 1, sp[s_], 11)
        nb = ebi.count(s_) + (s_ == 5)
        mid = opt.get("mid", 6)
        if nb and ne > 0 and mid < sp[s_ + 1] and s_ >= opt.get("midfrom", 0):
            stage_t(s_ + 2, 0, mid)
            a(f"s_waitcnt vmcnt({younger(('B', ne - 1))})"); stg(ne - 1, 0)
            stage_t(s_ + 2, mid, sp[s_ + 1])
            a("s_waitcnt lgkmcnt(0)")
            bdma(ne, 0); ne += 1; nb -= 1
        else:
            stage_t(s_ + 2, 0, sp[s_ + 1])
        for _ in range(nb):
            if ne > 0:
                a(f"s_waitcnt vmcnt({younger(('B', ne - 1))})"); stg(ne - 1, 0); a("s_waitcnt lgkmcnt(0)")
            with ffn_only(EA > 0): bdma(ne, 0)
            ne += 1
    assert sp[6] == 11 and ne == E + 1
    a("s_mov_b32 s77, s14")
    srd(a, RAUX, POUT, 2048 * 1024)
    a(f"s_lshr_b32 s68, {sU}, 1"); a(f"s_mul_i32 s68, s68, {16*FSTR}"); a(f"s_add_u32 s68, s68, {FA_OFF}")
    def fm(g0, g1): return sum(0x100 << g for g in range(g0, g1 + 1))
    a(f"s_mov_b32 s{RR}, 0x{fm(0,2):x}"); a(f"s_cmp_eq_u32 {sW}, 2"); a(f"s_cselect_b32 s{RR}, 0x{fm(2,5):x}, s{RR}")
    a(f"s_cmp_eq_u32 {sW}, 3"); a(f"s_cselect_b32 s{RR}, 0x{fm(5,7):x}, s{RR}")
    a(f"s_cmp_eq_u32 {sW}, 0"); a(f"s_cselect_b32 s{RR}, 0xff, s{RR}"); a(f"s_mov_b32 s{RR+1}, 0")
    a(f"s_lshl_b32 s69, {sU}, 9"); a(f"s_lshl_b32 s64, {sW}, 7"); a("s_add_u32 s69, s69, s64"); a(f"s_add_u32 s69, s69, {G_OFF}")
    bar2(("S", 6), 6)
    stamp(a, opt, 1)
    with ffn_only(EA > 1):
        for t in range(1, max(1, min(4, EA))): bdma(E + t, t)
    for t in range(max(1, EA), 4): bdma(E + t, t)
    bar2(("S", 7), 7)
    for t in range(4, 7): bdma(E + t, t)
    NSG = 9 - E
    staged = 0
    def stage_upto(t_end):
        nonlocal staged
        t_end = min(t_end, NSG)
        if staged >= t_end: return
        vwait(('B', E + t_end - 1))
        with ffn_only(staged < EA):
            for t in range(staged, min(t_end, EA)): stg(E + t, t)
        for t in range(max(staged, EA), t_end): stg(E + t, t)
        staged = t_end
    if opt.get("early", 1): stage_upto(3)
    a("s_barrier")
    stamp(a, opt, 2); st2(0)
    ref = [9]
    def btr(j, regs):
        r = 3 if j < 4 else (7 if j < 8 else 9)
        out = []
        if r != ref[0]:
            d = ((ref[0] - r) * 16384) & 0xffffffff
            out.append("\n".join(f"v_add_u32 v{2+nt}, 0x{d:x}, v{2+nt}" for nt in range(2))); ref[0] = r
        for f in range(4):
            out.append("\n".join(f"ds_read_b64_tr_b16 {vr(regs[f]+2*e,2)}, v{2+(f&1)} offset:{(r-j)*16384 + (f>>1)*2048 + e*512}" for e in range(2)))
        return out
    gq = opt.get("gq", 2)
    if opt.get("lp", 2) != 2: a(f"s_setprio {opt.get('lp')}")
    bdma(E + 7, 7)
    stage_upto(5); st2(1)
    def fpause():
        if opt.get("sb", 2): a(f"s_cmp_eq_u32 {sT}, 0"); a("s_cbranch_scc1 KL_NOSB"); a("s_barrier"); a.label("KL_NOSB")
    if opt.get("sbn", 1) == 1: fpause()
    st2(2)
    bdma(E + 8, 8)
    if opt.get("sbn", 1) == 2: fpause()
    a(f"s_cmp_eq_u32 {sW}, 0"); a("s_cbranch_scc1 KL_SK9")
    bdma(E + 9, 9, False)
    a.label("KL_SK9"); st2(3)
    def apause(t):
        if opt.get("sba", 10) == t:
            a(f"s_cmp_lg_u32 {sT}, 0"); a("s_cbranch_scc1 KL_NOSA"); a("s_barrier"); a.label("KL_NOSA")
    apause(9)
    tl = list(range(10, 19 - E))
    assert len(tl) >= 2
    freed = 0
    did_misc = False
    def misc():
        if gq == 1:
            a(f"s_cmp_lg_u32 {sT}, 0"); a("s_cbranch_scc1 KL_NOG1"); gate_loads(a, VL16); a.label("KL_NOG1")
        a(f"global_load_dwordx2 v[10:11], v{VZ}, s[{PDBG}:{PDBG+1}] sc1"); vm.append(("T", 0))
    for t in tl[:-2]:
        if t - 10 >= freed:
            a("s_waitcnt lgkmcnt(0)"); freed = staged
            stage_upto(staged + 2)
        if t == tl[max(0, len(tl) - 4)]: misc(); did_misc = True
        bdma(E + t, t - 10)
        apause(t)
        if t in (12, 14, 16): st2(4 + (t - 12) // 2)
    stage_upto(9)
    if not did_misc: misc()
    a(f"s_mov_b64 exec, s[{RR}:{RR+1}]")
    a(f"buffer_load_dwordx2 v[8:9], v57, {q(RWS)}, s68 offen sc1")
    a("s_mov_b64 exec, -1")
    a("s_waitcnt lgkmcnt(0)")
    a(f"s_cmp_eq_u32 {sW}, 0"); a("s_cbranch_scc1 KL_W0")
    bdma(0, tl[-2] - 10, False)
    a(f"s_cmp_eq_u32 {sW}, 3"); a("s_cbranch_scc1 KL_W1")
    bdma(0, tl[-1] - 10, False)
    a("s_waitcnt vmcnt(8)"); a("s_branch KL_W2")
    a.label("KL_W0"); a("s_waitcnt vmcnt(0)")
    a.label("KL_W1"); a("s_waitcnt vmcnt(4)")
    a.label("KL_W2")
    stamp(a, opt, 3); st2(7)
    tag_check(a, 10, VZ)
    a("v_mov_b32 v2, v62"); a("v_mov_b32 v3, v63")
    if gq < 2:
        a(f"s_cmp_lg_u32 {sT}, 0"); a("s_cbranch_scc1 KL_NOG")
        if gq == 0: gate_loads(a, VL16); a("s_waitcnt vmcnt(0)")
        gate_math(a, VL16)
        a.label("KL_NOG")
    a("v_lshrrev_b32 v7, 4, v0"); a("v_lshlrev_b32 v7, 4, v7")
    a(f"s_mov_b64 exec, s[{RR}:{RR+1}]")
    poll(a, 8, 57, "s68", f"s[{RR}:{RR+1}]", first_loaded=True)
    a("s_mov_b64 exec, -1")
    a("s_waitcnt lgkmcnt(0)")
    stamp(a, opt, 4)
    ref0 = ref[0]
    a(f"s_lshr_b32 s64, {sU}, 1"); a("s_lshl_b32 s64, s64, 7"); a(f"s_lshl_b32 s65, {sW}, 5"); a("s_add_u32 s64, s64, s65"); a(f"s_and_b32 s65, {sU}, 1"); a("s_add_u32 s64, s64, s65")
    a(f"s_cmp_eq_u32 {sW}, 0"); a("s_cbranch_scc1 KL_V16")
    a(f"s_cmp_eq_u32 {sW}, 3"); a("s_cbranch_scc1 KL_V18")
    def acc(tp, np_): return ACC + 16 * (2 * tp + np_)
    DM = opt.get("dmax", 12)
    WA = 80; RA_ = 88; OV = 92
    fill = [
        "s_lshl_b32 s64, s64, 10", f"s_lshl_b32 s65, {sCT}, 7", "s_add_u32 s70, s64, s65", "s_add_u32 s71, s70, 16384",
        f"s_sub_u32 s72, s79, {2*16384}", f"s_lshl_b32 s73, {sW}, 14", f"s_sub_u32 s73, {TOP-32768}, s73",
        "v_and_b32 v93, 15, v0", "v_lshrrev_b32 v94, 5, v0", "v_xor_b32 v94, v94, v93", "v_lshlrev_b32 v94, 4, v94",
        "v_lshlrev_b32 v95, 8, v93", "v_add_u32 v94, v94, v95", "v_bfe_u32 v95, v0, 4, 1", "v_lshlrev_b32 v95, 14, v95", "v_sub_u32 v94, v94, v95",
        f"v_add_u32 v{WA}, s72, v94"] + [f"v_xor_b32 v{WA+k}, {32*k}, v{WA}" for k in range(1, 8)] + [
        "v_lshrrev_b32 v93, 3, v0", "v_and_b32 v94, 7, v0", f"v_lshlrev_b32 v{OV}, 11, v93", "v_lshlrev_b32 v95, 4, v94", f"v_add_u32 v{OV}, v{OV}, v95",
        "v_lshlrev_b32 v95, 1, v94", "v_xor_b32 v95, v95, v93", "v_lshlrev_b32 v95, 4, v95", "v_lshlrev_b32 v93, 8, v93", "v_add_u32 v95, v95, v93",
        f"v_add_u32 v{RA_}, s73, v95", f"v_xor_b32 v{RA_+1}, 16, v{RA_}", f"v_xor_b32 v{RA_+2}, 128, v{RA_}", f"v_xor_b32 v{RA_+3}, 144, v{RA_}",
        "v_and_b32 v93, 8, v0", "v_cmp_ne_u32 s[74:75], 0, v93"]
    for nst, lab in ((19, None), (18, "KL_V18"), (16, "KL_V16")):
        a(".p2align 3")
        if lab: a.label(lab)
        free = list(range(BR + 16 * NBR, 256, 4)); ref[0] = ref0
        pend = [("A", i, b) for i in range(nst) for b in range(4)]
        gi = 4 * opt.get("gstep", 13)
        pend[gi:gi] = [("G", 0, 0), ("G", 1, 0)]
        loc = {}; issued = []; cur_soff = [None]
        done_loads = [0]
        fl = list(fill)
        def issue():
            if not pend: return False
            if len(issued) - done_loads[0] >= DM: return False
            if pend[0][0] == "A" and not free: return False
            k = pend.pop(0); issued.append(k)
            if k[0] == "A":
                r = free.pop(0); loc[k] = r
                if cur_soff[0] != k[1] and k[1]:
                    a("s_add_u32 s77, s77, 4096"); a("s_cmp_ge_u32 s77, s101"); a("s_cselect_b32 s77, 0, s77"); cur_soff[0] = k[1]
                a(f"buffer_load_dwordx4 {vr(r,4)}, v{VL16}, {q(RA)}, s77 offen offset:{k[2]*1024} {opt.get('ald', 'sc1')}")
            else:
                a(f"buffer_load_dwordx4 {vr(72+4*k[1],4)}, v7, {q(RWS)}, s69 offen offset:{k[1]*64} sc1")
            return True
        while issue(): pass
        bl = {}
        ldsq = []
        for i in range(nst):
            Bv = [BR + 16 * i + 4 * n for n in range(4)] if i < NBR else bl[i]
            needb = NBR <= i + 2 < nst
            if needb:
                tt = i + 2 - E; md = 10 if nst > 16 else 9
                tr = btr(tt if tt < md else tt - md, Bv)
                if len(tr) == 5: a(tr.pop(0))
                bl[i + 2] = Bv
            if i == nst - 1:
                assert not pend and not fl
                a("s_waitcnt vmcnt(0) lgkmcnt(0)"); a("s_nop 0")
                L_ = []
                for tp in range(2):
                    for np_ in range(2):
                        for half in range(2):
                            L_.append(f"v_mfma_f32_32x32x16_bf16 {vr(acc(tp,np_),16)}, {vr(Bv[2*half+np_],4)}, {vr(loc[('A', i, 2*half+tp)],4)}, {vr(acc(tp,np_),16)}")
                L_ += ["v_cndmask_b32 v96, v72, v73, s[74:75]", "v_cndmask_b32 v98, v76, v77, s[74:75]", "v_sub_f32 v100, 1.0, v96", "v_sub_f32 v101, 1.0, v98",
                       "v_cvt_pk_bf16_f32 v100, v100, v101", "v_and_b32 v102, 0xffff0000, v100", "v_lshlrev_b32 v100, 16, v100",
                       f"v_cmp_eq_u64 vcc, s[{TAG}:{TAG+1}], v[74:75]", f"v_cmp_eq_u64 s[64:65], s[{TAG}:{TAG+1}], v[78:79]"]
                for tp in range(2):
                    for np_ in range(2):
                        for j in range(4):
                            L_.append(f"ds_write_b128 v{WA+4*np_+j}, {vr(acc(tp,np_)+4*j,4)} offset:{(1-tp)*32768}")
                M_ = L_[:8]; V_ = L_[8:17]; W_ = L_[17:]
                seq = [M_[0], M_[1], M_[2]] + V_[:5] + [M_[3]] + V_[5:] + [M_[4]] + W_[0:4] + [M_[5], "s_nop 1"] + W_[4:6] + [M_[6]] + W_[6:8] + [M_[7], "s_nop 3"] + W_[8:12] + ["s_nop 3"] + W_[12:]
                for x in seq: a(x)
                break
            for half in range(2):
                for tp in range(2):
                    blk = 2 * half + tp
                    idx = issued.index(("A", i, blk)); done_loads[0] = idx + 1
                    w = f"s_waitcnt vmcnt({len(issued) - idx - 1})"
                    if i >= NBR and tp == 0:
                        li = ldsq.index((i, 2 * half + 1))
                        w += f" lgkmcnt({min(15, 2 * (len(ldsq) - li - 1))})"
                    a(w); a("s_nop 0")
                    A = loc[("A", i, blk)]
                    for np_ in range(2):
                        c = vr(acc(tp, np_), 16) if (i > 0 or half > 0) else "0"
                        f = 2 * half + np_
                        a(f"v_mfma_f32_32x32x16_bf16 {vr(acc(tp,np_),16)}, {vr(Bv[f],4)}, {vr(A,4)}, {c}")
                        if np_ == 1: free.append(A)
                        if tp == 1:
                            if needb: a(tr[f]); ldsq.append((i + 2, f))
                            elif i >= 2: free.append(Bv[f])
                        got = issue()
                        if i >= 2 and fl and not got:
                            for _ in range(min(3, len(fl))): a(fl.pop(0))
                            a(".p2align 3")
        if nst != 16: a("s_branch KL_FIN")
    a.label("KL_FIN")
    stamp(a, opt, 5)
    L = newlab("GL"); D = newlab("GD")
    a("s_and_b64 s[64:65], s[64:65], vcc"); a("s_andn2_b64 s[64:65], exec, s[64:65]"); a(f"s_cbranch_scc0 {D}")
    a("s_mov_b32 s66, 0x40000")
    a.label(L)
    a("s_sleep 1")
    a(f"buffer_load_dwordx4 v[72:75], v7, {q(RWS)}, s69 offen sc1"); a(f"buffer_load_dwordx4 v[76:79], v7, {q(RWS)}, s69 offen offset:64 sc1")
    a("s_waitcnt vmcnt(0)")
    for x in ["v_cndmask_b32 v96, v72, v73, s[74:75]", "v_cndmask_b32 v98, v76, v77, s[74:75]", "v_sub_f32 v100, 1.0, v96", "v_sub_f32 v101, 1.0, v98",
              "v_cvt_pk_bf16_f32 v100, v100, v101", "v_and_b32 v102, 0xffff0000, v100", "v_lshlrev_b32 v100, 16, v100",
              f"v_cmp_eq_u64 vcc, s[{TAG}:{TAG+1}], v[74:75]", f"v_cmp_eq_u64 s[64:65], s[{TAG}:{TAG+1}], v[78:79]", "s_nop 0"]: a(x)
    a("s_and_b64 s[64:65], s[64:65], vcc"); a("s_andn2_b64 s[64:65], exec, s[64:65]"); a(f"s_cbranch_scc0 {D}")
    a("s_sub_u32 s66, s66, 1"); a("s_cmp_lg_u32 s66, 0"); a(f"s_cbranch_scc1 {L}")
    a.label(D)
    a("s_waitcnt lgkmcnt(0)"); a("s_barrier"); stamp(a, opt, 6, True)
    T = 104
    def P(h, src): return T + 32 * h + 8 * src
    for h in range(2):
        for src in (0, 1, 2, 3):
            for e in range(2):
                off = (3 - src) * 4096 + h * 2048 + (16384 if src else 0)
                a(f"ds_read_b128 {vr(P(h,src)+4*e,4)}, v{RA_+2*h+e} offset:{off}")
    for h in range(2):
        a(f"s_waitcnt lgkmcnt({8*(1-h)+6})")
        for i in range(0, 8, 2): a(f"v_pk_mul_f32 {vr(P(h,0)+i,2)}, {vr(P(h,0)+i,2)}, {vr(96+2*h,2)} op_sel_hi:[1,0]")
        a(f"s_waitcnt lgkmcnt({8*(1-h)+2})")
        for i in range(0, 8, 2): a(f"v_pk_add_f32 {vr(P(h,1)+i,2)}, {vr(P(h,1)+i,2)}, {vr(P(h,2)+i,2)}")
        a(f"s_waitcnt lgkmcnt({8*(1-h)})")
        for i in range(0, 8, 2): a(f"v_pk_add_f32 {vr(P(h,1)+i,2)}, {vr(P(h,1)+i,2)}, {vr(P(h,3)+i,2)}")
        for i in range(0, 8, 2): a(f"v_pk_fma_f32 {vr(P(h,0)+i,2)}, {vr(P(h,1)+i,2)}, {vr(100+2*h,2)}, {vr(P(h,0)+i,2)} op_sel_hi:[1,0,1]")
        for i in range(4): a(f"v_cvt_pk_bf16_f32 v{P(h,2)+i}, v{P(h,0)+2*i}, v{P(h,0)+2*i+1}")
        a(f"buffer_store_dwordx4 {vr(P(h,2),4)}, v{OV}, {q(RAUX)}, s{70+h} offen {opt.get('ost', '')}")
    stamp(a, opt, 7)
    if so.get("stamps"): a(f"s_add_u32 s100, {sW}, 40")
    if so.get("stamps"): a(f"s_lshl_b32 s64, {sT}, 2"); a("s_add_u32 s100, s100, s64")
    stamp_end(a, so, "s100")

def generate(opt):
    a = Asm()
    post = opt.get("post")
    if post is None:
        a(f"; @launch grid=(256,1,1) block=(512,1,1) lds={LDS_BYTES}")
    else:
        a(f"; @launch kernel={NAME}_kernel grid=(256,1,1) block=(512,1,1) lds={LDS_BYTES}")
        a(f"; @launch kernel=k3_kernel grid=(1,1,1) block=(64,1,1) lds=0")
    a('.amdgcn_target "amdgcn-amd-amdhsa--gfx950"'); a(".text")
    gen(a, opt)
    if post is not None:
        wg, wv, idx, rf, sh = [int(x) for x in post.split(",")]
        a(".globl k3_kernel"); a(".p2align 8"); a(".type k3_kernel,@function"); a.label("k3_kernel")
        a("s_load_dwordx2 s[8:9], s[0:1], 72"); a("s_waitcnt lgkmcnt(0)")
        a(f"s_add_u32 s8, s8, {STAMP_OFF}"); a("s_addc_u32 s9, s9, 0")
        off = (wg * 8 + wv) * 64
        a("s_load_dword s4, s[8:9], 0"); a(f"s_load_dword s12, s[8:9], {off + 4*idx}"); a(f"s_load_dword s13, s[8:9], {off + 4*rf}"); a("s_memrealtime s[10:11]"); a("s_waitcnt lgkmcnt(0)")
        a("s_sub_u32 s12, s12, s13")
        a(f"s_lshr_b32 s12, s12, {sh}") if sh >= 0 else a(f"s_lshl_b32 s12, s12, {-sh}")
        a("s_min_u32 s12, s12, 20000"); a("s_add_u32 s12, s12, 6000")
        a.label("K3_L"); a("s_memrealtime s[6:7]"); a("s_waitcnt lgkmcnt(0)")
        a("s_sub_u32 s7, s6, s10"); a("s_cmp_gt_u32 s7, 30000"); a("s_cbranch_scc1 K3_E")
        a("s_sub_u32 s6, s6, s4"); a("s_cmp_lt_u32 s6, s12"); a("s_cbranch_scc1 K3_L")
        a.label("K3_E"); a("s_endpgm")
    a('.section .rodata,"a"'); a(".p2align 6")
    a(f".amdhsa_kernel {NAME}_kernel")
    a("  .amdhsa_next_free_vgpr 256"); a("  .amdhsa_next_free_sgpr 102"); a("  .amdhsa_accum_offset 256")
    a("  .amdhsa_group_segment_fixed_size 0"); a("  .amdhsa_kernarg_size 80"); a("  .amdhsa_user_sgpr_count 2")
    a("  .amdhsa_user_sgpr_kernarg_segment_ptr 1"); a("  .amdhsa_system_sgpr_workgroup_id_x 1"); a(".end_amdhsa_kernel")
    if post is not None:
        a(".p2align 6"); a(".amdhsa_kernel k3_kernel")
        a("  .amdhsa_next_free_vgpr 8"); a("  .amdhsa_next_free_sgpr 102"); a("  .amdhsa_accum_offset 8")
        a("  .amdhsa_group_segment_fixed_size 0"); a("  .amdhsa_kernarg_size 80"); a("  .amdhsa_user_sgpr_count 2")
        a("  .amdhsa_user_sgpr_kernarg_segment_ptr 1"); a("  .amdhsa_system_sgpr_workgroup_id_x 1"); a(".end_amdhsa_kernel")
    errs = check(a.lines)
    for e in errs: print(e, file=sys.stderr)
    assert not errs
    return a.text()

if __name__ == "__main__":
    opt = {}
    for kv in sys.argv[2:]:
        k, v = kv.split("=")
        try: v = int(v)
        except: pass
        opt[k] = v
    open(sys.argv[1], "w").write(generate(opt))
```

```python
import sys, struct
from asmlib import *

NAME = "gated_mix__sliding_local_dilated__dense_activation_relu__prompt"
A2_OFF = 0
W2_OFF = 0xA00000
G_OFF = 0xD00000
FW_OFF = 0xD10000
FA_OFF = 0xD20000
WS_USED = 0xD80000
FSTR = 1152
STAMP_OFF = 128 << 20
SLOT = 45056
XOFF, WOFF, EOFF = 0, 16384, 40960
SCR = 3 * SLOT
LDS_BYTES = 163840
TOP = LDS_BYTES
def slot_of(s): return ((7 - s) % 3) * SLOT
BIG = 0xF149F2CA
LOG2E = 1.4426950408889634
KS0 = [0, 16, 35, 54]; NST = [16, 19, 19, 18]
NBR = 9
BL_BASE = [0, 28672, 69632, 110592]
PX, PWQKV, PWO, PW1, PW2, PGATE, POUT, PDBG, PWS = 4, 6, 8, 12, 14, 16, 18, 20, 22
sB, sT, sG, sW, sU, sCT, TAG = "s24", "s25", "s26", "s27", "s28", "s29", 30
RX, RW, RE, RWS, RR, RAUX, RA, RB = 32, 36, 40, 44, 48, 52, 56, 60

def f32bits(x): return struct.unpack("<I", struct.pack("<f", x))[0]
def q(r): return f"s[{r}:{r+3}]"

def srd(a, d, base, size, add=0):
    if add == 0:
        a(f"s_mov_b32 s{d}, s{base}"); a(f"s_mov_b32 s{d+1}, s{base+1}")
    else:
        a(f"s_add_u32 s{d}, s{base}, {add}"); a(f"s_addc_u32 s{d+1}, s{base+1}, 0")
    a(f"s_mov_b32 s{d+2}, {size}"); a(f"s_mov_b32 s{d+3}, 0x20000")

def csel(a, d, x, y):
    a(f"s_mov_b32 {d}, {y}"); a(f"s_cselect_b32 {d}, {x}, {d}")

def spread(a, mf, other, last=4):
    n = len(mf) - last; other = list(other); k = 0
    for i, m in enumerate(mf):
        a(m)
        while k < len(other) and k * n <= i * len(other): a(other[k]); k += 1
    while k < len(other): a(other[k]); k += 1

def mix(xs, ws):
    out = []; i = j = 0
    while i < len(xs) or j < len(ws):
        if j >= len(ws) or (i < len(xs) and i * len(ws) <= j * len(xs)): out.append(xs[i]); i += 1
        else: out.append(ws[j]); j += 1
    return out

def interleave(a, mf, other, start=0, per=1):
    other = list(other)
    for i, m in enumerate(mf):
        a(m)
        if i >= start:
            for _ in range(per):
                if other: a(other.pop(0))
    for o in other: a(o)

def stamp_begin(a, opt):
    if opt.get("stamps"):
        a("s_memrealtime s[80:81]"); a("s_memtime s[82:83]")
        for k in range(8): a(f"s_mov_b32 s{84+2*k}, 0")

def stamp(a, opt, k, wait=False):
    if opt.get("stamps") == 1:
        a(f"s_memtime s[{84+2*k}:{85+2*k}]")
        if wait: a("s_waitcnt lgkmcnt(0)")

def stamp_end(a, opt, tag):
    if not opt.get("stamps"): return
    a("s_waitcnt vmcnt(0) lgkmcnt(0)")
    a("s_memrealtime s[64:65]"); a("s_memtime s[66:67]")
    a("s_waitcnt lgkmcnt(0)")
    srd(a, RAUX, PWS, 1 << 20, STAMP_OFF)
    a("s_lshl_b32 s68, s2, 3"); a("s_add_u32 s68, s68, s3"); a("s_lshl_b32 s68, s68, 6")
    a("s_getreg_b32 s69, hwreg(HW_REG_XCC_ID)")
    a(f"s_mov_b32 s65, {tag}")
    for i, s in enumerate((80, 64, 82, 84, 86, 88, 90, 92, 94, 96, 98, 66, 69, 65, 65, 65)):
        a(f"v_mov_b32 v{8+i}, s{s}")
    a("v_mov_b32 v6, s68")
    a("s_mov_b64 exec, 1")
    for k in range(4):
        a(f"buffer_store_dwordx4 v[{8+4*k}:{11+4*k}], v6, {q(RAUX)}, 0 offen offset:{16*k}")
    a("s_waitcnt vmcnt(0)")

_lab = [0]
def newlab(p):
    _lab[0] += 1; return f"{p}_{_lab[0]}"

def tag_check(a, vt, vz):
    L = newlab("TAGL"); D = newlab("TAGD")
    a("s_mov_b32 s64, 0x40000")
    a.label(L)
    a(f"v_readfirstlane_b32 s{TAG}, v{vt}"); a(f"v_readfirstlane_b32 s{TAG+1}, v{vt+1}"); a("s_nop 0")
    a(f"s_cmp_lg_u32 s{TAG}, 0"); a(f"s_cbranch_scc1 {D}")
    a("s_sub_u32 s64, s64, 1"); a("s_cmp_eq_u32 s64, 0"); a(f"s_cbranch_scc1 {D}")
    a("s_sleep 2")
    a(f"global_load_dwordx2 v[{vt}:{vt+1}], v{vz}, s[{PDBG}:{PDBG+1}] sc1"); a("s_waitcnt vmcnt(0)")
    a(f"s_branch {L}")
    a.label(D)

PSL = [1]
def poll(a, vt, voff, soff, need, first_loaded=False):
    L = newlab("POLL"); C = newlab("POLC"); D = newlab("POLD")
    a("s_mov_b32 s66, 0x40000")
    if first_loaded: a(f"s_branch {C}")
    a.label(L)
    a(f"buffer_load_dwordx2 v[{vt}:{vt+1}], v{voff}, {q(RWS)}, {soff} offen sc1")
    a("s_waitcnt vmcnt(0)")
    a.label(C)
    a(f"v_cmp_eq_u64 vcc, s[{TAG}:{TAG+1}], v[{vt}:{vt+1}]"); a("s_nop 0")
    a(f"s_andn2_b64 s[64:65], {need}, vcc"); a(f"s_cbranch_scc0 {D}")
    a("s_sub_u32 s66, s66, 1"); a("s_cmp_eq_u32 s66, 0"); a(f"s_cbranch_scc1 {D}")
    a(f"s_sleep {PSL[0]}"); a(f"s_branch {L}")
    a.label(D)

def gen(a, opt):
    global FSTR
    PSL[0] = opt.get("psl", 1); FSTR = opt.get("fstr", 1152)
    kn = NAME + "_kernel"
    a(f".globl {kn}"); a(".p2align 8"); a(f".type {kn},@function"); a.label(kn)
    a("s_cmp_ge_u32 s2, 256"); a("s_cbranch_scc1 K_END")
    a("s_load_dwordx16 s[4:19], s[0:1], 0")
    a("s_load_dwordx4 s[20:23], s[0:1], 64")
    stamp_begin(a, opt)
    def decode():
        a("s_and_b32 s64, s2, 7"); a("s_lshr_b32 s65, s2, 3")
        a("s_lshr_b32 s66, s65, 3")
        a(f"s_and_b32 {sT}, s66, 1")
        a("s_and_b32 s67, s64, 3"); a(f"s_lshl_b32 {sG}, s67, 1"); a("s_lshr_b32 s67, s66, 1"); a(f"s_add_u32 {sG}, {sG}, s67")
    def decode2():
        a("s_and_b32 s64, s2, 1"); a(f"s_lshl_b32 {sU}, {sB}, 1"); a(f"s_add_u32 {sU}, {sU}, s64")
        a("s_and_b32 s64, s2, 2"); a("s_lshl_b32 s64, s64, 1"); a("s_lshr_b32 s65, s2, 6")
        if opt.get("ctmix", 1): a(f"s_add_u32 s65, s65, {sB}"); a("s_and_b32 s65, s65, 3")
        a(f"s_add_u32 {sCT}, s64, s65")
    opt["_decode"] = decode; opt["_decode2"] = decode2
    def cpre():
        a.label("K_CPRE")
        decode()
        if opt.get("duty", 1) == 3:
            Lx = newlab("DU"); Lc = newlab("DU"); Ld = newlab("DU")
            dl_ = opt.get("dlead", 1); dsh = opt.get("dsh", 0)
            a("s_lshr_b32 s64, s2, 7"); a("s_lshl_b32 s64, s64, 6"); a("s_and_b32 s65, s2, 63"); a("s_add_u32 s64, s64, s65")
            a("s_lshl_b32 s64, s64, 2"); a(f"s_add_u32 s64, s64, {sW}")
            a("v_lshlrev_b32 v254, 7, v0"); a("v_lshlrev_b32 v253, 7, v0")
            a(f"s_mov_b32 s{RR+3}, 0x20000"); a(f"s_mov_b32 s{RA+3}, 0x20000")
            a("s_cmp_ge_u32 s64, 144"); a("s_cselect_b32 s63, 1, 0"); a(f"s_add_u32 s63, s63, {opt.get('dbs', 2)}")
            a("s_cmp_ge_u32 s64, 288"); a("s_cselect_b32 s63, 255, s63")
            a("s_mul_i32 s65, s64, 781"); a("s_lshr_b32 s65, s65, 16"); a("s_mul_i32 s66, s65, 84"); a("s_sub_u32 s66, s64, s66")
            a(f"s_max_u32 s101, s65, {dl_}"); a(f"s_sub_u32 s101, s101, {dl_}")
            if dsh: a(f"s_add_u32 s101, s101, {(1 << dsh) - 1}"); a(f"s_lshr_b32 s101, s101, {dsh}")
            a("s_cmp_ge_u32 s64, 504"); a("s_cselect_b32 s101, 255, s101")
            a(f"s_cmp_lg_u32 {sT}, 0"); a("s_cselect_b32 s101, 255, s101"); a("s_cselect_b32 s63, 255, s63")
            a("s_add_u32 s65, s65, 2")
            a("s_waitcnt lgkmcnt(0)")
            a("s_cmp_lt_u32 s64, 64")
            a(f"s_cselect_b32 s{RA}, s{PWO}, s{PW2}"); a(f"s_cselect_b32 s{RA+1}, s{PWO+1}, s{PW2+1}"); csel(a, f"s{RA+2}", 512*1024, 1792*1024)
            a("s_cselect_b32 s67, 0, 64"); a("s_sub_u32 s62, s64, s67"); a("s_lshl_b32 s62, s62, 13")
            a("s_cmp_lt_u32 s66, 52"); a(f"s_cbranch_scc1 {Lx}")
            a(f"s_mov_b32 s{RR}, s{PX}"); a(f"s_mov_b32 s{RR+1}, s{PX+1}"); a(f"s_mov_b32 s{RR+2}, {2048*1024}")
            a("v_lshlrev_b32 v254, 10, v0")
            a("s_sub_u32 s66, s66, 52"); a("s_lshl_b32 s100, s66, 16"); a("s_lshl_b32 s65, s65, 7"); a("s_add_u32 s100, s100, s65")
            a(f"s_branch {Lc}")
            a.label(Lx)
            a("s_cmp_lt_u32 s66, 24")
            a(f"s_cselect_b32 s{RR}, s{PWQKV}, s{PW1}"); a(f"s_cselect_b32 s{RR+1}, s{PWQKV+1}, s{PW1+1}"); csel(a, f"s{RR+2}", 512*3072, 512*3584)
            a("s_cselect_b32 s64, 24, 28"); a("s_cselect_b32 s67, 0, 24"); a("s_mul_i32 s65, s65, s64"); a("s_add_u32 s66, s66, s65"); a("s_sub_u32 s66, s66, s67"); a("s_lshl_b32 s100, s66, 13")
            a.label(Lc)
            a("s_cmp_lg_u32 s101, 0"); a(f"s_cbranch_scc1 {Ld}"); a(f"buffer_load_dword v255, v254, {q(RR)}, s100 offen"); a.label(Ld)
        elif opt.get("duty", 1):
            Lb = newlab("DU"); Lc = newlab("DU"); Ld = newlab("DU")
            a("s_waitcnt lgkmcnt(0)")
            a("v_lshlrev_b32 v254, 7, v0")
            a(f"s_mov_b32 s{RR+3}, 0x20000")
            if opt.get("duty", 1) == 2:
                a("s_lshr_b32 s64, s2, 7"); a("s_lshl_b32 s64, s64, 6"); a("s_and_b32 s65, s2, 63"); a("s_add_u32 s64, s64, s65")
                a(f"s_cmp_eq_u32 {sT}, 0"); a("s_cselect_b32 s64, s64, 128")
                a(f"s_branch {Lb}X")
            a("s_cmp_ge_u32 s2, 156"); a(f"s_cbranch_scc1 {Lb}")
            a("s_lshl_b32 s64, s2, 1"); a(f"s_and_b32 s65, {sW}, 1"); a("s_add_u32 s64, s64, s65")
            a("s_mul_i32 s65, s64, 1261"); a("s_lshr_b32 s65, s65, 16"); a("s_mul_i32 s66, s65, 52"); a("s_sub_u32 s64, s64, s66")
            a(f"s_max_u32 s101, s65, {opt.get('dlead', 1)}"); a(f"s_sub_u32 s101, s101, {opt.get('dlead', 1)}")
            a("s_add_u32 s65, s65, 2")
            if opt.get("xduty", 1):
                Le = newlab("DU")
                a(f"s_cmp_lt_u32 {sW}, 2"); a(f"s_cbranch_scc1 {Le}")
                a(f"s_mov_b32 s{RR}, s{PX}"); a(f"s_mov_b32 s{RR+1}, s{PX+1}"); a(f"s_mov_b32 s{RR+2}, {2048*1024}")
                a("v_lshlrev_b32 v254, 10, v0")
                a("s_lshl_b32 s100, s64, 16"); a("s_lshl_b32 s65, s65, 7"); a("s_add_u32 s100, s100, s65")
                a("s_cmp_ge_u32 s64, 32"); a("s_cselect_b32 s101, 255, s101")
                a(f"s_branch {Lc}")
                a.label(Le)
            a("s_cmp_lt_u32 s64, 24")
            a(f"s_cselect_b32 s{RR}, s{PWQKV}, s{PW1}"); a(f"s_cselect_b32 s{RR+1}, s{PWQKV+1}, s{PW1+1}"); csel(a, f"s{RR+2}", 512*3072, 512*3584)
            a("s_cselect_b32 s66, 24, 28"); a("s_cselect_b32 s67, 0, 24"); a("s_mul_i32 s65, s65, s66"); a("s_add_u32 s64, s64, s65"); a("s_sub_u32 s64, s64, s67"); a("s_lshl_b32 s100, s64, 13")
            a(f"s_cmp_ge_u32 {sW}, 2"); a("s_cselect_b32 s101, 255, s101")
            a(f"s_branch {Lc}")
            a.label(Lb)
            a("s_sub_u32 s64, s2, 156")
            a.label(Lb + "X")
            a("s_mul_i32 s64, s64, 3"); a(f"s_add_u32 s64, s64, {sW}")
            a("s_mul_i32 s101, s64, 911"); a(f"s_lshr_b32 s101, s101, {16 + opt.get('dbw', 1)}"); a(f"s_add_u32 s101, s101, {opt.get('dbs', 0)}")
            a(f"s_cmp_ge_u32 {sW}, 3"); a("s_cselect_b32 s101, 255, s101"); a("s_cmp_ge_u32 s64, 288"); a("s_cselect_b32 s101, 255, s101")
            a("s_cmp_lt_u32 s64, 64")
            a(f"s_cselect_b32 s{RR}, s{PWO}, s{PW2}"); a(f"s_cselect_b32 s{RR+1}, s{PWO+1}, s{PW2+1}"); csel(a, f"s{RR+2}", 512*1024, 1792*1024)
            a("s_cselect_b32 s67, 0, 64"); a("s_sub_u32 s64, s64, s67"); a("s_lshl_b32 s100, s64, 13")
            a.label(Lc)
            a("s_cmp_lg_u32 s101, 0"); a(f"s_cbranch_scc1 {Ld}"); a(f"buffer_load_dword v255, v254, {q(RR)}, s100 offen"); a.label(Ld)
        a("s_branch K_COMPUTE")
    opt["_cpre"] = cpre
    a("v_lshrrev_b32 v1, 6, v0"); a("v_and_b32 v0, 63, v0")
    a("v_readfirstlane_b32 s3, v1")
    a("s_and_b32 s64, s2, 4"); a("s_lshr_b32 s65, s2, 3"); a("s_lshl_b32 s64, s64, 1"); a("s_and_b32 s65, s65, 7"); a(f"s_add_u32 {sB}, s64, s65")
    a(f"s_and_b32 {sW}, s3, 3"); a("s_xor_b32 s3, s3, 4")
    a("s_cmp_lt_u32 s3, 4"); a("s_cbranch_scc1 K_HOP")
    gen_loader(a, opt)
    a.label("K_END"); a("s_endpgm")
    a.label("K_COMPUTE")
    a(f"s_cmp_eq_u32 {sT}, 0"); a("s_cbranch_scc1 K_ATTN")
    gen_ffn(a, opt)
    gen_attn(a, opt)
    a.label("K_CODE_END")

def compute_common_setup(a, opt):
    L = newlab("CS")
    a("v_mov_b32 v1, 0")
    a("s_or_b32 s64, s2, s3"); a("s_cmp_lg_u32 s64, 0"); a(f"s_cbranch_scc1 {L}")
    a("s_memrealtime s[64:65]"); a("s_waitcnt lgkmcnt(0)")
    a("s_or_b32 s64, s64, 1"); a("s_xor_b32 s65, s65, 0x5bd1e995")
    a("v_mov_b32 v10, s64"); a("v_mov_b32 v11, s65")
    a("s_mov_b64 exec, 1")
    a(f"global_store_dwordx2 v1, v[10:11], s[{PDBG}:{PDBG+1}] sc1")
    a("s_mov_b64 exec, -1")
    a.label(L)
    if opt.get("cpf", 2) == 1:
        L = newlab("CS")
        a("s_cmp_ge_u32 s2, 8"); a(f"s_cbranch_scc1 {L}"); a("s_cmp_lg_u32 s3, 1"); a(f"s_cbranch_scc1 {L}")
        a("s_getpc_b64 s[64:65]")
        G = newlab("GP"); a.label(G)
        a(f"s_sub_u32 s64, s64, {G}-{NAME}_kernel"); a("s_subb_u32 s65, s65, 0")
        a("v_lshlrev_b32 v10, 7, v0")
        a(f"s_mov_b32 s66, K_CODE_END-{NAME}_kernel-4")
        for r in range(opt.get("cpfn", 4)):
            a("v_min_u32 v11, s66, v10"); a("global_load_dword v255, v11, s[64:65]"); a("v_add_u32 v10, 8192, v10")
        a.label(L)
    srd(a, RWS, PWS, WS_USED)
    if opt.get("tlb", 0):
        Lt = newlab("TLB")
        a(f"s_cmp_lg_u32 {sW}, 2"); a(f"s_cbranch_scc1 {Lt}")
        a("v_lshlrev_b32 v13, 21, v0"); a("s_mov_b64 exec, 0x7f")
        a(f"buffer_load_dword v12, v13, {q(RWS)}, 0 offen")
        a("s_mov_b64 exec, 1")
        for p in (PW2, PWO, POUT, PGATE, PDBG):
            a(f"global_load_dword v12, v1, s[{p}:{p+1}]")
        a("s_mov_b64 exec, -1")
        a.label(Lt)
    a(f"s_lshl_b32 s78, {sB}, 4"); a(f"s_lshl_b32 s64, {sT}, 3"); a("s_add_u32 s78, s78, s64"); a(f"s_add_u32 s78, s78, {sG}")
    a(f"s_mul_i32 s78, s78, {FSTR}"); a(f"s_add_u32 s78, s78, {FA_OFF}")

def compute_publish(a, opt, vt, nst):
    L = newlab("NOPUB")
    a("s_mov_b64 exec, 1")
    a(f"v_mov_b32 v12, {TOP-4096}"); a("v_mov_b32 v13, 1")
    a(f"s_waitcnt vmcnt({nst})")
    tag_check(a, vt, 1)
    a("s_waitcnt vmcnt(0)")
    stamp(a, opt, 6)
    a("ds_add_rtn_u32 v13, v12, v13"); a("s_waitcnt lgkmcnt(0)")
    a("v_cmp_eq_u32 vcc, 3, v13"); a("s_nop 0"); a(f"s_cbranch_vccz {L}")
    a(f"buffer_store_dwordx2 v[{vt}:{vt+1}], v1, {q(RWS)}, s78 offen sc1")
    a.label(L)

def gate_loads(a, VL16):
    a(f"s_lshl_b32 s64, {sB}, 7"); a(f"s_and_b32 s65, {sG}, 3"); a("s_lshl_b32 s65, s65, 5"); a("s_add_u32 s65, s65, s64")
    a(f"s_lshl_b32 s66, {sW}, 3"); a("s_add_u32 s65, s65, s66"); a(f"s_lshr_b32 s66, {sG}, 2"); a("s_add_u32 s65, s65, s66"); a("s_lshl_b32 s65, s65, 10")
    a(f"s_lshl_b32 s66, {sG}, 4"); a("s_add_u32 s64, s64, s66"); a(f"s_lshl_b32 s66, {sW}, 2"); a("s_add_u32 s64, s64, s66")
    a("s_lshl_b32 s78, s64, 3"); a(f"s_add_u32 s78, s78, {G_OFF}")
    a(f"global_load_dwordx4 v[32:35], v{VL16}, s[{PGATE}:{PGATE+1}]")
    a(f"buffer_load_dwordx4 v[16:19], v{VL16}, {q(RX)}, s65 offen"); a(f"buffer_load_dwordx4 v[20:23], v{VL16}, {q(RX)}, s65 offen offset:2048")
    a("s_add_u32 s65, s65, 4096")
    a(f"buffer_load_dwordx4 v[24:27], v{VL16}, {q(RX)}, s65 offen"); a(f"buffer_load_dwordx4 v[28:31], v{VL16}, {q(RX)}, s65 offen offset:2048")
def gate_math(a, VL16):
    GU = 36; P = 44; R = 52
    for k in range(4):
        a(f"v_lshlrev_b32 v{GU+2*k}, 16, v{32+k}"); a(f"v_and_b32 v{GU+1+2*k}, 0xffff0000, v{32+k}")
    for row in range(4):
        xb = 16 + 4 * row
        for k in range(4):
            a(f"v_lshlrev_b32 v{P+2*k}, 16, v{xb+k}"); a(f"v_and_b32 v{P+2*k+1}, 0xffff0000, v{xb+k}")
        for i in range(0, 8, 2): a(f"v_pk_mul_f32 {vr(P+i,2)}, {vr(P+i,2)}, {vr(GU+i,2)}")
        for k in range(4): a(f"v_cvt_pk_bf16_f32 v{xb+k}, v{P+2*k}, v{P+2*k+1}")
        for k in range(4):
            a(f"v_lshlrev_b32 v{P+2*k}, 16, v{xb+k}"); a(f"v_and_b32 v{P+2*k+1}, 0xffff0000, v{xb+k}")
        a(f"v_pk_add_f32 {vr(P,2)}, {vr(P,2)}, {vr(P+4,2)}"); a(f"v_pk_add_f32 {vr(P+2,2)}, {vr(P+2,2)}, {vr(P+6,2)}")
        a(f"v_pk_add_f32 {vr(P,2)}, {vr(P,2)}, {vr(P+2,2)}")
        a(f"v_add_f32 v{R+row}, v{P}, v{P+1}")
    a.nop(1)
    for sh in (8, 4, 2, 1):
        for row in range(4): a(f"v_add_f32_dpp v{R+row}, v{R+row}, v{R+row} row_ror:{sh} row_mask:0xf bank_mask:0xf")
    for sw in ("v_permlane32_swap_b32", "v_permlane16_swap_b32"):
        for row in range(4): a(f"v_mov_b32 v{P+row}, v{R+row}")
        for row in range(4): a(f"{sw} v{R+row}, v{P+row}")
        for row in range(4): a(f"v_add_f32 v{R+row}, v{R+row}, v{P+row}")
    def rnd():
        for h in range(2):
            a(f"v_cvt_pk_bf16_f32 v{P+h}, v{R+2*h}, v{R+2*h+1}")
        for h in range(2):
            a(f"v_lshlrev_b32 v{R+2*h}, 16, v{P+h}"); a(f"v_and_b32 v{R+2*h+1}, 0xffff0000, v{P+h}")
    rnd()
    for row in range(4): a(f"v_mul_f32 v{R+row}, 0x{f32bits(-LOG2E):x}, v{R+row}")
    for row in range(4): a(f"v_exp_f32 v{R+row}, v{R+row}")
    for row in range(4): a(f"v_add_f32 v{R+row}, 1.0, v{R+row}")
    for row in range(4): a(f"v_rcp_f32 v{R+row}, v{R+row}")
    a.nop(1)
    rnd()
    a("v_cmp_eq_u32 vcc, 1, v0"); a(f"v_mov_b32 v{P+2}, s{TAG}"); a(f"v_mov_b32 v{P+3}, s{TAG+1}")
    a(f"v_cndmask_b32 v{P}, v{R}, v{R+2}, vcc"); a(f"v_cndmask_b32 v{P+1}, v{R+1}, v{R+3}, vcc")
    a("s_mov_b64 exec, 3")
    a(f"buffer_store_dwordx4 {vr(P,4)}, v{VL16}, {q(RWS)}, s78 offen sc1")
    a("s_mov_b64 exec, -1")

def final_half(a, opt, RA_, OV, so_, gl):
    T = 104
    def P(src): return T + 8 * src
    if gl: a("ds_read_b64 v[96:97], v103")
    for src in range(4):
        for e in range(2):
            a(f"ds_read_b128 {vr(P(src)+4*e,4)}, v{RA_+e} offset:{(3 - src) * 4096 + (16384 if src else 0)}")
    a("s_waitcnt lgkmcnt(6)")
    for i in range(0, 8, 2): a(f"v_pk_mul_f32 {vr(P(0)+i,2)}, {vr(P(0)+i,2)}, v[96:97] op_sel_hi:[1,0]")
    a("s_waitcnt lgkmcnt(2)")
    for i in range(0, 8, 2): a(f"v_pk_add_f32 {vr(P(1)+i,2)}, {vr(P(1)+i,2)}, {vr(P(2)+i,2)}")
    a("s_waitcnt lgkmcnt(0)")
    for i in range(0, 8, 2): a(f"v_pk_add_f32 {vr(P(1)+i,2)}, {vr(P(1)+i,2)}, {vr(P(3)+i,2)}")
    for i in range(0, 8, 2):
        if gl: a(f"v_pk_fma_f32 {vr(P(0)+i,2)}, {vr(P(1)+i,2)}, v[96:97], {vr(P(0)+i,2)} op_sel:[0,1,0] op_sel_hi:[1,1,1]")
        else: a(f"v_pk_fma_f32 {vr(P(0)+i,2)}, {vr(P(1)+i,2)}, v[100:101], {vr(P(0)+i,2)} op_sel_hi:[1,0,1]")
    for i in range(4): a(f"v_cvt_pk_bf16_f32 v{P(2)+i}, v{P(0)+2*i}, v{P(0)+2*i+1}")
    a(f"buffer_store_dwordx4 {vr(P(2),4)}, v{OV}, {q(RAUX)}, {so_} offen {opt.get('ost', 'sc1')}")

def compute_final(a, opt):
    a.label("K_CFIN")
    a("s_mov_b64 exec, -1"); a("s_setprio 0")
    opt["_decode2"]()
    srd(a, RAUX, POUT, 2048 * 1024)
    a(f"s_lshr_b32 s64, {sU}, 1"); a("s_lshl_b32 s64, s64, 7"); a(f"s_lshl_b32 s65, {sW}, 5"); a("s_add_u32 s64, s64, s65"); a(f"s_and_b32 s65, {sU}, 1"); a("s_add_u32 s64, s64, s65")
    a("s_lshl_b32 s64, s64, 10"); a(f"s_lshl_b32 s65, {sCT}, 7"); a("s_add_u32 s70, s64, s65"); a("s_add_u32 s70, s70, 16384")
    a(f"s_lshl_b32 s73, {sW}, 14"); a(f"s_sub_u32 s73, {TOP-32768+2048}, s73")
    for x in ["v_lshrrev_b32 v93, 3, v0", "v_and_b32 v94, 7, v0", "v_lshlrev_b32 v92, 11, v93", "v_lshlrev_b32 v95, 4, v94", "v_add_u32 v92, v92, v95",
              "v_lshlrev_b32 v95, 1, v94", "v_xor_b32 v95, v95, v93", "v_lshlrev_b32 v95, 4, v95", "v_lshlrev_b32 v93, 8, v93", "v_add_u32 v95, v95, v93",
              "v_add_u32 v95, s73, v95", "v_xor_b32 v88, 128, v95", "v_xor_b32 v89, 144, v95",
              f"s_lshl_b32 s72, {sW}, 9", f"s_add_u32 s72, s72, {TOP-4096+1024}", "v_lshlrev_b32 v103, 3, v0", "v_add_u32 v103, s72, v103"]: a(x)
    a("s_barrier")
    final_half(a, opt, 88, 92, "s70", True)
    a("s_endpgm")

def cpad(a, opt, n):
    if opt.get("pads", 0): a(f"s_branch {n}_S"); a.label(n); a("s_branch K_CPRE"); a.label(n + "_S")

def mainloop(a, opt, pre, addr_regs, reads, mfmas):
    a("s_mov_b32 s70, 1"); a("s_mov_b32 s72, 0"); a(f"s_mov_b32 s73, {(-SLOT) & 0xffffffff}"); a(f"s_mov_b32 s79, {2*SLOT}")
    for r in addr_regs: a(f"v_add_u32 v{r}, {slot_of(0)}, v{r}")
    if opt.get("prio", 2) == 1: a("s_setprio 1")
    du = opt.get("duty", 1)
    if du == 3 and pre == "KF": du = 0
    dl = f"buffer_load_dword v255, v254, {q(RR)}, s100 offen"
    if opt.get("cp0", 0): a("s_setprio 0")
    stamp(a, opt, 0)
    a("s_barrier")
    stamp(a, opt, 1)
    for r in reads(0, 0): a(r)
    a(".p2align 3")
    a.label(pre + "_LOOP")
    a("s_waitcnt lgkmcnt(0)")
    a("s_add_u32 s70, s70, 1")
    last = opt.get("last", 6)
    sal = ["s_cmp_eq_u32 s70, 3\ns_cselect_b32 s71, s79, s73", "s_cselect_b32 s70, 0, s70\ns_add_u32 s72, s72, 1"]
    if du: sal.append(f"s_cmp_eq_u32 s72, s101\ns_cbranch_scc1 {pre}_DUTY\n{pre}_DBACK:")
    if du == 3: sal.append(f"s_cmp_eq_u32 s72, s63\ns_cbranch_scc1 {pre}_DUTY2\n{pre}_DBACK2:")
    sal.append("s_cmp_eq_u32 s72, 8\ns_nop 0")
    mf = mfmas(0)
    spread(a, mf[:-last], reads(1, 1), 0)
    interleave(a, mf[-last:], sal)
    a("s_waitcnt lgkmcnt(0)")
    a("s_barrier")
    a(f"s_cbranch_scc1 {pre}_DONE"); a("s_nop 0")
    for _ in range(opt.get("slow", 0)): a("s_nop 15"); a("s_nop 15")
    adv = [f"v_add_u32 v{r}, s71, v{r}" for r in addr_regs]
    if len(adv) % 2: adv.append("s_nop 0")
    adv = [adv[i] + "\n" + adv[i+1] for i in range(0, len(adv), 2)]
    mf = mfmas(1)
    interleave(a, mf[:len(adv)], adv)
    spread(a, mf[len(adv):], reads(0, 0), opt.get("last2", 2))
    a(f"s_branch {pre}_LOOP")
    if du:
        a.label(pre + "_DUTY"); a(dl); a(f"s_branch {pre}_DBACK")
    if du == 3:
        a.label(pre + "_DUTY2"); a(f"buffer_load_dword v255, v253, {q(RA)}, s62 offen"); a(f"s_branch {pre}_DBACK2")
    a(".p2align 3")
    a.label(pre + "_DONE")
    if opt.get("prio", 2) == 2: a("s_setprio 3"); a("s_nop 0")
    stamp(a, opt, 2)

def gen_ffn(a, opt):
    ACC = 16; FR = 128
    def acc(t, n): return ACC + 4 * (t * 7 + n)
    def xf(s, t): return FR + 44 * s + 4 * t
    def wf(s, n): return FR + 44 * s + 16 + 4 * n
    XA = [2, 3]; WA = [4, 5, 6, 7]; SA = 8
    cpad(a, opt, "KPF_0")
    a(f"s_lshr_b32 s68, {sW}, 1")
    a(f"s_and_b32 s69, {sW}, 1")
    a("v_and_b32 v10, 15, v0"); a("v_lshrrev_b32 v11, 4, v0")
    a("v_lshrrev_b32 v12, 1, v10"); a("v_xor_b32 v12, v12, v11"); a("v_lshlrev_b32 v12, 4, v12")
    a("v_lshlrev_b32 v13, 7, v10"); a("v_add_u32 v12, v12, v13")
    a("s_lshl_b32 s64, s68, 13"); a(f"v_add_u32 v{XA[0]}, s64, v12"); a(f"v_xor_b32 v{XA[1]}, 64, v{XA[0]}")
    a("v_bfe_u32 v12, v0, 2, 2")
    a("v_lshlrev_b32 v13, 3, v11"); a("v_add_u32 v13, v13, v12")
    a("v_lshrrev_b32 v14, 1, v12"); a("v_and_b32 v15, 1, v11"); a("v_lshlrev_b32 v9, 1, v15"); a("v_or_b32 v14, v14, v9")
    a("v_and_b32 v9, 3, v0"); a("v_lshlrev_b32 v9, 3, v9")
    a("v_lshlrev_b32 v12, 7, v13"); a("v_add_u32 v12, v12, v9")
    for j in range(4):
        a("s_mul_i32 s64, s69, 6"); a(f"s_add_u32 s64, s64, {j}")
        a("s_and_b32 s65, s64, 3"); a("s_lshr_b32 s64, s64, 2"); a("s_lshl_b32 s64, s64, 13"); a(f"s_add_u32 s64, s64, {WOFF}")
        a(f"v_xor_b32 v{WA[j]}, s65, v14"); a(f"v_lshlrev_b32 v{WA[j]}, 5, v{WA[j]}"); a(f"v_add_u32 v{WA[j]}, v{WA[j]}, v12"); a(f"v_add_u32 v{WA[j]}, s64, v{WA[j]}")
    a(f"v_xor_b32 v{SA}, s69, v15"); a(f"v_lshlrev_b32 v{SA}, 5, v{SA}"); a(f"v_add_u32 v{SA}, v{SA}, v9")
    a("v_lshlrev_b32 v12, 6, v13"); a(f"v_add_u32 v{SA}, v{SA}, v12"); a(f"v_add_u32 v{SA}, {EOFF}, v{SA}")
    a(f"s_lshl_b32 s64, {sB}, 1"); a("s_add_u32 s64, s64, s68"); a("s_mul_i32 s64, s64, 72")
    a(f"s_mul_i32 s65, {sG}, 7"); a("s_add_u32 s64, s64, s65"); a("s_add_u32 s64, s64, 16")
    a(f"s_and_b32 s65, {sG}, 1")
    a("s_mul_i32 s66, s69, 3"); a("s_add_u32 s66, s66, s65"); a("s_add_u32 s66, s66, s64"); a("s_lshl_b32 s74, s66, 12")
    a("s_add_u32 s75, s74, 4096"); a("s_add_u32 s76, s74, 8192")
    a("s_cmp_eq_u32 s65, 0"); a("s_cselect_b32 s66, 6, 0"); a("s_add_u32 s66, s66, s64"); a("s_lshl_b32 s77, s66, 12")
    a("s_lshl_b32 s65, s69, 11"); a("s_add_u32 s77, s77, s65")
    a("v_lshlrev_b32 v9, 4, v0")
    a("s_waitcnt lgkmcnt(0)")
    compute_common_setup(a, opt)
    cpad(a, opt, "KPF_1")
    for i in range(112): a(f"v_mov_b32 v{ACC+i}, 0")
    cpad(a, opt, "KPF_2")
    def reads(kk, s):
        xs = [f"ds_read_b128 {vr(xf(s,t),4)}, v{XA[kk]} offset:{t*2048}" for t in range(4)]
        ws = []
        for n in range(6):
            for h in range(2):
                ws.append(f"ds_read_b64_tr_b16 {vr(wf(s,n)+2*h,2)}, v{WA[n&3]} offset:{(n>>2)*8192 + kk*4096 + h*512}")
        for h in range(2):
            ws.append(f"ds_read_b64_tr_b16 {vr(wf(s,6)+2*h,2)}, v{SA} offset:{kk*2048 + h*256}")
        return mix(xs, ws)
    def mfmas(s):
        return [f"v_mfma_f32_16x16x32_bf16 {vr(acc(t,n),4)}, {vr(wf(s,n),4)}, {vr(xf(s,t),4)}, {vr(acc(t,n),4)}" for n in range(7) for t in range(4)]
    mainloop(a, opt, "KF", XA + WA + [SA], reads, mfmas)
    E = [f"global_load_dwordx2 v[10:11], v1, s[{PDBG}:{PDBG+1}] sc1"] + mfmas(1)
    tmp = [FR + 4 * k for k in range(11)] + [216 + 4 * k for k in range(3)]
    k = 0
    for n in range(7):
        for tp in range(2):
            d = tmp[k]; k += 1
            for hh in range(2):
                sx = acc(2 * tp + hh, n)
                E.append(f"v_cvt_pk_bf16_f32 v{d+2*hh}, v{sx}, v{sx+1}"); E.append(f"v_cvt_pk_bf16_f32 v{d+2*hh+1}, v{sx+2}, v{sx+3}")
            for i in (0, 2, 1, 3): E.append(f"v_pk_max_i16 v{d+i}, v{d+i}, 0")
            E.append(f"v_permlane16_swap_b32 v{d}, v{d+2}"); E.append(f"v_permlane16_swap_b32 v{d+1}, v{d+3}")
            off = ((n & 1) * 2048 if n < 6 else 0) + tp * 1024
            E.append(f"buffer_store_dwordx4 {vr(d,4)}, v9, {q(RWS)}, s{74+(n>>1)} offen offset:{off} sc1")
    o, t = schedule(E, 40)
    print("ffn epilogue est", t, len(o), file=sys.stderr)
    wn = opt.get("wn", 0); ns = 0
    for x in o:
        if x.startswith("buffer_store") and opt.get("nostore"): continue
        if x.startswith("buffer_store"):
            if wn and ns >= wn: a(f"s_waitcnt vmcnt({wn-1})")
            ns += 1
        a(x)
    if opt.get("sb", 2) in (1, 3): a("s_barrier")
    stamp(a, opt, 3)
    compute_publish(a, opt, 10, 14)
    if opt.get("sb", 2) in (2, 3): a("s_barrier")
    stamp(a, opt, 5)
    stamp_end(a, opt, 1)
    a("s_branch K_CFIN" if opt.get("f8", 1) else "s_endpgm")

def gen_attn(a, opt):
    a.label("K_ATTN")
    ACC = 36; FR = 140
    def Q(t): return ACC + 4 * t
    def K(t): return ACC + 32 + 4 * t
    def V(t): return ACC + 68 + 4 * t
    def xf(s, t): return FR + 48 * s + 4 * t
    def wf(s, p): return FR + 48 * s + 36 + 4 * p
    XA = [2, 3]; WA = 4
    BC, BP, BP0, BP4, MC = 16, 20, 24, 28, 32
    cpad(a, opt, "KPA_0")
    a("v_and_b32 v10, 15, v0"); a("v_lshrrev_b32 v11, 4, v0")
    a("v_lshrrev_b32 v12, 1, v10"); a("v_xor_b32 v12, v12, v11"); a("v_lshlrev_b32 v12, 4, v12")
    a("v_lshlrev_b32 v13, 7, v10"); a(f"v_add_u32 v{XA[0]}, v12, v13"); a(f"v_xor_b32 v{XA[1]}, 64, v{XA[0]}")
    a("v_bfe_u32 v12, v0, 2, 2")
    a("v_lshlrev_b32 v13, 3, v11"); a("v_add_u32 v13, v13, v12")
    a("v_lshrrev_b32 v14, 1, v12"); a("v_and_b32 v15, 1, v11"); a("v_lshlrev_b32 v9, 1, v15"); a("v_or_b32 v14, v14, v9")
    a("v_and_b32 v9, 3, v0"); a("v_lshlrev_b32 v9, 3, v9")
    a("v_lshlrev_b32 v12, 7, v13"); a("v_add_u32 v12, v12, v9")
    a(f"v_xor_b32 v{WA}, {sW}, v14"); a(f"v_lshlrev_b32 v{WA}, 5, v{WA}"); a(f"v_add_u32 v{WA}, v{WA}, v12"); a(f"v_add_u32 v{WA}, {WOFF}, v{WA}")
    a("v_lshlrev_b32 v5, 2, v11"); a("v_sub_u32 v6, v5, v10")
    a(f"s_mul_i32 s64, {sB}, 144"); a(f"s_lshl_b32 s65, {sG}, 1"); a("s_add_u32 s64, s64, s65"); a(f"s_lshr_b32 s65, {sW}, 1"); a("s_add_u32 s64, s64, s65")
    a("s_lshl_b32 s74, s64, 12"); a(f"s_and_b32 s65, {sW}, 1"); a("s_lshl_b32 s65, s65, 11"); a("s_add_u32 s74, s74, s65")
    a(f"s_add_u32 s75, s74, {72*4096}")
    a(f"s_mov_b32 s76, 0x{f32bits(0.25*LOG2E):x}"); a("s_mov_b32 s77, s76")
    a("v_lshlrev_b32 v9, 4, v0")
    a("s_waitcnt lgkmcnt(0)")
    compute_common_setup(a, opt)
    cpad(a, opt, "KPA_1")
    a(f"v_mov_b32 v7, 0x{BIG:x}")
    a(f"s_cmp_eq_u32 {sB}, 0"); a(f"s_cselect_b32 s64, 0x{BIG:x}, 0"); a("v_mov_b32 v8, s64")
    a(f"v_mov_b32 v{MC}, 0"); a(f"v_mov_b32 v{MC+1}, 0")
    for r in range(4):
        a(f"v_add_u32 v14, {r+7}, v6")
        a("v_cmp_gt_u32 vcc, 8, v14")
        a(f"v_mov_b32 v15, {'0xffff' if r % 2 == 0 else '0xffff0000'}")
        a(f"v_add_u32 v14, {r}, v6")
        a(f"v_cndmask_b32 v{BC+r}, v7, v1, vcc")
        a("v_cndmask_b32 v15, v1, v15, vcc")
        a(f"v_or_b32 v{MC+(r>>1)}, v{MC+(r>>1)}, v15")
        a("v_cmp_le_i32 vcc, 9, v14")
        a(f"v_add_u32 v15, {r}, v5")
        a("v_cmp_gt_u32 s[64:65], 8, v15")
        a(f"v_cndmask_b32 v{BP+r}, v7, v1, vcc")
        a(f"v_cndmask_b32 v{BP0+r}, v7, v8, vcc")
        a("v_cmp_le_i32 vcc, 1, v14"); a("s_nop 0")
        a("s_and_b64 vcc, vcc, s[64:65]")
        a(f"v_cndmask_b32 v{BP4+r}, v7, v8, vcc")
    cpad(a, opt, "KPA_2")
    for i in range(104): a(f"v_mov_b32 v{ACC+i}, 0")
    def reads(kk, s):
        ws = []
        for p in range(3):
            for h in range(2):
                ws.append(f"ds_read_b64_tr_b16 {vr(wf(s,p)+2*h,2)}, v{WA} offset:{p*8192 + kk*4096 + h*512}")
        xs = [f"ds_read_b128 {vr(xf(s,t),4)}, v{XA[kk]} offset:{t*2048 if t < 8 else EOFF}" for t in range(9)]
        return mix(xs, ws)
    def mfmas(s):
        r = []
        for t in range(9):
            if t < 8: r.append(f"v_mfma_f32_16x16x32_bf16 {vr(Q(t),4)}, {vr(wf(s,0),4)}, {vr(xf(s,t),4)}, {vr(Q(t),4)}")
            r.append(f"v_mfma_f32_16x16x32_bf16 {vr(K(t),4)}, {vr(wf(s,1),4)}, {vr(xf(s,t),4)}, {vr(K(t),4)}")
            r.append(f"v_mfma_f32_16x16x32_bf16 {vr(V(t),4)}, {vr(xf(s,t),4)}, {vr(wf(s,2),4)}, {vr(V(t),4)}")
        return r
    a("s_mov_b32 s66, 0x3f803f80")
    mainloop(a, opt, "KA", XA + [WA], reads, mfmas)
    QB = FR; KB = FR + 16; M = FR + 34; ONES = FR + 44; VB = FR + 48; PB = FR + 68; TM = FR + 100
    E = [f"global_load_dwordx2 v[10:11], v1, s[{PDBG}:{PDBG+1}] sc1"] + mfmas(1)
    e = E.append
    def cvt(d, s): e(f"v_cvt_pk_bf16_f32 v{d}, v{s}, v{s+1}"); e(f"v_cvt_pk_bf16_f32 v{d+1}, v{s+2}, v{s+3}")
    for i in range(4): e(f"v_mov_b32 v{ONES+i}, s66")
    for t in range(8): cvt(QB + 2 * t, Q(t))
    for t in range(9): cvt(KB + 2 * t, K(t))
    def vslot(t): return (1 + t) if t < 4 else (2 + t)
    for t in range(8): cvt(VB + 2 * vslot(t), V(t))
    for d in (VB, VB + 10): cvt(d, V(8))
    for t in range(8):
        prev = 8 if t in (0, 4) else t - 1
        bp = BP0 if t == 0 else (BP4 if t == 4 else BP)
        e(f"v_mfma_f32_16x16x16_bf16 {vr(Q(t),4)}, {vr(KB+2*t,2)}, {vr(QB+2*t,2)}, {vr(BC,4)}")
        e(f"v_mfma_f32_16x16x16_bf16 {vr(K(t),4)}, {vr(KB+2*prev,2)}, {vr(QB+2*t,2)}, {vr(bp,4)}")
    for t in range(8):
        for r in range(4): e(f"v_max_f32 v{Q(t)+r}, v{Q(t)+r}, v{K(t)+r}")
        e(f"v_max3_f32 v{M+t}, v{Q(t)}, v{Q(t)+1}, v{Q(t)+2}")
        e(f"v_max_f32 v{M+t}, v{M+t}, v{Q(t)+3}")
    for b4 in (0, 4):
        m0, m1, m2, m3 = M + b4, M + b4 + 1, M + b4 + 2, M + b4 + 3
        e(f"v_permlane32_swap_b32 v{m0}, v{m1}"); e(f"v_max_f32 v{m0}, v{m0}, v{m1}")
        e(f"v_permlane32_swap_b32 v{m2}, v{m3}"); e(f"v_max_f32 v{m2}, v{m2}, v{m3}")
        e(f"v_permlane16_swap_b32 v{m0}, v{m2}"); e(f"v_max_f32 v{m0}, v{m0}, v{m2}")
        k0, k1, k2, k3 = K(b4), K(b4 + 1), K(b4 + 2), K(b4 + 3)
        e(f"v_mul_f32 v{k0}, s76, v{m0}"); e(f"v_mul_f32 v{k2}, s76, v{m0}")
        e(f"v_permlane16_swap_b32 v{k0}, v{k2}")
        e(f"v_mov_b32 v{k1}, v{k0}"); e(f"v_mov_b32 v{k3}, v{k2}")
        e(f"v_permlane32_swap_b32 v{k0}, v{k1}"); e(f"v_permlane32_swap_b32 v{k2}, v{k3}")
    pk = opt.get("pk", 1)
    for t in range(8):
        if pk:
            for r in (0, 2): e(f"v_pk_fma_f32 {vr(Q(t)+r,2)}, {vr(Q(t)+r,2)}, s[76:77], {vr(K(t),2)} op_sel_hi:[1,1,0] neg_lo:[0,0,1] neg_hi:[0,0,1]")
        else:
            for r in range(4): e(f"v_fma_f32 v{Q(t)+r}, v{Q(t)+r}, s76, -v{K(t)}")
        for r in range(4): e(f"v_exp_f32 v{Q(t)+r}, v{Q(t)+r}")
        cvt(PB + 4 * t + 2, Q(t))
        for h in range(2): e(f"v_bfi_b32 v{PB+4*t+h}, v{MC+h}, 0, v{PB+4*t+2+h}")
        for h in range(2): e(f"v_and_b32 v{PB+4*t+2+h}, v{MC+h}, v{PB+4*t+2+h}")
        e(f"v_mfma_f32_16x16x32_bf16 {vr(K(t),4)}, {vr(ONES,4)}, {vr(PB+4*t,4)}, 0")
        e(f"v_mfma_f32_16x16x32_bf16 {vr(Q(t),4)}, {vr(VB+2*(vslot(t)-1),4)}, {vr(PB+4*t,4)}, 0")
        e(f"v_rcp_f32 v{K(t)}, v{K(t)}")
        if pk:
            for r in (0, 2): e(f"v_pk_mul_f32 {vr(Q(t)+r,2)}, {vr(Q(t)+r,2)}, {vr(K(t),2)} op_sel_hi:[1,0]")
        else:
            for r in range(4): e(f"v_mul_f32 v{Q(t)+r}, v{Q(t)+r}, v{K(t)}")
        cvt(QB + 2 * t, Q(t))
        if t & 1:
            d = QB + 2 * t - 2
            e(f"v_permlane16_swap_b32 v{d}, v{d+2}"); e(f"v_permlane16_swap_b32 v{d+1}, v{d+3}")
            e(f"buffer_store_dwordx4 {vr(d,4)}, v9, {q(RWS)}, s{74+(t>>2)} offen offset:{((t>>1)&1)*1024} sc1")
    o, t = schedule(E, 0)
    print("attn epilogue est", t, len(o), file=sys.stderr)
    for x in o: a(x)
    if opt.get("sba", 10) and opt.get("sbl", 1) == 0: a("s_barrier")
    stamp(a, opt, 4)
    compute_publish(a, opt, 10, 4)
    if opt.get("sba", 10) and opt.get("sbl", 1) == 1: a("s_barrier")
    stamp(a, opt, 5)
    if opt.get("gq", 2) == 2:
        a("s_mov_b64 exec, -1")
        srd(a, RX, PX, 2048 * 1024)
        gate_loads(a, 9); a("s_waitcnt vmcnt(0)"); gate_math(a, 9)
    stamp_end(a, opt, 2)
    if opt.get("f8", 1): compute_final(a, opt)
    else: a("s_endpgm")

def gen_loader(a, opt):
    a("; ---- loader wave")
    VL16, VX0, VX1, VW, VE, VR, VZ = 1, 2, 3, 4, 5, 6, 7
    win = None
    npad = [0]
    def pad():
        return
        k = npad[0]; npad[0] += 1
        a(f"s_branch KP_{k}_S"); a.label(f"KP_{k}"); a("s_branch K_CPRE"); a.label(f"KP_{k}_S")
    b0 = slot_of(0)
    if opt.get("cpf", 2) == 2:
        L = newlab("CS")
        a("s_cmp_ge_u32 s2, 8"); a(f"s_cbranch_scc1 {L}")
        a("s_getpc_b64 s[64:65]")
        G = newlab("GP"); a.label(G)
        a(f"s_lshl_b32 s66, {sW}, 13"); a("v_lshlrev_b32 v10, 7, v0"); a("v_add_u32 v10, s66, v10")
        a(f"s_mov_b32 s66, K_CODE_END-{G}-4")
        a("v_min_u32 v10, s66, v10"); a("global_load_dword v255, v10, s[64:65]")
        a.label(L)
    a("v_lshrrev_b32 v10, 3, v0"); a("v_and_b32 v11, 7, v0"); a("v_lshrrev_b32 v12, 4, v0")
    a(f"s_and_b32 s68, {sW}, 1"); a(f"s_lshr_b32 s69, {sW}, 1")
    a(f"s_lshl_b32 s64, {sB}, 1"); a("s_add_u32 s64, s64, s68"); a("s_lshl_b32 s64, s64, 6"); a("s_add_u32 s64, s64, s69"); a("s_lshl_b32 s64, s64, 10")
    a("v_xor_b32 v13, v11, v12"); a("v_lshlrev_b32 v14, 11, v10"); a("v_lshl_add_u32 v14, v13, 4, v14")
    a(f"v_add_u32 v{VX0}, s64, v14"); a(f"v_xor_b32 v{VX1}, 64, v{VX0}")
    a(f"s_mov_b32 s{RX+3}, 0x20000"); a(f"s_lshl_b32 s{RX+2}, s{RX+3}, 4")
    a(f"s_lshl_b32 s70, {sW}, 12"); a(f"s_add_u32 m0, s70, {b0}"); a("s_movk_i32 s67, 0x4000")
    if opt.get("lstamp") == 3: a("s_memtime s[84:85]")
    a("s_waitcnt lgkmcnt(0)")
    if opt.get("lstamp") == 3: a("s_memtime s[86:87]")
    a(f"s_mov_b64 s[{RX}:{RX+1}], s[{PX}:{PX+1}]")
    a(f"buffer_load_dwordx4 v{VX0}, {q(RX)}, 0 offen lds")
    for m in range(1, 4):
        a("s_addk_i32 m0, 0x400")
        if m > 1: a("s_addk_i32 s67, 0x4000")
        else: a("s_setprio 2" if opt.get("pearly", 0) else "s_nop 0")
        a(f"buffer_load_dwordx4 v{VX0 if m % 2 == 0 else VX1}, {q(RX)}, s67 offen lds")
    a("s_branch K_HOPS")
    a.label("K_HOP")
    if opt.get("cp0", 0): a("s_setprio 3")
    if opt.get("pads", 0):
        a("s_bitcmp1_b32 s2, 6"); a("s_cbranch_scc0 K_HOPA")
        for k in range(3): a(f"s_cmp_eq_u32 s3, {k+1}"); a(f"s_cbranch_scc1 KPF_{k}")
        a("s_branch K_CPRE")
        a.label("K_HOPA")
        for k in range(3): a(f"s_cmp_eq_u32 s3, {k+1}"); a(f"s_cbranch_scc1 KPA_{k}")
    a("s_branch K_CPRE")
    a.label("K_HOPS")
    opt["_decode"]()
    a("s_movk_i32 s74, 3584"); a("s_movk_i32 s75, 128"); a("s_movk_i32 s66, 448")
    a(f"s_mul_i32 s66, s66, {sG}"); a(f"s_and_b32 s67, {sG}, 1"); a("s_lshl_b32 s64, s67, 6"); a("s_add_u32 s64, s64, s66"); a(f"s_lshl_b32 s65, {sG}, 7")
    a(f"s_cmp_eq_u32 {sT}, 0")
    a("s_cmovk_i32 s74, 3072"); a("s_cmovk_i32 s75, 1024"); a("s_cselect_b32 s64, s65, s64")
    a(f"s_cselect_b64 s[{RW}:{RW+1}], s[{PWQKV}:{PWQKV+1}], s[{PW1}:{PW1+1}]"); a(f"s_cselect_b64 s[{RE}:{RE+1}], s[{PX}:{PX+1}], s[{PW1}:{PW1+1}]")
    a(f"s_lshl_b32 s{RW+2}, s74, 9"); a(f"s_mov_b32 s{RW+3}, s{RX+3}"); a(f"s_mov_b32 s{RE+3}, s{RX+3}")
    a("v_and_b32 v15, 1, v12"); a("s_lshl_b32 s65, s68, 2"); a("v_xor_b32 v13, s65, v11"); a("v_lshlrev_b32 v15, 1, v15"); a("v_xor_b32 v15, v15, v13")
    a(f"s_lshl_b32 s65, {sW}, 3"); a(f"v_add_u32 v{VW}, s65, v10"); a(f"v_mul_u32_u24 v{VW}, s74, v{VW}"); a(f"v_lshl_add_u32 v{VW}, v15, 4, v{VW}"); a(f"v_add_u32 v{VW}, s64, v{VW}")
    a(f"s_lshl_b32 s71, {sW}, 10"); a(f"s_addk_i32 s71, {WOFF}")
    a("s_lshl_b32 s73, s74, 6"); a("s_lshl_b32 s74, s74, 5")
    a(f"s_add_u32 m0, s71, {b0}"); a("s_mov_b32 s50, 0")
    for k in range(6):
        if k == 3: a("s_addk_i32 m0, 0x1000"); a("s_add_u32 s50, s50, s74")
        elif 0 < k < 3: a("s_addk_i32 m0, 0x2000"); a("s_add_u32 s50, s50, s75")
        elif k > 3: a("s_addk_i32 m0, -0x2000"); a("s_sub_u32 s50, s50, s75")
        a(f"buffer_load_dwordx4 v{VW}, {q(RW)}, s50 offen lds")
        if k == 0: pad()
    a(f"s_cmp_eq_u32 {sT}, 0"); a("s_cbranch_scc1 KL_EA")
    a("s_cmp_eq_u32 s67, 0"); a("s_movk_i32 s65, 0"); a("s_cmovk_i32 s65, 384"); a("s_add_u32 s66, s66, s65")
    a("v_lshrrev_b32 v15, 2, v0"); a(f"s_lshl_b32 s65, {sW}, 4"); a("v_add_u32 v15, s65, v15"); a(f"v_mul_u32_u24 v{VE}, 3584, v15")
    a("v_lshrrev_b32 v15, 5, v0"); a("v_lshlrev_b32 v15, 1, v15"); a("v_and_b32 v13, 3, v0"); a("v_xor_b32 v15, v15, v13")
    a(f"v_lshl_add_u32 v{VE}, v15, 4, v{VE}"); a(f"v_add_u32 v{VE}, s66, v{VE}")
    a(f"s_lshl_b32 s72, {sW}, 10"); a("s_mov_b32 s76, s73"); a(f"s_mov_b32 s{RE+2}, s{RW+2}")
    a("s_branch KL_ED")
    a.label("KL_EA")
    a(f"s_lshl_b32 s64, {sB}, 7"); a(f"s_cmp_eq_u32 {sB}, 0"); a("s_cselect_b32 s65, -1, 15"); a(f"s_cselect_b32 s{RE+2}, 0, s{RX+2}"); a("s_sub_u32 s64, s64, s65")
    a("s_sub_u32 s64, s64, s68"); a("s_lshl_b32 s64, s64, 10")
    a("s_lshl_b32 s65, s68, 6"); a(f"v_xor_b32 v{VE}, s65, v14"); a(f"v_add_u32 v{VE}, s64, v{VE}")
    a("s_lshl_b32 s72, s68, 10"); a("s_movk_i32 s76, 128")
    a.label("KL_ED")
    a(f"s_add_u32 s72, s72, {EOFF}")
    a(f"s_add_u32 m0, s72, {b0}"); a("s_mov_b32 s77, 1")
    a(f"buffer_load_dwordx4 v{VE}, {q(RE)}, 0 offen lds")
    pad()
    def stage(s, lo=0, hi=11):
        base = slot_of(s)
        L = []
        for k in range(6):
            if k == 0: pre = [f"s_add_u32 m0, s71, {base}", "s_mul_i32 s50, s77, s73"]
            elif k == 3: pre = ["s_addk_i32 m0, 0x1000", "s_add_u32 s50, s50, s74"]
            elif k < 3: pre = ["s_addk_i32 m0, 0x2000", "s_add_u32 s50, s50, s75"]
            else: pre = ["s_addk_i32 m0, -0x2000", "s_sub_u32 s50, s50, s75"]
            L.append(pre + [f"buffer_load_dwordx4 v{VW}, {q(RW)}, s50 offen lds"])
        L.append([f"s_add_u32 m0, s72, {base}", "s_mul_i32 s50, s77, s76", f"buffer_load_dwordx4 v{VE}, {q(RE)}, s50 offen lds"])
        for m in range(4):
            pre = [f"s_add_u32 m0, s70, {base}", "s_lshl_b32 s50, s77, 7"] if m == 0 else ["s_addk_i32 m0, 0x400", "s_addk_i32 s50, 0x4000"]
            L.append(pre + [f"buffer_load_dwordx4 v{VX0 if m % 2 == 0 else VX1}, {q(RX)}, s50 offen lds"])
        L[-1].append("s_add_u32 s77, s77, 1")
        assert lo in (0, 6, 7, 11) and hi in (6, 7, 11)
        for x in L[lo:hi]:
            for y in x: a(y)
    def bar(n, k):
        a(f"s_waitcnt vmcnt({n})"); a("s_barrier")
        if opt.get("lstamp") == 1: a(f"s_memtime s[{84+2*k}:{85+2*k}]")
    def st2(k):
        if opt.get("lstamp") == 2: a(f"s_memtime s[{84+2*k}:{85+2*k}]")
    if opt.get("lstamp"):
        opt = dict(opt); so = opt.copy(); opt["stamps"] = 0
    else: so = opt
    s1a = int(str(opt.get("split", "x7bbbbbb"))[1], 16)
    if opt.get("lstamp") == 3: a("s_memtime s[88:89]")
    stage(1, 0, s1a)
    a("s_branch K_CPRE_S"); opt["_cpre"](); a.label("K_CPRE_S")
    opt["_decode2"]()
    if opt.get("lstamp") == 3:
        a("s_memtime s[90:91]"); a(f"s_waitcnt vmcnt({10 + s1a})"); a("s_memtime s[92:93]"); a(f"s_waitcnt vmcnt({s1a})"); a("s_memtime s[94:95]")
    a(f"v_lshlrev_b32 v{VL16}, 4, v0"); a(f"v_mov_b32 v{VZ}, 0")
    srd(a, RWS, PWS, WS_USED)
    a("v_and_b32 v15, 1, v12"); a("v_lshlrev_b32 v15, 2, v15"); a("v_xor_b32 v15, v15, v11"); a("v_lshlrev_b32 v15, 4, v15")
    a(f"v_lshlrev_b32 v{VR}, 10, v10"); a(f"v_add_u32 v{VR}, v{VR}, v15")
    a(f"s_mul_i32 s100, {sW}, 19"); a("s_sub_u32 s100, s100, 3"); a(f"s_cmp_eq_u32 {sW}, 0"); a("s_cselect_b32 s100, 0, s100"); a("s_cselect_b32 s101, 16, 19")
    a(f"s_cmp_eq_u32 {sW}, 3"); a("s_cselect_b32 s101, 18, s101"); a("s_lshl_b32 s101, s101, 12")
    a(f"s_mul_i32 s64, {sU}, 72"); a("s_add_u32 s64, s64, s100"); a("s_lshl_b32 s64, s64, 12")
    srd(a, RA, PWS, "s101", "s64")
    a("s_sub_u32 s64, s100, 16"); a("s_lshl_b32 s64, s64, 15")
    a(f"s_cmp_eq_u32 {sW}, 0"); a("s_cselect_b32 s64, 0, s64")
    a(f"s_cselect_b32 s66, s{PWO}, s{PW2}"); a(f"s_cselect_b32 s67, s{PWO+1}, s{PW2+1}")
    a(f"s_lshl_b32 s65, {sCT}, 7"); a("s_add_u32 s64, s64, s65")
    a(f"s_add_u32 s{RB}, s66, s64"); a(f"s_addc_u32 s{RB+1}, s67, 0")
    a(f"s_lshl_b32 s{RB+2}, s101, 3"); a(f"s_sub_u32 s{RB+2}, s{RB+2}, s65"); a(f"s_mov_b32 s{RB+3}, 0x20000")
    a(f"s_lshl_b32 s79, {sW}, 12"); a(f"s_sub_u32 s79, {TOP-4096}, s79")
    a(f"s_cmp_eq_u32 {sW}, 0"); a(f"s_cselect_b32 s79, {TOP-4096-16384}, s79")
    a(f"v_mov_b32 v13, {TOP-4096}"); a(f"ds_write_b32 v13, v{VZ}"); a("s_waitcnt lgkmcnt(0)")
    a("v_lshrrev_b32 v13, 5, v0"); a("v_lshlrev_b32 v13, 10, v13"); a("v_bfe_u32 v14, v0, 2, 2"); a("v_lshlrev_b32 v14, 7, v14"); a("v_add_u32 v13, v13, v14")
    a("v_bfe_u32 v14, v0, 3, 1"); a("v_lshlrev_b32 v14, 6, v14"); a("v_add_u32 v13, v13, v14")
    a("v_bfe_u32 v14, v0, 4, 1"); a("v_lshlrev_b32 v14, 5, v14"); a("v_add_u32 v13, v13, v14")
    a("v_and_b32 v14, 3, v0"); a("v_lshlrev_b32 v14, 3, v14"); a("v_add_u32 v13, v13, v14")
    a(f"s_sub_u32 s64, s79, {3*16384}"); a("v_add_u32 v58, s64, v13"); a("v_xor_b32 v59, 64, v58")
    for k, dr in ((60, 4), (62, 6)):
        a(f"v_subrev_u32 v{k}, {dr*16384}, v58"); a(f"v_subrev_u32 v{k+1}, {dr*16384}, v59")
    a(f"v_mul_u32_u24 v57, {FSTR}, v0")
    sp = [int(c, 16) for c in str(opt.get("split", "x7bbbbbb"))[1:]]
    assert sp[0] == s1a
    vm = [("S", 0)] * 11 + [("S", 1)] * s1a
    EA = opt.get("ea", 0)
    sL = "s15"
    def skipA(t): return t[0] == "B" and 10 <= t[1] < 10 + EA
    def younger(tag, attn=False):
        idx = max(i for i, t in enumerate(vm) if t == tag)
        return sum(1 for t in vm[idx+1:] if not (attn and skipA(t)))
    def vwait(tag):
        nf, na = younger(tag), younger(tag, True)
        if nf == na: a(f"s_waitcnt vmcnt({nf})"); return
        L1 = newlab("VW")
        a(f"s_waitcnt vmcnt({nf})"); a(f"s_cmp_lg_u32 {sL}, 0"); a(f"s_cbranch_scc1 {L1}"); a(f"s_waitcnt vmcnt({na})"); a.label(L1)
    class ffn_only:
        def __init__(self, on): self.on = on
        def __enter__(self):
            if self.on: self.L = newlab("FO"); a(f"s_cmp_eq_u32 {sL}, 0"); a(f"s_cbranch_scc1 {self.L}")
        def __exit__(self, *x):
            if self.on: a.label(self.L)
    def bar2(tag, k):
        vwait(tag); a("s_barrier")
        if opt.get("lstamp") == 1: a(f"s_memtime s[{84+2*k}:{85+2*k}]")
    def stage_t(s_, lo=0, hi=11): stage(s_, lo, hi); vm.extend([("S", s_)] * (hi - lo))
    br = opt.get("brot", 2)
    mp = opt.get("map", "Y")
    if br == 0: a("s_mov_b32 s14, 0")
    elif br == 2: a(f"s_and_b32 s14, {sB}, 1"); a("s_lshl_b32 s14, s14, 15")
    elif br == 4: a(f"s_and_b32 s14, {sB}, 3"); a("s_lshl_b32 s14, s14, 14")
    elif br == 5: a(f"s_and_b32 s14, {sB}, 6"); a("s_lshl_b32 s14, s14, 13")
    elif br == 6: a(f"s_and_b32 s14, {sB}, 2"); a("s_lshl_b32 s14, s14, 14")
    elif mp == "Z" and opt.get("p2map", 0) == 0: a(f"s_and_b32 s14, {sB}, 3"); a("s_lshl_b32 s14, s14, 14")
    elif mp == "Z": a(f"s_and_b32 s14, {sU}, 7"); a("s_lshl_b32 s14, s14, 13")
    elif mp == "Y" and not opt.get("p2alt", 0): a(f"s_and_b32 s14, {sB}, 7"); a("s_lshl_b32 s14, s14, 13")
    else: a(f"s_and_b32 s14, {sU}, 3"); a("s_lshl_b32 s14, s14, 14")
    a("s_lshl_b32 s8, s14, 3"); a("s_lshl_b32 s9, s101, 3")
    ACC = 8; BR = 72
    def bdma(tag, j, certain=True):
        for k in range(4):
            a(f"s_sub_u32 m0, s79, {16384*j - 1024*k}") if 16384*j - 1024*k >= 0 else a(f"s_add_u32 m0, s79, {1024*k - 16384*j}")
            a("s_nop 0")
            a(f"buffer_load_dwordx4 v{VR}, {q(RB)}, s8 offen lds")
            a("s_add_u32 s8, s8, 8192")
        a("s_cmp_ge_u32 s8, s9"); a("s_cselect_b32 s8, 0, s8")
        if certain: vm.extend([("B", tag)] * 4)
    def stg(i, j):
        r = 3 if j < 4 else (7 if j < 8 else 9)
        va = {3: 58, 7: 60, 9: 62}[r]
        for f in range(4):
            for e in range(2):
                a(f"ds_read_b64_tr_b16 {vr(BR+16*i+4*f+2*e,2)}, v{va+(f&1)} offset:{(r-j)*16384 + (f>>1)*2048 + e*512}")
    if "ebi" in opt: ebi = [int(c) for c in str(opt["ebi"])[1:]]
    elif "eb" in opt: ebi = list(range(5 - opt["eb"], 5))
    else: ebi = [0, 1, 2]
    E = len(ebi)
    ne = 0
    def swapback():
        a(f"s_cmp_eq_u32 {sL}, 0"); a("s_cselect_b32 s13, s8, s13"); a("s_cselect_b32 s8, s12, s8")
    if EA:
        assert E == 0 and EA <= 4
        lg = opt.get("lg", "T")
        if lg == "T": a(f"s_mov_b32 {sL}, {sT}")
        else: a(f"s_and_b32 {sL}, {sB}, {1 << opt.get('lgbit', 0)}")
        a(f"s_cmp_lg_u32 {sL}, 0"); a("s_cbranch_scc1 KL_NOEA")
        for t in range(EA): bdma(t, t, False)
        a("s_mov_b32 s12, s8"); a(f"s_cmp_eq_u32 {sW}, 0"); a(f"s_cselect_b32 s13, {9-EA}, {10-EA}"); a("s_lshl_b32 s13, s13, 15"); a("s_add_u32 s8, s8, s13")
        a("s_cmp_ge_u32 s8, s9"); a("s_cselect_b32 s13, s9, 0"); a("s_sub_u32 s8, s8, s13")
        for t in range(EA):
            a(f"s_waitcnt vmcnt({4*(EA-1-t)})"); stg(t, t)
        a("s_waitcnt lgkmcnt(0)")
        a.label("KL_NOEA")
    for s_ in range(6):
        bar(younger(("S", s_)), s_)
        if s_ == 0:
            stamp(a, opt, 0)
            if not opt.get("pearly", 0): a("s_setprio 2")
        if sp[s_] < 11: stage_t(s_ + 1, sp[s_], 11)
        nb = ebi.count(s_) + (s_ == 5)
        mid = opt.get("mid", 6)
        if nb and ne > 0 and mid < sp[s_ + 1] and s_ >= opt.get("midfrom", 0):
            stage_t(s_ + 2, 0, mid)
            a(f"s_waitcnt vmcnt({younger(('B', ne - 1))})"); stg(ne - 1, 0)
            stage_t(s_ + 2, mid, sp[s_ + 1])
            a("s_waitcnt lgkmcnt(0)")
            bdma(ne, 0); ne += 1; nb -= 1
        else:
            stage_t(s_ + 2, 0, sp[s_ + 1])
        for _ in range(nb):
            if ne > 0:
                a(f"s_waitcnt vmcnt({younger(('B', ne - 1))})"); stg(ne - 1, 0); a("s_waitcnt lgkmcnt(0)")
            bdma(ne, 0)
            if EA == 1: swapback()
            ne += 1
    assert sp[6] == 11 and ne == E + 1
    a("s_mov_b32 s77, s14")
    srd(a, RAUX, POUT, 2048 * 1024)
    a(f"s_lshr_b32 s68, {sU}, 1"); a(f"s_mul_i32 s68, s68, {16*FSTR}"); a(f"s_add_u32 s68, s68, {FA_OFF}")
    def fm(g0, g1): return sum(0x100 << g for g in range(g0, g1 + 1))
    a(f"s_mov_b32 s{RR}, 0x{fm(0,2):x}"); a(f"s_cmp_eq_u32 {sW}, 2"); a(f"s_cselect_b32 s{RR}, 0x{fm(2,5):x}, s{RR}")
    a(f"s_cmp_eq_u32 {sW}, 3"); a(f"s_cselect_b32 s{RR}, 0x{fm(5,7):x}, s{RR}")
    a(f"s_cmp_eq_u32 {sW}, 0"); a(f"s_cselect_b32 s{RR}, 0xff, s{RR}"); a(f"s_mov_b32 s{RR+1}, 0")
    a(f"s_lshl_b32 s69, {sU}, 9"); a(f"s_lshl_b32 s64, {sW}, 7"); a("s_add_u32 s69, s69, s64"); a(f"s_add_u32 s69, s69, {G_OFF}")
    bar2(("S", 6), 6)
    stamp(a, opt, 1)
    for t in range(1, 4):
        bdma(E + t, t)
        if EA and t == EA - 1: swapback()
    bar2(("S", 7), 7)
    for t in range(4, 7): bdma(E + t, t)
    NSG = 9 - E
    staged = 0
    def stage_upto(t_end):
        nonlocal staged
        t_end = min(t_end, NSG)
        if staged >= t_end: return
        vwait(('B', E + t_end - 1))
        with ffn_only(staged < EA):
            for t in range(staged, min(t_end, EA)): stg(E + t, t)
        for t in range(max(staged, EA), t_end): stg(E + t, t)
        staged = t_end
    if opt.get("early", 1): stage_upto(3)
    a("s_barrier")
    stamp(a, opt, 2); st2(0)
    ref = [9]
    def btr(j, regs):
        r = 3 if j < 4 else (7 if j < 8 else 9)
        out = []
        if r != ref[0]:
            d = ((ref[0] - r) * 16384) & 0xffffffff
            out.append("\n".join(f"v_add_u32 v{2+nt}, 0x{d:x}, v{2+nt}" for nt in range(2))); ref[0] = r
        for f in range(4):
            out.append("\n".join(f"ds_read_b64_tr_b16 {vr(regs[f]+2*e,2)}, v{2+(f&1)} offset:{(r-j)*16384 + (f>>1)*2048 + e*512}" for e in range(2)))
        return out
    gq = opt.get("gq", 2)
    if opt.get("lp", 2) != 2: a(f"s_setprio {opt.get('lp')}")
    bdma(E + 7, 7)
    stage_upto(5); st2(1)
    def fpause():
        if opt.get("sb", 2): a(f"s_cmp_eq_u32 {sT}, 0"); a("s_cbranch_scc1 KL_NOSB"); a("s_barrier"); a.label("KL_NOSB")
    if opt.get("sbn", 2) == 1: fpause()
    st2(2)
    bdma(E + 8, 8)
    if opt.get("sbn", 2) == 2: fpause()
    a(f"s_cmp_eq_u32 {sW}, 0"); a("s_cbranch_scc1 KL_SK9")
    bdma(E + 9, 9, False)
    a.label("KL_SK9"); st2(3)
    def apause(t):
        if opt.get("sb", 2) == 3 and opt.get("sb2", 10) == t:
            a(f"s_cmp_eq_u32 {sT}, 0"); a("s_cbranch_scc1 KL_NOSB2"); a("s_barrier"); a.label("KL_NOSB2")
        if opt.get("sba", 10) == t:
            a(f"s_cmp_lg_u32 {sT}, 0"); a("s_cbranch_scc1 KL_NOSA"); a("s_barrier"); a.label("KL_NOSA")
    apause(9)
    tl = list(range(10, 19 - E))
    assert len(tl) >= 2
    freed = 0
    did_misc = False
    def misc():
        if gq == 1:
            a(f"s_cmp_lg_u32 {sT}, 0"); a("s_cbranch_scc1 KL_NOG1"); gate_loads(a, VL16); a.label("KL_NOG1")
        a(f"global_load_dwordx2 v[10:11], v{VZ}, s[{PDBG}:{PDBG+1}] sc1"); vm.append(("T", 0))
    for t in tl[:-2]:
        if t - 10 >= freed:
            a("s_waitcnt lgkmcnt(0)"); freed = staged
            stage_upto(staged + 2)
        if t == tl[max(0, len(tl) - 4)]: misc(); did_misc = True
        with ffn_only(10 <= t < 10 + EA): bdma(E + t, t - 10)
        if EA and t == 10 + EA - 1: a(f"s_cmp_eq_u32 {sL}, 0"); a("s_cselect_b32 s8, s13, s8")
        apause(t)
        if t in (12, 14, 16): st2(4 + (t - 12) // 2)
    stage_upto(9)
    if not did_misc: misc()
    a(f"s_mov_b64 exec, s[{RR}:{RR+1}]")
    a(f"buffer_load_dwordx2 v[8:9], v57, {q(RWS)}, s68 offen sc1")
    a("s_mov_b64 exec, -1")
    a("s_waitcnt lgkmcnt(0)")
    a(f"s_cmp_eq_u32 {sW}, 0"); a("s_cbranch_scc1 KL_W0")
    bdma(0, tl[-2] - 10, False)
    a(f"s_cmp_eq_u32 {sW}, 3"); a("s_cbranch_scc1 KL_W1")
    bdma(0, tl[-1] - 10, False)
    a("s_waitcnt vmcnt(8)"); a("s_branch KL_W2")
    a.label("KL_W0"); a("s_waitcnt vmcnt(0)")
    a.label("KL_W1"); a("s_waitcnt vmcnt(4)")
    a.label("KL_W2")
    stamp(a, opt, 3); st2(7)
    tag_check(a, 10, VZ)
    a("v_mov_b32 v2, v62"); a("v_mov_b32 v3, v63")
    if gq < 2:
        a(f"s_cmp_lg_u32 {sT}, 0"); a("s_cbranch_scc1 KL_NOG")
        if gq == 0: gate_loads(a, VL16); a("s_waitcnt vmcnt(0)")
        gate_math(a, VL16)
        a.label("KL_NOG")
    a("v_lshrrev_b32 v7, 4, v0"); a("v_lshlrev_b32 v7, 4, v7")
    a(f"s_mov_b64 exec, s[{RR}:{RR+1}]")
    poll(a, 8, 57, "s68", f"s[{RR}:{RR+1}]", first_loaded=True)
    a("s_mov_b64 exec, -1")
    a("s_waitcnt lgkmcnt(0)")
    stamp(a, opt, 4)
    ref0 = ref[0]
    a(f"s_lshr_b32 s64, {sU}, 1"); a("s_lshl_b32 s64, s64, 7"); a(f"s_lshl_b32 s65, {sW}, 5"); a("s_add_u32 s64, s64, s65"); a(f"s_and_b32 s65, {sU}, 1"); a("s_add_u32 s64, s64, s65")
    a(f"s_cmp_eq_u32 {sW}, 0"); a("s_cbranch_scc1 KL_V16")
    a(f"s_cmp_eq_u32 {sW}, 3"); a("s_cbranch_scc1 KL_V18")
    def acc(tp, np_): return ACC + 16 * (2 * tp + np_)
    DM = opt.get("dmax", 12)
    WA = 80; RA_ = 88; OV = 92
    fill = [
        "s_lshl_b32 s64, s64, 10", f"s_lshl_b32 s65, {sCT}, 7", "s_add_u32 s70, s64, s65", "s_add_u32 s71, s70, 16384",
        f"s_sub_u32 s72, s79, {2*16384}", f"s_lshl_b32 s73, {sW}, 14", f"s_sub_u32 s73, {TOP-32768}, s73",
        "v_and_b32 v93, 15, v0", "v_lshrrev_b32 v94, 5, v0", "v_xor_b32 v94, v94, v93", "v_lshlrev_b32 v94, 4, v94",
        "v_lshlrev_b32 v95, 8, v93", "v_add_u32 v94, v94, v95", "v_bfe_u32 v95, v0, 4, 1", "v_lshlrev_b32 v95, 14, v95", "v_sub_u32 v94, v94, v95",
        f"v_add_u32 v{WA}, s72, v94"] + [f"v_xor_b32 v{WA+k}, {32*k}, v{WA}" for k in range(1, 8)] + [
        "v_lshrrev_b32 v93, 3, v0", "v_and_b32 v94, 7, v0", f"v_lshlrev_b32 v{OV}, 11, v93", "v_lshlrev_b32 v95, 4, v94", f"v_add_u32 v{OV}, v{OV}, v95",
        "v_lshlrev_b32 v95, 1, v94", "v_xor_b32 v95, v95, v93", "v_lshlrev_b32 v95, 4, v95", "v_lshlrev_b32 v93, 8, v93", "v_add_u32 v95, v95, v93",
        f"v_add_u32 v{RA_}, s73, v95", f"v_xor_b32 v{RA_+1}, 16, v{RA_}", f"v_xor_b32 v{RA_+2}, 128, v{RA_}", f"v_xor_b32 v{RA_+3}, 144, v{RA_}",
        "v_and_b32 v93, 8, v0", "v_cmp_ne_u32 s[74:75], 0, v93",
        f"s_lshl_b32 s72, {sW}, 9", f"s_add_u32 s72, s72, {TOP-4096+1024}", "v_lshlrev_b32 v103, 3, v0", "v_add_u32 v103, s72, v103"]
    for nst, lab in ((19, None), (18, "KL_V18"), (16, "KL_V16")):
        a(".p2align 3")
        if lab: a.label(lab)
        free = list(range(BR + 16 * NBR, 256, 4)); ref[0] = ref0
        pend = [("A", i, b) for i in range(nst) for b in range(4)]
        gi = 4 * opt.get("gstep", 13)
        pend[gi:gi] = [("G", 0, 0), ("G", 1, 0)]
        loc = {}; issued = []; cur_soff = [None]
        done_loads = [0]
        fl = list(fill)
        def issue():
            if not pend: return False
            if len(issued) - done_loads[0] >= DM: return False
            if pend[0][0] == "A" and not free: return False
            k = pend.pop(0); issued.append(k)
            if k[0] == "A":
                r = free.pop(0); loc[k] = r
                if cur_soff[0] != k[1] and k[1]:
                    a("s_add_u32 s77, s77, 4096"); a("s_cmp_ge_u32 s77, s101"); a("s_cselect_b32 s77, 0, s77"); cur_soff[0] = k[1]
                a(f"buffer_load_dwordx4 {vr(r,4)}, v{VL16}, {q(RA)}, s77 offen offset:{k[2]*1024} {opt.get('ald', 'sc1')}")
            else:
                a(f"buffer_load_dwordx4 {vr(72+4*k[1],4)}, v7, {q(RWS)}, s69 offen offset:{k[1]*64} sc1")
            return True
        while issue(): pass
        bl = {}
        ldsq = []
        for i in range(nst):
            Bv = [BR + 16 * i + 4 * n for n in range(4)] if i < NBR else bl[i]
            needb = NBR <= i + 2 < nst
            if needb:
                tt = i + 2 - E; md = 10 if nst > 16 else 9
                tr = btr(tt if tt < md else tt - md, Bv)
                if len(tr) == 5: a(tr.pop(0))
                bl[i + 2] = Bv
            if i == nst - 1:
                assert not pend and not fl
                a("s_waitcnt vmcnt(0) lgkmcnt(0)"); a("s_nop 0")
                L_ = []
                for tp in range(2):
                    for np_ in range(2):
                        for half in range(2):
                            L_.append(f"v_mfma_f32_32x32x16_bf16 {vr(acc(tp,np_),16)}, {vr(Bv[2*half+np_],4)}, {vr(loc[('A', i, 2*half+tp)],4)}, {vr(acc(tp,np_),16)}")
                L_ += ["v_cndmask_b32 v96, v72, v73, s[74:75]", "v_cndmask_b32 v98, v76, v77, s[74:75]", "v_sub_f32 v100, 1.0, v96", "v_sub_f32 v101, 1.0, v98",
                       "v_cvt_pk_bf16_f32 v100, v100, v101", "v_and_b32 v102, 0xffff0000, v100", "v_lshlrev_b32 v100, 16, v100",
                       f"v_cmp_eq_u64 vcc, s[{TAG}:{TAG+1}], v[74:75]", f"v_cmp_eq_u64 s[64:65], s[{TAG}:{TAG+1}], v[78:79]"]
                for tp in range(2):
                    for np_ in range(2):
                        for j in range(4):
                            L_.append(f"ds_write_b128 v{WA+4*np_+j}, {vr(acc(tp,np_)+4*j,4)} offset:{(1-tp)*32768}")
                M_ = L_[:8]; V_ = L_[8:17]; W_ = L_[17:]
                seq = [M_[0], M_[1], M_[2]] + V_[:5] + [M_[3]] + V_[5:] + [M_[4]] + W_[0:4] + [M_[5], "s_nop 1"] + W_[4:6] + [M_[6]] + W_[6:8] + [M_[7], "s_nop 3"] + W_[8:12] + ["s_nop 3"] + W_[12:]
                for x in seq: a(x)
                break
            for half in range(2):
                for tp in range(2):
                    blk = 2 * half + tp
                    idx = issued.index(("A", i, blk)); done_loads[0] = idx + 1
                    w = f"s_waitcnt vmcnt({len(issued) - idx - 1})"
                    if i >= NBR and tp == 0:
                        li = ldsq.index((i, 2 * half + 1))
                        w += f" lgkmcnt({min(15, 2 * (len(ldsq) - li - 1))})"
                    a(w); a("s_nop 0")
                    A = loc[("A", i, blk)]
                    for np_ in range(2):
                        c = vr(acc(tp, np_), 16) if (i > 0 or half > 0) else "0"
                        f = 2 * half + np_
                        a(f"v_mfma_f32_32x32x16_bf16 {vr(acc(tp,np_),16)}, {vr(Bv[f],4)}, {vr(A,4)}, {c}")
                        if np_ == 1: free.append(A)
                        if tp == 1:
                            if needb: a(tr[f]); ldsq.append((i + 2, f))
                            elif i >= 2: free.append(Bv[f])
                        got = issue()
                        if i >= 2 and fl and not got:
                            for _ in range(min(3, len(fl))): a(fl.pop(0))
                            a(".p2align 3")
        if nst != 16: a("s_branch KL_FIN")
    a.label("KL_FIN")
    stamp(a, opt, 5)
    L = newlab("GL"); D = newlab("GD")
    a("s_and_b64 s[64:65], s[64:65], vcc"); a("s_andn2_b64 s[64:65], exec, s[64:65]"); a(f"s_cbranch_scc0 {D}")
    a("s_mov_b32 s66, 0x40000")
    a.label(L)
    a("s_sleep 1")
    a(f"buffer_load_dwordx4 v[72:75], v7, {q(RWS)}, s69 offen sc1"); a(f"buffer_load_dwordx4 v[76:79], v7, {q(RWS)}, s69 offen offset:64 sc1")
    a("s_waitcnt vmcnt(0)")
    for x in ["v_cndmask_b32 v96, v72, v73, s[74:75]", "v_cndmask_b32 v98, v76, v77, s[74:75]", "v_sub_f32 v100, 1.0, v96", "v_sub_f32 v101, 1.0, v98",
              "v_cvt_pk_bf16_f32 v100, v100, v101", "v_and_b32 v102, 0xffff0000, v100", "v_lshlrev_b32 v100, 16, v100",
              f"v_cmp_eq_u64 vcc, s[{TAG}:{TAG+1}], v[74:75]", f"v_cmp_eq_u64 s[64:65], s[{TAG}:{TAG+1}], v[78:79]", "s_nop 0"]: a(x)
    a("s_and_b64 s[64:65], s[64:65], vcc"); a("s_andn2_b64 s[64:65], exec, s[64:65]"); a(f"s_cbranch_scc0 {D}")
    a("s_sub_u32 s66, s66, 1"); a("s_cmp_lg_u32 s66, 0"); a(f"s_cbranch_scc1 {L}")
    a.label(D)
    if opt.get("f8", 1):
        a("v_mov_b32 v99, v102")
        a("ds_write_b64 v103, v[98:99]")
        a("s_waitcnt lgkmcnt(0)"); a("s_barrier"); stamp(a, opt, 6, True)
        final_half(a, opt, RA_, OV, "s70", False)
    else:
        a("s_waitcnt lgkmcnt(0)"); a("s_barrier"); stamp(a, opt, 6, True)
        T = 104
        def P(h, src): return T + 32 * h + 8 * src
        for h in range(2):
            for src in (0, 1, 2, 3):
                for e in range(2):
                    off = (3 - src) * 4096 + h * 2048 + (16384 if src else 0)
                    a(f"ds_read_b128 {vr(P(h,src)+4*e,4)}, v{RA_+2*h+e} offset:{off}")
        for h in range(2):
            a(f"s_waitcnt lgkmcnt({8*(1-h)+6})")
            for i in range(0, 8, 2): a(f"v_pk_mul_f32 {vr(P(h,0)+i,2)}, {vr(P(h,0)+i,2)}, {vr(96+2*h,2)} op_sel_hi:[1,0]")
            a(f"s_waitcnt lgkmcnt({8*(1-h)+2})")
            for i in range(0, 8, 2): a(f"v_pk_add_f32 {vr(P(h,1)+i,2)}, {vr(P(h,1)+i,2)}, {vr(P(h,2)+i,2)}")
            a(f"s_waitcnt lgkmcnt({8*(1-h)})")
            for i in range(0, 8, 2): a(f"v_pk_add_f32 {vr(P(h,1)+i,2)}, {vr(P(h,1)+i,2)}, {vr(P(h,3)+i,2)}")
            for i in range(0, 8, 2): a(f"v_pk_fma_f32 {vr(P(h,0)+i,2)}, {vr(P(h,1)+i,2)}, {vr(100+2*h,2)}, {vr(P(h,0)+i,2)} op_sel_hi:[1,0,1]")
            for i in range(4): a(f"v_cvt_pk_bf16_f32 v{P(h,2)+i}, v{P(h,0)+2*i}, v{P(h,0)+2*i+1}")
            a(f"buffer_store_dwordx4 {vr(P(h,2),4)}, v{OV}, {q(RAUX)}, s{70+h} offen {opt.get('ost', 'sc1')}")
    stamp(a, opt, 7)
    if so.get("stamps"): a(f"s_add_u32 s100, {sW}, 40")
    if so.get("stamps"): a(f"s_lshl_b32 s64, {sT}, 2"); a("s_add_u32 s100, s100, s64")
    stamp_end(a, so, "s100")

def generate(opt):
    a = Asm()
    post = opt.get("post")
    if post is None:
        a(f"; @launch grid=(256,1,1) block=(512,1,1) lds={LDS_BYTES}")
    else:
        a(f"; @launch kernel={NAME}_kernel grid=(256,1,1) block=(512,1,1) lds={LDS_BYTES}")
        a(f"; @launch kernel=k3_kernel grid=(1,1,1) block=(64,1,1) lds=0")
    a('.amdgcn_target "amdgcn-amd-amdhsa--gfx950"'); a(".text")
    gen(a, opt)
    if post == "span":
        a(".globl k3_kernel"); a(".p2align 8"); a(".type k3_kernel,@function"); a.label("k3_kernel")
        a("s_load_dwordx2 s[8:9], s[0:1], 72"); a("s_waitcnt lgkmcnt(0)")
        a(f"s_add_u32 s8, s8, {STAMP_OFF}"); a("s_addc_u32 s9, s9, 0")
        a("s_load_dword s4, s[8:9], 256"); a("s_memrealtime s[10:11]")
        a("v_lshlrev_b32 v1, 9, v0")
        for k in range(4):
            a(f"global_load_dword v{2+k}, v1, s[8:9] offset:{5*64+4}"); a("v_add_u32 v1, 32768, v1")
        a("s_waitcnt vmcnt(0) lgkmcnt(0)")
        for k in range(4): a(f"v_subrev_u32 v{2+k}, s4, v{2+k}")
        a("v_max_u32 v2, v2, v3"); a("v_max3_u32 v2, v2, v4, v5"); a("s_mov_b32 s12, 0"); a("s_nop 1")
        for l in range(64): a(f"v_readlane_b32 s13, v2, {l}"); a("s_nop 0"); a("s_max_u32 s12, s12, s13")
        a("s_lshl_b32 s12, s12, 3")
        a("s_min_u32 s12, s12, 24000"); a("s_add_u32 s12, s12, 4000")
        a.label("K3_L"); a("s_memrealtime s[6:7]"); a("s_waitcnt lgkmcnt(0)")
        a("s_sub_u32 s7, s6, s10"); a("s_cmp_gt_u32 s7, 30000"); a("s_cbranch_scc1 K3_E")
        a("s_sub_u32 s6, s6, s4"); a("s_cmp_lt_u32 s6, s12"); a("s_cbranch_scc1 K3_L")
        a.label("K3_E"); a("s_endpgm")
    elif post is not None:
        wg, wv, idx, rf, sh = [int(x) for x in post.split(",")]
        a(".globl k3_kernel"); a(".p2align 8"); a(".type k3_kernel,@function"); a.label("k3_kernel")
        a("s_load_dwordx2 s[8:9], s[0:1], 72"); a("s_waitcnt lgkmcnt(0)")
        a(f"s_add_u32 s8, s8, {STAMP_OFF}"); a("s_addc_u32 s9, s9, 0")
        off = (wg * 8 + wv) * 64
        a("s_load_dword s4, s[8:9], 0"); a(f"s_load_dword s12, s[8:9], {off + 4*idx}"); a(f"s_load_dword s13, s[8:9], {off + 4*rf}"); a("s_memrealtime s[10:11]"); a("s_waitcnt lgkmcnt(0)")
        a("s_sub_u32 s12, s12, s13")
        a(f"s_lshr_b32 s12, s12, {sh}") if sh >= 0 else a(f"s_lshl_b32 s12, s12, {-sh}")
        a("s_min_u32 s12, s12, 20000"); a("s_add_u32 s12, s12, 6000")
        a.label("K3_L"); a("s_memrealtime s[6:7]"); a("s_waitcnt lgkmcnt(0)")
        a("s_sub_u32 s7, s6, s10"); a("s_cmp_gt_u32 s7, 30000"); a("s_cbranch_scc1 K3_E")
        a("s_sub_u32 s6, s6, s4"); a("s_cmp_lt_u32 s6, s12"); a("s_cbranch_scc1 K3_L")
        a.label("K3_E"); a("s_endpgm")
    a('.section .rodata,"a"'); a(".p2align 6")
    a(f".amdhsa_kernel {NAME}_kernel")
    a("  .amdhsa_next_free_vgpr 256"); a("  .amdhsa_next_free_sgpr 102"); a("  .amdhsa_accum_offset 256")
    a("  .amdhsa_group_segment_fixed_size 0"); a("  .amdhsa_kernarg_size 80"); a("  .amdhsa_user_sgpr_count 2")
    a("  .amdhsa_user_sgpr_kernarg_segment_ptr 1"); a("  .amdhsa_system_sgpr_workgroup_id_x 1"); a(".end_amdhsa_kernel")
    if post is not None:
        a(".p2align 6"); a(".amdhsa_kernel k3_kernel")
        a("  .amdhsa_next_free_vgpr 8"); a("  .amdhsa_next_free_sgpr 102"); a("  .amdhsa_accum_offset 8")
        a("  .amdhsa_group_segment_fixed_size 0"); a("  .amdhsa_kernarg_size 80"); a("  .amdhsa_user_sgpr_count 2")
        a("  .amdhsa_user_sgpr_kernarg_segment_ptr 1"); a("  .amdhsa_system_sgpr_workgroup_id_x 1"); a(".end_amdhsa_kernel")
    errs = check(a.lines)
    for e in errs: print(e, file=sys.stderr)
    assert not errs
    return a.text()

if __name__ == "__main__":
    opt = {}
    for kv in sys.argv[2:]:
        k, v = kv.split("=")
        try: v = int(v)
        except: pass
        opt[k] = v
    open(sys.argv[1], "w").write(generate(opt))
```

```python
import sys, struct
from asmlib import *

NAME = "gated_mix__sliding_local_dilated__dense_activation_relu__prompt"
A2_OFF = 0
W2_OFF = 0xA00000
G_OFF = 0xD00000
FW_OFF = 0xD10000
FA_OFF = 0xD20000
WS_USED = 0xD80000
FSTR = 1152
STAMP_OFF = 128 << 20
SLOT = 45056
XOFF, WOFF, EOFF = 0, 16384, 40960
SCR = 3 * SLOT
LDS_BYTES = 163840
TOP = LDS_BYTES
def slot_of(s): return ((7 - s) % 3) * SLOT
BIG = 0xF149F2CA
LOG2E = 1.4426950408889634
KS0 = [0, 16, 35, 54]; NST = [16, 19, 19, 18]
NBR = 9
BL_BASE = [0, 28672, 69632, 110592]
PX, PWQKV, PWO, PW1, PW2, PGATE, POUT, PDBG, PWS = 4, 6, 8, 12, 14, 16, 18, 20, 22
sB, sT, sG, sW, sU, sCT, TAG = "s24", "s25", "s26", "s27", "s28", "s29", 30
RX, RW, RE, RWS, RR, RAUX, RA, RB = 32, 36, 40, 44, 48, 52, 56, 60

def f32bits(x): return struct.unpack("<I", struct.pack("<f", x))[0]
def q(r): return f"s[{r}:{r+3}]"

def srd(a, d, base, size, add=0):
    if add == 0:
        a(f"s_mov_b32 s{d}, s{base}"); a(f"s_mov_b32 s{d+1}, s{base+1}")
    else:
        a(f"s_add_u32 s{d}, s{base}, {add}"); a(f"s_addc_u32 s{d+1}, s{base+1}, 0")
    a(f"s_mov_b32 s{d+2}, {size}"); a(f"s_mov_b32 s{d+3}, 0x20000")

def csel(a, d, x, y):
    a(f"s_mov_b32 {d}, {y}"); a(f"s_cselect_b32 {d}, {x}, {d}")

def spread(a, mf, other, last=4):
    n = len(mf) - last; other = list(other); k = 0
    for i, m in enumerate(mf):
        a(m)
        while k < len(other) and k * n <= i * len(other): a(other[k]); k += 1
    while k < len(other): a(other[k]); k += 1

def mix(xs, ws):
    out = []; i = j = 0
    while i < len(xs) or j < len(ws):
        if j >= len(ws) or (i < len(xs) and i * len(ws) <= j * len(xs)): out.append(xs[i]); i += 1
        else: out.append(ws[j]); j += 1
    return out

def interleave(a, mf, other, start=0, per=1):
    other = list(other)
    for i, m in enumerate(mf):
        a(m)
        if i >= start:
            for _ in range(per):
                if other: a(other.pop(0))
    for o in other: a(o)

def stamp_begin(a, opt):
    if opt.get("stamps"):
        a("s_memrealtime s[80:81]"); a("s_memtime s[82:83]")
        for k in range(8): a(f"s_mov_b32 s{84+2*k}, 0")

def stamp(a, opt, k, wait=False):
    if opt.get("stamps") == 1:
        a(f"s_memtime s[{84+2*k}:{85+2*k}]")
        if wait: a("s_waitcnt lgkmcnt(0)")

def stamp_end(a, opt, tag):
    if not opt.get("stamps"): return
    a("s_waitcnt vmcnt(0) lgkmcnt(0)")
    a("s_memrealtime s[64:65]"); a("s_memtime s[66:67]")
    a("s_waitcnt lgkmcnt(0)")
    srd(a, RAUX, PWS, 1 << 20, STAMP_OFF)
    a("s_lshl_b32 s68, s2, 3"); a("s_add_u32 s68, s68, s3"); a("s_lshl_b32 s68, s68, 6")
    a("s_getreg_b32 s69, hwreg(HW_REG_XCC_ID)")
    a(f"s_mov_b32 s65, {tag}")
    if opt.get("tg"): a(f"s_and_b32 s67, {sG}, 1"); a("s_mul_i32 s67, s67, 100"); a("s_add_u32 s65, s65, s67")
    for i, s in enumerate((80, 64, 82, 84, 86, 88, 90, 92, 94, 96, 98, 66, 69, 65, 65, 65)):
        a(f"v_mov_b32 v{8+i}, s{s}")
    a("v_mov_b32 v6, s68")
    a("s_mov_b64 exec, 1")
    for k in range(4):
        a(f"buffer_store_dwordx4 v[{8+4*k}:{11+4*k}], v6, {q(RAUX)}, 0 offen offset:{16*k}")
    a("s_waitcnt vmcnt(0)")

_lab = [0]
def newlab(p):
    _lab[0] += 1; return f"{p}_{_lab[0]}"

def tag_check(a, vt, vz):
    L = newlab("TAGL"); D = newlab("TAGD")
    a("s_mov_b32 s64, 0x40000")
    a.label(L)
    a(f"v_readfirstlane_b32 s{TAG}, v{vt}"); a(f"v_readfirstlane_b32 s{TAG+1}, v{vt+1}"); a("s_nop 0")
    a(f"s_cmp_lg_u32 s{TAG}, 0"); a(f"s_cbranch_scc1 {D}")
    a("s_sub_u32 s64, s64, 1"); a("s_cmp_eq_u32 s64, 0"); a(f"s_cbranch_scc1 {D}")
    a("s_sleep 2")
    a(f"global_load_dwordx2 v[{vt}:{vt+1}], v{vz}, s[{PDBG}:{PDBG+1}] sc1"); a("s_waitcnt vmcnt(0)")
    a(f"s_branch {L}")
    a.label(D)

PSL = [1]
def poll(a, vt, voff, soff, need, first_loaded=False):
    L = newlab("POLL"); C = newlab("POLC"); D = newlab("POLD")
    a("s_mov_b32 s66, 0x40000")
    if first_loaded: a(f"s_branch {C}")
    a.label(L)
    a(f"buffer_load_dwordx2 v[{vt}:{vt+1}], v{voff}, {q(RWS)}, {soff} offen sc1")
    a("s_waitcnt vmcnt(0)")
    a.label(C)
    a(f"v_cmp_eq_u64 vcc, s[{TAG}:{TAG+1}], v[{vt}:{vt+1}]"); a("s_nop 0")
    a(f"s_andn2_b64 s[64:65], {need}, vcc"); a(f"s_cbranch_scc0 {D}")
    a("s_sub_u32 s66, s66, 1"); a("s_cmp_eq_u32 s66, 0"); a(f"s_cbranch_scc1 {D}")
    a(f"s_sleep {PSL[0]}"); a(f"s_branch {L}")
    a.label(D)

def gen(a, opt):
    global FSTR
    PSL[0] = opt.get("psl", 1); FSTR = opt.get("fstr", 1152)
    kn = NAME + "_kernel"
    a(f".globl {kn}"); a(".p2align 8"); a(f".type {kn},@function"); a.label(kn)
    a("s_cmp_ge_u32 s2, 256"); a("s_cbranch_scc1 K_END")
    a("s_load_dwordx16 s[4:19], s[0:1], 0")
    a("s_load_dwordx4 s[20:23], s[0:1], 64")
    stamp_begin(a, opt)
    def decode():
        a("s_and_b32 s64, s2, 7"); a("s_lshr_b32 s65, s2, 3")
        a("s_lshr_b32 s66, s65, 3")
        a(f"s_and_b32 {sT}, s66, 1")
        a("s_and_b32 s67, s64, 3"); a(f"s_lshl_b32 {sG}, s67, 1"); a("s_lshr_b32 s67, s66, 1"); a(f"s_add_u32 {sG}, {sG}, s67")
    def decode2():
        if opt.get("p2alt", 0):
            a("s_and_b32 s64, s2, 7"); a(f"s_lshl_b32 {sU}, s64, 2"); a("s_bfe_u32 s64, s2, 0x20003"); a(f"s_add_u32 {sU}, {sU}, s64")
            a(f"s_lshr_b32 {sCT}, s2, 5")
            if opt.get("ctmix", 1): a("s_lshl_b32 s64, s64, 1"); a(f"s_add_u32 {sCT}, {sCT}, s64"); a(f"s_and_b32 {sCT}, {sCT}, 7")
            return
        a("s_and_b32 s64, s2, 1"); a(f"s_lshl_b32 {sU}, {sB}, 1"); a(f"s_add_u32 {sU}, {sU}, s64")
        a("s_and_b32 s64, s2, 2"); a("s_lshl_b32 s64, s64, 1"); a("s_lshr_b32 s65, s2, 6")
        if opt.get("ctmix", 1): a(f"s_add_u32 s65, s65, {sB}"); a("s_and_b32 s65, s65, 3")
        a(f"s_add_u32 {sCT}, s64, s65")
    opt["_decode"] = decode; opt["_decode2"] = decode2
    def cpre():
        a.label("K_CPRE")
        decode()
        if opt.get("duty", 1) == 3:
            Lx = newlab("DU"); Lc = newlab("DU"); Ld = newlab("DU")
            dl_ = opt.get("dlead", 1); dsh = opt.get("dsh", 0)
            a("s_lshr_b32 s64, s2, 7"); a("s_lshl_b32 s64, s64, 6"); a("s_and_b32 s65, s2, 63"); a("s_add_u32 s64, s64, s65")
            a("s_lshl_b32 s64, s64, 2"); a(f"s_add_u32 s64, s64, {sW}")
            a("v_lshlrev_b32 v254, 7, v0"); a("v_lshlrev_b32 v253, 7, v0")
            a(f"s_mov_b32 s{RR+3}, 0x20000"); a(f"s_mov_b32 s{RA+3}, 0x20000")
            a("s_cmp_ge_u32 s64, 144"); a("s_cselect_b32 s63, 1, 0"); a(f"s_add_u32 s63, s63, {opt.get('dbs', 2)}")
            a("s_cmp_ge_u32 s64, 288"); a("s_cselect_b32 s63, 255, s63")
            a("s_mul_i32 s65, s64, 781"); a("s_lshr_b32 s65, s65, 16"); a("s_mul_i32 s66, s65, 84"); a("s_sub_u32 s66, s64, s66")
            a(f"s_max_u32 s101, s65, {dl_}"); a(f"s_sub_u32 s101, s101, {dl_}")
            if dsh: a(f"s_add_u32 s101, s101, {(1 << dsh) - 1}"); a(f"s_lshr_b32 s101, s101, {dsh}")
            a("s_cmp_ge_u32 s64, 504"); a("s_cselect_b32 s101, 255, s101")
            a(f"s_cmp_lg_u32 {sT}, 0"); a("s_cselect_b32 s101, 255, s101"); a("s_cselect_b32 s63, 255, s63")
            a("s_add_u32 s65, s65, 2")
            a("s_waitcnt lgkmcnt(0)")
            a("s_cmp_lt_u32 s64, 64")
            a(f"s_cselect_b32 s{RA}, s{PWO}, s{PW2}"); a(f"s_cselect_b32 s{RA+1}, s{PWO+1}, s{PW2+1}"); csel(a, f"s{RA+2}", 512*1024, 1792*1024)
            a("s_cselect_b32 s67, 0, 64"); a("s_sub_u32 s62, s64, s67"); a("s_lshl_b32 s62, s62, 13")
            a("s_cmp_lt_u32 s66, 52"); a(f"s_cbranch_scc1 {Lx}")
            a(f"s_mov_b32 s{RR}, s{PX}"); a(f"s_mov_b32 s{RR+1}, s{PX+1}"); a(f"s_mov_b32 s{RR+2}, {2048*1024}")
            a("v_lshlrev_b32 v254, 10, v0")
            a("s_sub_u32 s66, s66, 52"); a("s_lshl_b32 s100, s66, 16"); a("s_lshl_b32 s65, s65, 7"); a("s_add_u32 s100, s100, s65")
            a(f"s_branch {Lc}")
            a.label(Lx)
            a("s_cmp_lt_u32 s66, 24")
            a(f"s_cselect_b32 s{RR}, s{PWQKV}, s{PW1}"); a(f"s_cselect_b32 s{RR+1}, s{PWQKV+1}, s{PW1+1}"); csel(a, f"s{RR+2}", 512*3072, 512*3584)
            a("s_cselect_b32 s64, 24, 28"); a("s_cselect_b32 s67, 0, 24"); a("s_mul_i32 s65, s65, s64"); a("s_add_u32 s66, s66, s65"); a("s_sub_u32 s66, s66, s67"); a("s_lshl_b32 s100, s66, 13")
            a.label(Lc)
            a("s_cmp_lg_u32 s101, 0"); a(f"s_cbranch_scc1 {Ld}"); a(f"buffer_load_dword v255, v254, {q(RR)}, s100 offen"); a.label(Ld)
        elif opt.get("duty", 1):
            Lb = newlab("DU"); Lc = newlab("DU"); Ld = newlab("DU")
            a("s_waitcnt lgkmcnt(0)")
            a("v_lshlrev_b32 v254, 7, v0")
            a(f"s_mov_b32 s{RR+3}, 0x20000")
            if opt.get("duty", 1) == 2:
                a("s_lshr_b32 s64, s2, 7"); a("s_lshl_b32 s64, s64, 6"); a("s_and_b32 s65, s2, 63"); a("s_add_u32 s64, s64, s65")
                a(f"s_cmp_eq_u32 {sT}, 0"); a("s_cselect_b32 s64, s64, 128")
                a(f"s_branch {Lb}X")
            a("s_cmp_ge_u32 s2, 156"); a(f"s_cbranch_scc1 {Lb}")
            a("s_lshl_b32 s64, s2, 1"); a(f"s_and_b32 s65, {sW}, 1"); a("s_add_u32 s64, s64, s65")
            a("s_mul_i32 s65, s64, 1261"); a("s_lshr_b32 s65, s65, 16"); a("s_mul_i32 s66, s65, 52"); a("s_sub_u32 s64, s64, s66")
            a(f"s_max_u32 s101, s65, {opt.get('dlead', 1)}"); a(f"s_sub_u32 s101, s101, {opt.get('dlead', 1)}")
            a("s_add_u32 s65, s65, 2")
            if opt.get("xduty", 1):
                Le = newlab("DU")
                a(f"s_cmp_lt_u32 {sW}, 2"); a(f"s_cbranch_scc1 {Le}")
                a(f"s_mov_b32 s{RR}, s{PX}"); a(f"s_mov_b32 s{RR+1}, s{PX+1}"); a(f"s_mov_b32 s{RR+2}, {2048*1024}")
                a("v_lshlrev_b32 v254, 10, v0")
                a("s_lshl_b32 s100, s64, 16"); a("s_lshl_b32 s65, s65, 7"); a("s_add_u32 s100, s100, s65")
                a("s_cmp_ge_u32 s64, 32"); a("s_cselect_b32 s101, 255, s101")
                a(f"s_branch {Lc}")
                a.label(Le)
            a("s_cmp_lt_u32 s64, 24")
            a(f"s_cselect_b32 s{RR}, s{PWQKV}, s{PW1}"); a(f"s_cselect_b32 s{RR+1}, s{PWQKV+1}, s{PW1+1}"); csel(a, f"s{RR+2}", 512*3072, 512*3584)
            a("s_cselect_b32 s66, 24, 28"); a("s_cselect_b32 s67, 0, 24"); a("s_mul_i32 s65, s65, s66"); a("s_add_u32 s64, s64, s65"); a("s_sub_u32 s64, s64, s67"); a("s_lshl_b32 s100, s64, 13")
            a(f"s_cmp_ge_u32 {sW}, 2"); a("s_cselect_b32 s101, 255, s101")
            a(f"s_branch {Lc}")
            a.label(Lb)
            a("s_sub_u32 s64, s2, 156")
            a.label(Lb + "X")
            a("s_mul_i32 s64, s64, 3"); a(f"s_add_u32 s64, s64, {sW}")
            a("s_mul_i32 s101, s64, 911"); a(f"s_lshr_b32 s101, s101, {16 + opt.get('dbw', 1)}"); a(f"s_add_u32 s101, s101, {opt.get('dbs', 0)}")
            a(f"s_cmp_ge_u32 {sW}, 3"); a("s_cselect_b32 s101, 255, s101"); a("s_cmp_ge_u32 s64, 288"); a("s_cselect_b32 s101, 255, s101")
            a("s_cmp_lt_u32 s64, 64")
            a(f"s_cselect_b32 s{RR}, s{PWO}, s{PW2}"); a(f"s_cselect_b32 s{RR+1}, s{PWO+1}, s{PW2+1}"); csel(a, f"s{RR+2}", 512*1024, 1792*1024)
            a("s_cselect_b32 s67, 0, 64"); a("s_sub_u32 s64, s64, s67"); a("s_lshl_b32 s100, s64, 13")
            a.label(Lc)
            a("s_cmp_lg_u32 s101, 0"); a(f"s_cbranch_scc1 {Ld}"); a(f"buffer_load_dword v255, v254, {q(RR)}, s100 offen"); a.label(Ld)
        a("s_branch K_COMPUTE")
    opt["_cpre"] = cpre
    a("v_lshrrev_b32 v1, 6, v0"); a("v_and_b32 v0, 63, v0")
    a("v_readfirstlane_b32 s3, v1")
    a("s_and_b32 s64, s2, 4"); a("s_lshr_b32 s65, s2, 3"); a("s_lshl_b32 s64, s64, 1"); a("s_and_b32 s65, s65, 7"); a(f"s_add_u32 {sB}, s64, s65")
    a(f"s_and_b32 {sW}, s3, 3"); a("s_xor_b32 s3, s3, 4")
    a("s_cmp_lt_u32 s3, 4"); a("s_cbranch_scc1 K_HOP")
    gen_loader(a, opt)
    a.label("K_END"); a("s_endpgm")
    a.label("K_COMPUTE")
    a(f"s_cmp_eq_u32 {sT}, 0"); a("s_cbranch_scc1 K_ATTN")
    gen_ffn(a, opt)
    gen_attn(a, opt)
    a.label("K_CODE_END")

def compute_common_setup(a, opt):
    L = newlab("CS")
    a("v_mov_b32 v1, 0")
    a("s_or_b32 s64, s2, s3"); a("s_cmp_lg_u32 s64, 0"); a(f"s_cbranch_scc1 {L}")
    a("s_memrealtime s[64:65]"); a("s_waitcnt lgkmcnt(0)")
    a("s_or_b32 s64, s64, 1"); a("s_xor_b32 s65, s65, 0x5bd1e995")
    a("v_mov_b32 v10, s64"); a("v_mov_b32 v11, s65")
    a("s_mov_b64 exec, 1")
    a(f"global_store_dwordx2 v1, v[10:11], s[{PDBG}:{PDBG+1}] sc1")
    a("s_mov_b64 exec, -1")
    a.label(L)
    if opt.get("cpf", 2) == 1:
        L = newlab("CS")
        a("s_cmp_ge_u32 s2, 8"); a(f"s_cbranch_scc1 {L}"); a("s_cmp_lg_u32 s3, 1"); a(f"s_cbranch_scc1 {L}")
        a("s_getpc_b64 s[64:65]")
        G = newlab("GP"); a.label(G)
        a(f"s_sub_u32 s64, s64, {G}-{NAME}_kernel"); a("s_subb_u32 s65, s65, 0")
        a("v_lshlrev_b32 v10, 7, v0")
        a(f"s_mov_b32 s66, K_CODE_END-{NAME}_kernel-4")
        for r in range(opt.get("cpfn", 4)):
            a("v_min_u32 v11, s66, v10"); a("global_load_dword v255, v11, s[64:65]"); a("v_add_u32 v10, 8192, v10")
        a.label(L)
    srd(a, RWS, PWS, WS_USED)
    if opt.get("tlb", 0):
        Lt = newlab("TLB")
        a(f"s_cmp_lg_u32 {sW}, 2"); a(f"s_cbranch_scc1 {Lt}")
        a("v_lshlrev_b32 v13, 21, v0"); a("s_mov_b64 exec, 0x7f")
        a(f"buffer_load_dword v12, v13, {q(RWS)}, 0 offen")
        a("s_mov_b64 exec, 1")
        for p in (PW2, PWO, POUT, PGATE, PDBG):
            a(f"global_load_dword v12, v1, s[{p}:{p+1}]")
        a("s_mov_b64 exec, -1")
        a.label(Lt)
    a(f"s_lshl_b32 s78, {sB}, 4"); a(f"s_lshl_b32 s64, {sT}, 3"); a("s_add_u32 s78, s78, s64"); a(f"s_add_u32 s78, s78, {sG}")
    a(f"s_mul_i32 s78, s78, {FSTR}"); a(f"s_add_u32 s78, s78, {FA_OFF}")

def compute_publish(a, opt, vt, nst):
    L = newlab("NOPUB")
    a("s_mov_b64 exec, 1")
    a(f"v_mov_b32 v12, {TOP-4096}"); a("v_mov_b32 v13, 1")
    a(f"s_waitcnt vmcnt({nst})")
    tag_check(a, vt, 1)
    a("s_waitcnt vmcnt(0)")
    stamp(a, opt, 6)
    a("ds_add_rtn_u32 v13, v12, v13"); a("s_waitcnt lgkmcnt(0)")
    a("v_cmp_eq_u32 vcc, 3, v13"); a("s_nop 0"); a(f"s_cbranch_vccz {L}")
    fo = opt.get("fop", 0)
    if fo == 0: a(f"buffer_store_dwordx2 v[{vt}:{vt+1}], v1, {q(RWS)}, s78 offen sc1")
    elif fo == 1: a(f"buffer_atomic_swap_x2 v[{vt}:{vt+1}], v1, {q(RWS)}, s78 offen sc1")
    elif fo == 2: a(f"buffer_store_dwordx2 v[{vt}:{vt+1}], v1, {q(RWS)}, s78 offen sc0 sc1")
    elif fo == 3:
        a("s_mov_b64 exec, 0xffff"); a(f"v_mov_b32 v{vt}, s{TAG}"); a(f"v_mov_b32 v{vt+1}, s{TAG+1}"); a("v_lshlrev_b32 v13, 3, v0")
        a(f"buffer_store_dwordx2 v[{vt}:{vt+1}], v13, {q(RWS)}, s78 offen sc1"); a("s_mov_b64 exec, 1")
    a.label(L)

def gate_loads(a, VL16):
    a(f"s_lshl_b32 s64, {sB}, 7"); a(f"s_and_b32 s65, {sG}, 3"); a("s_lshl_b32 s65, s65, 5"); a("s_add_u32 s65, s65, s64")
    a(f"s_lshl_b32 s66, {sW}, 3"); a("s_add_u32 s65, s65, s66"); a(f"s_lshr_b32 s66, {sG}, 2"); a("s_add_u32 s65, s65, s66"); a("s_lshl_b32 s65, s65, 10")
    a(f"s_lshl_b32 s66, {sG}, 4"); a("s_add_u32 s64, s64, s66"); a(f"s_lshl_b32 s66, {sW}, 2"); a("s_add_u32 s64, s64, s66")
    a("s_lshl_b32 s78, s64, 3"); a(f"s_add_u32 s78, s78, {G_OFF}")
    a(f"global_load_dwordx4 v[32:35], v{VL16}, s[{PGATE}:{PGATE+1}]")
    a(f"buffer_load_dwordx4 v[16:19], v{VL16}, {q(RX)}, s65 offen"); a(f"buffer_load_dwordx4 v[20:23], v{VL16}, {q(RX)}, s65 offen offset:2048")
    a("s_add_u32 s65, s65, 4096")
    a(f"buffer_load_dwordx4 v[24:27], v{VL16}, {q(RX)}, s65 offen"); a(f"buffer_load_dwordx4 v[28:31], v{VL16}, {q(RX)}, s65 offen offset:2048")
def gate_math(a, VL16):
    GU = 36; P = 44; R = 52
    for k in range(4):
        a(f"v_lshlrev_b32 v{GU+2*k}, 16, v{32+k}"); a(f"v_and_b32 v{GU+1+2*k}, 0xffff0000, v{32+k}")
    for row in range(4):
        xb = 16 + 4 * row
        for k in range(4):
            a(f"v_lshlrev_b32 v{P+2*k}, 16, v{xb+k}"); a(f"v_and_b32 v{P+2*k+1}, 0xffff0000, v{xb+k}")
        for i in range(0, 8, 2): a(f"v_pk_mul_f32 {vr(P+i,2)}, {vr(P+i,2)}, {vr(GU+i,2)}")
        for k in range(4): a(f"v_cvt_pk_bf16_f32 v{xb+k}, v{P+2*k}, v{P+2*k+1}")
        for k in range(4):
            a(f"v_lshlrev_b32 v{P+2*k}, 16, v{xb+k}"); a(f"v_and_b32 v{P+2*k+1}, 0xffff0000, v{xb+k}")
        a(f"v_pk_add_f32 {vr(P,2)}, {vr(P,2)}, {vr(P+4,2)}"); a(f"v_pk_add_f32 {vr(P+2,2)}, {vr(P+2,2)}, {vr(P+6,2)}")
        a(f"v_pk_add_f32 {vr(P,2)}, {vr(P,2)}, {vr(P+2,2)}")
        a(f"v_add_f32 v{R+row}, v{P}, v{P+1}")
    a.nop(1)
    for sh in (8, 4, 2, 1):
        for row in range(4): a(f"v_add_f32_dpp v{R+row}, v{R+row}, v{R+row} row_ror:{sh} row_mask:0xf bank_mask:0xf")
    for sw in ("v_permlane32_swap_b32", "v_permlane16_swap_b32"):
        for row in range(4): a(f"v_mov_b32 v{P+row}, v{R+row}")
        for row in range(4): a(f"{sw} v{R+row}, v{P+row}")
        for row in range(4): a(f"v_add_f32 v{R+row}, v{R+row}, v{P+row}")
    def rnd():
        for h in range(2):
            a(f"v_cvt_pk_bf16_f32 v{P+h}, v{R+2*h}, v{R+2*h+1}")
        for h in range(2):
            a(f"v_lshlrev_b32 v{R+2*h}, 16, v{P+h}"); a(f"v_and_b32 v{R+2*h+1}, 0xffff0000, v{P+h}")
    rnd()
    for row in range(4): a(f"v_mul_f32 v{R+row}, 0x{f32bits(-LOG2E):x}, v{R+row}")
    for row in range(4): a(f"v_exp_f32 v{R+row}, v{R+row}")
    for row in range(4): a(f"v_add_f32 v{R+row}, 1.0, v{R+row}")
    for row in range(4): a(f"v_rcp_f32 v{R+row}, v{R+row}")
    a.nop(1)
    rnd()
    a("v_cmp_eq_u32 vcc, 1, v0"); a(f"v_mov_b32 v{P+2}, s{TAG}"); a(f"v_mov_b32 v{P+3}, s{TAG+1}")
    a(f"v_cndmask_b32 v{P}, v{R}, v{R+2}, vcc"); a(f"v_cndmask_b32 v{P+1}, v{R+1}, v{R+3}, vcc")
    a("s_mov_b64 exec, 3")
    a(f"buffer_store_dwordx4 {vr(P,4)}, v{VL16}, {q(RWS)}, s78 offen sc1")
    a("s_mov_b64 exec, -1")

def final_half(a, opt, RA_, OV, so_, gl):
    T = 104
    def P(src): return T + 8 * src
    if gl: a("ds_read_b64 v[96:97], v103")
    for src in range(4):
        for e in range(2):
            a(f"ds_read_b128 {vr(P(src)+4*e,4)}, v{RA_+e} offset:{(3 - src) * 4096 + (16384 if src else 0)}")
    a("s_waitcnt lgkmcnt(6)")
    for i in range(0, 8, 2): a(f"v_pk_mul_f32 {vr(P(0)+i,2)}, {vr(P(0)+i,2)}, v[96:97] op_sel_hi:[1,0]")
    a("s_waitcnt lgkmcnt(2)")
    for i in range(0, 8, 2): a(f"v_pk_add_f32 {vr(P(1)+i,2)}, {vr(P(1)+i,2)}, {vr(P(2)+i,2)}")
    a("s_waitcnt lgkmcnt(0)")
    for i in range(0, 8, 2): a(f"v_pk_add_f32 {vr(P(1)+i,2)}, {vr(P(1)+i,2)}, {vr(P(3)+i,2)}")
    for i in range(0, 8, 2):
        if gl: a(f"v_pk_fma_f32 {vr(P(0)+i,2)}, {vr(P(1)+i,2)}, v[96:97], {vr(P(0)+i,2)} op_sel:[0,1,0] op_sel_hi:[1,1,1]")
        else: a(f"v_pk_fma_f32 {vr(P(0)+i,2)}, {vr(P(1)+i,2)}, v[100:101], {vr(P(0)+i,2)} op_sel_hi:[1,0,1]")
    for i in range(4): a(f"v_cvt_pk_bf16_f32 v{P(2)+i}, v{P(0)+2*i}, v{P(0)+2*i+1}")
    a(f"buffer_store_dwordx4 {vr(P(2),4)}, v{OV}, {q(RAUX)}, {so_} offen {opt.get('ost', 'sc1')}")

def compute_final(a, opt):
    a.label("K_CFIN")
    a("s_mov_b64 exec, -1"); a("s_setprio 0")
    opt["_decode2"]()
    srd(a, RAUX, POUT, 2048 * 1024)
    a(f"s_lshr_b32 s64, {sU}, 1"); a("s_lshl_b32 s64, s64, 7"); a(f"s_lshl_b32 s65, {sW}, 5"); a("s_add_u32 s64, s64, s65"); a(f"s_and_b32 s65, {sU}, 1"); a("s_add_u32 s64, s64, s65")
    a("s_lshl_b32 s64, s64, 10"); a(f"s_lshl_b32 s65, {sCT}, 7"); a("s_add_u32 s70, s64, s65"); a("s_add_u32 s70, s70, 16384")
    a(f"s_lshl_b32 s73, {sW}, 14"); a(f"s_sub_u32 s73, {TOP-32768+2048}, s73")
    for x in ["v_lshrrev_b32 v93, 3, v0", "v_and_b32 v94, 7, v0", "v_lshlrev_b32 v92, 11, v93", "v_lshlrev_b32 v95, 4, v94", "v_add_u32 v92, v92, v95",
              "v_lshlrev_b32 v95, 1, v94", "v_xor_b32 v95, v95, v93", "v_lshlrev_b32 v95, 4, v95", "v_lshlrev_b32 v93, 8, v93", "v_add_u32 v95, v95, v93",
              "v_add_u32 v95, s73, v95", "v_xor_b32 v88, 128, v95", "v_xor_b32 v89, 144, v95",
              f"s_lshl_b32 s72, {sW}, 9", f"s_add_u32 s72, s72, {TOP-4096+1024}", "v_lshlrev_b32 v103, 3, v0", "v_add_u32 v103, s72, v103"]: a(x)
    a("s_barrier")
    final_half(a, opt, 88, 92, "s70", True)
    a("s_endpgm")

def cpad(a, opt, n):
    if opt.get("pads", 0): a(f"s_branch {n}_S"); a.label(n); a("s_branch K_CPRE"); a.label(n + "_S")

def mainloop(a, opt, pre, addr_regs, reads, mfmas):
    a("s_mov_b32 s70, 1"); a("s_mov_b32 s72, 0"); a(f"s_mov_b32 s73, {(-SLOT) & 0xffffffff}"); a(f"s_mov_b32 s79, {2*SLOT}")
    for r in addr_regs: a(f"v_add_u32 v{r}, {slot_of(0)}, v{r}")
    if opt.get("prio", 2) == 1: a("s_setprio 1")
    du = opt.get("duty", 1)
    if du == 3 and pre == "KF": du = 0
    dl = f"buffer_load_dword v255, v254, {q(RR)}, s100 offen"
    if opt.get("cp0", 0): a("s_setprio 0")
    stamp(a, opt, 0)
    a("s_barrier")
    stamp(a, opt, 1)
    for r in reads(0, 0): a(r)
    a(".p2align 3")
    a.label(pre + "_LOOP")
    a("s_waitcnt lgkmcnt(0)")
    a("s_add_u32 s70, s70, 1")
    last = opt.get("last", 6)
    sal = ["s_cmp_eq_u32 s70, 3\ns_cselect_b32 s71, s79, s73", "s_cselect_b32 s70, 0, s70\ns_add_u32 s72, s72, 1"]
    if du: sal.append(f"s_cmp_eq_u32 s72, s101\ns_cbranch_scc1 {pre}_DUTY\n{pre}_DBACK:")
    if du == 3: sal.append(f"s_cmp_eq_u32 s72, s63\ns_cbranch_scc1 {pre}_DUTY2\n{pre}_DBACK2:")
    sal.append("s_cmp_eq_u32 s72, 8\ns_nop 0")
    mf = mfmas(0)
    spread(a, mf[:-last], reads(1, 1), 0)
    interleave(a, mf[-last:], sal)
    a("s_waitcnt lgkmcnt(0)")
    a("s_barrier")
    a(f"s_cbranch_scc1 {pre}_DONE"); a("s_nop 0")
    for _ in range(opt.get("slow", 0)): a("s_nop 15"); a("s_nop 15")
    adv = [f"v_add_u32 v{r}, s71, v{r}" for r in addr_regs]
    if len(adv) % 2: adv.append("s_nop 0")
    adv = [adv[i] + "\n" + adv[i+1] for i in range(0, len(adv), 2)]
    mf = mfmas(1)
    interleave(a, mf[:len(adv)], adv)
    spread(a, mf[len(adv):], reads(0, 0), opt.get("last2", 2))
    a(f"s_branch {pre}_LOOP")
    if du:
        a.label(pre + "_DUTY"); a(dl); a(f"s_branch {pre}_DBACK")
    if du == 3:
        a.label(pre + "_DUTY2"); a(f"buffer_load_dword v255, v253, {q(RA)}, s62 offen"); a(f"s_branch {pre}_DBACK2")
    a(".p2align 3")
    a.label(pre + "_DONE")
    if opt.get("prio", 2) == 2: a("s_setprio 3"); a("s_nop 0")
    stamp(a, opt, 2)

def gen_ffn(a, opt):
    ACC = 16; FR = 128
    def acc(t, n): return ACC + 4 * (t * 7 + n)
    def xf(s, t): return FR + 44 * s + 4 * t
    def wf(s, n): return FR + 44 * s + 16 + 4 * n
    XA = [2, 3]; WA = [4, 5, 6, 7]; SA = 8
    cpad(a, opt, "KPF_0")
    a(f"s_lshr_b32 s68, {sW}, 1")
    a(f"s_and_b32 s69, {sW}, 1")
    a("v_and_b32 v10, 15, v0"); a("v_lshrrev_b32 v11, 4, v0")
    a("v_lshrrev_b32 v12, 1, v10"); a("v_xor_b32 v12, v12, v11"); a("v_lshlrev_b32 v12, 4, v12")
    a("v_lshlrev_b32 v13, 7, v10"); a("v_add_u32 v12, v12, v13")
    a("s_lshl_b32 s64, s68, 13"); a(f"v_add_u32 v{XA[0]}, s64, v12"); a(f"v_xor_b32 v{XA[1]}, 64, v{XA[0]}")
    a("v_bfe_u32 v12, v0, 2, 2")
    a("v_lshlrev_b32 v13, 3, v11"); a("v_add_u32 v13, v13, v12")
    a("v_lshrrev_b32 v14, 1, v12"); a("v_and_b32 v15, 1, v11"); a("v_lshlrev_b32 v9, 1, v15"); a("v_or_b32 v14, v14, v9")
    a("v_and_b32 v9, 3, v0"); a("v_lshlrev_b32 v9, 3, v9")
    a("v_lshlrev_b32 v12, 7, v13"); a("v_add_u32 v12, v12, v9")
    for j in range(4):
        a("s_mul_i32 s64, s69, 6"); a(f"s_add_u32 s64, s64, {j}")
        a("s_and_b32 s65, s64, 3"); a("s_lshr_b32 s64, s64, 2"); a("s_lshl_b32 s64, s64, 13"); a(f"s_add_u32 s64, s64, {WOFF}")
        a(f"v_xor_b32 v{WA[j]}, s65, v14"); a(f"v_lshlrev_b32 v{WA[j]}, 5, v{WA[j]}"); a(f"v_add_u32 v{WA[j]}, v{WA[j]}, v12"); a(f"v_add_u32 v{WA[j]}, s64, v{WA[j]}")
    a(f"v_xor_b32 v{SA}, s69, v15"); a(f"v_lshlrev_b32 v{SA}, 5, v{SA}"); a(f"v_add_u32 v{SA}, v{SA}, v9")
    a("v_lshlrev_b32 v12, 6, v13"); a(f"v_add_u32 v{SA}, v{SA}, v12"); a(f"v_add_u32 v{SA}, {EOFF}, v{SA}")
    a(f"s_lshl_b32 s64, {sB}, 1"); a("s_add_u32 s64, s64, s68"); a("s_mul_i32 s64, s64, 72")
    a(f"s_mul_i32 s65, {sG}, 7"); a("s_add_u32 s64, s64, s65"); a("s_add_u32 s64, s64, 16")
    a(f"s_and_b32 s65, {sG}, 1")
    a("s_mul_i32 s66, s69, 3"); a("s_add_u32 s66, s66, s65"); a("s_add_u32 s66, s66, s64"); a("s_lshl_b32 s74, s66, 12")
    a("s_add_u32 s75, s74, 4096"); a("s_add_u32 s76, s74, 8192")
    a("s_cmp_eq_u32 s65, 0"); a("s_cselect_b32 s66, 6, 0"); a("s_add_u32 s66, s66, s64"); a("s_lshl_b32 s77, s66, 12")
    a("s_lshl_b32 s65, s69, 11"); a("s_add_u32 s77, s77, s65")
    a("v_lshlrev_b32 v9, 4, v0")
    a("s_waitcnt lgkmcnt(0)")
    compute_common_setup(a, opt)
    cpad(a, opt, "KPF_1")
    for i in range(112): a(f"v_mov_b32 v{ACC+i}, 0")
    cpad(a, opt, "KPF_2")
    def reads(kk, s):
        xs = [f"ds_read_b128 {vr(xf(s,t),4)}, v{XA[kk]} offset:{t*2048}" for t in range(4)]
        ws = []
        for n in range(6):
            for h in range(2):
                ws.append(f"ds_read_b64_tr_b16 {vr(wf(s,n)+2*h,2)}, v{WA[n&3]} offset:{(n>>2)*8192 + kk*4096 + h*512}")
        for h in range(2):
            ws.append(f"ds_read_b64_tr_b16 {vr(wf(s,6)+2*h,2)}, v{SA} offset:{kk*2048 + h*256}")
        return mix(xs, ws)
    def mfmas(s):
        return [f"v_mfma_f32_16x16x32_bf16 {vr(acc(t,n),4)}, {vr(wf(s,n),4)}, {vr(xf(s,t),4)}, {vr(acc(t,n),4)}" for n in range(7) for t in range(4)]
    mainloop(a, opt, "KF", XA + WA + [SA], reads, mfmas)
    E = [f"global_load_dwordx2 v[10:11], v1, s[{PDBG}:{PDBG+1}] sc1"] + mfmas(1)
    tmp = [FR + 4 * k for k in range(11)] + [216 + 4 * k for k in range(3)]
    k = 0
    for n in range(7):
        for tp in range(2):
            d = tmp[k]; k += 1
            for hh in range(2):
                sx = acc(2 * tp + hh, n)
                E.append(f"v_cvt_pk_bf16_f32 v{d+2*hh}, v{sx}, v{sx+1}"); E.append(f"v_cvt_pk_bf16_f32 v{d+2*hh+1}, v{sx+2}, v{sx+3}")
            for i in (0, 2, 1, 3): E.append(f"v_pk_max_i16 v{d+i}, v{d+i}, 0")
            E.append(f"v_permlane16_swap_b32 v{d}, v{d+2}"); E.append(f"v_permlane16_swap_b32 v{d+1}, v{d+3}")
            off = ((n & 1) * 2048 if n < 6 else 0) + tp * 1024
            E.append(f"buffer_store_dwordx4 {vr(d,4)}, v9, {q(RWS)}, s{74+(n>>1)} offen offset:{off} sc1")
    o, t = schedule(E, 40)
    print("ffn epilogue est", t, len(o), file=sys.stderr)
    wn = opt.get("wn", 0); ns = 0
    for x in o:
        if x.startswith("buffer_store") and opt.get("nostore"): continue
        if x.startswith("buffer_store"):
            if wn and ns >= wn: a(f"s_waitcnt vmcnt({wn-1})")
            ns += 1
        a(x)
    if opt.get("sb", 2) in (1, 3): a("s_barrier")
    stamp(a, opt, 3)
    compute_publish(a, opt, 10, 14)
    if opt.get("sb", 2) in (2, 3): a("s_barrier")
    stamp(a, opt, 5)
    stamp_end(a, opt, 1)
    a("s_branch K_CFIN" if opt.get("f8", 1) else "s_endpgm")

def gen_attn(a, opt):
    a.label("K_ATTN")
    ACC = 36; FR = 140
    def Q(t): return ACC + 4 * t
    def K(t): return ACC + 32 + 4 * t
    def V(t): return ACC + 68 + 4 * t
    def xf(s, t): return FR + 48 * s + 4 * t
    def wf(s, p): return FR + 48 * s + 36 + 4 * p
    XA = [2, 3]; WA = 4
    BC, BP, BP0, BP4, MC = 16, 20, 24, 28, 32
    cpad(a, opt, "KPA_0")
    a("v_and_b32 v10, 15, v0"); a("v_lshrrev_b32 v11, 4, v0")
    a("v_lshrrev_b32 v12, 1, v10"); a("v_xor_b32 v12, v12, v11"); a("v_lshlrev_b32 v12, 4, v12")
    a("v_lshlrev_b32 v13, 7, v10"); a(f"v_add_u32 v{XA[0]}, v12, v13"); a(f"v_xor_b32 v{XA[1]}, 64, v{XA[0]}")
    a("v_bfe_u32 v12, v0, 2, 2")
    a("v_lshlrev_b32 v13, 3, v11"); a("v_add_u32 v13, v13, v12")
    a("v_lshrrev_b32 v14, 1, v12"); a("v_and_b32 v15, 1, v11"); a("v_lshlrev_b32 v9, 1, v15"); a("v_or_b32 v14, v14, v9")
    a("v_and_b32 v9, 3, v0"); a("v_lshlrev_b32 v9, 3, v9")
    a("v_lshlrev_b32 v12, 7, v13"); a("v_add_u32 v12, v12, v9")
    a(f"v_xor_b32 v{WA}, {sW}, v14"); a(f"v_lshlrev_b32 v{WA}, 5, v{WA}"); a(f"v_add_u32 v{WA}, v{WA}, v12"); a(f"v_add_u32 v{WA}, {WOFF}, v{WA}")
    a("v_lshlrev_b32 v5, 2, v11"); a("v_sub_u32 v6, v5, v10")
    a(f"s_mul_i32 s64, {sB}, 144"); a(f"s_lshl_b32 s65, {sG}, 1"); a("s_add_u32 s64, s64, s65"); a(f"s_lshr_b32 s65, {sW}, 1"); a("s_add_u32 s64, s64, s65")
    a("s_lshl_b32 s74, s64, 12"); a(f"s_and_b32 s65, {sW}, 1"); a("s_lshl_b32 s65, s65, 11"); a("s_add_u32 s74, s74, s65")
    a(f"s_add_u32 s75, s74, {72*4096}")
    a(f"s_mov_b32 s76, 0x{f32bits(0.25*LOG2E):x}"); a("s_mov_b32 s77, s76")
    a("v_lshlrev_b32 v9, 4, v0")
    a("s_waitcnt lgkmcnt(0)")
    compute_common_setup(a, opt)
    cpad(a, opt, "KPA_1")
    a(f"v_mov_b32 v7, 0x{BIG:x}")
    a(f"s_cmp_eq_u32 {sB}, 0"); a(f"s_cselect_b32 s64, 0x{BIG:x}, 0"); a("v_mov_b32 v8, s64")
    a(f"v_mov_b32 v{MC}, 0"); a(f"v_mov_b32 v{MC+1}, 0")
    for r in range(4):
        a(f"v_add_u32 v14, {r+7}, v6")
        a("v_cmp_gt_u32 vcc, 8, v14")
        a(f"v_mov_b32 v15, {'0xffff' if r % 2 == 0 else '0xffff0000'}")
        a(f"v_add_u32 v14, {r}, v6")
        a(f"v_cndmask_b32 v{BC+r}, v7, v1, vcc")
        a("v_cndmask_b32 v15, v1, v15, vcc")
        a(f"v_or_b32 v{MC+(r>>1)}, v{MC+(r>>1)}, v15")
        a("v_cmp_le_i32 vcc, 9, v14")
        a(f"v_add_u32 v15, {r}, v5")
        a("v_cmp_gt_u32 s[64:65], 8, v15")
        a(f"v_cndmask_b32 v{BP+r}, v7, v1, vcc")
        a(f"v_cndmask_b32 v{BP0+r}, v7, v8, vcc")
        a("v_cmp_le_i32 vcc, 1, v14"); a("s_nop 0")
        a("s_and_b64 vcc, vcc, s[64:65]")
        a(f"v_cndmask_b32 v{BP4+r}, v7, v8, vcc")
    cpad(a, opt, "KPA_2")
    for i in range(104): a(f"v_mov_b32 v{ACC+i}, 0")
    def reads(kk, s):
        ws = []
        for p in range(3):
            for h in range(2):
                ws.append(f"ds_read_b64_tr_b16 {vr(wf(s,p)+2*h,2)}, v{WA} offset:{p*8192 + kk*4096 + h*512}")
        xs = [f"ds_read_b128 {vr(xf(s,t),4)}, v{XA[kk]} offset:{t*2048 if t < 8 else EOFF}" for t in range(9)]
        return mix(xs, ws)
    def mfmas(s):
        r = []
        for t in range(9):
            if t < 8: r.append(f"v_mfma_f32_16x16x32_bf16 {vr(Q(t),4)}, {vr(wf(s,0),4)}, {vr(xf(s,t),4)}, {vr(Q(t),4)}")
            r.append(f"v_mfma_f32_16x16x32_bf16 {vr(K(t),4)}, {vr(wf(s,1),4)}, {vr(xf(s,t),4)}, {vr(K(t),4)}")
            r.append(f"v_mfma_f32_16x16x32_bf16 {vr(V(t),4)}, {vr(xf(s,t),4)}, {vr(wf(s,2),4)}, {vr(V(t),4)}")
        return r
    a("s_mov_b32 s66, 0x3f803f80")
    mainloop(a, opt, "KA", XA + [WA], reads, mfmas)
    QB = FR; KB = FR + 16; M = FR + 34; ONES = FR + 44; VB = FR + 48; PB = FR + 68; TM = FR + 100
    E = [f"global_load_dwordx2 v[10:11], v1, s[{PDBG}:{PDBG+1}] sc1"] + mfmas(1)
    e = E.append
    def cvt(d, s): e(f"v_cvt_pk_bf16_f32 v{d}, v{s}, v{s+1}"); e(f"v_cvt_pk_bf16_f32 v{d+1}, v{s+2}, v{s+3}")
    for i in range(4): e(f"v_mov_b32 v{ONES+i}, s66")
    for t in range(8): cvt(QB + 2 * t, Q(t))
    for t in range(9): cvt(KB + 2 * t, K(t))
    def vslot(t): return (1 + t) if t < 4 else (2 + t)
    for t in range(8): cvt(VB + 2 * vslot(t), V(t))
    for d in (VB, VB + 10): cvt(d, V(8))
    for t in range(8):
        prev = 8 if t in (0, 4) else t - 1
        bp = BP0 if t == 0 else (BP4 if t == 4 else BP)
        e(f"v_mfma_f32_16x16x16_bf16 {vr(Q(t),4)}, {vr(KB+2*t,2)}, {vr(QB+2*t,2)}, {vr(BC,4)}")
        e(f"v_mfma_f32_16x16x16_bf16 {vr(K(t),4)}, {vr(KB+2*prev,2)}, {vr(QB+2*t,2)}, {vr(bp,4)}")
    for t in range(8):
        for r in range(4): e(f"v_max_f32 v{Q(t)+r}, v{Q(t)+r}, v{K(t)+r}")
        e(f"v_max3_f32 v{M+t}, v{Q(t)}, v{Q(t)+1}, v{Q(t)+2}")
        e(f"v_max_f32 v{M+t}, v{M+t}, v{Q(t)+3}")
    for b4 in (0, 4):
        m0, m1, m2, m3 = M + b4, M + b4 + 1, M + b4 + 2, M + b4 + 3
        e(f"v_permlane32_swap_b32 v{m0}, v{m1}"); e(f"v_max_f32 v{m0}, v{m0}, v{m1}")
        e(f"v_permlane32_swap_b32 v{m2}, v{m3}"); e(f"v_max_f32 v{m2}, v{m2}, v{m3}")
        e(f"v_permlane16_swap_b32 v{m0}, v{m2}"); e(f"v_max_f32 v{m0}, v{m0}, v{m2}")
        k0, k1, k2, k3 = K(b4), K(b4 + 1), K(b4 + 2), K(b4 + 3)
        e(f"v_mul_f32 v{k0}, s76, v{m0}"); e(f"v_mul_f32 v{k2}, s76, v{m0}")
        e(f"v_permlane16_swap_b32 v{k0}, v{k2}")
        e(f"v_mov_b32 v{k1}, v{k0}"); e(f"v_mov_b32 v{k3}, v{k2}")
        e(f"v_permlane32_swap_b32 v{k0}, v{k1}"); e(f"v_permlane32_swap_b32 v{k2}, v{k3}")
    pk = opt.get("pk", 1)
    for t in range(8):
        if pk:
            for r in (0, 2): e(f"v_pk_fma_f32 {vr(Q(t)+r,2)}, {vr(Q(t)+r,2)}, s[76:77], {vr(K(t),2)} op_sel_hi:[1,1,0] neg_lo:[0,0,1] neg_hi:[0,0,1]")
        else:
            for r in range(4): e(f"v_fma_f32 v{Q(t)+r}, v{Q(t)+r}, s76, -v{K(t)}")
        for r in range(4): e(f"v_exp_f32 v{Q(t)+r}, v{Q(t)+r}")
        cvt(PB + 4 * t + 2, Q(t))
        for h in range(2): e(f"v_bfi_b32 v{PB+4*t+h}, v{MC+h}, 0, v{PB+4*t+2+h}")
        for h in range(2): e(f"v_and_b32 v{PB+4*t+2+h}, v{MC+h}, v{PB+4*t+2+h}")
        e(f"v_mfma_f32_16x16x32_bf16 {vr(K(t),4)}, {vr(ONES,4)}, {vr(PB+4*t,4)}, 0")
        e(f"v_mfma_f32_16x16x32_bf16 {vr(Q(t),4)}, {vr(VB+2*(vslot(t)-1),4)}, {vr(PB+4*t,4)}, 0")
        e(f"v_rcp_f32 v{K(t)}, v{K(t)}")
        if pk:
            for r in (0, 2): e(f"v_pk_mul_f32 {vr(Q(t)+r,2)}, {vr(Q(t)+r,2)}, {vr(K(t),2)} op_sel_hi:[1,0]")
        else:
            for r in range(4): e(f"v_mul_f32 v{Q(t)+r}, v{Q(t)+r}, v{K(t)}")
        cvt(QB + 2 * t, Q(t))
        if t & 1:
            d = QB + 2 * t - 2
            e(f"v_permlane16_swap_b32 v{d}, v{d+2}"); e(f"v_permlane16_swap_b32 v{d+1}, v{d+3}")
            e(f"buffer_store_dwordx4 {vr(d,4)}, v9, {q(RWS)}, s{74+(t>>2)} offen offset:{((t>>1)&1)*1024} sc1")
    o, t = schedule(E, 0)
    print("attn epilogue est", t, len(o), file=sys.stderr)
    for x in o: a(x)
    if opt.get("sba", 11) and opt.get("sbl", 1) == 0: a("s_barrier")
    stamp(a, opt, 4)
    compute_publish(a, opt, 10, 4)
    if opt.get("sba", 11) and opt.get("sbl", 1) == 1: a("s_barrier")
    stamp(a, opt, 5)
    if opt.get("gq", 2) == 2:
        a("s_mov_b64 exec, -1")
        srd(a, RX, PX, 2048 * 1024)
        gate_loads(a, 9); a("s_waitcnt vmcnt(0)"); gate_math(a, 9)
    stamp_end(a, opt, 2)
    if opt.get("f8", 1): compute_final(a, opt)
    else: a("s_endpgm")

def gen_loader(a, opt):
    a("; ---- loader wave")
    VL16, VX0, VX1, VW, VE, VR, VZ = 1, 2, 3, 4, 5, 6, 7
    win = None
    npad = [0]
    def pad():
        return
        k = npad[0]; npad[0] += 1
        a(f"s_branch KP_{k}_S"); a.label(f"KP_{k}"); a("s_branch K_CPRE"); a.label(f"KP_{k}_S")
    b0 = slot_of(0)
    if opt.get("cpf", 2) == 2:
        L = newlab("CS")
        a("s_cmp_ge_u32 s2, 8"); a(f"s_cbranch_scc1 {L}")
        a("s_getpc_b64 s[64:65]")
        G = newlab("GP"); a.label(G)
        a(f"s_lshl_b32 s66, {sW}, 13"); a("v_lshlrev_b32 v10, 7, v0"); a("v_add_u32 v10, s66, v10")
        a(f"s_mov_b32 s66, K_CODE_END-{G}-4")
        a("v_min_u32 v10, s66, v10"); a("global_load_dword v255, v10, s[64:65]")
        a.label(L)
    a("v_lshrrev_b32 v10, 3, v0"); a("v_and_b32 v11, 7, v0"); a("v_lshrrev_b32 v12, 4, v0")
    a(f"s_and_b32 s68, {sW}, 1"); a(f"s_lshr_b32 s69, {sW}, 1")
    a(f"s_lshl_b32 s64, {sB}, 1"); a("s_add_u32 s64, s64, s68"); a("s_lshl_b32 s64, s64, 6"); a("s_add_u32 s64, s64, s69"); a("s_lshl_b32 s64, s64, 10")
    a("v_xor_b32 v13, v11, v12"); a("v_lshlrev_b32 v14, 11, v10"); a("v_lshl_add_u32 v14, v13, 4, v14")
    a(f"v_add_u32 v{VX0}, s64, v14"); a(f"v_xor_b32 v{VX1}, 64, v{VX0}")
    a(f"s_mov_b32 s{RX+3}, 0x20000"); a(f"s_lshl_b32 s{RX+2}, s{RX+3}, 4")
    a(f"s_lshl_b32 s70, {sW}, 12"); a(f"s_add_u32 m0, s70, {b0}"); a("s_movk_i32 s51, 0x4000")
    wl = opt.get("wlate", 0)
    def wsetup():
        opt["_decode"]()
        a("s_movk_i32 s74, 3584"); a("s_movk_i32 s75, 128"); a("s_movk_i32 s66, 448")
        a(f"s_mul_i32 s66, s66, {sG}"); a(f"s_and_b32 s67, {sG}, 1"); a("s_lshl_b32 s64, s67, 6"); a("s_add_u32 s64, s64, s66"); a(f"s_lshl_b32 s65, {sG}, 7")
        a(f"s_cmp_eq_u32 {sT}, 0")
        a("s_cmovk_i32 s74, 3072"); a("s_cmovk_i32 s75, 1024"); a("s_cselect_b32 s64, s65, s64")
        a(f"s_lshl_b32 s{RW+2}, s74, 9"); a(f"s_mov_b32 s{RW+3}, s{RX+3}"); a(f"s_mov_b32 s{RE+3}, s{RX+3}")
        a("v_and_b32 v15, 1, v12"); a("s_lshl_b32 s65, s68, 2"); a("v_xor_b32 v13, s65, v11"); a("v_lshlrev_b32 v15, 1, v15"); a("v_xor_b32 v15, v15, v13")
        a(f"s_lshl_b32 s65, {sW}, 3"); a(f"v_add_u32 v{VW}, s65, v10"); a(f"v_mul_u32_u24 v{VW}, s74, v{VW}"); a(f"v_lshl_add_u32 v{VW}, v15, 4, v{VW}"); a(f"v_add_u32 v{VW}, s64, v{VW}")
        a(f"s_lshl_b32 s71, {sW}, 10"); a(f"s_addk_i32 s71, {WOFF}")
        a("s_lshl_b32 s73, s74, 6"); a("s_lshl_b32 s74, s74, 5")
    if wl:
        wsetup(); a("s_movk_i32 s51, 0x4000")
    if opt.get("lstamp") == 3: a("s_memtime s[84:85]")
    a("s_waitcnt lgkmcnt(0)")
    if opt.get("lstamp") == 3: a("s_memtime s[86:87]")
    a(f"s_mov_b64 s[{RX}:{RX+1}], s[{PX}:{PX+1}]")
    a(f"buffer_load_dwordx4 v{VX0}, {q(RX)}, 0 offen lds")
    for m in range(1, 4):
        a("s_addk_i32 m0, 0x400")
        if m > 1: a("s_addk_i32 s51, 0x4000")
        else: a("s_setprio 2" if opt.get("pearly", 0) else "s_nop 0")
        a(f"buffer_load_dwordx4 v{VX0 if m % 2 == 0 else VX1}, {q(RX)}, s51 offen lds")
    a("s_branch K_HOPS")
    a.label("K_HOP")
    if opt.get("cp0", 0): a("s_setprio 3")
    if opt.get("pads", 0):
        a("s_bitcmp1_b32 s2, 6"); a("s_cbranch_scc0 K_HOPA")
        for k in range(3): a(f"s_cmp_eq_u32 s3, {k+1}"); a(f"s_cbranch_scc1 KPF_{k}")
        a("s_branch K_CPRE")
        a.label("K_HOPA")
        for k in range(3): a(f"s_cmp_eq_u32 s3, {k+1}"); a(f"s_cbranch_scc1 KPA_{k}")
    a("s_branch K_CPRE")
    a.label("K_HOPS")
    if not wl: wsetup()
    a(f"s_cmp_eq_u32 {sT}, 0")
    a(f"s_cselect_b64 s[{RW}:{RW+1}], s[{PWQKV}:{PWQKV+1}], s[{PW1}:{PW1+1}]"); a(f"s_cselect_b64 s[{RE}:{RE+1}], s[{PX}:{PX+1}], s[{PW1}:{PW1+1}]")
    a(f"s_add_u32 m0, s71, {b0}"); a("s_mov_b32 s50, 0")
    for k in range(6):
        if k == 3: a("s_addk_i32 m0, 0x1000"); a("s_add_u32 s50, s50, s74")
        elif 0 < k < 3: a("s_addk_i32 m0, 0x2000"); a("s_add_u32 s50, s50, s75")
        elif k > 3: a("s_addk_i32 m0, -0x2000"); a("s_sub_u32 s50, s50, s75")
        a(f"buffer_load_dwordx4 v{VW}, {q(RW)}, s50 offen lds")
        if k == 0: pad()
    a(f"s_cmp_eq_u32 {sT}, 0"); a("s_cbranch_scc1 KL_EA")
    a("s_cmp_eq_u32 s67, 0"); a("s_movk_i32 s65, 0"); a("s_cmovk_i32 s65, 384"); a("s_add_u32 s66, s66, s65")
    a("v_lshrrev_b32 v15, 2, v0"); a(f"s_lshl_b32 s65, {sW}, 4"); a("v_add_u32 v15, s65, v15"); a(f"v_mul_u32_u24 v{VE}, 3584, v15")
    a("v_lshrrev_b32 v15, 5, v0"); a("v_lshlrev_b32 v15, 1, v15"); a("v_and_b32 v13, 3, v0"); a("v_xor_b32 v15, v15, v13")
    a(f"v_lshl_add_u32 v{VE}, v15, 4, v{VE}"); a(f"v_add_u32 v{VE}, s66, v{VE}")
    a(f"s_lshl_b32 s72, {sW}, 10"); a("s_mov_b32 s76, s73"); a(f"s_mov_b32 s{RE+2}, s{RW+2}")
    a("s_branch KL_ED")
    a.label("KL_EA")
    a(f"s_lshl_b32 s64, {sB}, 7"); a(f"s_cmp_eq_u32 {sB}, 0"); a("s_cselect_b32 s65, -1, 15"); a(f"s_cselect_b32 s{RE+2}, 0, s{RX+2}"); a("s_sub_u32 s64, s64, s65")
    a("s_sub_u32 s64, s64, s68"); a("s_lshl_b32 s64, s64, 10")
    a("s_lshl_b32 s65, s68, 6"); a(f"v_xor_b32 v{VE}, s65, v14"); a(f"v_add_u32 v{VE}, s64, v{VE}")
    a("s_lshl_b32 s72, s68, 10"); a("s_movk_i32 s76, 128")
    a.label("KL_ED")
    a(f"s_add_u32 s72, s72, {EOFF}")
    a(f"s_add_u32 m0, s72, {b0}"); a("s_mov_b32 s77, 1")
    a(f"buffer_load_dwordx4 v{VE}, {q(RE)}, 0 offen lds")
    pad()
    def stage(s, lo=0, hi=11):
        base = slot_of(s)
        L = []
        for k in range(6):
            if k == 0: pre = [f"s_add_u32 m0, s71, {base}", "s_mul_i32 s50, s77, s73"]
            elif k == 3: pre = ["s_addk_i32 m0, 0x1000", "s_add_u32 s50, s50, s74"]
            elif k < 3: pre = ["s_addk_i32 m0, 0x2000", "s_add_u32 s50, s50, s75"]
            else: pre = ["s_addk_i32 m0, -0x2000", "s_sub_u32 s50, s50, s75"]
            L.append(pre + [f"buffer_load_dwordx4 v{VW}, {q(RW)}, s50 offen lds"])
        L.append([f"s_add_u32 m0, s72, {base}", "s_mul_i32 s50, s77, s76", f"buffer_load_dwordx4 v{VE}, {q(RE)}, s50 offen lds"])
        for m in range(4):
            pre = [f"s_add_u32 m0, s70, {base}", "s_lshl_b32 s50, s77, 7"] if m == 0 else ["s_addk_i32 m0, 0x400", "s_addk_i32 s50, 0x4000"]
            L.append(pre + [f"buffer_load_dwordx4 v{VX0 if m % 2 == 0 else VX1}, {q(RX)}, s50 offen lds"])
        L[-1].append("s_add_u32 s77, s77, 1")
        assert lo in (0, 6, 7, 11) and hi in (6, 7, 11)
        for x in L[lo:hi]:
            for y in x: a(y)
    def bar(n, k):
        a(f"s_waitcnt vmcnt({n})"); a("s_barrier")
        if opt.get("lstamp") == 1: a(f"s_memtime s[{84+2*k}:{85+2*k}]")
    def st2(k):
        if opt.get("lstamp") == 2: a(f"s_memtime s[{84+2*k}:{85+2*k}]")
    if opt.get("lstamp"):
        opt = dict(opt); so = opt.copy(); opt["stamps"] = 0
    else: so = opt
    s1a = int(str(opt.get("split", "x7bbbbbb"))[1], 16)
    if opt.get("lstamp") == 3: a("s_memtime s[88:89]")
    stage(1, 0, s1a)
    a("s_branch K_CPRE_S"); opt["_cpre"](); a.label("K_CPRE_S")
    opt["_decode2"]()
    if opt.get("lstamp") == 3:
        a("s_memtime s[90:91]"); a(f"s_waitcnt vmcnt({10 + s1a})"); a("s_memtime s[92:93]"); a(f"s_waitcnt vmcnt({s1a})"); a("s_memtime s[94:95]")
    a(f"v_lshlrev_b32 v{VL16}, 4, v0"); a(f"v_mov_b32 v{VZ}, 0")
    srd(a, RWS, PWS, WS_USED)
    a("v_and_b32 v15, 1, v12"); a("v_lshlrev_b32 v15, 2, v15"); a("v_xor_b32 v15, v15, v11"); a("v_lshlrev_b32 v15, 4, v15")
    a(f"v_lshlrev_b32 v{VR}, 10, v10"); a(f"v_add_u32 v{VR}, v{VR}, v15")
    a(f"s_mul_i32 s100, {sW}, 19"); a("s_sub_u32 s100, s100, 3"); a(f"s_cmp_eq_u32 {sW}, 0"); a("s_cselect_b32 s100, 0, s100"); a("s_cselect_b32 s101, 16, 19")
    a(f"s_cmp_eq_u32 {sW}, 3"); a("s_cselect_b32 s101, 18, s101"); a("s_lshl_b32 s101, s101, 12")
    a(f"s_mul_i32 s64, {sU}, 72"); a("s_add_u32 s64, s64, s100"); a("s_lshl_b32 s64, s64, 12")
    srd(a, RA, PWS, "s101", "s64")
    a("s_sub_u32 s64, s100, 16"); a("s_lshl_b32 s64, s64, 15")
    a(f"s_cmp_eq_u32 {sW}, 0"); a("s_cselect_b32 s64, 0, s64")
    a(f"s_cselect_b32 s66, s{PWO}, s{PW2}"); a(f"s_cselect_b32 s67, s{PWO+1}, s{PW2+1}")
    a(f"s_lshl_b32 s65, {sCT}, 7"); a("s_add_u32 s64, s64, s65")
    a(f"s_add_u32 s{RB}, s66, s64"); a(f"s_addc_u32 s{RB+1}, s67, 0")
    a(f"s_lshl_b32 s{RB+2}, s101, 3"); a(f"s_sub_u32 s{RB+2}, s{RB+2}, s65"); a(f"s_mov_b32 s{RB+3}, 0x20000")
    a(f"s_lshl_b32 s79, {sW}, 12"); a(f"s_sub_u32 s79, {TOP-4096}, s79")
    a(f"s_cmp_eq_u32 {sW}, 0"); a(f"s_cselect_b32 s79, {TOP-4096-16384}, s79")
    a(f"v_mov_b32 v13, {TOP-4096}"); a(f"ds_write_b32 v13, v{VZ}"); a("s_waitcnt lgkmcnt(0)")
    a("v_lshrrev_b32 v13, 5, v0"); a("v_lshlrev_b32 v13, 10, v13"); a("v_bfe_u32 v14, v0, 2, 2"); a("v_lshlrev_b32 v14, 7, v14"); a("v_add_u32 v13, v13, v14")
    a("v_bfe_u32 v14, v0, 3, 1"); a("v_lshlrev_b32 v14, 6, v14"); a("v_add_u32 v13, v13, v14")
    a("v_bfe_u32 v14, v0, 4, 1"); a("v_lshlrev_b32 v14, 5, v14"); a("v_add_u32 v13, v13, v14")
    a("v_and_b32 v14, 3, v0"); a("v_lshlrev_b32 v14, 3, v14"); a("v_add_u32 v13, v13, v14")
    a(f"s_sub_u32 s64, s79, {3*16384}"); a("v_add_u32 v58, s64, v13"); a("v_xor_b32 v59, 64, v58")
    for k, dr in ((60, 4), (62, 6)):
        a(f"v_subrev_u32 v{k}, {dr*16384}, v58"); a(f"v_subrev_u32 v{k+1}, {dr*16384}, v59")
    a(f"v_mul_u32_u24 v57, {FSTR}, v0")
    sp = [int(c, 16) for c in str(opt.get("split", "x7bbbbbb"))[1:]]
    assert sp[0] == s1a
    vm = [("S", 0)] * 11 + [("S", 1)] * s1a
    EA = opt.get("ea", 0)
    sL = "s15"
    def skipA(t): return t[0] == "B" and 10 <= t[1] < 10 + EA
    def younger(tag, attn=False):
        idx = max(i for i, t in enumerate(vm) if t == tag)
        return sum(1 for t in vm[idx+1:] if not (attn and skipA(t)))
    def vwait(tag):
        nf, na = younger(tag), younger(tag, True)
        if nf == na: a(f"s_waitcnt vmcnt({nf})"); return
        L1 = newlab("VW")
        a(f"s_waitcnt vmcnt({nf})"); a(f"s_cmp_lg_u32 {sL}, 0"); a(f"s_cbranch_scc1 {L1}"); a(f"s_waitcnt vmcnt({na})"); a.label(L1)
    class ffn_only:
        def __init__(self, on): self.on = on
        def __enter__(self):
            if self.on: self.L = newlab("FO"); a(f"s_cmp_eq_u32 {sL}, 0"); a(f"s_cbranch_scc1 {self.L}")
        def __exit__(self, *x):
            if self.on: a.label(self.L)
    def bar2(tag, k):
        vwait(tag); a("s_barrier")
        if opt.get("lstamp") == 1: a(f"s_memtime s[{84+2*k}:{85+2*k}]")
    def stage_t(s_, lo=0, hi=11): stage(s_, lo, hi); vm.extend([("S", s_)] * (hi - lo))
    br = opt.get("brot", 2)
    mp = opt.get("map", "Y")
    if br == 0: a("s_mov_b32 s14, 0")
    elif br == 2: a(f"s_and_b32 s14, {sB}, 1"); a("s_lshl_b32 s14, s14, 15")
    elif br == 4: a(f"s_and_b32 s14, {sB}, 3"); a("s_lshl_b32 s14, s14, 14")
    elif br == 7: a("s_lshr_b32 s14, s2, 7"); a("s_lshl_b32 s14, s14, 15")
    elif br == 8: a("s_lshr_b32 s14, s2, 6"); a("s_lshl_b32 s14, s14, 14")
    elif br == 9: a("s_lshr_b32 s14, s2, 6"); a("s_lshl_b32 s14, s14, 12")
    elif br == 10: a("s_lshr_b32 s14, s2, 7"); a("s_lshl_b32 s14, s14, 13")
    elif br == 5: a(f"s_and_b32 s14, {sB}, 6"); a("s_lshl_b32 s14, s14, 13")
    elif br == 6: a(f"s_and_b32 s14, {sB}, 2"); a("s_lshl_b32 s14, s14, 14")
    elif mp == "Z" and opt.get("p2map", 0) == 0: a(f"s_and_b32 s14, {sB}, 3"); a("s_lshl_b32 s14, s14, 14")
    elif mp == "Z": a(f"s_and_b32 s14, {sU}, 7"); a("s_lshl_b32 s14, s14, 13")
    elif mp == "Y" and not opt.get("p2alt", 0): a(f"s_and_b32 s14, {sB}, 7"); a("s_lshl_b32 s14, s14, 13")
    else: a(f"s_and_b32 s14, {sU}, 3"); a("s_lshl_b32 s14, s14, 14")
    a("s_lshl_b32 s8, s14, 3"); a("s_lshl_b32 s9, s101, 3")
    ACC = 8; BR = 72
    def bdma(tag, j, certain=True):
        for k in range(4):
            a(f"s_sub_u32 m0, s79, {16384*j - 1024*k}") if 16384*j - 1024*k >= 0 else a(f"s_add_u32 m0, s79, {1024*k - 16384*j}")
            a("s_nop 0")
            a(f"buffer_load_dwordx4 v{VR}, {q(RB)}, s8 offen lds")
            a("s_add_u32 s8, s8, 8192")
        a("s_cmp_ge_u32 s8, s9"); a("s_cselect_b32 s8, 0, s8")
        if certain: vm.extend([("B", tag)] * 4)
    def stg(i, j):
        r = 3 if j < 4 else (7 if j < 8 else 9)
        va = {3: 58, 7: 60, 9: 62}[r]
        for f in range(4):
            for e in range(2):
                a(f"ds_read_b64_tr_b16 {vr(BR+16*i+4*f+2*e,2)}, v{va+(f&1)} offset:{(r-j)*16384 + (f>>1)*2048 + e*512}")
    if "ebi" in opt: ebi = [int(c) for c in str(opt["ebi"])[1:]]
    elif "eb" in opt: ebi = list(range(5 - opt["eb"], 5))
    else: ebi = [0, 1, 2]
    E = len(ebi)
    ne = 0
    def swapback():
        a(f"s_cmp_eq_u32 {sL}, 0"); a("s_cselect_b32 s13, s8, s13"); a("s_cselect_b32 s8, s12, s8")
    if EA:
        assert E == 0 and EA <= 4
        lg = opt.get("lg", "T")
        if lg == "T": a(f"s_mov_b32 {sL}, {sT}")
        elif lg == "G": a(f"s_and_b32 {sL}, {sG}, 1"); a(f"s_xor_b32 {sL}, {sL}, 1")
        else: a(f"s_and_b32 {sL}, {sB}, {1 << opt.get('lgbit', 0)}")
        a(f"s_cmp_lg_u32 {sL}, 0"); a("s_cbranch_scc1 KL_NOEA")
        for t in range(EA): bdma(t, t, False)
        a("s_mov_b32 s12, s8"); a(f"s_cmp_eq_u32 {sW}, 0"); a(f"s_cselect_b32 s13, {9-EA}, {10-EA}"); a("s_lshl_b32 s13, s13, 15"); a("s_add_u32 s8, s8, s13")
        a("s_cmp_ge_u32 s8, s9"); a("s_cselect_b32 s13, s9, 0"); a("s_sub_u32 s8, s8, s13")
        for t in range(EA):
            a(f"s_waitcnt vmcnt({4*(EA-1-t)})"); stg(t, t)
        a("s_waitcnt lgkmcnt(0)")
        a.label("KL_NOEA")
    stg_map = str(opt.get("stag", "x0000"))[1:]
    if len(set(stg_map)) > 1:
        assert not EA
        a("s_bfe_u32 s64, s2, 0x20003"); a("s_lshl_b32 s64, s64, 2"); a(f"s_lshr_b32 s15, 0x{stg_map[::-1]}, s64"); a("s_and_b32 s15, s15, 15")
    def cbar0(pos):
        if str(pos) not in stg_map: return
        if len(set(stg_map)) == 1: bar(younger(("S", 0)), 0); return
        L_ = newlab("CB"); a(f"s_cmp_lg_u32 s15, {pos}"); a(f"s_cbranch_scc1 {L_}"); bar(younger(("S", 0)), 0); a.label(L_)
    for s_ in range(6):
        if s_ == 0:
            cbar0(0)
            stamp(a, opt, 0)
            if not opt.get("pearly", 0): a("s_setprio 2")
        else: bar(younger(("S", s_)), s_)
        if sp[s_] < 11: stage_t(s_ + 1, sp[s_], 11)
        if s_ == 0: cbar0(1)
        nb = ebi.count(s_) + (s_ == 5)
        mid = opt.get("mid", 11)
        if nb and ne > 0 and mid < sp[s_ + 1] and s_ >= opt.get("midfrom", 0):
            stage_t(s_ + 2, 0, mid)
            a(f"s_waitcnt vmcnt({younger(('B', ne - 1))})"); stg(ne - 1, 0)
            stage_t(s_ + 2, mid, sp[s_ + 1])
            a("s_waitcnt lgkmcnt(0)")
            bdma(ne, 0); ne += 1; nb -= 1
        else:
            if s_ == 0 and "4" in stg_map:
                stage_t(2, 0, 6); cbar0(4); stage_t(2, 6, sp[1])
            else: stage_t(s_ + 2, 0, sp[s_ + 1])
        if s_ == 0: cbar0(2)
        for _ in range(nb):
            if ne > 0:
                a(f"s_waitcnt vmcnt({younger(('B', ne - 1))})"); stg(ne - 1, 0); a("s_waitcnt lgkmcnt(0)")
            bdma(ne, 0)
            if EA == 1: swapback()
            ne += 1
        if s_ == 0: cbar0(3)
    assert sp[6] == 11 and ne == E + 1
    a("s_mov_b32 s77, s14")
    srd(a, RAUX, POUT, 2048 * 1024)
    a(f"s_lshr_b32 s68, {sU}, 1"); a(f"s_mul_i32 s68, s68, {16*FSTR}"); a(f"s_add_u32 s68, s68, {FA_OFF}")
    def fm(g0, g1): return sum(0x100 << g for g in range(g0, g1 + 1))
    a(f"s_mov_b32 s{RR}, 0x{fm(0,2):x}"); a(f"s_cmp_eq_u32 {sW}, 2"); a(f"s_cselect_b32 s{RR}, 0x{fm(2,5):x}, s{RR}")
    a(f"s_cmp_eq_u32 {sW}, 3"); a(f"s_cselect_b32 s{RR}, 0x{fm(5,7):x}, s{RR}")
    a(f"s_cmp_eq_u32 {sW}, 0"); a(f"s_cselect_b32 s{RR}, 0xff, s{RR}"); a(f"s_mov_b32 s{RR+1}, 0")
    a(f"s_lshl_b32 s69, {sU}, 9"); a(f"s_lshl_b32 s64, {sW}, 7"); a("s_add_u32 s69, s69, s64"); a(f"s_add_u32 s69, s69, {G_OFF}")
    bar2(("S", 6), 6)
    stamp(a, opt, 1)
    for t in range(1, 4):
        bdma(E + t, t)
        if EA and t == EA - 1: swapback()
    bar2(("S", 7), 7)
    for t in range(4, 7): bdma(E + t, t)
    NSG = 9 - E
    staged = 0
    def stage_upto(t_end):
        nonlocal staged
        t_end = min(t_end, NSG)
        if staged >= t_end: return
        vwait(('B', E + t_end - 1))
        with ffn_only(staged < EA):
            for t in range(staged, min(t_end, EA)): stg(E + t, t)
        for t in range(max(staged, EA), t_end): stg(E + t, t)
        staged = t_end
    if opt.get("early", 1): stage_upto(3)
    a("s_barrier")
    stamp(a, opt, 2); st2(0)
    ref = [9]
    def btr(j, regs):
        r = 3 if j < 4 else (7 if j < 8 else 9)
        out = []
        if r != ref[0]:
            d = ((ref[0] - r) * 16384) & 0xffffffff
            out.append("\n".join(f"v_add_u32 v{2+nt}, 0x{d:x}, v{2+nt}" for nt in range(2))); ref[0] = r
        for f in range(4):
            out.append("\n".join(f"ds_read_b64_tr_b16 {vr(regs[f]+2*e,2)}, v{2+(f&1)} offset:{(r-j)*16384 + (f>>1)*2048 + e*512}" for e in range(2)))
        return out
    gq = opt.get("gq", 2)
    if opt.get("lp", 2) != 2: a(f"s_setprio {opt.get('lp')}")
    bdma(E + 7, 7)
    stage_upto(5); st2(1)
    def fpause():
        if opt.get("sb", 2): a(f"s_cmp_eq_u32 {sT}, 0"); a("s_cbranch_scc1 KL_NOSB"); a("s_barrier"); a.label("KL_NOSB")
    if opt.get("sbn", 1) == 1: fpause()
    st2(2)
    bdma(E + 8, 8)
    if opt.get("sbn", 1) == 2: fpause()
    a(f"s_cmp_eq_u32 {sW}, 0"); a("s_cbranch_scc1 KL_SK9")
    bdma(E + 9, 9, False)
    a.label("KL_SK9"); st2(3)
    def apause(t):
        if opt.get("sb", 2) == 3 and opt.get("sb2", 10) == t:
            a(f"s_cmp_eq_u32 {sT}, 0"); a("s_cbranch_scc1 KL_NOSB2"); a("s_barrier"); a.label("KL_NOSB2")
        if opt.get("sba", 11) == t:
            a(f"s_cmp_lg_u32 {sT}, 0"); a("s_cbranch_scc1 KL_NOSA"); a("s_barrier"); a.label("KL_NOSA")
    apause(9)
    tl = list(range(10, 19 - E))
    assert len(tl) >= 2
    freed = 0
    did_misc = False
    def misc():
        if gq == 1:
            a(f"s_cmp_lg_u32 {sT}, 0"); a("s_cbranch_scc1 KL_NOG1"); gate_loads(a, VL16); a.label("KL_NOG1")
        a(f"global_load_dwordx2 v[10:11], v{VZ}, s[{PDBG}:{PDBG+1}] sc1"); vm.append(("T", 0))
    for t in tl[:-2]:
        if t - 10 >= freed:
            a("s_waitcnt lgkmcnt(0)"); freed = staged
            stage_upto(staged + 2)
        if t == tl[max(0, len(tl) - 4)]: misc(); did_misc = True
        with ffn_only(10 <= t < 10 + EA): bdma(E + t, t - 10)
        if EA and t == 10 + EA - 1: a(f"s_cmp_eq_u32 {sL}, 0"); a("s_cselect_b32 s8, s13, s8")
        apause(t)
        if t in (12, 14, 16): st2(4 + (t - 12) // 2)
    stage_upto(9)
    if not did_misc: misc()
    a(f"s_mov_b64 exec, s[{RR}:{RR+1}]")
    a(f"buffer_load_dwordx2 v[8:9], v57, {q(RWS)}, s68 offen sc1")
    a("s_mov_b64 exec, -1")
    a("s_waitcnt lgkmcnt(0)")
    a(f"s_cmp_eq_u32 {sW}, 0"); a("s_cbranch_scc1 KL_W0")
    bdma(0, tl[-2] - 10, False)
    a(f"s_cmp_eq_u32 {sW}, 3"); a("s_cbranch_scc1 KL_W1")
    bdma(0, tl[-1] - 10, False)
    a("s_waitcnt vmcnt(8)"); a("s_branch KL_W2")
    a.label("KL_W0"); a("s_waitcnt vmcnt(0)")
    a.label("KL_W1"); a("s_waitcnt vmcnt(4)")
    a.label("KL_W2")
    stamp(a, opt, 3); st2(7)
    tag_check(a, 10, VZ)
    a("v_mov_b32 v2, v62"); a("v_mov_b32 v3, v63")
    if gq < 2:
        a(f"s_cmp_lg_u32 {sT}, 0"); a("s_cbranch_scc1 KL_NOG")
        if gq == 0: gate_loads(a, VL16); a("s_waitcnt vmcnt(0)")
        gate_math(a, VL16)
        a.label("KL_NOG")
    a("v_lshrrev_b32 v7, 4, v0"); a("v_lshlrev_b32 v7, 4, v7")
    a(f"s_mov_b64 exec, s[{RR}:{RR+1}]")
    if not opt.get("nopoll"): poll(a, 8, 57, "s68", f"s[{RR}:{RR+1}]", first_loaded=True)
    a("s_mov_b64 exec, -1")
    a("s_waitcnt lgkmcnt(0)")
    stamp(a, opt, 4)
    ref0 = ref[0]
    a(f"s_lshr_b32 s64, {sU}, 1"); a("s_lshl_b32 s64, s64, 7"); a(f"s_lshl_b32 s65, {sW}, 5"); a("s_add_u32 s64, s64, s65"); a(f"s_and_b32 s65, {sU}, 1"); a("s_add_u32 s64, s64, s65")
    a(f"s_cmp_eq_u32 {sW}, 0"); a("s_cbranch_scc1 KL_V16")
    a(f"s_cmp_eq_u32 {sW}, 3"); a("s_cbranch_scc1 KL_V18")
    def acc(tp, np_): return ACC + 16 * (2 * tp + np_)
    DM = opt.get("dmax", 10)
    WA = 80; RA_ = 88; OV = 92
    fill = [
        "s_lshl_b32 s64, s64, 10", f"s_lshl_b32 s65, {sCT}, 7", "s_add_u32 s70, s64, s65", "s_add_u32 s71, s70, 16384",
        f"s_sub_u32 s72, s79, {2*16384}", f"s_lshl_b32 s73, {sW}, 14", f"s_sub_u32 s73, {TOP-32768}, s73",
        "v_and_b32 v93, 15, v0", "v_lshrrev_b32 v94, 5, v0", "v_xor_b32 v94, v94, v93", "v_lshlrev_b32 v94, 4, v94",
        "v_lshlrev_b32 v95, 8, v93", "v_add_u32 v94, v94, v95", "v_bfe_u32 v95, v0, 4, 1", "v_lshlrev_b32 v95, 14, v95", "v_sub_u32 v94, v94, v95",
        f"v_add_u32 v{WA}, s72, v94"] + [f"v_xor_b32 v{WA+k}, {32*k}, v{WA}" for k in range(1, 8)] + [
        "v_lshrrev_b32 v93, 3, v0", "v_and_b32 v94, 7, v0", f"v_lshlrev_b32 v{OV}, 11, v93", "v_lshlrev_b32 v95, 4, v94", f"v_add_u32 v{OV}, v{OV}, v95",
        "v_lshlrev_b32 v95, 1, v94", "v_xor_b32 v95, v95, v93", "v_lshlrev_b32 v95, 4, v95", "v_lshlrev_b32 v93, 8, v93", "v_add_u32 v95, v95, v93",
        f"v_add_u32 v{RA_}, s73, v95", f"v_xor_b32 v{RA_+1}, 16, v{RA_}", f"v_xor_b32 v{RA_+2}, 128, v{RA_}", f"v_xor_b32 v{RA_+3}, 144, v{RA_}",
        "v_and_b32 v93, 8, v0", "v_cmp_ne_u32 s[74:75], 0, v93",
        f"s_lshl_b32 s72, {sW}, 9", f"s_add_u32 s72, s72, {TOP-4096+1024}", "v_lshlrev_b32 v103, 3, v0", "v_add_u32 v103, s72, v103"]
    for nst, lab in ((19, None), (18, "KL_V18"), (16, "KL_V16")):
        a(".p2align 3")
        if lab: a.label(lab)
        free = list(range(BR + 16 * NBR, 256, 4)); ref[0] = ref0
        if "dmv" in opt: DM = int(str(opt["dmv"])[1:][(19, 18, 16).index(nst)], 16)
        pend = [("A", i, b) for i in range(nst) for b in range(4)]
        gi = 4 * opt.get("gstep", 13)
        pend[gi:gi] = [("G", 0, 0), ("G", 1, 0)]
        loc = {}; issued = []; cur_soff = [None]
        done_loads = [0]
        fl = list(fill)
        def issue():
            if not pend: return False
            if len(issued) - done_loads[0] >= DM: return False
            if pend[0][0] == "A" and not free: return False
            k = pend.pop(0); issued.append(k)
            if k[0] == "A":
                r = free.pop(0); loc[k] = r
                if cur_soff[0] != k[1] and k[1]:
                    a("s_add_u32 s77, s77, 4096"); a("s_cmp_ge_u32 s77, s101"); a("s_cselect_b32 s77, 0, s77"); cur_soff[0] = k[1]
                a(f"buffer_load_dwordx4 {vr(r,4)}, v{VL16}, {q(RA)}, s77 offen offset:{k[2]*1024} {opt.get('ald', 'sc1')}")
            else:
                a(f"buffer_load_dwordx4 {vr(72+4*k[1],4)}, v7, {q(RWS)}, s69 offen offset:{k[1]*64} sc1")
            return True
        while issue(): pass
        bl = {}
        ldsq = []
        for i in range(nst):
            Bv = [BR + 16 * i + 4 * n for n in range(4)] if i < NBR else bl[i]
            needb = NBR <= i + 2 < nst
            if needb:
                tt = i + 2 - E; md = 10 if nst > 16 else 9
                tr = btr(tt if tt < md else tt - md, Bv)
                if len(tr) == 5: a(tr.pop(0))
                bl[i + 2] = Bv
            if i == nst - 1:
                assert not pend and not fl
                a("s_waitcnt vmcnt(0) lgkmcnt(0)"); a("s_nop 0")
                L_ = []
                for tp in range(2):
                    for np_ in range(2):
                        for half in range(2):
                            L_.append(f"v_mfma_f32_32x32x16_bf16 {vr(acc(tp,np_),16)}, {vr(Bv[2*half+np_],4)}, {vr(loc[('A', i, 2*half+tp)],4)}, {vr(acc(tp,np_),16)}")
                L_ += ["v_cndmask_b32 v96, v72, v73, s[74:75]", "v_cndmask_b32 v98, v76, v77, s[74:75]", "v_sub_f32 v100, 1.0, v96", "v_sub_f32 v101, 1.0, v98",
                       "v_cvt_pk_bf16_f32 v100, v100, v101", "v_and_b32 v102, 0xffff0000, v100", "v_lshlrev_b32 v100, 16, v100",
                       f"v_cmp_eq_u64 vcc, s[{TAG}:{TAG+1}], v[74:75]", f"v_cmp_eq_u64 s[64:65], s[{TAG}:{TAG+1}], v[78:79]"]
                for tp in range(2):
                    for np_ in range(2):
                        for j in range(4):
                            L_.append(f"ds_write_b128 v{WA+4*np_+j}, {vr(acc(tp,np_)+4*j,4)} offset:{(1-tp)*32768}")
                M_ = L_[:8]; V_ = L_[8:17]; W_ = L_[17:]
                seq = [M_[0], M_[1], M_[2]] + V_[:5] + [M_[3]] + V_[5:] + [M_[4]] + W_[0:4] + [M_[5], "s_nop 1"] + W_[4:6] + [M_[6]] + W_[6:8] + [M_[7], "s_nop 3"] + W_[8:12] + ["s_nop 3"] + W_[12:]
                for x in seq: a(x)
                break
            for half in range(2):
                for tp in range(2):
                    blk = 2 * half + tp
                    idx = issued.index(("A", i, blk)); done_loads[0] = idx + 1
                    w = f"s_waitcnt vmcnt({len(issued) - idx - 1})"
                    if i >= NBR and tp == 0:
                        li = ldsq.index((i, 2 * half + 1))
                        w += f" lgkmcnt({min(15, 2 * (len(ldsq) - li - 1))})"
                    a(w); a("s_nop 0")
                    A = loc[("A", i, blk)]
                    for np_ in range(2):
                        c = vr(acc(tp, np_), 16) if (i > 0 or half > 0) else "0"
                        f = 2 * half + np_
                        a(f"v_mfma_f32_32x32x16_bf16 {vr(acc(tp,np_),16)}, {vr(Bv[f],4)}, {vr(A,4)}, {c}")
                        if np_ == 1: free.append(A)
                        if tp == 1:
                            if needb: a(tr[f]); ldsq.append((i + 2, f))
                            elif i >= 2: free.append(Bv[f])
                        got = issue()
                        if i >= 2 and fl and not got:
                            for _ in range(min(3, len(fl))): a(fl.pop(0))
                            a(".p2align 3")
        if nst != 16: a("s_branch KL_FIN")
    a.label("KL_FIN")
    stamp(a, opt, 5)
    L = newlab("GL"); D = newlab("GD")
    a("s_and_b64 s[64:65], s[64:65], vcc"); a("s_andn2_b64 s[64:65], exec, s[64:65]"); a(f"s_cbranch_scc0 {D}")
    a("s_mov_b32 s66, 0x40000")
    a.label(L)
    a("s_sleep 1")
    a(f"buffer_load_dwordx4 v[72:75], v7, {q(RWS)}, s69 offen sc1"); a(f"buffer_load_dwordx4 v[76:79], v7, {q(RWS)}, s69 offen offset:64 sc1")
    a("s_waitcnt vmcnt(0)")
    for x in ["v_cndmask_b32 v96, v72, v73, s[74:75]", "v_cndmask_b32 v98, v76, v77, s[74:75]", "v_sub_f32 v100, 1.0, v96", "v_sub_f32 v101, 1.0, v98",
              "v_cvt_pk_bf16_f32 v100, v100, v101", "v_and_b32 v102, 0xffff0000, v100", "v_lshlrev_b32 v100, 16, v100",
              f"v_cmp_eq_u64 vcc, s[{TAG}:{TAG+1}], v[74:75]", f"v_cmp_eq_u64 s[64:65], s[{TAG}:{TAG+1}], v[78:79]", "s_nop 0"]: a(x)
    a("s_and_b64 s[64:65], s[64:65], vcc"); a("s_andn2_b64 s[64:65], exec, s[64:65]"); a(f"s_cbranch_scc0 {D}")
    a("s_sub_u32 s66, s66, 1"); a("s_cmp_lg_u32 s66, 0"); a(f"s_cbranch_scc1 {L}")
    a.label(D)
    if opt.get("f8", 1):
        a("v_mov_b32 v99, v102")
        a("ds_write_b64 v103, v[98:99]")
        a("s_waitcnt lgkmcnt(0)"); a("s_barrier"); stamp(a, opt, 6, True)
        final_half(a, opt, RA_, OV, "s70", False)
    else:
        a("s_waitcnt lgkmcnt(0)"); a("s_barrier"); stamp(a, opt, 6, True)
        T = 104
        def P(h, src): return T + 32 * h + 8 * src
        for h in range(2):
            for src in (0, 1, 2, 3):
                for e in range(2):
                    off = (3 - src) * 4096 + h * 2048 + (16384 if src else 0)
                    a(f"ds_read_b128 {vr(P(h,src)+4*e,4)}, v{RA_+2*h+e} offset:{off}")
        for h in range(2):
            a(f"s_waitcnt lgkmcnt({8*(1-h)+6})")
            for i in range(0, 8, 2): a(f"v_pk_mul_f32 {vr(P(h,0)+i,2)}, {vr(P(h,0)+i,2)}, {vr(96+2*h,2)} op_sel_hi:[1,0]")
            a(f"s_waitcnt lgkmcnt({8*(1-h)+2})")
            for i in range(0, 8, 2): a(f"v_pk_add_f32 {vr(P(h,1)+i,2)}, {vr(P(h,1)+i,2)}, {vr(P(h,2)+i,2)}")
            a(f"s_waitcnt lgkmcnt({8*(1-h)})")
            for i in range(0, 8, 2): a(f"v_pk_add_f32 {vr(P(h,1)+i,2)}, {vr(P(h,1)+i,2)}, {vr(P(h,3)+i,2)}")
            for i in range(0, 8, 2): a(f"v_pk_fma_f32 {vr(P(h,0)+i,2)}, {vr(P(h,1)+i,2)}, {vr(100+2*h,2)}, {vr(P(h,0)+i,2)} op_sel_hi:[1,0,1]")
            for i in range(4): a(f"v_cvt_pk_bf16_f32 v{P(h,2)+i}, v{P(h,0)+2*i}, v{P(h,0)+2*i+1}")
            a(f"buffer_store_dwordx4 {vr(P(h,2),4)}, v{OV}, {q(RAUX)}, s{70+h} offen {opt.get('ost', 'sc1')}")
    stamp(a, opt, 7)
    if so.get("stamps"): a(f"s_add_u32 s100, {sW}, 40")
    if so.get("stamps"): a(f"s_lshl_b32 s64, {sT}, 2"); a("s_add_u32 s100, s100, s64")
    stamp_end(a, so, "s100")

HEADER = """; gated mix of (sliding dilated attention -> Wo) and (ReLU MLP); one fused persistent launch, 256 workgroups (1 per CU).
; kernarg: x, wqkv, wo, (unused), w1, w2, gate_w, out, debug, ws
; hand-off: per-workgroup flag lines in ws carrying a per-launch tag (published through the zeroed debug buffer).
"""

def generate(opt):
    a = Asm()
    for l in HEADER.strip().split("\n"): a.lines.append(l)
    post = opt.get("post")
    if post is None:
        a(f"; @launch grid=(256,1,1) block=(512,1,1) lds={LDS_BYTES}")
    else:
        a(f"; @launch kernel={NAME}_kernel grid=(256,1,1) block=(512,1,1) lds={LDS_BYTES}")
        a(f"; @launch kernel=k3_kernel grid=(1,1,1) block=(64,1,1) lds=0")
    a('.amdgcn_target "amdgcn-amd-amdhsa--gfx950"'); a(".text")
    gen(a, opt)
    if post == "span":
        a(".globl k3_kernel"); a(".p2align 8"); a(".type k3_kernel,@function"); a.label("k3_kernel")
        a("s_load_dwordx2 s[8:9], s[0:1], 72"); a("s_waitcnt lgkmcnt(0)")
        a(f"s_add_u32 s8, s8, {STAMP_OFF}"); a("s_addc_u32 s9, s9, 0")
        a("s_load_dword s4, s[8:9], 256"); a("s_memrealtime s[10:11]")
        a("v_lshlrev_b32 v1, 9, v0")
        for k in range(4):
            a(f"global_load_dword v{2+k}, v1, s[8:9] offset:{5*64+4}"); a("v_add_u32 v1, 32768, v1")
        a("s_waitcnt vmcnt(0) lgkmcnt(0)")
        for k in range(4): a(f"v_subrev_u32 v{2+k}, s4, v{2+k}")
        a("v_max_u32 v2, v2, v3"); a("v_max3_u32 v2, v2, v4, v5"); a("s_mov_b32 s12, 0"); a("s_nop 1")
        for l in range(64): a(f"v_readlane_b32 s13, v2, {l}"); a("s_nop 0"); a("s_max_u32 s12, s12, s13")
        a("s_lshl_b32 s12, s12, 3")
        a("s_min_u32 s12, s12, 24000"); a("s_add_u32 s12, s12, 4000")
        a.label("K3_L"); a("s_memrealtime s[6:7]"); a("s_waitcnt lgkmcnt(0)")
        a("s_sub_u32 s7, s6, s10"); a("s_cmp_gt_u32 s7, 30000"); a("s_cbranch_scc1 K3_E")
        a("s_sub_u32 s6, s6, s4"); a("s_cmp_lt_u32 s6, s12"); a("s_cbranch_scc1 K3_L")
        a.label("K3_E"); a("s_endpgm")
    elif post is not None:
        wg, wv, idx, rf, sh = [int(x) for x in post.split(",")]
        a(".globl k3_kernel"); a(".p2align 8"); a(".type k3_kernel,@function"); a.label("k3_kernel")
        a("s_load_dwordx2 s[8:9], s[0:1], 72"); a("s_waitcnt lgkmcnt(0)")
        a(f"s_add_u32 s8, s8, {STAMP_OFF}"); a("s_addc_u32 s9, s9, 0")
        off = (wg * 8 + wv) * 64
        a("s_load_dword s4, s[8:9], 0"); a(f"s_load_dword s12, s[8:9], {off + 4*idx}"); a(f"s_load_dword s13, s[8:9], {off + 4*rf}"); a("s_memrealtime s[10:11]"); a("s_waitcnt lgkmcnt(0)")
        a("s_sub_u32 s12, s12, s13")
        a(f"s_lshr_b32 s12, s12, {sh}") if sh >= 0 else a(f"s_lshl_b32 s12, s12, {-sh}")
        a("s_min_u32 s12, s12, 20000"); a("s_add_u32 s12, s12, 6000")
        a.label("K3_L"); a("s_memrealtime s[6:7]"); a("s_waitcnt lgkmcnt(0)")
        a("s_sub_u32 s7, s6, s10"); a("s_cmp_gt_u32 s7, 30000"); a("s_cbranch_scc1 K3_E")
        a("s_sub_u32 s6, s6, s4"); a("s_cmp_lt_u32 s6, s12"); a("s_cbranch_scc1 K3_L")
        a.label("K3_E"); a("s_endpgm")
    a('.section .rodata,"a"'); a(".p2align 6")
    a(f".amdhsa_kernel {NAME}_kernel")
    a("  .amdhsa_next_free_vgpr 256"); a("  .amdhsa_next_free_sgpr 102"); a("  .amdhsa_accum_offset 256")
    a("  .amdhsa_group_segment_fixed_size 0"); a("  .amdhsa_kernarg_size 80"); a("  .amdhsa_user_sgpr_count 2")
    a("  .amdhsa_user_sgpr_kernarg_segment_ptr 1"); a("  .amdhsa_system_sgpr_workgroup_id_x 1"); a(".end_amdhsa_kernel")
    if post is not None:
        a(".p2align 6"); a(".amdhsa_kernel k3_kernel")
        a("  .amdhsa_next_free_vgpr 8"); a("  .amdhsa_next_free_sgpr 102"); a("  .amdhsa_accum_offset 8")
        a("  .amdhsa_group_segment_fixed_size 0"); a("  .amdhsa_kernarg_size 80"); a("  .amdhsa_user_sgpr_count 2")
        a("  .amdhsa_user_sgpr_kernarg_segment_ptr 1"); a("  .amdhsa_system_sgpr_workgroup_id_x 1"); a(".end_amdhsa_kernel")
    errs = check(a.lines)
    for e in errs: print(e, file=sys.stderr)
    assert not errs
    return a.text()

if __name__ == "__main__":
    opt = {}
    for kv in sys.argv[2:]:
        k, v = kv.split("=")
        try: v = int(v)
        except: pass
        opt[k] = v
    open(sys.argv[1], "w").write(generate(opt))
```

```python
import sys, struct
from asmlib import *

NAME = "gated_mix__sliding_local_dilated__dense_activation_relu__prompt"
A2_OFF = 0
W2_OFF = 0xA00000
G_OFF = 0xD00000
FW_OFF = 0xD10000
FA_OFF = 0xD20000
WS_USED = 0xD80000
FSTR = 1152
STAMP_OFF = 128 << 20
SLOT = 45056
XOFF, WOFF, EOFF = 0, 16384, 40960
SCR = 3 * SLOT
LDS_BYTES = 163840
TOP = LDS_BYTES
def slot_of(s): return ((7 - s) % 3) * SLOT
BIG = 0xF149F2CA
LOG2E = 1.4426950408889634
KS0 = [0, 16, 35, 54]; NST = [16, 19, 19, 18]
NBR = 9
BL_BASE = [0, 28672, 69632, 110592]
PX, PWQKV, PWO, PW1, PW2, PGATE, POUT, PDBG, PWS = 4, 6, 8, 12, 14, 16, 18, 20, 22
sB, sT, sG, sW, sU, sCT, TAG = "s24", "s25", "s26", "s27", "s28", "s29", 30
RX, RW, RE, RWS, RR, RAUX, RA, RB = 32, 36, 40, 44, 48, 52, 56, 60

def f32bits(x): return struct.unpack("<I", struct.pack("<f", x))[0]
def q(r): return f"s[{r}:{r+3}]"

def srd(a, d, base, size, add=0):
    if add == 0:
        a(f"s_mov_b32 s{d}, s{base}"); a(f"s_mov_b32 s{d+1}, s{base+1}")
    else:
        a(f"s_add_u32 s{d}, s{base}, {add}"); a(f"s_addc_u32 s{d+1}, s{base+1}, 0")
    a(f"s_mov_b32 s{d+2}, {size}"); a(f"s_mov_b32 s{d+3}, 0x20000")

def csel(a, d, x, y):
    a(f"s_mov_b32 {d}, {y}"); a(f"s_cselect_b32 {d}, {x}, {d}")

def spread(a, mf, other, last=4):
    n = len(mf) - last; other = list(other); k = 0
    for i, m in enumerate(mf):
        a(m)
        while k < len(other) and k * n <= i * len(other): a(other[k]); k += 1
    while k < len(other): a(other[k]); k += 1

def mix(xs, ws):
    out = []; i = j = 0
    while i < len(xs) or j < len(ws):
        if j >= len(ws) or (i < len(xs) and i * len(ws) <= j * len(xs)): out.append(xs[i]); i += 1
        else: out.append(ws[j]); j += 1
    return out

def interleave(a, mf, other, start=0, per=1):
    other = list(other)
    for i, m in enumerate(mf):
        a(m)
        if i >= start:
            for _ in range(per):
                if other: a(other.pop(0))
    for o in other: a(o)

def stamp_begin(a, opt):
    if opt.get("stamps"):
        a("s_memrealtime s[80:81]"); a("s_memtime s[82:83]")
        for k in range(8): a(f"s_mov_b32 s{84+2*k}, 0")

def stamp(a, opt, k, wait=False):
    if opt.get("stamps") == 1:
        a(f"s_memtime s[{84+2*k}:{85+2*k}]")
        if wait: a("s_waitcnt lgkmcnt(0)")

def stamp_end(a, opt, tag):
    if not opt.get("stamps"): return
    a("s_waitcnt vmcnt(0) lgkmcnt(0)")
    a("s_memrealtime s[64:65]"); a("s_memtime s[66:67]")
    a("s_waitcnt lgkmcnt(0)")
    srd(a, RAUX, PWS, 1 << 20, STAMP_OFF)
    a("s_lshl_b32 s68, s2, 3"); a("s_add_u32 s68, s68, s3"); a("s_lshl_b32 s68, s68, 6")
    a("s_getreg_b32 s69, hwreg(HW_REG_XCC_ID)")
    a(f"s_mov_b32 s65, {tag}")
    if opt.get("tg"): a(f"s_and_b32 s67, {sG}, 1"); a("s_mul_i32 s67, s67, 100"); a("s_add_u32 s65, s65, s67")
    for i, s in enumerate((80, 64, 82, 84, 86, 88, 90, 92, 94, 96, 98, 66, 69, 65, 65, 65)):
        a(f"v_mov_b32 v{8+i}, s{s}")
    a("v_mov_b32 v6, s68")
    a("s_mov_b64 exec, 1")
    for k in range(4):
        a(f"buffer_store_dwordx4 v[{8+4*k}:{11+4*k}], v6, {q(RAUX)}, 0 offen offset:{16*k}")
    a("s_waitcnt vmcnt(0)")

_lab = [0]
def newlab(p):
    _lab[0] += 1; return f"{p}_{_lab[0]}"

def tag_check(a, vt, vz):
    L = newlab("TAGL"); D = newlab("TAGD")
    a("s_mov_b32 s64, 0x40000")
    a.label(L)
    a(f"v_readfirstlane_b32 s{TAG}, v{vt}"); a(f"v_readfirstlane_b32 s{TAG+1}, v{vt+1}"); a("s_nop 0")
    a(f"s_cmp_lg_u32 s{TAG}, 0"); a(f"s_cbranch_scc1 {D}")
    a("s_sub_u32 s64, s64, 1"); a("s_cmp_eq_u32 s64, 0"); a(f"s_cbranch_scc1 {D}")
    a("s_sleep 2")
    a(f"global_load_dwordx2 v[{vt}:{vt+1}], v{vz}, s[{PDBG}:{PDBG+1}] sc1"); a("s_waitcnt vmcnt(0)")
    a(f"s_branch {L}")
    a.label(D)

PSL = [1]
def poll(a, vt, voff, soff, need, first_loaded=False):
    L = newlab("POLL"); C = newlab("POLC"); D = newlab("POLD")
    a("s_mov_b32 s66, 0x40000")
    if first_loaded: a(f"s_branch {C}")
    a.label(L)
    a(f"buffer_load_dwordx2 v[{vt}:{vt+1}], v{voff}, {q(RWS)}, {soff} offen sc1")
    a("s_waitcnt vmcnt(0)")
    a.label(C)
    a(f"v_cmp_eq_u64 vcc, s[{TAG}:{TAG+1}], v[{vt}:{vt+1}]"); a("s_nop 0")
    a(f"s_andn2_b64 s[64:65], {need}, vcc"); a(f"s_cbranch_scc0 {D}")
    a("s_sub_u32 s66, s66, 1"); a("s_cmp_eq_u32 s66, 0"); a(f"s_cbranch_scc1 {D}")
    a(f"s_sleep {PSL[0]}"); a(f"s_branch {L}")
    a.label(D)

def gen(a, opt):
    global FSTR
    PSL[0] = opt.get("psl", 1); FSTR = opt.get("fstr", 1152)
    kn = NAME + "_kernel"
    a(f".globl {kn}"); a(".p2align 8"); a(f".type {kn},@function"); a.label(kn)
    a("s_cmp_ge_u32 s2, 256"); a("s_cbranch_scc1 K_END")
    a("s_load_dwordx16 s[4:19], s[0:1], 0")
    a("s_load_dwordx4 s[20:23], s[0:1], 64")
    stamp_begin(a, opt)
    def decode():
        a("s_and_b32 s64, s2, 7"); a("s_lshr_b32 s65, s2, 3")
        a("s_lshr_b32 s66, s65, 3")
        a(f"s_and_b32 {sT}, s66, 1")
        a("s_and_b32 s67, s64, 3"); a(f"s_lshl_b32 {sG}, s67, 1"); a("s_lshr_b32 s67, s66, 1"); a(f"s_add_u32 {sG}, {sG}, s67")
    def decode2():
        if opt.get("p2alt", 0):
            a("s_and_b32 s64, s2, 7"); a(f"s_lshl_b32 {sU}, s64, 2"); a("s_bfe_u32 s64, s2, 0x20003"); a(f"s_add_u32 {sU}, {sU}, s64")
            a(f"s_lshr_b32 {sCT}, s2, 5")
            if opt.get("ctmix", 1): a("s_lshl_b32 s64, s64, 1"); a(f"s_add_u32 {sCT}, {sCT}, s64"); a(f"s_and_b32 {sCT}, {sCT}, 7")
            return
        a("s_and_b32 s64, s2, 1"); a(f"s_lshl_b32 {sU}, {sB}, 1"); a(f"s_add_u32 {sU}, {sU}, s64")
        a("s_and_b32 s64, s2, 2"); a("s_lshl_b32 s64, s64, 1"); a("s_lshr_b32 s65, s2, 6")
        if opt.get("ctmix", 1): a(f"s_add_u32 s65, s65, {sB}"); a("s_and_b32 s65, s65, 3")
        a(f"s_add_u32 {sCT}, s64, s65")
    opt["_decode"] = decode; opt["_decode2"] = decode2
    def cpre():
        a.label("K_CPRE")
        decode()
        if opt.get("duty", 1) == 3:
            Lx = newlab("DU"); Lc = newlab("DU"); Ld = newlab("DU")
            dl_ = opt.get("dlead", 1); dsh = opt.get("dsh", 0)
            a("s_lshr_b32 s64, s2, 7"); a("s_lshl_b32 s64, s64, 6"); a("s_and_b32 s65, s2, 63"); a("s_add_u32 s64, s64, s65")
            a("s_lshl_b32 s64, s64, 2"); a(f"s_add_u32 s64, s64, {sW}")
            a("v_lshlrev_b32 v254, 7, v0"); a("v_lshlrev_b32 v253, 7, v0")
            a(f"s_mov_b32 s{RR+3}, 0x20000"); a(f"s_mov_b32 s{RA+3}, 0x20000")
            a("s_cmp_ge_u32 s64, 144"); a("s_cselect_b32 s63, 1, 0"); a(f"s_add_u32 s63, s63, {opt.get('dbs', 2)}")
            a("s_cmp_ge_u32 s64, 288"); a("s_cselect_b32 s63, 255, s63")
            a("s_mul_i32 s65, s64, 781"); a("s_lshr_b32 s65, s65, 16"); a("s_mul_i32 s66, s65, 84"); a("s_sub_u32 s66, s64, s66")
            a(f"s_max_u32 s101, s65, {dl_}"); a(f"s_sub_u32 s101, s101, {dl_}")
            if dsh: a(f"s_add_u32 s101, s101, {(1 << dsh) - 1}"); a(f"s_lshr_b32 s101, s101, {dsh}")
            a("s_cmp_ge_u32 s64, 504"); a("s_cselect_b32 s101, 255, s101")
            a(f"s_cmp_lg_u32 {sT}, 0"); a("s_cselect_b32 s101, 255, s101"); a("s_cselect_b32 s63, 255, s63")
            a("s_add_u32 s65, s65, 2")
            a("s_waitcnt lgkmcnt(0)")
            a("s_cmp_lt_u32 s64, 64")
            a(f"s_cselect_b32 s{RA}, s{PWO}, s{PW2}"); a(f"s_cselect_b32 s{RA+1}, s{PWO+1}, s{PW2+1}"); csel(a, f"s{RA+2}", 512*1024, 1792*1024)
            a("s_cselect_b32 s67, 0, 64"); a("s_sub_u32 s62, s64, s67"); a("s_lshl_b32 s62, s62, 13")
            a("s_cmp_lt_u32 s66, 52"); a(f"s_cbranch_scc1 {Lx}")
            a(f"s_mov_b32 s{RR}, s{PX}"); a(f"s_mov_b32 s{RR+1}, s{PX+1}"); a(f"s_mov_b32 s{RR+2}, {2048*1024}")
            a("v_lshlrev_b32 v254, 10, v0")
            a("s_sub_u32 s66, s66, 52"); a("s_lshl_b32 s100, s66, 16"); a("s_lshl_b32 s65, s65, 7"); a("s_add_u32 s100, s100, s65")
            a(f"s_branch {Lc}")
            a.label(Lx)
            a("s_cmp_lt_u32 s66, 24")
            a(f"s_cselect_b32 s{RR}, s{PWQKV}, s{PW1}"); a(f"s_cselect_b32 s{RR+1}, s{PWQKV+1}, s{PW1+1}"); csel(a, f"s{RR+2}", 512*3072, 512*3584)
            a("s_cselect_b32 s64, 24, 28"); a("s_cselect_b32 s67, 0, 24"); a("s_mul_i32 s65, s65, s64"); a("s_add_u32 s66, s66, s65"); a("s_sub_u32 s66, s66, s67"); a("s_lshl_b32 s100, s66, 13")
            a.label(Lc)
            a("s_cmp_lg_u32 s101, 0"); a(f"s_cbranch_scc1 {Ld}"); a(f"buffer_load_dword v255, v254, {q(RR)}, s100 offen"); a.label(Ld)
        elif opt.get("duty", 1):
            Lb = newlab("DU"); Lc = newlab("DU"); Ld = newlab("DU")
            a("s_waitcnt lgkmcnt(0)")
            a("v_lshlrev_b32 v254, 7, v0")
            a(f"s_mov_b32 s{RR+3}, 0x20000")
            if opt.get("duty", 1) == 2:
                a("s_lshr_b32 s64, s2, 7"); a("s_lshl_b32 s64, s64, 6"); a("s_and_b32 s65, s2, 63"); a("s_add_u32 s64, s64, s65")
                a(f"s_cmp_eq_u32 {sT}, 0"); a("s_cselect_b32 s64, s64, 128")
                a(f"s_branch {Lb}X")
            a("s_cmp_ge_u32 s2, 156"); a(f"s_cbranch_scc1 {Lb}")
            a("s_lshl_b32 s64, s2, 1"); a(f"s_and_b32 s65, {sW}, 1"); a("s_add_u32 s64, s64, s65")
            a("s_mul_i32 s65, s64, 1261"); a("s_lshr_b32 s65, s65, 16"); a("s_mul_i32 s66, s65, 52"); a("s_sub_u32 s64, s64, s66")
            a(f"s_max_u32 s101, s65, {opt.get('dlead', 1)}"); a(f"s_sub_u32 s101, s101, {opt.get('dlead', 1)}")
            a("s_add_u32 s65, s65, 2")
            if opt.get("xduty", 1):
                Le = newlab("DU")
                a(f"s_cmp_lt_u32 {sW}, 2"); a(f"s_cbranch_scc1 {Le}")
                a(f"s_mov_b32 s{RR}, s{PX}"); a(f"s_mov_b32 s{RR+1}, s{PX+1}"); a(f"s_mov_b32 s{RR+2}, {2048*1024}")
                a("v_lshlrev_b32 v254, 10, v0")
                a("s_lshl_b32 s100, s64, 16"); a("s_lshl_b32 s65, s65, 7"); a("s_add_u32 s100, s100, s65")
                a("s_cmp_ge_u32 s64, 32"); a("s_cselect_b32 s101, 255, s101")
                a(f"s_branch {Lc}")
                a.label(Le)
            a("s_cmp_lt_u32 s64, 24")
            a(f"s_cselect_b32 s{RR}, s{PWQKV}, s{PW1}"); a(f"s_cselect_b32 s{RR+1}, s{PWQKV+1}, s{PW1+1}"); csel(a, f"s{RR+2}", 512*3072, 512*3584)
            a("s_cselect_b32 s66, 24, 28"); a("s_cselect_b32 s67, 0, 24"); a("s_mul_i32 s65, s65, s66"); a("s_add_u32 s64, s64, s65"); a("s_sub_u32 s64, s64, s67"); a("s_lshl_b32 s100, s64, 13")
            a(f"s_cmp_ge_u32 {sW}, 2"); a("s_cselect_b32 s101, 255, s101")
            a(f"s_branch {Lc}")
            a.label(Lb)
            a("s_sub_u32 s64, s2, 156")
            a.label(Lb + "X")
            a("s_mul_i32 s64, s64, 3"); a(f"s_add_u32 s64, s64, {sW}")
            a("s_mul_i32 s101, s64, 911"); a(f"s_lshr_b32 s101, s101, {16 + opt.get('dbw', 1)}"); a(f"s_add_u32 s101, s101, {opt.get('dbs', 0)}")
            a(f"s_cmp_ge_u32 {sW}, 3"); a("s_cselect_b32 s101, 255, s101"); a("s_cmp_ge_u32 s64, 288"); a("s_cselect_b32 s101, 255, s101")
            a("s_cmp_lt_u32 s64, 64")
            a(f"s_cselect_b32 s{RR}, s{PWO}, s{PW2}"); a(f"s_cselect_b32 s{RR+1}, s{PWO+1}, s{PW2+1}"); csel(a, f"s{RR+2}", 512*1024, 1792*1024)
            a("s_cselect_b32 s67, 0, 64"); a("s_sub_u32 s64, s64, s67"); a("s_lshl_b32 s100, s64, 13")
            a.label(Lc)
            a("s_cmp_lg_u32 s101, 0"); a(f"s_cbranch_scc1 {Ld}"); a(f"buffer_load_dword v255, v254, {q(RR)}, s100 offen"); a.label(Ld)
        a("s_branch K_COMPUTE")
    opt["_cpre"] = cpre
    a("v_lshrrev_b32 v1, 6, v0"); a("v_and_b32 v0, 63, v0")
    a("v_readfirstlane_b32 s3, v1")
    a("s_and_b32 s64, s2, 4"); a("s_lshr_b32 s65, s2, 3"); a("s_lshl_b32 s64, s64, 1"); a("s_and_b32 s65, s65, 7"); a(f"s_add_u32 {sB}, s64, s65")
    a(f"s_and_b32 {sW}, s3, 3"); a("s_xor_b32 s3, s3, 4")
    a("s_cmp_lt_u32 s3, 4"); a("s_cbranch_scc1 K_HOP")
    gen_loader(a, opt)
    a.label("K_END"); a("s_endpgm")
    a.label("K_COMPUTE")
    a(f"s_cmp_eq_u32 {sT}, 0"); a("s_cbranch_scc1 K_ATTN")
    gen_ffn(a, opt)
    gen_attn(a, opt)
    a.label("K_CODE_END")

def compute_common_setup(a, opt):
    L = newlab("CS")
    a("v_mov_b32 v1, 0")
    a("s_or_b32 s64, s2, s3"); a("s_cmp_lg_u32 s64, 0"); a(f"s_cbranch_scc1 {L}")
    a("s_memrealtime s[64:65]"); a("s_waitcnt lgkmcnt(0)")
    a("s_or_b32 s64, s64, 1"); a("s_xor_b32 s65, s65, 0x5bd1e995")
    a("v_mov_b32 v10, s64"); a("v_mov_b32 v11, s65")
    a("s_mov_b64 exec, 1")
    a(f"global_store_dwordx2 v1, v[10:11], s[{PDBG}:{PDBG+1}] sc1")
    a("s_mov_b64 exec, -1")
    a.label(L)
    if opt.get("cpf", 2) == 1:
        L = newlab("CS")
        a("s_cmp_ge_u32 s2, 8"); a(f"s_cbranch_scc1 {L}"); a("s_cmp_lg_u32 s3, 1"); a(f"s_cbranch_scc1 {L}")
        a("s_getpc_b64 s[64:65]")
        G = newlab("GP"); a.label(G)
        a(f"s_sub_u32 s64, s64, {G}-{NAME}_kernel"); a("s_subb_u32 s65, s65, 0")
        a("v_lshlrev_b32 v10, 7, v0")
        a(f"s_mov_b32 s66, K_CODE_END-{NAME}_kernel-4")
        for r in range(opt.get("cpfn", 4)):
            a("v_min_u32 v11, s66, v10"); a("global_load_dword v255, v11, s[64:65]"); a("v_add_u32 v10, 8192, v10")
        a.label(L)
    srd(a, RWS, PWS, WS_USED)
    if opt.get("tlb", 0):
        Lt = newlab("TLB")
        a(f"s_cmp_lg_u32 {sW}, 2"); a(f"s_cbranch_scc1 {Lt}")
        a("v_lshlrev_b32 v13, 21, v0"); a("s_mov_b64 exec, 0x7f")
        a(f"buffer_load_dword v12, v13, {q(RWS)}, 0 offen")
        a("s_mov_b64 exec, 1")
        for p in (PW2, PWO, POUT, PGATE, PDBG):
            a(f"global_load_dword v12, v1, s[{p}:{p+1}]")
        a("s_mov_b64 exec, -1")
        a.label(Lt)
    a(f"s_lshl_b32 s78, {sB}, 4"); a(f"s_lshl_b32 s64, {sT}, 3"); a("s_add_u32 s78, s78, s64"); a(f"s_add_u32 s78, s78, {sG}")
    a(f"s_mul_i32 s78, s78, {FSTR}"); a(f"s_add_u32 s78, s78, {FA_OFF}")

def compute_publish(a, opt, vt, nst):
    L = newlab("NOPUB")
    a("s_mov_b64 exec, 1")
    a(f"v_mov_b32 v12, {TOP-4096}"); a("v_mov_b32 v13, 1")
    a(f"s_waitcnt vmcnt({nst})")
    tag_check(a, vt, 1)
    a("s_waitcnt vmcnt(0)")
    stamp(a, opt, 6)
    a("ds_add_rtn_u32 v13, v12, v13"); a("s_waitcnt lgkmcnt(0)")
    a("v_cmp_eq_u32 vcc, 3, v13"); a("s_nop 0"); a(f"s_cbranch_vccz {L}")
    fo = opt.get("fop", 0)
    if fo == 0: a(f"buffer_store_dwordx2 v[{vt}:{vt+1}], v1, {q(RWS)}, s78 offen sc1")
    elif fo == 1: a(f"buffer_atomic_swap_x2 v[{vt}:{vt+1}], v1, {q(RWS)}, s78 offen sc1")
    elif fo == 2: a(f"buffer_store_dwordx2 v[{vt}:{vt+1}], v1, {q(RWS)}, s78 offen sc0 sc1")
    elif fo == 3:
        a("s_mov_b64 exec, 0xffff"); a(f"v_mov_b32 v{vt}, s{TAG}"); a(f"v_mov_b32 v{vt+1}, s{TAG+1}"); a("v_lshlrev_b32 v13, 3, v0")
        a(f"buffer_store_dwordx2 v[{vt}:{vt+1}], v13, {q(RWS)}, s78 offen sc1"); a("s_mov_b64 exec, 1")
    a.label(L)

def gate_loads(a, VL16):
    a(f"s_lshl_b32 s64, {sB}, 7"); a(f"s_and_b32 s65, {sG}, 3"); a("s_lshl_b32 s65, s65, 5"); a("s_add_u32 s65, s65, s64")
    a(f"s_lshl_b32 s66, {sW}, 3"); a("s_add_u32 s65, s65, s66"); a(f"s_lshr_b32 s66, {sG}, 2"); a("s_add_u32 s65, s65, s66"); a("s_lshl_b32 s65, s65, 10")
    a(f"s_lshl_b32 s66, {sG}, 4"); a("s_add_u32 s64, s64, s66"); a(f"s_lshl_b32 s66, {sW}, 2"); a("s_add_u32 s64, s64, s66")
    a("s_lshl_b32 s78, s64, 3"); a(f"s_add_u32 s78, s78, {G_OFF}")
    a(f"global_load_dwordx4 v[32:35], v{VL16}, s[{PGATE}:{PGATE+1}]")
    a(f"buffer_load_dwordx4 v[16:19], v{VL16}, {q(RX)}, s65 offen"); a(f"buffer_load_dwordx4 v[20:23], v{VL16}, {q(RX)}, s65 offen offset:2048")
    a("s_add_u32 s65, s65, 4096")
    a(f"buffer_load_dwordx4 v[24:27], v{VL16}, {q(RX)}, s65 offen"); a(f"buffer_load_dwordx4 v[28:31], v{VL16}, {q(RX)}, s65 offen offset:2048")
def gate_math(a, VL16):
    GU = 36; P = 44; R = 52
    for k in range(4):
        a(f"v_lshlrev_b32 v{GU+2*k}, 16, v{32+k}"); a(f"v_and_b32 v{GU+1+2*k}, 0xffff0000, v{32+k}")
    for row in range(4):
        xb = 16 + 4 * row
        for k in range(4):
            a(f"v_lshlrev_b32 v{P+2*k}, 16, v{xb+k}"); a(f"v_and_b32 v{P+2*k+1}, 0xffff0000, v{xb+k}")
        for i in range(0, 8, 2): a(f"v_pk_mul_f32 {vr(P+i,2)}, {vr(P+i,2)}, {vr(GU+i,2)}")
        for k in range(4): a(f"v_cvt_pk_bf16_f32 v{xb+k}, v{P+2*k}, v{P+2*k+1}")
        for k in range(4):
            a(f"v_lshlrev_b32 v{P+2*k}, 16, v{xb+k}"); a(f"v_and_b32 v{P+2*k+1}, 0xffff0000, v{xb+k}")
        a(f"v_pk_add_f32 {vr(P,2)}, {vr(P,2)}, {vr(P+4,2)}"); a(f"v_pk_add_f32 {vr(P+2,2)}, {vr(P+2,2)}, {vr(P+6,2)}")
        a(f"v_pk_add_f32 {vr(P,2)}, {vr(P,2)}, {vr(P+2,2)}")
        a(f"v_add_f32 v{R+row}, v{P}, v{P+1}")
    a.nop(1)
    for sh in (8, 4, 2, 1):
        for row in range(4): a(f"v_add_f32_dpp v{R+row}, v{R+row}, v{R+row} row_ror:{sh} row_mask:0xf bank_mask:0xf")
    for sw in ("v_permlane32_swap_b32", "v_permlane16_swap_b32"):
        for row in range(4): a(f"v_mov_b32 v{P+row}, v{R+row}")
        for row in range(4): a(f"{sw} v{R+row}, v{P+row}")
        for row in range(4): a(f"v_add_f32 v{R+row}, v{R+row}, v{P+row}")
    def rnd():
        for h in range(2):
            a(f"v_cvt_pk_bf16_f32 v{P+h}, v{R+2*h}, v{R+2*h+1}")
        for h in range(2):
            a(f"v_lshlrev_b32 v{R+2*h}, 16, v{P+h}"); a(f"v_and_b32 v{R+2*h+1}, 0xffff0000, v{P+h}")
    rnd()
    for row in range(4): a(f"v_mul_f32 v{R+row}, 0x{f32bits(-LOG2E):x}, v{R+row}")
    for row in range(4): a(f"v_exp_f32 v{R+row}, v{R+row}")
    for row in range(4): a(f"v_add_f32 v{R+row}, 1.0, v{R+row}")
    for row in range(4): a(f"v_rcp_f32 v{R+row}, v{R+row}")
    a.nop(1)
    rnd()
    a("v_cmp_eq_u32 vcc, 1, v0"); a(f"v_mov_b32 v{P+2}, s{TAG}"); a(f"v_mov_b32 v{P+3}, s{TAG+1}")
    a(f"v_cndmask_b32 v{P}, v{R}, v{R+2}, vcc"); a(f"v_cndmask_b32 v{P+1}, v{R+1}, v{R+3}, vcc")
    a("s_mov_b64 exec, 3")
    a(f"buffer_store_dwordx4 {vr(P,4)}, v{VL16}, {q(RWS)}, s78 offen sc1")
    a("s_mov_b64 exec, -1")

def final_half(a, opt, RA_, OV, so_, gl):
    T = 104
    def P(src): return T + 8 * src
    if gl: a("ds_read_b64 v[96:97], v103")
    for src in range(4):
        for e in range(2):
            a(f"ds_read_b128 {vr(P(src)+4*e,4)}, v{RA_+e} offset:{(3 - src) * 4096 + (16384 if src else 0)}")
    a("s_waitcnt lgkmcnt(6)")
    for i in range(0, 8, 2): a(f"v_pk_mul_f32 {vr(P(0)+i,2)}, {vr(P(0)+i,2)}, v[96:97] op_sel_hi:[1,0]")
    a("s_waitcnt lgkmcnt(2)")
    for i in range(0, 8, 2): a(f"v_pk_add_f32 {vr(P(1)+i,2)}, {vr(P(1)+i,2)}, {vr(P(2)+i,2)}")
    a("s_waitcnt lgkmcnt(0)")
    for i in range(0, 8, 2): a(f"v_pk_add_f32 {vr(P(1)+i,2)}, {vr(P(1)+i,2)}, {vr(P(3)+i,2)}")
    for i in range(0, 8, 2):
        if gl: a(f"v_pk_fma_f32 {vr(P(0)+i,2)}, {vr(P(1)+i,2)}, v[96:97], {vr(P(0)+i,2)} op_sel:[0,1,0] op_sel_hi:[1,1,1]")
        else: a(f"v_pk_fma_f32 {vr(P(0)+i,2)}, {vr(P(1)+i,2)}, v[100:101], {vr(P(0)+i,2)} op_sel_hi:[1,0,1]")
    for i in range(4): a(f"v_cvt_pk_bf16_f32 v{P(2)+i}, v{P(0)+2*i}, v{P(0)+2*i+1}")
    a(f"buffer_store_dwordx4 {vr(P(2),4)}, v{OV}, {q(RAUX)}, {so_} offen {opt.get('ost', 'sc1')}")

def compute_final(a, opt):
    a.label("K_CFIN")
    a("s_mov_b64 exec, -1"); a("s_setprio 0")
    opt["_decode2"]()
    srd(a, RAUX, POUT, 2048 * 1024)
    a(f"s_lshr_b32 s64, {sU}, 1"); a("s_lshl_b32 s64, s64, 7"); a(f"s_lshl_b32 s65, {sW}, 5"); a("s_add_u32 s64, s64, s65"); a(f"s_and_b32 s65, {sU}, 1"); a("s_add_u32 s64, s64, s65")
    a("s_lshl_b32 s64, s64, 10"); a(f"s_lshl_b32 s65, {sCT}, 7"); a("s_add_u32 s70, s64, s65"); a("s_add_u32 s70, s70, 16384")
    a(f"s_lshl_b32 s73, {sW}, 14"); a(f"s_sub_u32 s73, {TOP-32768+2048}, s73")
    for x in ["v_lshrrev_b32 v93, 3, v0", "v_and_b32 v94, 7, v0", "v_lshlrev_b32 v92, 11, v93", "v_lshlrev_b32 v95, 4, v94", "v_add_u32 v92, v92, v95",
              "v_lshlrev_b32 v95, 1, v94", "v_xor_b32 v95, v95, v93", "v_lshlrev_b32 v95, 4, v95", "v_lshlrev_b32 v93, 8, v93", "v_add_u32 v95, v95, v93",
              "v_add_u32 v95, s73, v95", "v_xor_b32 v88, 128, v95", "v_xor_b32 v89, 144, v95",
              f"s_lshl_b32 s72, {sW}, 9", f"s_add_u32 s72, s72, {TOP-4096+1024}", "v_lshlrev_b32 v103, 3, v0", "v_add_u32 v103, s72, v103"]: a(x)
    a("s_barrier")
    final_half(a, opt, 88, 92, "s70", True)
    a("s_endpgm")

def cpad(a, opt, n):
    if opt.get("pads", 0): a(f"s_branch {n}_S"); a.label(n); a("s_branch K_CPRE"); a.label(n + "_S")

def mainloop(a, opt, pre, addr_regs, reads, mfmas):
    a("s_mov_b32 s70, 1"); a("s_mov_b32 s72, 0"); a(f"s_mov_b32 s73, {(-SLOT) & 0xffffffff}"); a(f"s_mov_b32 s79, {2*SLOT}")
    for r in addr_regs: a(f"v_add_u32 v{r}, {slot_of(0)}, v{r}")
    if opt.get("prio", 2) == 1: a("s_setprio 1")
    du = opt.get("duty", 1)
    if du == 3 and pre == "KF": du = 0
    dl = f"buffer_load_dword v255, v254, {q(RR)}, s100 offen"
    if opt.get("cp0", 0): a("s_setprio 0")
    stamp(a, opt, 0)
    a("s_barrier")
    stamp(a, opt, 1)
    for r in reads(0, 0): a(r)
    a(".p2align 3")
    a.label(pre + "_LOOP")
    a("s_waitcnt lgkmcnt(0)")
    a("s_add_u32 s70, s70, 1")
    last = opt.get("last", 6)
    sal = ["s_cmp_eq_u32 s70, 3\ns_cselect_b32 s71, s79, s73", "s_cselect_b32 s70, 0, s70\ns_add_u32 s72, s72, 1"]
    if du: sal.append(f"s_cmp_eq_u32 s72, s101\ns_cbranch_scc1 {pre}_DUTY\n{pre}_DBACK:")
    if du == 3: sal.append(f"s_cmp_eq_u32 s72, s63\ns_cbranch_scc1 {pre}_DUTY2\n{pre}_DBACK2:")
    sal.append("s_cmp_eq_u32 s72, 8\ns_nop 0")
    mf = mfmas(0)
    spread(a, mf[:-last], reads(1, 1), 0)
    interleave(a, mf[-last:], sal)
    a("s_waitcnt lgkmcnt(0)")
    a("s_barrier")
    a(f"s_cbranch_scc1 {pre}_DONE"); a("s_nop 0")
    for _ in range(opt.get("slow", 0)): a("s_nop 15"); a("s_nop 15")
    adv = [f"v_add_u32 v{r}, s71, v{r}" for r in addr_regs]
    if len(adv) % 2: adv.append("s_nop 0")
    adv = [adv[i] + "\n" + adv[i+1] for i in range(0, len(adv), 2)]
    mf = mfmas(1)
    interleave(a, mf[:len(adv)], adv)
    spread(a, mf[len(adv):], reads(0, 0), opt.get("last2", 2))
    a(f"s_branch {pre}_LOOP")
    if du:
        a.label(pre + "_DUTY"); a(dl); a(f"s_branch {pre}_DBACK")
    if du == 3:
        a.label(pre + "_DUTY2"); a(f"buffer_load_dword v255, v253, {q(RA)}, s62 offen"); a(f"s_branch {pre}_DBACK2")
    a(".p2align 3")
    a.label(pre + "_DONE")
    if opt.get("prio", 2) == 2: a("s_setprio 3"); a("s_nop 0")
    stamp(a, opt, 2)

def gen_ffn(a, opt):
    ACC = 16; FR = 128
    def acc(t, n): return ACC + 4 * (t * 7 + n)
    def xf(s, t): return FR + 44 * s + 4 * t
    def wf(s, n): return FR + 44 * s + 16 + 4 * n
    XA = [2, 3]; WA = [4, 5, 6, 7]; SA = 8
    cpad(a, opt, "KPF_0")
    a(f"s_lshr_b32 s68, {sW}, 1")
    a(f"s_and_b32 s69, {sW}, 1")
    a("v_and_b32 v10, 15, v0"); a("v_lshrrev_b32 v11, 4, v0")
    a("v_lshrrev_b32 v12, 1, v10"); a("v_xor_b32 v12, v12, v11"); a("v_lshlrev_b32 v12, 4, v12")
    a("v_lshlrev_b32 v13, 7, v10"); a("v_add_u32 v12, v12, v13")
    a("s_lshl_b32 s64, s68, 13"); a(f"v_add_u32 v{XA[0]}, s64, v12"); a(f"v_xor_b32 v{XA[1]}, 64, v{XA[0]}")
    a("v_bfe_u32 v12, v0, 2, 2")
    a("v_lshlrev_b32 v13, 3, v11"); a("v_add_u32 v13, v13, v12")
    a("v_lshrrev_b32 v14, 1, v12"); a("v_and_b32 v15, 1, v11"); a("v_lshlrev_b32 v9, 1, v15"); a("v_or_b32 v14, v14, v9")
    a("v_and_b32 v9, 3, v0"); a("v_lshlrev_b32 v9, 3, v9")
    a("v_lshlrev_b32 v12, 7, v13"); a("v_add_u32 v12, v12, v9")
    for j in range(4):
        a("s_mul_i32 s64, s69, 6"); a(f"s_add_u32 s64, s64, {j}")
        a("s_and_b32 s65, s64, 3"); a("s_lshr_b32 s64, s64, 2"); a("s_lshl_b32 s64, s64, 13"); a(f"s_add_u32 s64, s64, {WOFF}")
        a(f"v_xor_b32 v{WA[j]}, s65, v14"); a(f"v_lshlrev_b32 v{WA[j]}, 5, v{WA[j]}"); a(f"v_add_u32 v{WA[j]}, v{WA[j]}, v12"); a(f"v_add_u32 v{WA[j]}, s64, v{WA[j]}")
    a(f"v_xor_b32 v{SA}, s69, v15"); a(f"v_lshlrev_b32 v{SA}, 5, v{SA}"); a(f"v_add_u32 v{SA}, v{SA}, v9")
    a("v_lshlrev_b32 v12, 6, v13"); a(f"v_add_u32 v{SA}, v{SA}, v12"); a(f"v_add_u32 v{SA}, {EOFF}, v{SA}")
    a(f"s_lshl_b32 s64, {sB}, 1"); a("s_add_u32 s64, s64, s68"); a("s_mul_i32 s64, s64, 72")
    a(f"s_mul_i32 s65, {sG}, 7"); a("s_add_u32 s64, s64, s65"); a("s_add_u32 s64, s64, 16")
    a(f"s_and_b32 s65, {sG}, 1")
    a("s_mul_i32 s66, s69, 3"); a("s_add_u32 s66, s66, s65"); a("s_add_u32 s66, s66, s64"); a("s_lshl_b32 s74, s66, 12")
    a("s_add_u32 s75, s74, 4096"); a("s_add_u32 s76, s74, 8192")
    a("s_cmp_eq_u32 s65, 0"); a("s_cselect_b32 s66, 6, 0"); a("s_add_u32 s66, s66, s64"); a("s_lshl_b32 s77, s66, 12")
    a("s_lshl_b32 s65, s69, 11"); a("s_add_u32 s77, s77, s65")
    a("v_lshlrev_b32 v9, 4, v0")
    a("s_waitcnt lgkmcnt(0)")
    compute_common_setup(a, opt)
    cpad(a, opt, "KPF_1")
    for i in range(112): a(f"v_mov_b32 v{ACC+i}, 0")
    cpad(a, opt, "KPF_2")
    def reads(kk, s):
        xs = [f"ds_read_b128 {vr(xf(s,t),4)}, v{XA[kk]} offset:{t*2048}" for t in range(4)]
        ws = []
        for n in range(6):
            for h in range(2):
                ws.append(f"ds_read_b64_tr_b16 {vr(wf(s,n)+2*h,2)}, v{WA[n&3]} offset:{(n>>2)*8192 + kk*4096 + h*512}")
        for h in range(2):
            ws.append(f"ds_read_b64_tr_b16 {vr(wf(s,6)+2*h,2)}, v{SA} offset:{kk*2048 + h*256}")
        return mix(xs, ws)
    def mfmas(s):
        return [f"v_mfma_f32_16x16x32_bf16 {vr(acc(t,n),4)}, {vr(wf(s,n),4)}, {vr(xf(s,t),4)}, {vr(acc(t,n),4)}" for n in range(7) for t in range(4)]
    mainloop(a, opt, "KF", XA + WA + [SA], reads, mfmas)
    E = [f"global_load_dwordx2 v[10:11], v1, s[{PDBG}:{PDBG+1}] sc1"] + mfmas(1)
    tmp = [FR + 4 * k for k in range(11)] + [216 + 4 * k for k in range(3)]
    k = 0
    for n in range(7):
        for tp in range(2):
            d = tmp[k]; k += 1
            for hh in range(2):
                sx = acc(2 * tp + hh, n)
                E.append(f"v_cvt_pk_bf16_f32 v{d+2*hh}, v{sx}, v{sx+1}"); E.append(f"v_cvt_pk_bf16_f32 v{d+2*hh+1}, v{sx+2}, v{sx+3}")
            for i in (0, 2, 1, 3): E.append(f"v_pk_max_i16 v{d+i}, v{d+i}, 0")
            E.append(f"v_permlane16_swap_b32 v{d}, v{d+2}"); E.append(f"v_permlane16_swap_b32 v{d+1}, v{d+3}")
            off = ((n & 1) * 2048 if n < 6 else 0) + tp * 1024
            E.append(f"buffer_store_dwordx4 {vr(d,4)}, v9, {q(RWS)}, s{74+(n>>1)} offen offset:{off} sc1")
    o, t = schedule(E, 40)
    print("ffn epilogue est", t, len(o), file=sys.stderr)
    wn = opt.get("wn", 0); ns = 0
    for x in o:
        if x.startswith("buffer_store") and opt.get("nostore"): continue
        if x.startswith("buffer_store"):
            if wn and ns >= wn: a(f"s_waitcnt vmcnt({wn-1})")
            ns += 1
        a(x)
    if opt.get("sb", 2) in (1, 3): a("s_barrier")
    stamp(a, opt, 3)
    compute_publish(a, opt, 10, 14)
    if opt.get("sb", 2) in (2, 3): a("s_barrier")
    stamp(a, opt, 5)
    stamp_end(a, opt, 1)
    a("s_branch K_CFIN" if opt.get("f8", 1) else "s_endpgm")

def gen_attn(a, opt):
    a.label("K_ATTN")
    ACC = 36; FR = 140
    def Q(t): return ACC + 4 * t
    def K(t): return ACC + 32 + 4 * t
    def V(t): return ACC + 68 + 4 * t
    def xf(s, t): return FR + 48 * s + 4 * t
    def wf(s, p): return FR + 48 * s + 36 + 4 * p
    XA = [2, 3]; WA = 4
    BC, BP, BP0, BP4, MC = 16, 20, 24, 28, 32
    cpad(a, opt, "KPA_0")
    a("v_and_b32 v10, 15, v0"); a("v_lshrrev_b32 v11, 4, v0")
    a("v_lshrrev_b32 v12, 1, v10"); a("v_xor_b32 v12, v12, v11"); a("v_lshlrev_b32 v12, 4, v12")
    a("v_lshlrev_b32 v13, 7, v10"); a(f"v_add_u32 v{XA[0]}, v12, v13"); a(f"v_xor_b32 v{XA[1]}, 64, v{XA[0]}")
    a("v_bfe_u32 v12, v0, 2, 2")
    a("v_lshlrev_b32 v13, 3, v11"); a("v_add_u32 v13, v13, v12")
    a("v_lshrrev_b32 v14, 1, v12"); a("v_and_b32 v15, 1, v11"); a("v_lshlrev_b32 v9, 1, v15"); a("v_or_b32 v14, v14, v9")
    a("v_and_b32 v9, 3, v0"); a("v_lshlrev_b32 v9, 3, v9")
    a("v_lshlrev_b32 v12, 7, v13"); a("v_add_u32 v12, v12, v9")
    a(f"v_xor_b32 v{WA}, {sW}, v14"); a(f"v_lshlrev_b32 v{WA}, 5, v{WA}"); a(f"v_add_u32 v{WA}, v{WA}, v12"); a(f"v_add_u32 v{WA}, {WOFF}, v{WA}")
    a("v_lshlrev_b32 v5, 2, v11"); a("v_sub_u32 v6, v5, v10")
    a(f"s_mul_i32 s64, {sB}, 144"); a(f"s_lshl_b32 s65, {sG}, 1"); a("s_add_u32 s64, s64, s65"); a(f"s_lshr_b32 s65, {sW}, 1"); a("s_add_u32 s64, s64, s65")
    a("s_lshl_b32 s74, s64, 12"); a(f"s_and_b32 s65, {sW}, 1"); a("s_lshl_b32 s65, s65, 11"); a("s_add_u32 s74, s74, s65")
    a(f"s_add_u32 s75, s74, {72*4096}")
    a(f"s_mov_b32 s76, 0x{f32bits(0.25*LOG2E):x}"); a("s_mov_b32 s77, s76")
    a("v_lshlrev_b32 v9, 4, v0")
    a("s_waitcnt lgkmcnt(0)")
    compute_common_setup(a, opt)
    cpad(a, opt, "KPA_1")
    a(f"v_mov_b32 v7, 0x{BIG:x}")
    a(f"s_cmp_eq_u32 {sB}, 0"); a(f"s_cselect_b32 s64, 0x{BIG:x}, 0"); a("v_mov_b32 v8, s64")
    a(f"v_mov_b32 v{MC}, 0"); a(f"v_mov_b32 v{MC+1}, 0")
    for r in range(4):
        a(f"v_add_u32 v14, {r+7}, v6")
        a("v_cmp_gt_u32 vcc, 8, v14")
        a(f"v_mov_b32 v15, {'0xffff' if r % 2 == 0 else '0xffff0000'}")
        a(f"v_add_u32 v14, {r}, v6")
        a(f"v_cndmask_b32 v{BC+r}, v7, v1, vcc")
        a("v_cndmask_b32 v15, v1, v15, vcc")
        a(f"v_or_b32 v{MC+(r>>1)}, v{MC+(r>>1)}, v15")
        a("v_cmp_le_i32 vcc, 9, v14")
        a(f"v_add_u32 v15, {r}, v5")
        a("v_cmp_gt_u32 s[64:65], 8, v15")
        a(f"v_cndmask_b32 v{BP+r}, v7, v1, vcc")
        a(f"v_cndmask_b32 v{BP0+r}, v7, v8, vcc")
        a("v_cmp_le_i32 vcc, 1, v14"); a("s_nop 0")
        a("s_and_b64 vcc, vcc, s[64:65]")
        a(f"v_cndmask_b32 v{BP4+r}, v7, v8, vcc")
    cpad(a, opt, "KPA_2")
    for i in range(104): a(f"v_mov_b32 v{ACC+i}, 0")
    def reads(kk, s):
        ws = []
        for p in range(3):
            for h in range(2):
                ws.append(f"ds_read_b64_tr_b16 {vr(wf(s,p)+2*h,2)}, v{WA} offset:{p*8192 + kk*4096 + h*512}")
        xs = [f"ds_read_b128 {vr(xf(s,t),4)}, v{XA[kk]} offset:{t*2048 if t < 8 else EOFF}" for t in range(9)]
        return mix(xs, ws)
    def mfmas(s):
        r = []
        for t in range(9):
            if t < 8: r.append(f"v_mfma_f32_16x16x32_bf16 {vr(Q(t),4)}, {vr(wf(s,0),4)}, {vr(xf(s,t),4)}, {vr(Q(t),4)}")
            r.append(f"v_mfma_f32_16x16x32_bf16 {vr(K(t),4)}, {vr(wf(s,1),4)}, {vr(xf(s,t),4)}, {vr(K(t),4)}")
            r.append(f"v_mfma_f32_16x16x32_bf16 {vr(V(t),4)}, {vr(xf(s,t),4)}, {vr(wf(s,2),4)}, {vr(V(t),4)}")
        return r
    a("s_mov_b32 s66, 0x3f803f80"); a("s_mov_b32 s67, 0xffff0000")
    mainloop(a, opt, "KA", XA + [WA], reads, mfmas)
    QB = FR; KB = FR + 16; M = FR + 34; ONES = FR + 44; VB = FR + 48; PB = FR + 68; TM = FR + 100
    E = [f"global_load_dwordx2 v[10:11], v1, s[{PDBG}:{PDBG+1}] sc1"] + mfmas(1)
    e = E.append
    def cvt(d, s): e(f"v_cvt_pk_bf16_f32 v{d}, v{s}, v{s+1}"); e(f"v_cvt_pk_bf16_f32 v{d+1}, v{s+2}, v{s+3}")
    for i in range(4): e(f"v_mov_b32 v{ONES+i}, s66")
    for t in range(8): cvt(QB + 2 * t, Q(t))
    for t in range(9): cvt(KB + 2 * t, K(t))
    def vslot(t): return (1 + t) if t < 4 else (2 + t)
    for t in range(8): cvt(VB + 2 * vslot(t), V(t))
    for d in (VB, VB + 10): cvt(d, V(8))
    for t in range(8):
        prev = 8 if t in (0, 4) else t - 1
        bp = BP0 if t == 0 else (BP4 if t == 4 else BP)
        e(f"v_mfma_f32_16x16x16_bf16 {vr(Q(t),4)}, {vr(KB+2*t,2)}, {vr(QB+2*t,2)}, {vr(BC,4)}")
        e(f"v_mfma_f32_16x16x16_bf16 {vr(K(t),4)}, {vr(KB+2*prev,2)}, {vr(QB+2*t,2)}, {vr(bp,4)}")
    for t in range(8):
        for r in range(4): e(f"v_max_f32 v{Q(t)+r}, v{Q(t)+r}, v{K(t)+r}")
        if opt.get("rl", 1):
            for r in (0, 2):
                e(f"v_cvt_pk_bf16_f32 v{Q(t)+r+1}, v{Q(t)+r}, v{Q(t)+r+1}")
                e(f"v_lshlrev_b32 v{Q(t)+r}, 16, v{Q(t)+r+1}"); e(f"v_and_b32 v{Q(t)+r+1}, s67, v{Q(t)+r+1}")
        e(f"v_max3_f32 v{M+t}, v{Q(t)}, v{Q(t)+1}, v{Q(t)+2}")
        e(f"v_max_f32 v{M+t}, v{M+t}, v{Q(t)+3}")
    for b4 in (0, 4):
        m0, m1, m2, m3 = M + b4, M + b4 + 1, M + b4 + 2, M + b4 + 3
        e(f"v_permlane32_swap_b32 v{m0}, v{m1}"); e(f"v_max_f32 v{m0}, v{m0}, v{m1}")
        e(f"v_permlane32_swap_b32 v{m2}, v{m3}"); e(f"v_max_f32 v{m2}, v{m2}, v{m3}")
        e(f"v_permlane16_swap_b32 v{m0}, v{m2}"); e(f"v_max_f32 v{m0}, v{m0}, v{m2}")
        k0, k1, k2, k3 = K(b4), K(b4 + 1), K(b4 + 2), K(b4 + 3)
        e(f"v_mul_f32 v{k0}, s76, v{m0}"); e(f"v_mul_f32 v{k2}, s76, v{m0}")
        e(f"v_permlane16_swap_b32 v{k0}, v{k2}")
        e(f"v_mov_b32 v{k1}, v{k0}"); e(f"v_mov_b32 v{k3}, v{k2}")
        e(f"v_permlane32_swap_b32 v{k0}, v{k1}"); e(f"v_permlane32_swap_b32 v{k2}, v{k3}")
    pk = opt.get("pk", 1)
    for t in range(8):
        if pk:
            for r in (0, 2): e(f"v_pk_fma_f32 {vr(Q(t)+r,2)}, {vr(Q(t)+r,2)}, s[76:77], {vr(K(t),2)} op_sel_hi:[1,1,0] neg_lo:[0,0,1] neg_hi:[0,0,1]")
        else:
            for r in range(4): e(f"v_fma_f32 v{Q(t)+r}, v{Q(t)+r}, s76, -v{K(t)}")
        for r in range(4): e(f"v_exp_f32 v{Q(t)+r}, v{Q(t)+r}")
        cvt(PB + 4 * t + 2, Q(t))
        for h in range(2): e(f"v_bfi_b32 v{PB+4*t+h}, v{MC+h}, 0, v{PB+4*t+2+h}")
        for h in range(2): e(f"v_and_b32 v{PB+4*t+2+h}, v{MC+h}, v{PB+4*t+2+h}")
        e(f"v_mfma_f32_16x16x32_bf16 {vr(K(t),4)}, {vr(ONES,4)}, {vr(PB+4*t,4)}, 0")
        e(f"v_mfma_f32_16x16x32_bf16 {vr(Q(t),4)}, {vr(VB+2*(vslot(t)-1),4)}, {vr(PB+4*t,4)}, 0")
        e(f"v_rcp_f32 v{K(t)}, v{K(t)}")
        if pk:
            for r in (0, 2): e(f"v_pk_mul_f32 {vr(Q(t)+r,2)}, {vr(Q(t)+r,2)}, {vr(K(t),2)} op_sel_hi:[1,0]")
        else:
            for r in range(4): e(f"v_mul_f32 v{Q(t)+r}, v{Q(t)+r}, v{K(t)}")
        cvt(QB + 2 * t, Q(t))
        if t & 1:
            d = QB + 2 * t - 2
            e(f"v_permlane16_swap_b32 v{d}, v{d+2}"); e(f"v_permlane16_swap_b32 v{d+1}, v{d+3}")
            e(f"buffer_store_dwordx4 {vr(d,4)}, v9, {q(RWS)}, s{74+(t>>2)} offen offset:{((t>>1)&1)*1024} sc1")
    o, t = schedule(E, 0)
    print("attn epilogue est", t, len(o), file=sys.stderr)
    for x in o: a(x)
    if opt.get("sba", 11) and opt.get("sbl", 1) == 0: a("s_barrier")
    stamp(a, opt, 4)
    compute_publish(a, opt, 10, 4)
    if opt.get("sba", 11) and opt.get("sbl", 1) == 1: a("s_barrier")
    stamp(a, opt, 5)
    if opt.get("gq", 2) == 2:
        a("s_mov_b64 exec, -1")
        srd(a, RX, PX, 2048 * 1024)
        gate_loads(a, 9); a("s_waitcnt vmcnt(0)"); gate_math(a, 9)
    stamp_end(a, opt, 2)
    if opt.get("f8", 1): compute_final(a, opt)
    else: a("s_endpgm")

def gen_loader(a, opt):
    a("; ---- loader wave")
    VL16, VX0, VX1, VW, VE, VR, VZ = 1, 2, 3, 4, 5, 6, 7
    win = None
    npad = [0]
    def pad():
        return
        k = npad[0]; npad[0] += 1
        a(f"s_branch KP_{k}_S"); a.label(f"KP_{k}"); a("s_branch K_CPRE"); a.label(f"KP_{k}_S")
    b0 = slot_of(0)
    if opt.get("cpf", 2) == 2:
        L = newlab("CS")
        a("s_cmp_ge_u32 s2, 8"); a(f"s_cbranch_scc1 {L}")
        a("s_getpc_b64 s[64:65]")
        G = newlab("GP"); a.label(G)
        a(f"s_lshl_b32 s66, {sW}, 13"); a("v_lshlrev_b32 v10, 7, v0"); a("v_add_u32 v10, s66, v10")
        a(f"s_mov_b32 s66, K_CODE_END-{G}-4")
        a("v_min_u32 v10, s66, v10"); a("global_load_dword v255, v10, s[64:65]")
        a.label(L)
    a("v_lshrrev_b32 v10, 3, v0"); a("v_and_b32 v11, 7, v0"); a("v_lshrrev_b32 v12, 4, v0")
    a(f"s_and_b32 s68, {sW}, 1"); a(f"s_lshr_b32 s69, {sW}, 1")
    a(f"s_lshl_b32 s64, {sB}, 1"); a("s_add_u32 s64, s64, s68"); a("s_lshl_b32 s64, s64, 6"); a("s_add_u32 s64, s64, s69"); a("s_lshl_b32 s64, s64, 10")
    a("v_xor_b32 v13, v11, v12"); a("v_lshlrev_b32 v14, 11, v10"); a("v_lshl_add_u32 v14, v13, 4, v14")
    a(f"v_add_u32 v{VX0}, s64, v14"); a(f"v_xor_b32 v{VX1}, 64, v{VX0}")
    a(f"s_mov_b32 s{RX+3}, 0x20000"); a(f"s_lshl_b32 s{RX+2}, s{RX+3}, 4")
    a(f"s_lshl_b32 s70, {sW}, 12"); a(f"s_add_u32 m0, s70, {b0}"); a("s_movk_i32 s51, 0x4000")
    wl = opt.get("wlate", 0)
    def wsetup():
        opt["_decode"]()
        a("s_movk_i32 s74, 3584"); a("s_movk_i32 s75, 128"); a("s_movk_i32 s66, 448")
        a(f"s_mul_i32 s66, s66, {sG}"); a(f"s_and_b32 s67, {sG}, 1"); a("s_lshl_b32 s64, s67, 6"); a("s_add_u32 s64, s64, s66"); a(f"s_lshl_b32 s65, {sG}, 7")
        a(f"s_cmp_eq_u32 {sT}, 0")
        a("s_cmovk_i32 s74, 3072"); a("s_cmovk_i32 s75, 1024"); a("s_cselect_b32 s64, s65, s64")
        a(f"s_lshl_b32 s{RW+2}, s74, 9"); a(f"s_mov_b32 s{RW+3}, s{RX+3}"); a(f"s_mov_b32 s{RE+3}, s{RX+3}")
        a("v_and_b32 v15, 1, v12"); a("s_lshl_b32 s65, s68, 2"); a("v_xor_b32 v13, s65, v11"); a("v_lshlrev_b32 v15, 1, v15"); a("v_xor_b32 v15, v15, v13")
        a(f"s_lshl_b32 s65, {sW}, 3"); a(f"v_add_u32 v{VW}, s65, v10"); a(f"v_mul_u32_u24 v{VW}, s74, v{VW}"); a(f"v_lshl_add_u32 v{VW}, v15, 4, v{VW}"); a(f"v_add_u32 v{VW}, s64, v{VW}")
        a(f"s_lshl_b32 s71, {sW}, 10"); a(f"s_addk_i32 s71, {WOFF}")
        a("s_lshl_b32 s73, s74, 6"); a("s_lshl_b32 s74, s74, 5")
    if wl:
        wsetup(); a("s_movk_i32 s51, 0x4000")
    if opt.get("lstamp") == 3: a("s_memtime s[84:85]")
    a("s_waitcnt lgkmcnt(0)")
    if opt.get("lstamp") == 3: a("s_memtime s[86:87]")
    a(f"s_mov_b64 s[{RX}:{RX+1}], s[{PX}:{PX+1}]")
    a(f"buffer_load_dwordx4 v{VX0}, {q(RX)}, 0 offen lds")
    for m in range(1, 4):
        a("s_addk_i32 m0, 0x400")
        if m > 1: a("s_addk_i32 s51, 0x4000")
        else: a("s_setprio 2" if opt.get("pearly", 0) else "s_nop 0")
        a(f"buffer_load_dwordx4 v{VX0 if m % 2 == 0 else VX1}, {q(RX)}, s51 offen lds")
    a("s_branch K_HOPS")
    a.label("K_HOP")
    if opt.get("cp0", 0): a("s_setprio 3")
    if opt.get("pads", 0):
        a("s_bitcmp1_b32 s2, 6"); a("s_cbranch_scc0 K_HOPA")
        for k in range(3): a(f"s_cmp_eq_u32 s3, {k+1}"); a(f"s_cbranch_scc1 KPF_{k}")
        a("s_branch K_CPRE")
        a.label("K_HOPA")
        for k in range(3): a(f"s_cmp_eq_u32 s3, {k+1}"); a(f"s_cbranch_scc1 KPA_{k}")
    a("s_branch K_CPRE")
    a.label("K_HOPS")
    if not wl: wsetup()
    a(f"s_cmp_eq_u32 {sT}, 0")
    a(f"s_cselect_b64 s[{RW}:{RW+1}], s[{PWQKV}:{PWQKV+1}], s[{PW1}:{PW1+1}]"); a(f"s_cselect_b64 s[{RE}:{RE+1}], s[{PX}:{PX+1}], s[{PW1}:{PW1+1}]")
    a(f"s_add_u32 m0, s71, {b0}"); a("s_mov_b32 s50, 0")
    for k in range(6):
        if k == 3: a("s_addk_i32 m0, 0x1000"); a("s_add_u32 s50, s50, s74")
        elif 0 < k < 3: a("s_addk_i32 m0, 0x2000"); a("s_add_u32 s50, s50, s75")
        elif k > 3: a("s_addk_i32 m0, -0x2000"); a("s_sub_u32 s50, s50, s75")
        a(f"buffer_load_dwordx4 v{VW}, {q(RW)}, s50 offen lds")
        if k == 0: pad()
    a(f"s_cmp_eq_u32 {sT}, 0"); a("s_cbranch_scc1 KL_EA")
    a("s_cmp_eq_u32 s67, 0"); a("s_movk_i32 s65, 0"); a("s_cmovk_i32 s65, 384"); a("s_add_u32 s66, s66, s65")
    a("v_lshrrev_b32 v15, 2, v0"); a(f"s_lshl_b32 s65, {sW}, 4"); a("v_add_u32 v15, s65, v15"); a(f"v_mul_u32_u24 v{VE}, 3584, v15")
    a("v_lshrrev_b32 v15, 5, v0"); a("v_lshlrev_b32 v15, 1, v15"); a("v_and_b32 v13, 3, v0"); a("v_xor_b32 v15, v15, v13")
    a(f"v_lshl_add_u32 v{VE}, v15, 4, v{VE}"); a(f"v_add_u32 v{VE}, s66, v{VE}")
    a(f"s_lshl_b32 s72, {sW}, 10"); a("s_mov_b32 s76, s73"); a(f"s_mov_b32 s{RE+2}, s{RW+2}")
    a("s_branch KL_ED")
    a.label("KL_EA")
    a(f"s_lshl_b32 s64, {sB}, 7"); a(f"s_cmp_eq_u32 {sB}, 0"); a("s_cselect_b32 s65, -1, 15"); a(f"s_cselect_b32 s{RE+2}, 0, s{RX+2}"); a("s_sub_u32 s64, s64, s65")
    a("s_sub_u32 s64, s64, s68"); a("s_lshl_b32 s64, s64, 10")
    a("s_lshl_b32 s65, s68, 6"); a(f"v_xor_b32 v{VE}, s65, v14"); a(f"v_add_u32 v{VE}, s64, v{VE}")
    a("s_lshl_b32 s72, s68, 10"); a("s_movk_i32 s76, 128")
    a.label("KL_ED")
    a(f"s_add_u32 s72, s72, {EOFF}")
    a(f"s_add_u32 m0, s72, {b0}"); a("s_mov_b32 s77, 1")
    a(f"buffer_load_dwordx4 v{VE}, {q(RE)}, 0 offen lds")
    pad()
    def stage(s, lo=0, hi=11):
        base = slot_of(s)
        L = []
        for k in range(6):
            if k == 0: pre = [f"s_add_u32 m0, s71, {base}", "s_mul_i32 s50, s77, s73"]
            elif k == 3: pre = ["s_addk_i32 m0, 0x1000", "s_add_u32 s50, s50, s74"]
            elif k < 3: pre = ["s_addk_i32 m0, 0x2000", "s_add_u32 s50, s50, s75"]
            else: pre = ["s_addk_i32 m0, -0x2000", "s_sub_u32 s50, s50, s75"]
            L.append(pre + [f"buffer_load_dwordx4 v{VW}, {q(RW)}, s50 offen lds"])
        L.append([f"s_add_u32 m0, s72, {base}", "s_mul_i32 s50, s77, s76", f"buffer_load_dwordx4 v{VE}, {q(RE)}, s50 offen lds"])
        for m in range(4):
            pre = [f"s_add_u32 m0, s70, {base}", "s_lshl_b32 s50, s77, 7"] if m == 0 else ["s_addk_i32 m0, 0x400", "s_addk_i32 s50, 0x4000"]
            L.append(pre + [f"buffer_load_dwordx4 v{VX0 if m % 2 == 0 else VX1}, {q(RX)}, s50 offen lds"])
        if opt.get("win"): L[-1] += ["s_and_b32 s77, s78, 7", "s_lshr_b32 s78, s78, 4"]
        else: L[-1].append("s_add_u32 s77, s77, 1")
        assert lo in (0, 6, 7, 11) and hi in (6, 7, 11)
        for x in L[lo:hi]:
            for y in x: a(y)
    def bar(n, k):
        a(f"s_waitcnt vmcnt({n})"); a("s_barrier")
        if opt.get("lstamp") == 1: a(f"s_memtime s[{84+2*k}:{85+2*k}]")
    def st2(k):
        if opt.get("lstamp") == 2: a(f"s_memtime s[{84+2*k}:{85+2*k}]")
    if opt.get("lstamp"):
        opt = dict(opt); so = opt.copy(); opt["stamps"] = 0
    else: so = opt
    s1a = int(str(opt.get("split", "x7bbbbbb"))[1], 16)
    if opt.get("lstamp") == 3: a("s_memtime s[88:89]")
    stage(1, 0, s1a)
    a("s_branch K_CPRE_S"); opt["_cpre"](); a.label("K_CPRE_S")
    opt["_decode2"]()
    if opt.get("lstamp") == 3:
        a("s_memtime s[90:91]"); a(f"s_waitcnt vmcnt({10 + s1a})"); a("s_memtime s[92:93]"); a(f"s_waitcnt vmcnt({s1a})"); a("s_memtime s[94:95]")
    if opt.get("win"):
        assert s1a < 11
        wins = [int(c) for c in str(opt["win"])]
        assert sum(wins) == 6
        xm = opt.get("xm", 1)
        a("s_lshr_b32 s64, s2, 6"); a(f"s_mul_i32 s64, s64, {xm}"); a(f"s_and_b32 s65, {sB}, 7"); a("s_add_u32 s64, s64, s65")
        for r in range(8 + 3 * xm):
            t = 0; base = 2; k = 0
            for w_ in wins:
                for i in range(w_):
                    t |= (base + (i + r) % w_) << (4 * k); k += 1
                base += w_
            if r == 0: a(f"s_mov_b32 s78, 0x{t:x}")
            else: a(f"s_cmp_eq_u32 s64, {r}"); a(f"s_cselect_b32 s78, 0x{t:x}, s78")
    a(f"v_lshlrev_b32 v{VL16}, 4, v0"); a(f"v_mov_b32 v{VZ}, 0")
    srd(a, RWS, PWS, WS_USED)
    a("v_and_b32 v15, 1, v12"); a("v_lshlrev_b32 v15, 2, v15"); a("v_xor_b32 v15, v15, v11"); a("v_lshlrev_b32 v15, 4, v15")
    a(f"v_lshlrev_b32 v{VR}, 10, v10"); a(f"v_add_u32 v{VR}, v{VR}, v15")
    a(f"s_mul_i32 s100, {sW}, 19"); a("s_sub_u32 s100, s100, 3"); a(f"s_cmp_eq_u32 {sW}, 0"); a("s_cselect_b32 s100, 0, s100"); a("s_cselect_b32 s101, 16, 19")
    a(f"s_cmp_eq_u32 {sW}, 3"); a("s_cselect_b32 s101, 18, s101"); a("s_lshl_b32 s101, s101, 12")
    a(f"s_mul_i32 s64, {sU}, 72"); a("s_add_u32 s64, s64, s100"); a("s_lshl_b32 s64, s64, 12")
    srd(a, RA, PWS, "s101", "s64")
    a("s_sub_u32 s64, s100, 16"); a("s_lshl_b32 s64, s64, 15")
    a(f"s_cmp_eq_u32 {sW}, 0"); a("s_cselect_b32 s64, 0, s64")
    a(f"s_cselect_b32 s66, s{PWO}, s{PW2}"); a(f"s_cselect_b32 s67, s{PWO+1}, s{PW2+1}")
    a(f"s_lshl_b32 s65, {sCT}, 7"); a("s_add_u32 s64, s64, s65")
    a(f"s_add_u32 s{RB}, s66, s64"); a(f"s_addc_u32 s{RB+1}, s67, 0")
    a(f"s_lshl_b32 s{RB+2}, s101, 3"); a(f"s_sub_u32 s{RB+2}, s{RB+2}, s65"); a(f"s_mov_b32 s{RB+3}, 0x20000")
    a(f"s_lshl_b32 s79, {sW}, 12"); a(f"s_sub_u32 s79, {TOP-4096}, s79")
    a(f"s_cmp_eq_u32 {sW}, 0"); a(f"s_cselect_b32 s79, {TOP-4096-16384}, s79")
    a(f"v_mov_b32 v13, {TOP-4096}"); a(f"ds_write_b32 v13, v{VZ}"); a("s_waitcnt lgkmcnt(0)")
    a("v_lshrrev_b32 v13, 5, v0"); a("v_lshlrev_b32 v13, 10, v13"); a("v_bfe_u32 v14, v0, 2, 2"); a("v_lshlrev_b32 v14, 7, v14"); a("v_add_u32 v13, v13, v14")
    a("v_bfe_u32 v14, v0, 3, 1"); a("v_lshlrev_b32 v14, 6, v14"); a("v_add_u32 v13, v13, v14")
    a("v_bfe_u32 v14, v0, 4, 1"); a("v_lshlrev_b32 v14, 5, v14"); a("v_add_u32 v13, v13, v14")
    a("v_and_b32 v14, 3, v0"); a("v_lshlrev_b32 v14, 3, v14"); a("v_add_u32 v13, v13, v14")
    a(f"s_sub_u32 s64, s79, {3*16384}"); a("v_add_u32 v58, s64, v13"); a("v_xor_b32 v59, 64, v58")
    for k, dr in ((60, 4), (62, 6)):
        a(f"v_subrev_u32 v{k}, {dr*16384}, v58"); a(f"v_subrev_u32 v{k+1}, {dr*16384}, v59")
    a(f"v_mul_u32_u24 v57, {FSTR}, v0")
    sp = [int(c, 16) for c in str(opt.get("split", "x7bbbbbb"))[1:]]
    assert sp[0] == s1a
    vm = [("S", 0)] * 11 + [("S", 1)] * s1a
    EA = opt.get("ea", 0)
    sL = "s15"
    def skipA(t): return t[0] == "B" and 10 <= t[1] < 10 + EA
    def younger(tag, attn=False):
        idx = max(i for i, t in enumerate(vm) if t == tag)
        return sum(1 for t in vm[idx+1:] if not (attn and skipA(t)))
    def vwait(tag):
        nf, na = younger(tag), younger(tag, True)
        if nf == na: a(f"s_waitcnt vmcnt({nf})"); return
        L1 = newlab("VW")
        a(f"s_waitcnt vmcnt({nf})"); a(f"s_cmp_lg_u32 {sL}, 0"); a(f"s_cbranch_scc1 {L1}"); a(f"s_waitcnt vmcnt({na})"); a.label(L1)
    class ffn_only:
        def __init__(self, on): self.on = on
        def __enter__(self):
            if self.on: self.L = newlab("FO"); a(f"s_cmp_eq_u32 {sL}, 0"); a(f"s_cbranch_scc1 {self.L}")
        def __exit__(self, *x):
            if self.on: a.label(self.L)
    def bar2(tag, k):
        vwait(tag); a("s_barrier")
        if opt.get("lstamp") == 1: a(f"s_memtime s[{84+2*k}:{85+2*k}]")
    def stage_t(s_, lo=0, hi=11): stage(s_, lo, hi); vm.extend([("S", s_)] * (hi - lo))
    br = opt.get("brot", 2)
    mp = opt.get("map", "Y")
    if br == 0: a("s_mov_b32 s14, 0")
    elif br == 2: a(f"s_and_b32 s14, {sB}, 1"); a("s_lshl_b32 s14, s14, 15")
    elif br == 4: a(f"s_and_b32 s14, {sB}, 3"); a("s_lshl_b32 s14, s14, 14")
    elif br == 7: a("s_lshr_b32 s14, s2, 7"); a("s_lshl_b32 s14, s14, 15")
    elif br == 8: a("s_lshr_b32 s14, s2, 6"); a("s_lshl_b32 s14, s14, 14")
    elif br == 9: a("s_lshr_b32 s14, s2, 6"); a("s_lshl_b32 s14, s14, 12")
    elif br == 10: a("s_lshr_b32 s14, s2, 7"); a("s_lshl_b32 s14, s14, 13")
    elif br == 5: a(f"s_and_b32 s14, {sB}, 6"); a("s_lshl_b32 s14, s14, 13")
    elif br == 6: a(f"s_and_b32 s14, {sB}, 2"); a("s_lshl_b32 s14, s14, 14")
    elif mp == "Z" and opt.get("p2map", 0) == 0: a(f"s_and_b32 s14, {sB}, 3"); a("s_lshl_b32 s14, s14, 14")
    elif mp == "Z": a(f"s_and_b32 s14, {sU}, 7"); a("s_lshl_b32 s14, s14, 13")
    elif mp == "Y" and not opt.get("p2alt", 0): a(f"s_and_b32 s14, {sB}, 7"); a("s_lshl_b32 s14, s14, 13")
    else: a(f"s_and_b32 s14, {sU}, 3"); a("s_lshl_b32 s14, s14, 14")
    a("s_lshl_b32 s8, s14, 3"); a("s_lshl_b32 s9, s101, 3")
    ACC = 8; BR = 72
    def bdma(tag, j, certain=True):
        for k in range(4):
            a(f"s_sub_u32 m0, s79, {16384*j - 1024*k}") if 16384*j - 1024*k >= 0 else a(f"s_add_u32 m0, s79, {1024*k - 16384*j}")
            a("s_nop 0")
            a(f"buffer_load_dwordx4 v{VR}, {q(RB)}, s8 offen lds")
            a("s_add_u32 s8, s8, 8192")
        a("s_cmp_ge_u32 s8, s9"); a("s_cselect_b32 s8, 0, s8")
        if certain: vm.extend([("B", tag)] * 4)
    def stg(i, j):
        r = 3 if j < 4 else (7 if j < 8 else 9)
        va = {3: 58, 7: 60, 9: 62}[r]
        for f in range(4):
            for e in range(2):
                a(f"ds_read_b64_tr_b16 {vr(BR+16*i+4*f+2*e,2)}, v{va+(f&1)} offset:{(r-j)*16384 + (f>>1)*2048 + e*512}")
    if "ebi" in opt: ebi = [int(c) for c in str(opt["ebi"])[1:]]
    elif "eb" in opt: ebi = list(range(5 - opt["eb"], 5))
    else: ebi = [0, 1, 2]
    E = len(ebi)
    ne = 0
    def swapback():
        a(f"s_cmp_eq_u32 {sL}, 0"); a("s_cselect_b32 s13, s8, s13"); a("s_cselect_b32 s8, s12, s8")
    if EA:
        assert E == 0 and EA <= 4
        lg = opt.get("lg", "T")
        if lg == "T": a(f"s_mov_b32 {sL}, {sT}")
        elif lg == "G": a(f"s_and_b32 {sL}, {sG}, 1"); a(f"s_xor_b32 {sL}, {sL}, 1")
        else: a(f"s_and_b32 {sL}, {sB}, {1 << opt.get('lgbit', 0)}")
        a(f"s_cmp_lg_u32 {sL}, 0"); a("s_cbranch_scc1 KL_NOEA")
        for t in range(EA): bdma(t, t, False)
        a("s_mov_b32 s12, s8"); a(f"s_cmp_eq_u32 {sW}, 0"); a(f"s_cselect_b32 s13, {9-EA}, {10-EA}"); a("s_lshl_b32 s13, s13, 15"); a("s_add_u32 s8, s8, s13")
        a("s_cmp_ge_u32 s8, s9"); a("s_cselect_b32 s13, s9, 0"); a("s_sub_u32 s8, s8, s13")
        for t in range(EA):
            a(f"s_waitcnt vmcnt({4*(EA-1-t)})"); stg(t, t)
        a("s_waitcnt lgkmcnt(0)")
        a.label("KL_NOEA")
    stg_map = str(opt.get("stag", "x0000"))[1:]
    if len(set(stg_map)) > 1:
        assert not EA
        a("s_bfe_u32 s64, s2, 0x20003"); a("s_lshl_b32 s64, s64, 2"); a(f"s_lshr_b32 s15, 0x{stg_map[::-1]}, s64"); a("s_and_b32 s15, s15, 15")
    def cbar0(pos):
        if str(pos) not in stg_map: return
        if len(set(stg_map)) == 1: bar(younger(("S", 0)), 0); return
        L_ = newlab("CB"); a(f"s_cmp_lg_u32 s15, {pos}"); a(f"s_cbranch_scc1 {L_}"); bar(younger(("S", 0)), 0); a.label(L_)
    for s_ in range(6):
        if s_ == 0:
            cbar0(0)
            stamp(a, opt, 0)
            if not opt.get("pearly", 0): a("s_setprio 2")
        else: bar(younger(("S", s_)), s_)
        if sp[s_] < 11: stage_t(s_ + 1, sp[s_], 11)
        if s_ == 0: cbar0(1)
        nb = ebi.count(s_) + (s_ == 5)
        mid = opt.get("mid", 11)
        if nb and ne > 0 and mid < sp[s_ + 1] and s_ >= opt.get("midfrom", 0):
            stage_t(s_ + 2, 0, mid)
            a(f"s_waitcnt vmcnt({younger(('B', ne - 1))})"); stg(ne - 1, 0)
            stage_t(s_ + 2, mid, sp[s_ + 1])
            a("s_waitcnt lgkmcnt(0)")
            bdma(ne, 0); ne += 1; nb -= 1
        else:
            if s_ == 0 and "4" in stg_map:
                stage_t(2, 0, 6); cbar0(4); stage_t(2, 6, sp[1])
            else: stage_t(s_ + 2, 0, sp[s_ + 1])
        if s_ == 0: cbar0(2)
        for _ in range(nb):
            if ne > 0:
                a(f"s_waitcnt vmcnt({younger(('B', ne - 1))})"); stg(ne - 1, 0); a("s_waitcnt lgkmcnt(0)")
            bdma(ne, 0)
            if EA == 1: swapback()
            ne += 1
        if s_ == 0: cbar0(3)
    assert sp[6] == 11 and ne == E + 1
    a("s_mov_b32 s77, s14")
    srd(a, RAUX, POUT, 2048 * 1024)
    a(f"s_lshr_b32 s68, {sU}, 1"); a(f"s_mul_i32 s68, s68, {16*FSTR}"); a(f"s_add_u32 s68, s68, {FA_OFF}")
    def fm(g0, g1): return sum(0x100 << g for g in range(g0, g1 + 1))
    a(f"s_mov_b32 s{RR}, 0x{fm(0,2):x}"); a(f"s_cmp_eq_u32 {sW}, 2"); a(f"s_cselect_b32 s{RR}, 0x{fm(2,5):x}, s{RR}")
    a(f"s_cmp_eq_u32 {sW}, 3"); a(f"s_cselect_b32 s{RR}, 0x{fm(5,7):x}, s{RR}")
    a(f"s_cmp_eq_u32 {sW}, 0"); a(f"s_cselect_b32 s{RR}, 0xff, s{RR}"); a(f"s_mov_b32 s{RR+1}, 0")
    a(f"s_lshl_b32 s69, {sU}, 9"); a(f"s_lshl_b32 s64, {sW}, 7"); a("s_add_u32 s69, s69, s64"); a(f"s_add_u32 s69, s69, {G_OFF}")
    bar2(("S", 6), 6)
    stamp(a, opt, 1)
    for t in range(1, 4):
        bdma(E + t, t)
        if EA and t == EA - 1: swapback()
    bar2(("S", 7), 7)
    for t in range(4, 7): bdma(E + t, t)
    NSG = 9 - E
    staged = 0
    def stage_upto(t_end):
        nonlocal staged
        t_end = min(t_end, NSG)
        if staged >= t_end: return
        vwait(('B', E + t_end - 1))
        with ffn_only(staged < EA):
            for t in range(staged, min(t_end, EA)): stg(E + t, t)
        for t in range(max(staged, EA), t_end): stg(E + t, t)
        staged = t_end
    if opt.get("early", 1): stage_upto(3)
    a("s_barrier")
    stamp(a, opt, 2); st2(0)
    ref = [9]
    def btr(j, regs):
        r = 3 if j < 4 else (7 if j < 8 else 9)
        out = []
        if r != ref[0]:
            d = ((ref[0] - r) * 16384) & 0xffffffff
            out.append("\n".join(f"v_add_u32 v{2+nt}, 0x{d:x}, v{2+nt}" for nt in range(2))); ref[0] = r
        for f in range(4):
            out.append("\n".join(f"ds_read_b64_tr_b16 {vr(regs[f]+2*e,2)}, v{2+(f&1)} offset:{(r-j)*16384 + (f>>1)*2048 + e*512}" for e in range(2)))
        return out
    gq = opt.get("gq", 2)
    if opt.get("lp", 2) != 2: a(f"s_setprio {opt.get('lp')}")
    bdma(E + 7, 7)
    stage_upto(5); st2(1)
    def fpause():
        if opt.get("sb", 2): a(f"s_cmp_eq_u32 {sT}, 0"); a("s_cbranch_scc1 KL_NOSB"); a("s_barrier"); a.label("KL_NOSB")
    if opt.get("sbn", 1) == 1: fpause()
    st2(2)
    bdma(E + 8, 8)
    if opt.get("sbn", 1) == 2: fpause()
    a(f"s_cmp_eq_u32 {sW}, 0"); a("s_cbranch_scc1 KL_SK9")
    bdma(E + 9, 9, False)
    a.label("KL_SK9"); st2(3)
    def apause(t):
        if opt.get("sb", 2) == 3 and opt.get("sb2", 10) == t:
            a(f"s_cmp_eq_u32 {sT}, 0"); a("s_cbranch_scc1 KL_NOSB2"); a("s_barrier"); a.label("KL_NOSB2")
        if opt.get("sba", 11) == t:
            a(f"s_cmp_lg_u32 {sT}, 0"); a("s_cbranch_scc1 KL_NOSA"); a("s_barrier"); a.label("KL_NOSA")
    apause(9)
    tl = list(range(10, 19 - E))
    assert len(tl) >= 2
    freed = 0
    did_misc = False
    def misc():
        if gq == 1:
            a(f"s_cmp_lg_u32 {sT}, 0"); a("s_cbranch_scc1 KL_NOG1"); gate_loads(a, VL16); a.label("KL_NOG1")
        a(f"global_load_dwordx2 v[10:11], v{VZ}, s[{PDBG}:{PDBG+1}] sc1"); vm.append(("T", 0))
    for t in tl[:-2]:
        if t - 10 >= freed:
            a("s_waitcnt lgkmcnt(0)"); freed = staged
            stage_upto(staged + 2)
        if t == tl[max(0, len(tl) - 4)]: misc(); did_misc = True
        with ffn_only(10 <= t < 10 + EA): bdma(E + t, t - 10)
        if EA and t == 10 + EA - 1: a(f"s_cmp_eq_u32 {sL}, 0"); a("s_cselect_b32 s8, s13, s8")
        apause(t)
        if t in (12, 14, 16): st2(4 + (t - 12) // 2)
    stage_upto(9)
    if not did_misc: misc()
    a(f"s_mov_b64 exec, s[{RR}:{RR+1}]")
    a(f"buffer_load_dwordx2 v[8:9], v57, {q(RWS)}, s68 offen sc1")
    a("s_mov_b64 exec, -1")
    a("s_waitcnt lgkmcnt(0)")
    a(f"s_cmp_eq_u32 {sW}, 0"); a("s_cbranch_scc1 KL_W0")
    bdma(0, tl[-2] - 10, False)
    a(f"s_cmp_eq_u32 {sW}, 3"); a("s_cbranch_scc1 KL_W1")
    bdma(0, tl[-1] - 10, False)
    a("s_waitcnt vmcnt(8)"); a("s_branch KL_W2")
    a.label("KL_W0"); a("s_waitcnt vmcnt(0)")
    a.label("KL_W1"); a("s_waitcnt vmcnt(4)")
    a.label("KL_W2")
    stamp(a, opt, 3); st2(7)
    tag_check(a, 10, VZ)
    a("v_mov_b32 v2, v62"); a("v_mov_b32 v3, v63")
    if gq < 2:
        a(f"s_cmp_lg_u32 {sT}, 0"); a("s_cbranch_scc1 KL_NOG")
        if gq == 0: gate_loads(a, VL16); a("s_waitcnt vmcnt(0)")
        gate_math(a, VL16)
        a.label("KL_NOG")
    a("v_lshrrev_b32 v7, 4, v0"); a("v_lshlrev_b32 v7, 4, v7")
    a(f"s_mov_b64 exec, s[{RR}:{RR+1}]")
    if not opt.get("nopoll"): poll(a, 8, 57, "s68", f"s[{RR}:{RR+1}]", first_loaded=True)
    a("s_mov_b64 exec, -1")
    a("s_waitcnt lgkmcnt(0)")
    stamp(a, opt, 4)
    ref0 = ref[0]
    a(f"s_lshr_b32 s64, {sU}, 1"); a("s_lshl_b32 s64, s64, 7"); a(f"s_lshl_b32 s65, {sW}, 5"); a("s_add_u32 s64, s64, s65"); a(f"s_and_b32 s65, {sU}, 1"); a("s_add_u32 s64, s64, s65")
    a(f"s_cmp_eq_u32 {sW}, 0"); a("s_cbranch_scc1 KL_V16")
    a(f"s_cmp_eq_u32 {sW}, 3"); a("s_cbranch_scc1 KL_V18")
    def acc(tp, np_): return ACC + 16 * (2 * tp + np_)
    DM = opt.get("dmax", 10)
    WA = 80; RA_ = 88; OV = 92
    fill = [
        "s_lshl_b32 s64, s64, 10", f"s_lshl_b32 s65, {sCT}, 7", "s_add_u32 s70, s64, s65", "s_add_u32 s71, s70, 16384",
        f"s_sub_u32 s72, s79, {2*16384}", f"s_lshl_b32 s73, {sW}, 14", f"s_sub_u32 s73, {TOP-32768}, s73",
        "v_and_b32 v93, 15, v0", "v_lshrrev_b32 v94, 5, v0", "v_xor_b32 v94, v94, v93", "v_lshlrev_b32 v94, 4, v94",
        "v_lshlrev_b32 v95, 8, v93", "v_add_u32 v94, v94, v95", "v_bfe_u32 v95, v0, 4, 1", "v_lshlrev_b32 v95, 14, v95", "v_sub_u32 v94, v94, v95",
        f"v_add_u32 v{WA}, s72, v94"] + [f"v_xor_b32 v{WA+k}, {32*k}, v{WA}" for k in range(1, 8)] + [
        "v_lshrrev_b32 v93, 3, v0", "v_and_b32 v94, 7, v0", f"v_lshlrev_b32 v{OV}, 11, v93", "v_lshlrev_b32 v95, 4, v94", f"v_add_u32 v{OV}, v{OV}, v95",
        "v_lshlrev_b32 v95, 1, v94", "v_xor_b32 v95, v95, v93", "v_lshlrev_b32 v95, 4, v95", "v_lshlrev_b32 v93, 8, v93", "v_add_u32 v95, v95, v93",
        f"v_add_u32 v{RA_}, s73, v95", f"v_xor_b32 v{RA_+1}, 16, v{RA_}", f"v_xor_b32 v{RA_+2}, 128, v{RA_}", f"v_xor_b32 v{RA_+3}, 144, v{RA_}",
        "v_and_b32 v93, 8, v0", "v_cmp_ne_u32 s[74:75], 0, v93",
        f"s_lshl_b32 s72, {sW}, 9", f"s_add_u32 s72, s72, {TOP-4096+1024}", "v_lshlrev_b32 v103, 3, v0", "v_add_u32 v103, s72, v103"]
    for nst, lab in ((19, None), (18, "KL_V18"), (16, "KL_V16")):
        a(".p2align 3")
        if lab: a.label(lab)
        free = list(range(BR + 16 * NBR, 256, 4)); ref[0] = ref0
        if "dmv" in opt: DM = int(str(opt["dmv"])[1:][(19, 18, 16).index(nst)], 16)
        pend = [("A", i, b) for i in range(nst) for b in range(4)]
        gi = 4 * opt.get("gstep", 13)
        pend[gi:gi] = [("G", 0, 0), ("G", 1, 0)]
        loc = {}; issued = []; cur_soff = [None]
        done_loads = [0]
        fl = list(fill)
        def issue():
            if not pend: return False
            if len(issued) - done_loads[0] >= DM: return False
            if pend[0][0] == "A" and not free: return False
            k = pend.pop(0); issued.append(k)
            if k[0] == "A":
                r = free.pop(0); loc[k] = r
                if cur_soff[0] != k[1] and k[1]:
                    a("s_add_u32 s77, s77, 4096"); a("s_cmp_ge_u32 s77, s101"); a("s_cselect_b32 s77, 0, s77"); cur_soff[0] = k[1]
                a(f"buffer_load_dwordx4 {vr(r,4)}, v{VL16}, {q(RA)}, s77 offen offset:{k[2]*1024} {opt.get('ald', 'sc1')}")
            else:
                a(f"buffer_load_dwordx4 {vr(72+4*k[1],4)}, v7, {q(RWS)}, s69 offen offset:{k[1]*64} sc1")
            return True
        while issue(): pass
        bl = {}
        ldsq = []
        for i in range(nst):
            Bv = [BR + 16 * i + 4 * n for n in range(4)] if i < NBR else bl[i]
            needb = NBR <= i + 2 < nst
            if needb:
                tt = i + 2 - E; md = 10 if nst > 16 else 9
                tr = btr(tt if tt < md else tt - md, Bv)
                if len(tr) == 5: a(tr.pop(0))
                bl[i + 2] = Bv
            if i == nst - 1:
                assert not pend and not fl
                a("s_waitcnt vmcnt(0) lgkmcnt(0)"); a("s_nop 0")
                L_ = []
                for tp in range(2):
                    for np_ in range(2):
                        for half in range(2):
                            L_.append(f"v_mfma_f32_32x32x16_bf16 {vr(acc(tp,np_),16)}, {vr(Bv[2*half+np_],4)}, {vr(loc[('A', i, 2*half+tp)],4)}, {vr(acc(tp,np_),16)}")
                L_ += ["v_cndmask_b32 v96, v72, v73, s[74:75]", "v_cndmask_b32 v98, v76, v77, s[74:75]", "v_sub_f32 v100, 1.0, v96", "v_sub_f32 v101, 1.0, v98",
                       "v_cvt_pk_bf16_f32 v100, v100, v101", "v_and_b32 v102, 0xffff0000, v100", "v_lshlrev_b32 v100, 16, v100",
                       f"v_cmp_eq_u64 vcc, s[{TAG}:{TAG+1}], v[74:75]", f"v_cmp_eq_u64 s[64:65], s[{TAG}:{TAG+1}], v[78:79]"]
                for tp in range(2):
                    for np_ in range(2):
                        for j in range(4):
                            L_.append(f"ds_write_b128 v{WA+4*np_+j}, {vr(acc(tp,np_)+4*j,4)} offset:{(1-tp)*32768}")
                M_ = L_[:8]; V_ = L_[8:17]; W_ = L_[17:]
                seq = [M_[0], M_[1], M_[2]] + V_[:5] + [M_[3]] + V_[5:] + [M_[4]] + W_[0:4] + [M_[5], "s_nop 1"] + W_[4:6] + [M_[6]] + W_[6:8] + [M_[7], "s_nop 3"] + W_[8:12] + ["s_nop 3"] + W_[12:]
                for x in seq: a(x)
                break
            for half in range(2):
                for tp in range(2):
                    blk = 2 * half + tp
                    idx = issued.index(("A", i, blk)); done_loads[0] = idx + 1
                    w = f"s_waitcnt vmcnt({len(issued) - idx - 1})"
                    if i >= NBR and tp == 0:
                        li = ldsq.index((i, 2 * half + 1))
                        w += f" lgkmcnt({min(15, 2 * (len(ldsq) - li - 1))})"
                    a(w); a("s_nop 0")
                    A = loc[("A", i, blk)]
                    for np_ in range(2):
                        c = vr(acc(tp, np_), 16) if (i > 0 or half > 0) else "0"
                        f = 2 * half + np_
                        a(f"v_mfma_f32_32x32x16_bf16 {vr(acc(tp,np_),16)}, {vr(Bv[f],4)}, {vr(A,4)}, {c}")
                        if np_ == 1: free.append(A)
                        if tp == 1:
                            if needb: a(tr[f]); ldsq.append((i + 2, f))
                            elif i >= 2: free.append(Bv[f])
                        got = issue()
                        if i >= 2 and fl and not got:
                            for _ in range(min(3, len(fl))): a(fl.pop(0))
                            a(".p2align 3")
        if nst != 16: a("s_branch KL_FIN")
    a.label("KL_FIN")
    stamp(a, opt, 5)
    L = newlab("GL"); D = newlab("GD")
    a("s_and_b64 s[64:65], s[64:65], vcc"); a("s_andn2_b64 s[64:65], exec, s[64:65]"); a(f"s_cbranch_scc0 {D}")
    a("s_mov_b32 s66, 0x40000")
    a.label(L)
    a("s_sleep 1")
    a(f"buffer_load_dwordx4 v[72:75], v7, {q(RWS)}, s69 offen sc1"); a(f"buffer_load_dwordx4 v[76:79], v7, {q(RWS)}, s69 offen offset:64 sc1")
    a("s_waitcnt vmcnt(0)")
    for x in ["v_cndmask_b32 v96, v72, v73, s[74:75]", "v_cndmask_b32 v98, v76, v77, s[74:75]", "v_sub_f32 v100, 1.0, v96", "v_sub_f32 v101, 1.0, v98",
              "v_cvt_pk_bf16_f32 v100, v100, v101", "v_and_b32 v102, 0xffff0000, v100", "v_lshlrev_b32 v100, 16, v100",
              f"v_cmp_eq_u64 vcc, s[{TAG}:{TAG+1}], v[74:75]", f"v_cmp_eq_u64 s[64:65], s[{TAG}:{TAG+1}], v[78:79]", "s_nop 0"]: a(x)
    a("s_and_b64 s[64:65], s[64:65], vcc"); a("s_andn2_b64 s[64:65], exec, s[64:65]"); a(f"s_cbranch_scc0 {D}")
    a("s_sub_u32 s66, s66, 1"); a("s_cmp_lg_u32 s66, 0"); a(f"s_cbranch_scc1 {L}")
    a.label(D)
    if opt.get("f8", 1):
        a("v_mov_b32 v99, v102")
        a("ds_write_b64 v103, v[98:99]")
        a("s_waitcnt lgkmcnt(0)"); a("s_barrier"); stamp(a, opt, 6, True)
        final_half(a, opt, RA_, OV, "s70", False)
    else:
        a("s_waitcnt lgkmcnt(0)"); a("s_barrier"); stamp(a, opt, 6, True)
        T = 104
        def P(h, src): return T + 32 * h + 8 * src
        for h in range(2):
            for src in (0, 1, 2, 3):
                for e in range(2):
                    off = (3 - src) * 4096 + h * 2048 + (16384 if src else 0)
                    a(f"ds_read_b128 {vr(P(h,src)+4*e,4)}, v{RA_+2*h+e} offset:{off}")
        for h in range(2):
            a(f"s_waitcnt lgkmcnt({8*(1-h)+6})")
            for i in range(0, 8, 2): a(f"v_pk_mul_f32 {vr(P(h,0)+i,2)}, {vr(P(h,0)+i,2)}, {vr(96+2*h,2)} op_sel_hi:[1,0]")
            a(f"s_waitcnt lgkmcnt({8*(1-h)+2})")
            for i in range(0, 8, 2): a(f"v_pk_add_f32 {vr(P(h,1)+i,2)}, {vr(P(h,1)+i,2)}, {vr(P(h,2)+i,2)}")
            a(f"s_waitcnt lgkmcnt({8*(1-h)})")
            for i in range(0, 8, 2): a(f"v_pk_add_f32 {vr(P(h,1)+i,2)}, {vr(P(h,1)+i,2)}, {vr(P(h,3)+i,2)}")
            for i in range(0, 8, 2): a(f"v_pk_fma_f32 {vr(P(h,0)+i,2)}, {vr(P(h,1)+i,2)}, {vr(100+2*h,2)}, {vr(P(h,0)+i,2)} op_sel_hi:[1,0,1]")
            for i in range(4): a(f"v_cvt_pk_bf16_f32 v{P(h,2)+i}, v{P(h,0)+2*i}, v{P(h,0)+2*i+1}")
            a(f"buffer_store_dwordx4 {vr(P(h,2),4)}, v{OV}, {q(RAUX)}, s{70+h} offen {opt.get('ost', 'sc1')}")
    stamp(a, opt, 7)
    if so.get("stamps"): a(f"s_add_u32 s100, {sW}, 40")
    if so.get("stamps"): a(f"s_lshl_b32 s64, {sT}, 2"); a("s_add_u32 s100, s100, s64")
    stamp_end(a, so, "s100")

HEADER = """; gated mix of (sliding dilated attention -> Wo) and (ReLU MLP); one fused persistent launch, 256 workgroups (1 per CU).
; kernarg: x, wqkv, wo, (unused), w1, w2, gate_w, out, debug, ws
; hand-off: per-workgroup flag lines in ws carrying a per-launch tag (published through the zeroed debug buffer).
"""

def generate(opt):
    a = Asm()
    for l in HEADER.strip().split("\n"): a.lines.append(l)
    post = opt.get("post")
    if post is None:
        a(f"; @launch grid=(256,1,1) block=(512,1,1) lds={LDS_BYTES}")
    else:
        if opt.get("k0"): a(f"; @launch kernel=k0_kernel grid=(1,1,1) block=(64,1,1) lds=0")
        a(f"; @launch kernel={NAME}_kernel grid=(256,1,1) block=(512,1,1) lds={LDS_BYTES}")
        a(f"; @launch kernel=k3_kernel grid=(1,1,1) block=(64,1,1) lds=0")
    a('.amdgcn_target "amdgcn-amd-amdhsa--gfx950"'); a(".text")
    gen(a, opt)
    if opt.get("k0"):
        a(".globl k0_kernel"); a(".p2align 8"); a(".type k0_kernel,@function"); a.label("k0_kernel")
        a("s_memrealtime s[4:5]"); a("s_load_dwordx2 s[8:9], s[0:1], 72"); a("s_cmp_lg_u32 s2, 0"); a("s_cbranch_scc1 K0_E"); a("s_waitcnt lgkmcnt(0)")
        a(f"s_add_u32 s8, s8, {STAMP_OFF + 0x40000}"); a("s_addc_u32 s9, s9, 0"); a("v_mov_b32 v1, 0"); a("v_mov_b32 v2, s4")
        a("global_store_dword v1, v2, s[8:9]"); a.label("K0_E"); a("s_endpgm")
    if post in ("pre0", "pred", "main0"):
        a(".globl k3_kernel"); a(".p2align 8"); a(".type k3_kernel,@function"); a.label("k3_kernel")
        a("s_load_dwordx2 s[8:9], s[0:1], 72"); a("s_waitcnt lgkmcnt(0)")
        a(f"s_add_u32 s8, s8, {STAMP_OFF}"); a("s_addc_u32 s9, s9, 0")
        a(f"s_load_dword s4, s[8:9], {0x40000 if post != 'main0' else 256}"); a("s_load_dword s12, s[8:9], 256"); a("s_memrealtime s[10:11]"); a("s_waitcnt lgkmcnt(0)")
        a("s_sub_u32 s12, s12, s4"); a("s_lshl_b32 s12, s12, 3")
        if post != "pred": a("s_mov_b32 s12, 0")
        a("s_min_u32 s12, s12, 20000"); a("s_add_u32 s12, s12, 6000")
        a.label("K3_L"); a("s_memrealtime s[6:7]"); a("s_waitcnt lgkmcnt(0)")
        a("s_sub_u32 s7, s6, s10"); a("s_cmp_gt_u32 s7, 30000"); a("s_cbranch_scc1 K3_E")
        a("s_sub_u32 s6, s6, s4"); a("s_cmp_lt_u32 s6, s12"); a("s_cbranch_scc1 K3_L")
        a.label("K3_E"); a("s_endpgm")
    elif post == "span":
        a(".globl k3_kernel"); a(".p2align 8"); a(".type k3_kernel,@function"); a.label("k3_kernel")
        a("s_load_dwordx2 s[8:9], s[0:1], 72"); a("s_waitcnt lgkmcnt(0)")
        a(f"s_add_u32 s8, s8, {STAMP_OFF}"); a("s_addc_u32 s9, s9, 0")
        a("s_load_dword s4, s[8:9], 256"); a("s_memrealtime s[10:11]")
        a("v_lshlrev_b32 v1, 9, v0")
        for k in range(4):
            a(f"global_load_dword v{2+k}, v1, s[8:9] offset:{5*64+4}"); a("v_add_u32 v1, 32768, v1")
        a("s_waitcnt vmcnt(0) lgkmcnt(0)")
        for k in range(4): a(f"v_subrev_u32 v{2+k}, s4, v{2+k}")
        a("v_max_u32 v2, v2, v3"); a("v_max3_u32 v2, v2, v4, v5"); a("s_mov_b32 s12, 0"); a("s_nop 1")
        for l in range(64): a(f"v_readlane_b32 s13, v2, {l}"); a("s_nop 0"); a("s_max_u32 s12, s12, s13")
        a("s_lshl_b32 s12, s12, 3")
        a("s_min_u32 s12, s12, 24000"); a("s_add_u32 s12, s12, 4000")
        a.label("K3_L"); a("s_memrealtime s[6:7]"); a("s_waitcnt lgkmcnt(0)")
        a("s_sub_u32 s7, s6, s10"); a("s_cmp_gt_u32 s7, 30000"); a("s_cbranch_scc1 K3_E")
        a("s_sub_u32 s6, s6, s4"); a("s_cmp_lt_u32 s6, s12"); a("s_cbranch_scc1 K3_L")
        a.label("K3_E"); a("s_endpgm")
    elif post is not None:
        wg, wv, idx, rf, sh = [int(x) for x in post.split(",")]
        a(".globl k3_kernel"); a(".p2align 8"); a(".type k3_kernel,@function"); a.label("k3_kernel")
        a("s_load_dwordx2 s[8:9], s[0:1], 72"); a("s_waitcnt lgkmcnt(0)")
        a(f"s_add_u32 s8, s8, {STAMP_OFF}"); a("s_addc_u32 s9, s9, 0")
        off = (wg * 8 + wv) * 64
        a("s_load_dword s4, s[8:9], 0"); a(f"s_load_dword s12, s[8:9], {off + 4*idx}"); a(f"s_load_dword s13, s[8:9], {off + 4*rf}"); a("s_memrealtime s[10:11]"); a("s_waitcnt lgkmcnt(0)")
        a("s_sub_u32 s12, s12, s13")
        a(f"s_lshr_b32 s12, s12, {sh}") if sh >= 0 else a(f"s_lshl_b32 s12, s12, {-sh}")
        a("s_min_u32 s12, s12, 20000"); a("s_add_u32 s12, s12, 6000")
        a.label("K3_L"); a("s_memrealtime s[6:7]"); a("s_waitcnt lgkmcnt(0)")
        a("s_sub_u32 s7, s6, s10"); a("s_cmp_gt_u32 s7, 30000"); a("s_cbranch_scc1 K3_E")
        a("s_sub_u32 s6, s6, s4"); a("s_cmp_lt_u32 s6, s12"); a("s_cbranch_scc1 K3_L")
        a.label("K3_E"); a("s_endpgm")
    a('.section .rodata,"a"'); a(".p2align 6")
    a(f".amdhsa_kernel {NAME}_kernel")
    a("  .amdhsa_next_free_vgpr 256"); a("  .amdhsa_next_free_sgpr 102"); a("  .amdhsa_accum_offset 256")
    a("  .amdhsa_group_segment_fixed_size 0"); a("  .amdhsa_kernarg_size 80"); a("  .amdhsa_user_sgpr_count 2")
    a("  .amdhsa_user_sgpr_kernarg_segment_ptr 1"); a("  .amdhsa_system_sgpr_workgroup_id_x 1"); a(".end_amdhsa_kernel")
    if opt.get("k0"):
        a(".p2align 6"); a(".amdhsa_kernel k0_kernel")
        a("  .amdhsa_next_free_vgpr 8"); a("  .amdhsa_next_free_sgpr 102"); a("  .amdhsa_accum_offset 8")
        a("  .amdhsa_group_segment_fixed_size 0"); a("  .amdhsa_kernarg_size 80"); a("  .amdhsa_user_sgpr_count 2")
        a("  .amdhsa_user_sgpr_kernarg_segment_ptr 1"); a("  .amdhsa_system_sgpr_workgroup_id_x 1"); a(".end_amdhsa_kernel")
    if post is not None:
        a(".p2align 6"); a(".amdhsa_kernel k3_kernel")
        a("  .amdhsa_next_free_vgpr 8"); a("  .amdhsa_next_free_sgpr 102"); a("  .amdhsa_accum_offset 8")
        a("  .amdhsa_group_segment_fixed_size 0"); a("  .amdhsa_kernarg_size 80"); a("  .amdhsa_user_sgpr_count 2")
        a("  .amdhsa_user_sgpr_kernarg_segment_ptr 1"); a("  .amdhsa_system_sgpr_workgroup_id_x 1"); a(".end_amdhsa_kernel")
    errs = check(a.lines)
    for e in errs: print(e, file=sys.stderr)
    assert not errs
    return a.text()

if __name__ == "__main__":
    opt = {}
    for kv in sys.argv[2:]:
        k, v = kv.split("=")
        try: v = int(v)
        except: pass
        opt[k] = v
    open(sys.argv[1], "w").write(generate(opt))
```

```python
import sys, struct
from asmlib import *

NAME = "gated_mix__sliding_local_dilated__dense_activation_relu__prompt"
A2_OFF = 0
W2_OFF = 0xA00000
G_OFF = 0xD00000
FW_OFF = 0xD10000
FA_OFF = 0xD20000
WS_USED = 0xD80000
FSTR = 1152
STAMP_OFF = 128 << 20
SLOT = 45056
XOFF, WOFF, EOFF = 0, 16384, 40960
SCR = 3 * SLOT
LDS_BYTES = 163840
TOP = LDS_BYTES
def slot_of(s): return ((7 - s) % 3) * SLOT
BIG = 0xF149F2CA
LOG2E = 1.4426950408889634
KS0 = [0, 16, 35, 54]; NST = [16, 19, 19, 18]
NBR = 9
BL_BASE = [0, 28672, 69632, 110592]
PX, PWQKV, PWO, PW1, PW2, PGATE, POUT, PDBG, PWS = 4, 6, 8, 12, 14, 16, 18, 20, 22
sB, sT, sG, sW, sU, sCT, TAG = "s24", "s25", "s26", "s27", "s28", "s29", 30
RX, RW, RE, RWS, RR, RAUX, RA, RB = 32, 36, 40, 44, 48, 52, 56, 60

def f32bits(x): return struct.unpack("<I", struct.pack("<f", x))[0]
def q(r): return f"s[{r}:{r+3}]"

def srd(a, d, base, size, add=0):
    if add == 0:
        a(f"s_mov_b32 s{d}, s{base}"); a(f"s_mov_b32 s{d+1}, s{base+1}")
    else:
        a(f"s_add_u32 s{d}, s{base}, {add}"); a(f"s_addc_u32 s{d+1}, s{base+1}, 0")
    a(f"s_mov_b32 s{d+2}, {size}"); a(f"s_mov_b32 s{d+3}, 0x20000")

def csel(a, d, x, y):
    a(f"s_mov_b32 {d}, {y}"); a(f"s_cselect_b32 {d}, {x}, {d}")

def spread(a, mf, other, last=4):
    n = len(mf) - last; other = list(other); k = 0
    for i, m in enumerate(mf):
        a(m)
        while k < len(other) and k * n <= i * len(other): a(other[k]); k += 1
    while k < len(other): a(other[k]); k += 1

def mix(xs, ws):
    out = []; i = j = 0
    while i < len(xs) or j < len(ws):
        if j >= len(ws) or (i < len(xs) and i * len(ws) <= j * len(xs)): out.append(xs[i]); i += 1
        else: out.append(ws[j]); j += 1
    return out

def interleave(a, mf, other, start=0, per=1):
    other = list(other)
    for i, m in enumerate(mf):
        a(m)
        if i >= start:
            for _ in range(per):
                if other: a(other.pop(0))
    for o in other: a(o)

def stamp_begin(a, opt):
    if opt.get("stamps"):
        a("s_memrealtime s[80:81]"); a("s_memtime s[82:83]")
        for k in range(8): a(f"s_mov_b32 s{84+2*k}, 0")

def stamp(a, opt, k, wait=False):
    if opt.get("stamps") == 1:
        a(f"s_memtime s[{84+2*k}:{85+2*k}]")
        if wait: a("s_waitcnt lgkmcnt(0)")

def stamp_end(a, opt, tag):
    if not opt.get("stamps"): return
    a("s_waitcnt vmcnt(0) lgkmcnt(0)")
    a("s_memrealtime s[64:65]"); a("s_memtime s[66:67]")
    a("s_waitcnt lgkmcnt(0)")
    srd(a, RAUX, PWS, 1 << 20, STAMP_OFF)
    a("s_lshl_b32 s68, s2, 3"); a("s_add_u32 s68, s68, s3"); a("s_lshl_b32 s68, s68, 6")
    a("s_getreg_b32 s69, hwreg(HW_REG_XCC_ID)")
    a(f"s_mov_b32 s65, {tag}")
    if opt.get("tg"): a(f"s_and_b32 s67, {sG}, 1"); a("s_mul_i32 s67, s67, 100"); a("s_add_u32 s65, s65, s67")
    for i, s in enumerate((80, 64, 82, 84, 86, 88, 90, 92, 94, 96, 98, 66, 69, 65, 65, 65)):
        a(f"v_mov_b32 v{8+i}, s{s}")
    a("v_mov_b32 v6, s68")
    a("s_mov_b64 exec, 1")
    for k in range(4):
        a(f"buffer_store_dwordx4 v[{8+4*k}:{11+4*k}], v6, {q(RAUX)}, 0 offen offset:{16*k}")
    a("s_waitcnt vmcnt(0)")

_lab = [0]
def newlab(p):
    _lab[0] += 1; return f"{p}_{_lab[0]}"

def tag_check(a, vt, vz):
    L = newlab("TAGL"); D = newlab("TAGD")
    a("s_mov_b32 s64, 0x40000")
    a.label(L)
    a(f"v_readfirstlane_b32 s{TAG}, v{vt}"); a(f"v_readfirstlane_b32 s{TAG+1}, v{vt+1}"); a("s_nop 0")
    a(f"s_cmp_lg_u32 s{TAG}, 0"); a(f"s_cbranch_scc1 {D}")
    a("s_sub_u32 s64, s64, 1"); a("s_cmp_eq_u32 s64, 0"); a(f"s_cbranch_scc1 {D}")
    a("s_sleep 2")
    a(f"global_load_dwordx2 v[{vt}:{vt+1}], v{vz}, s[{PDBG}:{PDBG+1}] sc1"); a("s_waitcnt vmcnt(0)")
    a(f"s_branch {L}")
    a.label(D)

PSL = [1]
def poll(a, vt, voff, soff, need, first_loaded=False):
    L = newlab("POLL"); C = newlab("POLC"); D = newlab("POLD")
    a("s_mov_b32 s66, 0x40000")
    if first_loaded: a(f"s_branch {C}")
    a.label(L)
    a(f"buffer_load_dwordx2 v[{vt}:{vt+1}], v{voff}, {q(RWS)}, {soff} offen sc1")
    a("s_waitcnt vmcnt(0)")
    a.label(C)
    a(f"v_cmp_eq_u64 vcc, s[{TAG}:{TAG+1}], v[{vt}:{vt+1}]"); a("s_nop 0")
    a(f"s_andn2_b64 s[64:65], {need}, vcc"); a(f"s_cbranch_scc0 {D}")
    a("s_sub_u32 s66, s66, 1"); a("s_cmp_eq_u32 s66, 0"); a(f"s_cbranch_scc1 {D}")
    a(f"s_sleep {PSL[0]}"); a(f"s_branch {L}")
    a.label(D)

def gen(a, opt):
    global FSTR
    PSL[0] = opt.get("psl", 1); FSTR = opt.get("fstr", 1152)
    kn = NAME + "_kernel"
    a(f".globl {kn}"); a(".p2align 8"); a(f".type {kn},@function"); a.label(kn)
    a("s_cmp_ge_u32 s2, 256"); a("s_cbranch_scc1 K_END")
    a("s_load_dwordx16 s[4:19], s[0:1], 0")
    a("s_load_dwordx4 s[20:23], s[0:1], 64")
    stamp_begin(a, opt)
    def decode():
        a("s_and_b32 s64, s2, 7"); a("s_lshr_b32 s65, s2, 3")
        a("s_lshr_b32 s66, s65, 3")
        a(f"s_and_b32 {sT}, s66, 1")
        a("s_and_b32 s67, s64, 3"); a(f"s_lshl_b32 {sG}, s67, 1"); a("s_lshr_b32 s67, s66, 1"); a(f"s_add_u32 {sG}, {sG}, s67")
    def decode2():
        if opt.get("p2alt", 0):
            a("s_and_b32 s64, s2, 7"); a(f"s_lshl_b32 {sU}, s64, 2"); a("s_bfe_u32 s64, s2, 0x20003"); a(f"s_add_u32 {sU}, {sU}, s64")
            a(f"s_lshr_b32 {sCT}, s2, 5")
            if opt.get("ctmix", 1): a("s_lshl_b32 s64, s64, 1"); a(f"s_add_u32 {sCT}, {sCT}, s64"); a(f"s_and_b32 {sCT}, {sCT}, 7")
            return
        a("s_and_b32 s64, s2, 1"); a(f"s_lshl_b32 {sU}, {sB}, 1"); a(f"s_add_u32 {sU}, {sU}, s64")
        a("s_and_b32 s64, s2, 2"); a("s_lshl_b32 s64, s64, 1"); a("s_lshr_b32 s65, s2, 6")
        if opt.get("ctmix", 1): a(f"s_add_u32 s65, s65, {sB}"); a("s_and_b32 s65, s65, 3")
        a(f"s_add_u32 {sCT}, s64, s65")
    opt["_decode"] = decode; opt["_decode2"] = decode2
    def cpre():
        a.label("K_CPRE")
        decode()
        if opt.get("duty", 1) == 4:
            L1 = newlab("DU"); L2 = newlab("DU"); L3 = newlab("DU"); L4 = newlab("DU"); Ld = newlab("DU"); Le = newlab("DU")
            dl_ = opt.get("dlead", 1)
            def slot(dst, st2):
                a(f"s_max_u32 {dst}, {st2}, {dl_}"); a(f"s_sub_u32 {dst}, {dst}, {dl_}")
            a("s_bfe_u32 s64, s2, 0x30003"); a("s_lshr_b32 s65, s2, 7"); a("s_lshl_b32 s65, s65, 3"); a("s_add_u32 s64, s64, s65")
            a("s_lshl_b32 s64, s64, 2"); a(f"s_add_u32 s64, s64, {sW}")
            a("s_and_b32 s69, s2, 7")
            a(f"s_mov_b32 s{RR+3}, 0x20000"); a(f"s_mov_b32 s{RA+3}, 0x20000")
            a("v_lshlrev_b32 v254, 7, v0"); a("v_lshlrev_b32 v253, 7, v0")
            a("s_waitcnt lgkmcnt(0)")
            a("s_cmp_ge_u32 s64, 42"); a(f"s_cbranch_scc1 {L1}")
            a("s_mul_i32 s65, s64, 37"); a("s_lshr_b32 s65, s65, 8"); a("s_mul_i32 s66, s65, 7"); a("s_sub_u32 s66, s64, s66")
            slot("s101", "s65")
            a("s_lshl_b32 s66, s66, 6"); a("v_add_u32 v252, s66, v0"); a("v_mul_u32_u24 v254, 9363, v252"); a("v_lshrrev_b32 v254, 16, v254")
            a("v_mul_u32_u24 v251, 7, v254"); a("v_sub_u32 v252, v252, v251"); a("v_mul_u32_u24 v254, 3584, v254"); a("v_lshl_add_u32 v254, v252, 7, v254")
            a("s_add_u32 s65, s65, 2"); a(f"s_mul_i32 s100, s65, {64*3584}"); a("s_and_b32 s66, s69, 3"); a("s_mul_i32 s66, s66, 896"); a("s_add_u32 s100, s100, s66")
            a(f"s_mov_b64 s[{RR}:{RR+1}], s[{PW1}:{PW1+1}]"); a(f"s_mov_b32 s{RR+2}, {512*3584}")
            a(f"s_branch {L2}")
            a.label(L1)
            a("s_sub_u32 s66, s64, 42"); a("s_lshl_b32 s66, s66, 3"); a("s_add_u32 s66, s66, s69")
            a("s_mul_i32 s65, s66, 171"); a("s_lshr_b32 s65, s65, 12")
            slot("s101", "s65")
            a("s_cmp_ge_u32 s66, 144"); a("s_cselect_b32 s101, 255, s101")
            a("s_add_u32 s66, s66, 48"); a("s_lshl_b32 s100, s66, 13")
            a(f"s_mov_b64 s[{RR}:{RR+1}], s[{PWQKV}:{PWQKV+1}]"); a(f"s_mov_b32 s{RR+2}, {512*3072}")
            a.label(L2)
            a("s_lshl_b32 s64, s64, 3"); a("s_add_u32 s64, s64, s69")
            a("s_cmp_ge_u32 s64, 288"); a(f"s_cbranch_scc1 {L3}")
            a("s_cmp_ge_u32 s64, 144"); a("s_cselect_b32 s63, 1, 0"); a(f"s_add_u32 s63, s63, {opt.get('dbs', 0)}")
            a("s_cmp_lt_u32 s64, 64")
            a(f"s_cselect_b64 s[{RA}:{RA+1}], s[{PWO}:{PWO+1}], s[{PW2}:{PW2+1}]"); csel(a, f"s{RA+2}", 512*1024, 1792*1024)
            a("s_cselect_b32 s67, 0, 64"); a("s_sub_u32 s62, s64, s67"); a("s_lshl_b32 s62, s62, 13")
            a(f"s_branch {L4}")
            a.label(L3)
            a("s_sub_u32 s66, s64, 288"); a("s_lshr_b32 s65, s66, 5"); a("s_and_b32 s66, s66, 31")
            slot("s63", "s65")
            a("s_cmp_ge_u32 s64, 480"); a("s_cselect_b32 s63, 255, s63")
            a("s_add_u32 s65, s65, 2"); a("s_lshl_b32 s65, s65, 7"); a("s_lshl_b32 s62, s66, 16"); a("s_add_u32 s62, s62, s65")
            a("v_lshlrev_b32 v253, 10, v0")
            a(f"s_mov_b64 s[{RA}:{RA+1}], s[{PX}:{PX+1}]"); a(f"s_mov_b32 s{RA+2}, {2048*1024}")
            a.label(L4)
            a(f"s_cmp_lg_u32 {sT}, 0"); a("s_cselect_b32 s101, 255, s101"); a("s_cselect_b32 s63, 255, s63")
            a("s_cmp_lg_u32 s101, 0"); a(f"s_cbranch_scc1 {Ld}"); a(f"buffer_load_dword v255, v254, {q(RR)}, s100 offen"); a.label(Ld)
            a("s_cmp_lg_u32 s63, 0"); a(f"s_cbranch_scc1 {Le}"); a(f"buffer_load_dword v255, v253, {q(RA)}, s62 offen"); a.label(Le)
        elif opt.get("duty", 1) == 3:
            Lx = newlab("DU"); Lc = newlab("DU"); Ld = newlab("DU")
            dl_ = opt.get("dlead", 1); dsh = opt.get("dsh", 0)
            a("s_lshr_b32 s64, s2, 7"); a("s_lshl_b32 s64, s64, 6"); a("s_and_b32 s65, s2, 63"); a("s_add_u32 s64, s64, s65")
            a("s_lshl_b32 s64, s64, 2"); a(f"s_add_u32 s64, s64, {sW}")
            a("v_lshlrev_b32 v254, 7, v0"); a("v_lshlrev_b32 v253, 7, v0")
            a(f"s_mov_b32 s{RR+3}, 0x20000"); a(f"s_mov_b32 s{RA+3}, 0x20000")
            a("s_cmp_ge_u32 s64, 144"); a("s_cselect_b32 s63, 1, 0"); a(f"s_add_u32 s63, s63, {opt.get('dbs', 2)}")
            a("s_cmp_ge_u32 s64, 288"); a("s_cselect_b32 s63, 255, s63")
            a("s_mul_i32 s65, s64, 781"); a("s_lshr_b32 s65, s65, 16"); a("s_mul_i32 s66, s65, 84"); a("s_sub_u32 s66, s64, s66")
            a(f"s_max_u32 s101, s65, {dl_}"); a(f"s_sub_u32 s101, s101, {dl_}")
            if dsh: a(f"s_add_u32 s101, s101, {(1 << dsh) - 1}"); a(f"s_lshr_b32 s101, s101, {dsh}")
            a("s_cmp_ge_u32 s64, 504"); a("s_cselect_b32 s101, 255, s101")
            a(f"s_cmp_lg_u32 {sT}, 0"); a("s_cselect_b32 s101, 255, s101"); a("s_cselect_b32 s63, 255, s63")
            a("s_add_u32 s65, s65, 2")
            a("s_waitcnt lgkmcnt(0)")
            a("s_cmp_lt_u32 s64, 64")
            a(f"s_cselect_b32 s{RA}, s{PWO}, s{PW2}"); a(f"s_cselect_b32 s{RA+1}, s{PWO+1}, s{PW2+1}"); csel(a, f"s{RA+2}", 512*1024, 1792*1024)
            a("s_cselect_b32 s67, 0, 64"); a("s_sub_u32 s62, s64, s67"); a("s_lshl_b32 s62, s62, 13")
            a("s_cmp_lt_u32 s66, 52"); a(f"s_cbranch_scc1 {Lx}")
            a(f"s_mov_b32 s{RR}, s{PX}"); a(f"s_mov_b32 s{RR+1}, s{PX+1}"); a(f"s_mov_b32 s{RR+2}, {2048*1024}")
            a("v_lshlrev_b32 v254, 10, v0")
            a("s_sub_u32 s66, s66, 52"); a("s_lshl_b32 s100, s66, 16"); a("s_lshl_b32 s65, s65, 7"); a("s_add_u32 s100, s100, s65")
            a(f"s_branch {Lc}")
            a.label(Lx)
            a("s_cmp_lt_u32 s66, 24")
            a(f"s_cselect_b32 s{RR}, s{PWQKV}, s{PW1}"); a(f"s_cselect_b32 s{RR+1}, s{PWQKV+1}, s{PW1+1}"); csel(a, f"s{RR+2}", 512*3072, 512*3584)
            a("s_cselect_b32 s64, 24, 28"); a("s_cselect_b32 s67, 0, 24"); a("s_mul_i32 s65, s65, s64"); a("s_add_u32 s66, s66, s65"); a("s_sub_u32 s66, s66, s67"); a("s_lshl_b32 s100, s66, 13")
            a.label(Lc)
            a("s_cmp_lg_u32 s101, 0"); a(f"s_cbranch_scc1 {Ld}"); a(f"buffer_load_dword v255, v254, {q(RR)}, s100 offen"); a.label(Ld)
        elif opt.get("duty", 1):
            Lb = newlab("DU"); Lc = newlab("DU"); Ld = newlab("DU")
            a("s_waitcnt lgkmcnt(0)")
            a("v_lshlrev_b32 v254, 7, v0")
            a(f"s_mov_b32 s{RR+3}, 0x20000")
            if opt.get("duty", 1) == 2:
                a("s_lshr_b32 s64, s2, 7"); a("s_lshl_b32 s64, s64, 6"); a("s_and_b32 s65, s2, 63"); a("s_add_u32 s64, s64, s65")
                a(f"s_cmp_eq_u32 {sT}, 0"); a("s_cselect_b32 s64, s64, 128")
                a(f"s_branch {Lb}X")
            a("s_cmp_ge_u32 s2, 156"); a(f"s_cbranch_scc1 {Lb}")
            a("s_lshl_b32 s64, s2, 1"); a(f"s_and_b32 s65, {sW}, 1"); a("s_add_u32 s64, s64, s65")
            a("s_mul_i32 s65, s64, 1261"); a("s_lshr_b32 s65, s65, 16"); a("s_mul_i32 s66, s65, 52"); a("s_sub_u32 s64, s64, s66")
            a(f"s_max_u32 s101, s65, {opt.get('dlead', 1)}"); a(f"s_sub_u32 s101, s101, {opt.get('dlead', 1)}")
            a("s_add_u32 s65, s65, 2")
            if opt.get("xduty", 1):
                Le = newlab("DU")
                a(f"s_cmp_lt_u32 {sW}, 2"); a(f"s_cbranch_scc1 {Le}")
                a(f"s_mov_b32 s{RR}, s{PX}"); a(f"s_mov_b32 s{RR+1}, s{PX+1}"); a(f"s_mov_b32 s{RR+2}, {2048*1024}")
                a("v_lshlrev_b32 v254, 10, v0")
                a("s_lshl_b32 s100, s64, 16"); a("s_lshl_b32 s65, s65, 7"); a("s_add_u32 s100, s100, s65")
                a("s_cmp_ge_u32 s64, 32"); a("s_cselect_b32 s101, 255, s101")
                a(f"s_branch {Lc}")
                a.label(Le)
            a("s_cmp_lt_u32 s64, 24")
            a(f"s_cselect_b32 s{RR}, s{PWQKV}, s{PW1}"); a(f"s_cselect_b32 s{RR+1}, s{PWQKV+1}, s{PW1+1}"); csel(a, f"s{RR+2}", 512*3072, 512*3584)
            a("s_cselect_b32 s66, 24, 28"); a("s_cselect_b32 s67, 0, 24"); a("s_mul_i32 s65, s65, s66"); a("s_add_u32 s64, s64, s65"); a("s_sub_u32 s64, s64, s67"); a("s_lshl_b32 s100, s64, 13")
            a(f"s_cmp_ge_u32 {sW}, 2"); a("s_cselect_b32 s101, 255, s101")
            a(f"s_branch {Lc}")
            a.label(Lb)
            a("s_sub_u32 s64, s2, 156")
            a.label(Lb + "X")
            a("s_mul_i32 s64, s64, 3"); a(f"s_add_u32 s64, s64, {sW}")
            a("s_mul_i32 s101, s64, 911"); a(f"s_lshr_b32 s101, s101, {16 + opt.get('dbw', 1)}"); a(f"s_add_u32 s101, s101, {opt.get('dbs', 0)}")
            a(f"s_cmp_ge_u32 {sW}, 3"); a("s_cselect_b32 s101, 255, s101"); a("s_cmp_ge_u32 s64, 288"); a("s_cselect_b32 s101, 255, s101")
            a("s_cmp_lt_u32 s64, 64")
            a(f"s_cselect_b32 s{RR}, s{PWO}, s{PW2}"); a(f"s_cselect_b32 s{RR+1}, s{PWO+1}, s{PW2+1}"); csel(a, f"s{RR+2}", 512*1024, 1792*1024)
            a("s_cselect_b32 s67, 0, 64"); a("s_sub_u32 s64, s64, s67"); a("s_lshl_b32 s100, s64, 13")
            a.label(Lc)
            a("s_cmp_lg_u32 s101, 0"); a(f"s_cbranch_scc1 {Ld}"); a(f"buffer_load_dword v255, v254, {q(RR)}, s100 offen"); a.label(Ld)
        a("s_branch K_COMPUTE")
    opt["_cpre"] = cpre
    a("v_lshrrev_b32 v1, 6, v0"); a("v_and_b32 v0, 63, v0")
    a("v_readfirstlane_b32 s3, v1")
    a("s_and_b32 s64, s2, 4"); a("s_lshr_b32 s65, s2, 3"); a("s_lshl_b32 s64, s64, 1"); a("s_and_b32 s65, s65, 7"); a(f"s_add_u32 {sB}, s64, s65")
    a(f"s_and_b32 {sW}, s3, 3"); a("s_xor_b32 s3, s3, 4")
    a("s_cmp_lt_u32 s3, 4"); a("s_cbranch_scc1 K_HOP")
    gen_loader(a, opt)
    a.label("K_END"); a("s_endpgm")
    a.label("K_COMPUTE")
    a(f"s_cmp_eq_u32 {sT}, 0"); a("s_cbranch_scc1 K_ATTN")
    gen_ffn(a, opt)
    gen_attn(a, opt)
    a.label("K_CODE_END")

def compute_common_setup(a, opt):
    L = newlab("CS")
    a("v_mov_b32 v1, 0")
    a("s_or_b32 s64, s2, s3"); a("s_cmp_lg_u32 s64, 0"); a(f"s_cbranch_scc1 {L}")
    a("s_memrealtime s[64:65]"); a("s_waitcnt lgkmcnt(0)")
    a("s_or_b32 s64, s64, 1"); a("s_xor_b32 s65, s65, 0x5bd1e995")
    a("v_mov_b32 v10, s64"); a("v_mov_b32 v11, s65")
    a("s_mov_b64 exec, 1")
    a(f"global_store_dwordx2 v1, v[10:11], s[{PDBG}:{PDBG+1}] sc1")
    a("s_mov_b64 exec, -1")
    a.label(L)
    if opt.get("cpf", 2) == 1:
        L = newlab("CS")
        a("s_cmp_ge_u32 s2, 8"); a(f"s_cbranch_scc1 {L}"); a("s_cmp_lg_u32 s3, 1"); a(f"s_cbranch_scc1 {L}")
        a("s_getpc_b64 s[64:65]")
        G = newlab("GP"); a.label(G)
        a(f"s_sub_u32 s64, s64, {G}-{NAME}_kernel"); a("s_subb_u32 s65, s65, 0")
        a("v_lshlrev_b32 v10, 7, v0")
        a(f"s_mov_b32 s66, K_CODE_END-{NAME}_kernel-4")
        for r in range(opt.get("cpfn", 4)):
            a("v_min_u32 v11, s66, v10"); a("global_load_dword v255, v11, s[64:65]"); a("v_add_u32 v10, 8192, v10")
        a.label(L)
    srd(a, RWS, PWS, WS_USED)
    if opt.get("tlb", 0):
        Lt = newlab("TLB")
        a(f"s_cmp_lg_u32 {sW}, 2"); a(f"s_cbranch_scc1 {Lt}")
        a("v_lshlrev_b32 v13, 21, v0"); a("s_mov_b64 exec, 0x7f")
        a(f"buffer_load_dword v12, v13, {q(RWS)}, 0 offen")
        a("s_mov_b64 exec, 1")
        for p in (PW2, PWO, POUT, PGATE, PDBG):
            a(f"global_load_dword v12, v1, s[{p}:{p+1}]")
        a("s_mov_b64 exec, -1")
        a.label(Lt)
    a(f"s_lshl_b32 s78, {sB}, 4"); a(f"s_lshl_b32 s64, {sT}, 3"); a("s_add_u32 s78, s78, s64"); a(f"s_add_u32 s78, s78, {sG}")
    a(f"s_mul_i32 s78, s78, {FSTR}"); a(f"s_add_u32 s78, s78, {FA_OFF}")

def compute_publish(a, opt, vt, nst):
    L = newlab("NOPUB")
    a("s_mov_b64 exec, 1")
    a(f"v_mov_b32 v12, {TOP-4096}"); a("v_mov_b32 v13, 1")
    a(f"s_waitcnt vmcnt({nst})")
    tag_check(a, vt, 1)
    a("s_waitcnt vmcnt(0)")
    stamp(a, opt, 6)
    a("ds_add_rtn_u32 v13, v12, v13"); a("s_waitcnt lgkmcnt(0)")
    a("v_cmp_eq_u32 vcc, 3, v13"); a("s_nop 0"); a(f"s_cbranch_vccz {L}")
    fo = opt.get("fop", 0)
    if fo == 0: a(f"buffer_store_dwordx2 v[{vt}:{vt+1}], v1, {q(RWS)}, s78 offen sc1")
    elif fo == 1: a(f"buffer_atomic_swap_x2 v[{vt}:{vt+1}], v1, {q(RWS)}, s78 offen sc1")
    elif fo == 2: a(f"buffer_store_dwordx2 v[{vt}:{vt+1}], v1, {q(RWS)}, s78 offen sc0 sc1")
    elif fo == 3:
        a("s_mov_b64 exec, 0xffff"); a(f"v_mov_b32 v{vt}, s{TAG}"); a(f"v_mov_b32 v{vt+1}, s{TAG+1}"); a("v_lshlrev_b32 v13, 3, v0")
        a(f"buffer_store_dwordx2 v[{vt}:{vt+1}], v13, {q(RWS)}, s78 offen sc1"); a("s_mov_b64 exec, 1")
    a.label(L)

def gate_loads(a, VL16):
    a(f"s_lshl_b32 s64, {sB}, 7"); a(f"s_and_b32 s65, {sG}, 3"); a("s_lshl_b32 s65, s65, 5"); a("s_add_u32 s65, s65, s64")
    a(f"s_lshl_b32 s66, {sW}, 3"); a("s_add_u32 s65, s65, s66"); a(f"s_lshr_b32 s66, {sG}, 2"); a("s_add_u32 s65, s65, s66"); a("s_lshl_b32 s65, s65, 10")
    a(f"s_lshl_b32 s66, {sG}, 4"); a("s_add_u32 s64, s64, s66"); a(f"s_lshl_b32 s66, {sW}, 2"); a("s_add_u32 s64, s64, s66")
    a("s_lshl_b32 s78, s64, 3"); a(f"s_add_u32 s78, s78, {G_OFF}")
    a(f"global_load_dwordx4 v[32:35], v{VL16}, s[{PGATE}:{PGATE+1}]")
    a(f"buffer_load_dwordx4 v[16:19], v{VL16}, {q(RX)}, s65 offen"); a(f"buffer_load_dwordx4 v[20:23], v{VL16}, {q(RX)}, s65 offen offset:2048")
    a("s_add_u32 s65, s65, 4096")
    a(f"buffer_load_dwordx4 v[24:27], v{VL16}, {q(RX)}, s65 offen"); a(f"buffer_load_dwordx4 v[28:31], v{VL16}, {q(RX)}, s65 offen offset:2048")
def gate_math(a, VL16):
    GU = 36; P = 44; R = 52
    for k in range(4):
        a(f"v_lshlrev_b32 v{GU+2*k}, 16, v{32+k}"); a(f"v_and_b32 v{GU+1+2*k}, 0xffff0000, v{32+k}")
    for row in range(4):
        xb = 16 + 4 * row
        for k in range(4):
            a(f"v_lshlrev_b32 v{P+2*k}, 16, v{xb+k}"); a(f"v_and_b32 v{P+2*k+1}, 0xffff0000, v{xb+k}")
        for i in range(0, 8, 2): a(f"v_pk_mul_f32 {vr(P+i,2)}, {vr(P+i,2)}, {vr(GU+i,2)}")
        for k in range(4): a(f"v_cvt_pk_bf16_f32 v{xb+k}, v{P+2*k}, v{P+2*k+1}")
        for k in range(4):
            a(f"v_lshlrev_b32 v{P+2*k}, 16, v{xb+k}"); a(f"v_and_b32 v{P+2*k+1}, 0xffff0000, v{xb+k}")
        a(f"v_pk_add_f32 {vr(P,2)}, {vr(P,2)}, {vr(P+4,2)}"); a(f"v_pk_add_f32 {vr(P+2,2)}, {vr(P+2,2)}, {vr(P+6,2)}")
        a(f"v_pk_add_f32 {vr(P,2)}, {vr(P,2)}, {vr(P+2,2)}")
        a(f"v_add_f32 v{R+row}, v{P}, v{P+1}")
    a.nop(1)
    for sh in (8, 4, 2, 1):
        for row in range(4): a(f"v_add_f32_dpp v{R+row}, v{R+row}, v{R+row} row_ror:{sh} row_mask:0xf bank_mask:0xf")
    for sw in ("v_permlane32_swap_b32", "v_permlane16_swap_b32"):
        for row in range(4): a(f"v_mov_b32 v{P+row}, v{R+row}")
        for row in range(4): a(f"{sw} v{R+row}, v{P+row}")
        for row in range(4): a(f"v_add_f32 v{R+row}, v{R+row}, v{P+row}")
    def rnd():
        for h in range(2):
            a(f"v_cvt_pk_bf16_f32 v{P+h}, v{R+2*h}, v{R+2*h+1}")
        for h in range(2):
            a(f"v_lshlrev_b32 v{R+2*h}, 16, v{P+h}"); a(f"v_and_b32 v{R+2*h+1}, 0xffff0000, v{P+h}")
    rnd()
    for row in range(4): a(f"v_mul_f32 v{R+row}, 0x{f32bits(-LOG2E):x}, v{R+row}")
    for row in range(4): a(f"v_exp_f32 v{R+row}, v{R+row}")
    for row in range(4): a(f"v_add_f32 v{R+row}, 1.0, v{R+row}")
    for row in range(4): a(f"v_rcp_f32 v{R+row}, v{R+row}")
    a.nop(1)
    rnd()
    a("v_cmp_eq_u32 vcc, 1, v0"); a(f"v_mov_b32 v{P+2}, s{TAG}"); a(f"v_mov_b32 v{P+3}, s{TAG+1}")
    a(f"v_cndmask_b32 v{P}, v{R}, v{R+2}, vcc"); a(f"v_cndmask_b32 v{P+1}, v{R+1}, v{R+3}, vcc")
    a("s_mov_b64 exec, 3")
    a(f"buffer_store_dwordx4 {vr(P,4)}, v{VL16}, {q(RWS)}, s78 offen sc1")
    a("s_mov_b64 exec, -1")

def final_half(a, opt, RA_, OV, so_, gl):
    T = 104
    def P(src): return T + 8 * src
    if gl: a("ds_read_b64 v[96:97], v103")
    for src in range(4):
        for e in range(2):
            a(f"ds_read_b128 {vr(P(src)+4*e,4)}, v{RA_+e} offset:{(3 - src) * 4096 + (16384 if src else 0)}")
    a("s_waitcnt lgkmcnt(6)")
    for i in range(0, 8, 2): a(f"v_pk_mul_f32 {vr(P(0)+i,2)}, {vr(P(0)+i,2)}, v[96:97] op_sel_hi:[1,0]")
    a("s_waitcnt lgkmcnt(2)")
    for i in range(0, 8, 2): a(f"v_pk_add_f32 {vr(P(1)+i,2)}, {vr(P(1)+i,2)}, {vr(P(2)+i,2)}")
    a("s_waitcnt lgkmcnt(0)")
    for i in range(0, 8, 2): a(f"v_pk_add_f32 {vr(P(1)+i,2)}, {vr(P(1)+i,2)}, {vr(P(3)+i,2)}")
    for i in range(0, 8, 2):
        if gl: a(f"v_pk_fma_f32 {vr(P(0)+i,2)}, {vr(P(1)+i,2)}, v[96:97], {vr(P(0)+i,2)} op_sel:[0,1,0] op_sel_hi:[1,1,1]")
        else: a(f"v_pk_fma_f32 {vr(P(0)+i,2)}, {vr(P(1)+i,2)}, v[100:101], {vr(P(0)+i,2)} op_sel_hi:[1,0,1]")
    for i in range(4): a(f"v_cvt_pk_bf16_f32 v{P(2)+i}, v{P(0)+2*i}, v{P(0)+2*i+1}")
    a(f"buffer_store_dwordx4 {vr(P(2),4)}, v{OV}, {q(RAUX)}, {so_} offen {opt.get('ost', 'sc1')}")

def compute_final(a, opt):
    a.label("K_CFIN")
    a("s_mov_b64 exec, -1"); a("s_setprio 0")
    opt["_decode2"]()
    srd(a, RAUX, POUT, 2048 * 1024)
    a(f"s_lshr_b32 s64, {sU}, 1"); a("s_lshl_b32 s64, s64, 7"); a(f"s_lshl_b32 s65, {sW}, 5"); a("s_add_u32 s64, s64, s65"); a(f"s_and_b32 s65, {sU}, 1"); a("s_add_u32 s64, s64, s65")
    a("s_lshl_b32 s64, s64, 10"); a(f"s_lshl_b32 s65, {sCT}, 7"); a("s_add_u32 s70, s64, s65"); a("s_add_u32 s70, s70, 16384")
    a(f"s_lshl_b32 s73, {sW}, 14"); a(f"s_sub_u32 s73, {TOP-32768+2048}, s73")
    for x in ["v_lshrrev_b32 v93, 3, v0", "v_and_b32 v94, 7, v0", "v_lshlrev_b32 v92, 11, v93", "v_lshlrev_b32 v95, 4, v94", "v_add_u32 v92, v92, v95",
              "v_lshlrev_b32 v95, 1, v94", "v_xor_b32 v95, v95, v93", "v_lshlrev_b32 v95, 4, v95", "v_lshlrev_b32 v93, 8, v93", "v_add_u32 v95, v95, v93",
              "v_add_u32 v95, s73, v95", "v_xor_b32 v88, 128, v95", "v_xor_b32 v89, 144, v95",
              f"s_lshl_b32 s72, {sW}, 9", f"s_add_u32 s72, s72, {TOP-4096+1024}", "v_lshlrev_b32 v103, 3, v0", "v_add_u32 v103, s72, v103"]: a(x)
    a("s_barrier")
    final_half(a, opt, 88, 92, "s70", True)
    a("s_endpgm")

def cpad(a, opt, n):
    if opt.get("pads", 0): a(f"s_branch {n}_S"); a.label(n); a("s_branch K_CPRE"); a.label(n + "_S")

def mainloop(a, opt, pre, addr_regs, reads, mfmas):
    a("s_mov_b32 s70, 1"); a("s_mov_b32 s72, 0"); a(f"s_mov_b32 s73, {(-SLOT) & 0xffffffff}"); a(f"s_mov_b32 s79, {2*SLOT}")
    for r in addr_regs: a(f"v_add_u32 v{r}, {slot_of(0)}, v{r}")
    if opt.get("prio", 2) == 1: a("s_setprio 1")
    du = opt.get("duty", 1)
    if du == 4: du = 3
    if du == 3 and pre == "KF": du = 0
    dl = f"buffer_load_dword v255, v254, {q(RR)}, s100 offen"
    if opt.get("cp0", 0): a("s_setprio 0")
    stamp(a, opt, 0)
    a("s_barrier")
    stamp(a, opt, 1)
    for r in reads(0, 0): a(r)
    a(".p2align 3")
    a.label(pre + "_LOOP")
    a("s_waitcnt lgkmcnt(0)")
    a("s_add_u32 s70, s70, 1")
    last = opt.get("last", 6)
    sal = ["s_cmp_eq_u32 s70, 3\ns_cselect_b32 s71, s79, s73", "s_cselect_b32 s70, 0, s70\ns_add_u32 s72, s72, 1"]
    if du: sal.append(f"s_cmp_eq_u32 s72, s101\ns_cbranch_scc1 {pre}_DUTY\n{pre}_DBACK:")
    if du == 3: sal.append(f"s_cmp_eq_u32 s72, s63\ns_cbranch_scc1 {pre}_DUTY2\n{pre}_DBACK2:")
    sal.append("s_cmp_eq_u32 s72, 8\ns_nop 0")
    mf = mfmas(0)
    spread(a, mf[:-last], reads(1, 1), 0)
    interleave(a, mf[-last:], sal)
    a("s_waitcnt lgkmcnt(0)")
    a("s_barrier")
    a(f"s_cbranch_scc1 {pre}_DONE"); a("s_nop 0")
    for _ in range(opt.get("slow", 0)): a("s_nop 15"); a("s_nop 15")
    adv = [f"v_add_u32 v{r}, s71, v{r}" for r in addr_regs]
    if len(adv) % 2: adv.append("s_nop 0")
    adv = [adv[i] + "\n" + adv[i+1] for i in range(0, len(adv), 2)]
    mf = mfmas(1)
    interleave(a, mf[:len(adv)], adv)
    spread(a, mf[len(adv):], reads(0, 0), opt.get("last2", 2))
    a(f"s_branch {pre}_LOOP")
    if du:
        a.label(pre + "_DUTY"); a(dl); a(f"s_branch {pre}_DBACK")
    if du == 3:
        a.label(pre + "_DUTY2"); a(f"buffer_load_dword v255, v253, {q(RA)}, s62 offen"); a(f"s_branch {pre}_DBACK2")
    a(".p2align 3")
    a.label(pre + "_DONE")
    if opt.get("prio", 2) == 2: a("s_setprio 3"); a("s_nop 0")
    stamp(a, opt, 2)

def gen_ffn(a, opt):
    ACC = 16; FR = 128
    def acc(t, n): return ACC + 4 * (t * 7 + n)
    def xf(s, t): return FR + 44 * s + 4 * t
    def wf(s, n): return FR + 44 * s + 16 + 4 * n
    XA = [2, 3]; WA = [4, 5, 6, 7]; SA = 8
    cpad(a, opt, "KPF_0")
    a(f"s_lshr_b32 s68, {sW}, 1")
    a(f"s_and_b32 s69, {sW}, 1")
    a("v_and_b32 v10, 15, v0"); a("v_lshrrev_b32 v11, 4, v0")
    a("v_lshrrev_b32 v12, 1, v10"); a("v_xor_b32 v12, v12, v11"); a("v_lshlrev_b32 v12, 4, v12")
    a("v_lshlrev_b32 v13, 7, v10"); a("v_add_u32 v12, v12, v13")
    a("s_lshl_b32 s64, s68, 13"); a(f"v_add_u32 v{XA[0]}, s64, v12"); a(f"v_xor_b32 v{XA[1]}, 64, v{XA[0]}")
    a("v_bfe_u32 v12, v0, 2, 2")
    a("v_lshlrev_b32 v13, 3, v11"); a("v_add_u32 v13, v13, v12")
    a("v_lshrrev_b32 v14, 1, v12"); a("v_and_b32 v15, 1, v11"); a("v_lshlrev_b32 v9, 1, v15"); a("v_or_b32 v14, v14, v9")
    a("v_and_b32 v9, 3, v0"); a("v_lshlrev_b32 v9, 3, v9")
    a("v_lshlrev_b32 v12, 7, v13"); a("v_add_u32 v12, v12, v9")
    for j in range(4):
        a("s_mul_i32 s64, s69, 6"); a(f"s_add_u32 s64, s64, {j}")
        a("s_and_b32 s65, s64, 3"); a("s_lshr_b32 s64, s64, 2"); a("s_lshl_b32 s64, s64, 13"); a(f"s_add_u32 s64, s64, {WOFF}")
        a(f"v_xor_b32 v{WA[j]}, s65, v14"); a(f"v_lshlrev_b32 v{WA[j]}, 5, v{WA[j]}"); a(f"v_add_u32 v{WA[j]}, v{WA[j]}, v12"); a(f"v_add_u32 v{WA[j]}, s64, v{WA[j]}")
    a(f"v_xor_b32 v{SA}, s69, v15"); a(f"v_lshlrev_b32 v{SA}, 5, v{SA}"); a(f"v_add_u32 v{SA}, v{SA}, v9")
    a("v_lshlrev_b32 v12, 6, v13"); a(f"v_add_u32 v{SA}, v{SA}, v12"); a(f"v_add_u32 v{SA}, {EOFF}, v{SA}")
    a(f"s_lshl_b32 s64, {sB}, 1"); a("s_add_u32 s64, s64, s68"); a("s_mul_i32 s64, s64, 72")
    a(f"s_mul_i32 s65, {sG}, 7"); a("s_add_u32 s64, s64, s65"); a("s_add_u32 s64, s64, 16")
    a(f"s_and_b32 s65, {sG}, 1")
    a("s_mul_i32 s66, s69, 3"); a("s_add_u32 s66, s66, s65"); a("s_add_u32 s66, s66, s64"); a("s_lshl_b32 s74, s66, 12")
    a("s_add_u32 s75, s74, 4096"); a("s_add_u32 s76, s74, 8192")
    a("s_cmp_eq_u32 s65, 0"); a("s_cselect_b32 s66, 6, 0"); a("s_add_u32 s66, s66, s64"); a("s_lshl_b32 s77, s66, 12")
    a("s_lshl_b32 s65, s69, 11"); a("s_add_u32 s77, s77, s65")
    a("v_lshlrev_b32 v9, 4, v0")
    a("s_waitcnt lgkmcnt(0)")
    compute_common_setup(a, opt)
    cpad(a, opt, "KPF_1")
    for i in range(112): a(f"v_mov_b32 v{ACC+i}, 0")
    cpad(a, opt, "KPF_2")
    def reads(kk, s):
        xs = [f"ds_read_b128 {vr(xf(s,t),4)}, v{XA[kk]} offset:{t*2048}" for t in range(4)]
        ws = []
        for n in range(6):
            for h in range(2):
                ws.append(f"ds_read_b64_tr_b16 {vr(wf(s,n)+2*h,2)}, v{WA[n&3]} offset:{(n>>2)*8192 + kk*4096 + h*512}")
        for h in range(2):
            ws.append(f"ds_read_b64_tr_b16 {vr(wf(s,6)+2*h,2)}, v{SA} offset:{kk*2048 + h*256}")
        return mix(xs, ws)
    def mfmas(s):
        return [f"v_mfma_f32_16x16x32_bf16 {vr(acc(t,n),4)}, {vr(wf(s,n),4)}, {vr(xf(s,t),4)}, {vr(acc(t,n),4)}" for n in range(7) for t in range(4)]
    mainloop(a, opt, "KF", XA + WA + [SA], reads, mfmas)
    E = [f"global_load_dwordx2 v[10:11], v1, s[{PDBG}:{PDBG+1}] sc1"] + mfmas(1)
    tmp = [FR + 4 * k for k in range(11)] + [216 + 4 * k for k in range(3)]
    k = 0
    for n in range(7):
        for tp in range(2):
            d = tmp[k]; k += 1
            for hh in range(2):
                sx = acc(2 * tp + hh, n)
                E.append(f"v_cvt_pk_bf16_f32 v{d+2*hh}, v{sx}, v{sx+1}"); E.append(f"v_cvt_pk_bf16_f32 v{d+2*hh+1}, v{sx+2}, v{sx+3}")
            for i in (0, 2, 1, 3): E.append(f"v_pk_max_i16 v{d+i}, v{d+i}, 0")
            E.append(f"v_permlane16_swap_b32 v{d}, v{d+2}"); E.append(f"v_permlane16_swap_b32 v{d+1}, v{d+3}")
            off = ((n & 1) * 2048 if n < 6 else 0) + tp * 1024
            E.append(f"buffer_store_dwordx4 {vr(d,4)}, v9, {q(RWS)}, s{74+(n>>1)} offen offset:{off} sc1")
    o, t = schedule(E, 40)
    print("ffn epilogue est", t, len(o), file=sys.stderr)
    wn = opt.get("wn", 0); ns = 0
    for x in o:
        if x.startswith("buffer_store") and opt.get("nostore"): continue
        if x.startswith("buffer_store"):
            if wn and ns >= wn: a(f"s_waitcnt vmcnt({wn-1})")
            ns += 1
        a(x)
    if opt.get("sb", 2) in (1, 3): a("s_barrier")
    stamp(a, opt, 3)
    compute_publish(a, opt, 10, 14)
    if opt.get("sb", 2) in (2, 3): a("s_barrier")
    stamp(a, opt, 5)
    stamp_end(a, opt, 1)
    a("s_branch K_CFIN" if opt.get("f8", 1) else "s_endpgm")

def gen_attn(a, opt):
    a.label("K_ATTN")
    ACC = 36; FR = 140
    def Q(t): return ACC + 4 * t
    def K(t): return ACC + 32 + 4 * t
    def V(t): return ACC + 68 + 4 * t
    def xf(s, t): return FR + 48 * s + 4 * t
    def wf(s, p): return FR + 48 * s + 36 + 4 * p
    XA = [2, 3]; WA = 4
    BC, BP, BP0, BP4, MC = 16, 20, 24, 28, 32
    cpad(a, opt, "KPA_0")
    a("v_and_b32 v10, 15, v0"); a("v_lshrrev_b32 v11, 4, v0")
    a("v_lshrrev_b32 v12, 1, v10"); a("v_xor_b32 v12, v12, v11"); a("v_lshlrev_b32 v12, 4, v12")
    a("v_lshlrev_b32 v13, 7, v10"); a(f"v_add_u32 v{XA[0]}, v12, v13"); a(f"v_xor_b32 v{XA[1]}, 64, v{XA[0]}")
    a("v_bfe_u32 v12, v0, 2, 2")
    a("v_lshlrev_b32 v13, 3, v11"); a("v_add_u32 v13, v13, v12")
    a("v_lshrrev_b32 v14, 1, v12"); a("v_and_b32 v15, 1, v11"); a("v_lshlrev_b32 v9, 1, v15"); a("v_or_b32 v14, v14, v9")
    a("v_and_b32 v9, 3, v0"); a("v_lshlrev_b32 v9, 3, v9")
    a("v_lshlrev_b32 v12, 7, v13"); a("v_add_u32 v12, v12, v9")
    a(f"v_xor_b32 v{WA}, {sW}, v14"); a(f"v_lshlrev_b32 v{WA}, 5, v{WA}"); a(f"v_add_u32 v{WA}, v{WA}, v12"); a(f"v_add_u32 v{WA}, {WOFF}, v{WA}")
    a("v_lshlrev_b32 v5, 2, v11"); a("v_sub_u32 v6, v5, v10")
    a(f"s_mul_i32 s64, {sB}, 144"); a(f"s_lshl_b32 s65, {sG}, 1"); a("s_add_u32 s64, s64, s65"); a(f"s_lshr_b32 s65, {sW}, 1"); a("s_add_u32 s64, s64, s65")
    a("s_lshl_b32 s74, s64, 12"); a(f"s_and_b32 s65, {sW}, 1"); a("s_lshl_b32 s65, s65, 11"); a("s_add_u32 s74, s74, s65")
    a(f"s_add_u32 s75, s74, {72*4096}")
    a(f"s_mov_b32 s76, 0x{f32bits(0.25*LOG2E):x}"); a("s_mov_b32 s77, s76")
    a("v_lshlrev_b32 v9, 4, v0")
    a("s_waitcnt lgkmcnt(0)")
    compute_common_setup(a, opt)
    cpad(a, opt, "KPA_1")
    a(f"v_mov_b32 v7, 0x{BIG:x}")
    a(f"s_cmp_eq_u32 {sB}, 0"); a(f"s_cselect_b32 s64, 0x{BIG:x}, 0"); a("v_mov_b32 v8, s64")
    a(f"v_mov_b32 v{MC}, 0"); a(f"v_mov_b32 v{MC+1}, 0")
    for r in range(4):
        a(f"v_add_u32 v14, {r+7}, v6")
        a("v_cmp_gt_u32 vcc, 8, v14")
        a(f"v_mov_b32 v15, {'0xffff' if r % 2 == 0 else '0xffff0000'}")
        a(f"v_add_u32 v14, {r}, v6")
        a(f"v_cndmask_b32 v{BC+r}, v7, v1, vcc")
        a("v_cndmask_b32 v15, v1, v15, vcc")
        a(f"v_or_b32 v{MC+(r>>1)}, v{MC+(r>>1)}, v15")
        a("v_cmp_le_i32 vcc, 9, v14")
        a(f"v_add_u32 v15, {r}, v5")
        a("v_cmp_gt_u32 s[64:65], 8, v15")
        a(f"v_cndmask_b32 v{BP+r}, v7, v1, vcc")
        a(f"v_cndmask_b32 v{BP0+r}, v7, v8, vcc")
        a("v_cmp_le_i32 vcc, 1, v14"); a("s_nop 0")
        a("s_and_b64 vcc, vcc, s[64:65]")
        a(f"v_cndmask_b32 v{BP4+r}, v7, v8, vcc")
    cpad(a, opt, "KPA_2")
    for i in range(104): a(f"v_mov_b32 v{ACC+i}, 0")
    def reads(kk, s):
        ws = []
        for p in range(3):
            for h in range(2):
                ws.append(f"ds_read_b64_tr_b16 {vr(wf(s,p)+2*h,2)}, v{WA} offset:{p*8192 + kk*4096 + h*512}")
        xs = [f"ds_read_b128 {vr(xf(s,t),4)}, v{XA[kk]} offset:{t*2048 if t < 8 else EOFF}" for t in range(9)]
        return mix(xs, ws)
    def mfmas(s):
        r = []
        for t in range(9):
            if t < 8: r.append(f"v_mfma_f32_16x16x32_bf16 {vr(Q(t),4)}, {vr(wf(s,0),4)}, {vr(xf(s,t),4)}, {vr(Q(t),4)}")
            r.append(f"v_mfma_f32_16x16x32_bf16 {vr(K(t),4)}, {vr(wf(s,1),4)}, {vr(xf(s,t),4)}, {vr(K(t),4)}")
            r.append(f"v_mfma_f32_16x16x32_bf16 {vr(V(t),4)}, {vr(xf(s,t),4)}, {vr(wf(s,2),4)}, {vr(V(t),4)}")
        return r
    a("s_mov_b32 s66, 0x3f803f80"); a("s_mov_b32 s67, 0xffff0000")
    mainloop(a, opt, "KA", XA + [WA], reads, mfmas)
    QB = FR; KB = FR + 16; M = FR + 34; ONES = FR + 44; VB = FR + 48; PB = FR + 68; TM = FR + 100
    E = [f"global_load_dwordx2 v[10:11], v1, s[{PDBG}:{PDBG+1}] sc1"] + mfmas(1)
    e = E.append
    def cvt(d, s): e(f"v_cvt_pk_bf16_f32 v{d}, v{s}, v{s+1}"); e(f"v_cvt_pk_bf16_f32 v{d+1}, v{s+2}, v{s+3}")
    for i in range(4): e(f"v_mov_b32 v{ONES+i}, s66")
    for t in range(8): cvt(QB + 2 * t, Q(t))
    for t in range(9): cvt(KB + 2 * t, K(t))
    def vslot(t): return (1 + t) if t < 4 else (2 + t)
    for t in range(8): cvt(VB + 2 * vslot(t), V(t))
    for d in (VB, VB + 10): cvt(d, V(8))
    for t in range(8):
        prev = 8 if t in (0, 4) else t - 1
        bp = BP0 if t == 0 else (BP4 if t == 4 else BP)
        e(f"v_mfma_f32_16x16x16_bf16 {vr(Q(t),4)}, {vr(KB+2*t,2)}, {vr(QB+2*t,2)}, {vr(BC,4)}")
        e(f"v_mfma_f32_16x16x16_bf16 {vr(K(t),4)}, {vr(KB+2*prev,2)}, {vr(QB+2*t,2)}, {vr(bp,4)}")
    for t in range(8):
        for r in range(4): e(f"v_max_f32 v{Q(t)+r}, v{Q(t)+r}, v{K(t)+r}")
        if opt.get("rl", 1):
            for r in (0, 2):
                e(f"v_cvt_pk_bf16_f32 v{Q(t)+r+1}, v{Q(t)+r}, v{Q(t)+r+1}")
                e(f"v_lshlrev_b32 v{Q(t)+r}, 16, v{Q(t)+r+1}"); e(f"v_and_b32 v{Q(t)+r+1}, s67, v{Q(t)+r+1}")
        e(f"v_max3_f32 v{M+t}, v{Q(t)}, v{Q(t)+1}, v{Q(t)+2}")
        e(f"v_max_f32 v{M+t}, v{M+t}, v{Q(t)+3}")
    for b4 in (0, 4):
        m0, m1, m2, m3 = M + b4, M + b4 + 1, M + b4 + 2, M + b4 + 3
        e(f"v_permlane32_swap_b32 v{m0}, v{m1}"); e(f"v_max_f32 v{m0}, v{m0}, v{m1}")
        e(f"v_permlane32_swap_b32 v{m2}, v{m3}"); e(f"v_max_f32 v{m2}, v{m2}, v{m3}")
        e(f"v_permlane16_swap_b32 v{m0}, v{m2}"); e(f"v_max_f32 v{m0}, v{m0}, v{m2}")
        k0, k1, k2, k3 = K(b4), K(b4 + 1), K(b4 + 2), K(b4 + 3)
        e(f"v_mul_f32 v{k0}, s76, v{m0}"); e(f"v_mul_f32 v{k2}, s76, v{m0}")
        e(f"v_permlane16_swap_b32 v{k0}, v{k2}")
        e(f"v_mov_b32 v{k1}, v{k0}"); e(f"v_mov_b32 v{k3}, v{k2}")
        e(f"v_permlane32_swap_b32 v{k0}, v{k1}"); e(f"v_permlane32_swap_b32 v{k2}, v{k3}")
    pk = opt.get("pk", 1)
    for t in range(8):
        if pk:
            for r in (0, 2): e(f"v_pk_fma_f32 {vr(Q(t)+r,2)}, {vr(Q(t)+r,2)}, s[76:77], {vr(K(t),2)} op_sel_hi:[1,1,0] neg_lo:[0,0,1] neg_hi:[0,0,1]")
        else:
            for r in range(4): e(f"v_fma_f32 v{Q(t)+r}, v{Q(t)+r}, s76, -v{K(t)}")
        for r in range(4): e(f"v_exp_f32 v{Q(t)+r}, v{Q(t)+r}")
        cvt(PB + 4 * t + 2, Q(t))
        for h in range(2): e(f"v_bfi_b32 v{PB+4*t+h}, v{MC+h}, 0, v{PB+4*t+2+h}")
        for h in range(2): e(f"v_and_b32 v{PB+4*t+2+h}, v{MC+h}, v{PB+4*t+2+h}")
        e(f"v_mfma_f32_16x16x32_bf16 {vr(K(t),4)}, {vr(ONES,4)}, {vr(PB+4*t,4)}, 0")
        e(f"v_mfma_f32_16x16x32_bf16 {vr(Q(t),4)}, {vr(VB+2*(vslot(t)-1),4)}, {vr(PB+4*t,4)}, 0")
        e(f"v_rcp_f32 v{K(t)}, v{K(t)}")
        if pk:
            for r in (0, 2): e(f"v_pk_mul_f32 {vr(Q(t)+r,2)}, {vr(Q(t)+r,2)}, {vr(K(t),2)} op_sel_hi:[1,0]")
        else:
            for r in range(4): e(f"v_mul_f32 v{Q(t)+r}, v{Q(t)+r}, v{K(t)}")
        cvt(QB + 2 * t, Q(t))
        if t & 1:
            d = QB + 2 * t - 2
            e(f"v_permlane16_swap_b32 v{d}, v{d+2}"); e(f"v_permlane16_swap_b32 v{d+1}, v{d+3}")
            e(f"buffer_store_dwordx4 {vr(d,4)}, v9, {q(RWS)}, s{74+(t>>2)} offen offset:{((t>>1)&1)*1024} sc1")
    o, t = schedule(E, 0)
    print("attn epilogue est", t, len(o), file=sys.stderr)
    for x in o: a(x)
    if opt.get("sba", 11) and opt.get("sbl", 1) == 0: a("s_barrier")
    stamp(a, opt, 4)
    compute_publish(a, opt, 10, 4)
    if opt.get("sba", 11) and opt.get("sbl", 1) == 1: a("s_barrier")
    stamp(a, opt, 5)
    if opt.get("gq", 2) == 2:
        a("s_mov_b64 exec, -1")
        srd(a, RX, PX, 2048 * 1024)
        gate_loads(a, 9); a("s_waitcnt vmcnt(0)"); gate_math(a, 9)
    stamp_end(a, opt, 2)
    if opt.get("f8", 1): compute_final(a, opt)
    else: a("s_endpgm")

def gen_loader(a, opt):
    a("; ---- loader wave")
    VL16, VX0, VX1, VW, VE, VR, VZ = 1, 2, 3, 4, 5, 6, 7
    win = None
    npad = [0]
    def pad():
        return
        k = npad[0]; npad[0] += 1
        a(f"s_branch KP_{k}_S"); a.label(f"KP_{k}"); a("s_branch K_CPRE"); a.label(f"KP_{k}_S")
    b0 = slot_of(0)
    if opt.get("cpf", 2) == 2:
        L = newlab("CS")
        a("s_cmp_ge_u32 s2, 8"); a(f"s_cbranch_scc1 {L}")
        a("s_getpc_b64 s[64:65]")
        G = newlab("GP"); a.label(G)
        a(f"s_lshl_b32 s66, {sW}, 13"); a("v_lshlrev_b32 v10, 7, v0"); a("v_add_u32 v10, s66, v10")
        a(f"s_mov_b32 s66, K_CODE_END-{G}-4")
        a("v_min_u32 v10, s66, v10"); a("global_load_dword v255, v10, s[64:65]")
        a.label(L)
    a("v_lshrrev_b32 v10, 3, v0"); a("v_and_b32 v11, 7, v0"); a("v_lshrrev_b32 v12, 4, v0")
    a(f"s_and_b32 s68, {sW}, 1"); a(f"s_lshr_b32 s69, {sW}, 1")
    a(f"s_lshl_b32 s64, {sB}, 1"); a("s_add_u32 s64, s64, s68"); a("s_lshl_b32 s64, s64, 6"); a("s_add_u32 s64, s64, s69"); a("s_lshl_b32 s64, s64, 10")
    a("v_xor_b32 v13, v11, v12"); a("v_lshlrev_b32 v14, 11, v10"); a("v_lshl_add_u32 v14, v13, 4, v14")
    a(f"v_add_u32 v{VX0}, s64, v14"); a(f"v_xor_b32 v{VX1}, 64, v{VX0}")
    a(f"s_mov_b32 s{RX+3}, 0x20000"); a(f"s_lshl_b32 s{RX+2}, s{RX+3}, 4")
    a(f"s_lshl_b32 s70, {sW}, 12"); a(f"s_add_u32 m0, s70, {b0}"); a("s_movk_i32 s51, 0x4000")
    wl = opt.get("wlate", 0)
    def wsetup():
        opt["_decode"]()
        a("s_movk_i32 s74, 3584"); a("s_movk_i32 s75, 128"); a("s_movk_i32 s66, 448")
        a(f"s_mul_i32 s66, s66, {sG}"); a(f"s_and_b32 s67, {sG}, 1"); a("s_lshl_b32 s64, s67, 6"); a("s_add_u32 s64, s64, s66"); a(f"s_lshl_b32 s65, {sG}, 7")
        a(f"s_cmp_eq_u32 {sT}, 0")
        a("s_cmovk_i32 s74, 3072"); a("s_cmovk_i32 s75, 1024"); a("s_cselect_b32 s64, s65, s64")
        a(f"s_lshl_b32 s{RW+2}, s74, 9"); a(f"s_mov_b32 s{RW+3}, s{RX+3}"); a(f"s_mov_b32 s{RE+3}, s{RX+3}")
        a("v_and_b32 v15, 1, v12"); a("s_lshl_b32 s65, s68, 2"); a("v_xor_b32 v13, s65, v11"); a("v_lshlrev_b32 v15, 1, v15"); a("v_xor_b32 v15, v15, v13")
        a(f"s_lshl_b32 s65, {sW}, 3"); a(f"v_add_u32 v{VW}, s65, v10"); a(f"v_mul_u32_u24 v{VW}, s74, v{VW}"); a(f"v_lshl_add_u32 v{VW}, v15, 4, v{VW}"); a(f"v_add_u32 v{VW}, s64, v{VW}")
        a(f"s_lshl_b32 s71, {sW}, 10"); a(f"s_addk_i32 s71, {WOFF}")
        a("s_lshl_b32 s73, s74, 6"); a("s_lshl_b32 s74, s74, 5")
    if wl:
        wsetup(); a("s_movk_i32 s51, 0x4000")
    if opt.get("lstamp") == 3: a("s_memtime s[84:85]")
    a("s_waitcnt lgkmcnt(0)")
    if opt.get("lstamp") == 3: a("s_memtime s[86:87]")
    a(f"s_mov_b64 s[{RX}:{RX+1}], s[{PX}:{PX+1}]")
    a(f"buffer_load_dwordx4 v{VX0}, {q(RX)}, 0 offen lds")
    for m in range(1, 4):
        a("s_addk_i32 m0, 0x400")
        if m > 1: a("s_addk_i32 s51, 0x4000")
        else: a("s_setprio 2" if opt.get("pearly", 0) else "s_nop 0")
        a(f"buffer_load_dwordx4 v{VX0 if m % 2 == 0 else VX1}, {q(RX)}, s51 offen lds")
    a("s_branch K_HOPS")
    a.label("K_HOP")
    if opt.get("cp0", 0): a("s_setprio 3")
    if opt.get("pads", 0):
        a("s_bitcmp1_b32 s2, 6"); a("s_cbranch_scc0 K_HOPA")
        for k in range(3): a(f"s_cmp_eq_u32 s3, {k+1}"); a(f"s_cbranch_scc1 KPF_{k}")
        a("s_branch K_CPRE")
        a.label("K_HOPA")
        for k in range(3): a(f"s_cmp_eq_u32 s3, {k+1}"); a(f"s_cbranch_scc1 KPA_{k}")
    a("s_branch K_CPRE")
    a.label("K_HOPS")
    if not wl: wsetup()
    a(f"s_cmp_eq_u32 {sT}, 0")
    a(f"s_cselect_b64 s[{RW}:{RW+1}], s[{PWQKV}:{PWQKV+1}], s[{PW1}:{PW1+1}]"); a(f"s_cselect_b64 s[{RE}:{RE+1}], s[{PX}:{PX+1}], s[{PW1}:{PW1+1}]")
    a(f"s_add_u32 m0, s71, {b0}"); a("s_mov_b32 s50, 0")
    for k in range(6):
        if k == 3: a("s_addk_i32 m0, 0x1000"); a("s_add_u32 s50, s50, s74")
        elif 0 < k < 3: a("s_addk_i32 m0, 0x2000"); a("s_add_u32 s50, s50, s75")
        elif k > 3: a("s_addk_i32 m0, -0x2000"); a("s_sub_u32 s50, s50, s75")
        a(f"buffer_load_dwordx4 v{VW}, {q(RW)}, s50 offen lds")
        if k == 0: pad()
    a(f"s_cmp_eq_u32 {sT}, 0"); a("s_cbranch_scc1 KL_EA")
    a("s_cmp_eq_u32 s67, 0"); a("s_movk_i32 s65, 0"); a("s_cmovk_i32 s65, 384"); a("s_add_u32 s66, s66, s65")
    a("v_lshrrev_b32 v15, 2, v0"); a(f"s_lshl_b32 s65, {sW}, 4"); a("v_add_u32 v15, s65, v15"); a(f"v_mul_u32_u24 v{VE}, 3584, v15")
    a("v_lshrrev_b32 v15, 5, v0"); a("v_lshlrev_b32 v15, 1, v15"); a("v_and_b32 v13, 3, v0"); a("v_xor_b32 v15, v15, v13")
    a(f"v_lshl_add_u32 v{VE}, v15, 4, v{VE}"); a(f"v_add_u32 v{VE}, s66, v{VE}")
    a(f"s_lshl_b32 s72, {sW}, 10"); a("s_mov_b32 s76, s73"); a(f"s_mov_b32 s{RE+2}, s{RW+2}")
    a("s_branch KL_ED")
    a.label("KL_EA")
    a(f"s_lshl_b32 s64, {sB}, 7"); a(f"s_cmp_eq_u32 {sB}, 0"); a("s_cselect_b32 s65, -1, 15"); a(f"s_cselect_b32 s{RE+2}, 0, s{RX+2}"); a("s_sub_u32 s64, s64, s65")
    a("s_sub_u32 s64, s64, s68"); a("s_lshl_b32 s64, s64, 10")
    a("s_lshl_b32 s65, s68, 6"); a(f"v_xor_b32 v{VE}, s65, v14"); a(f"v_add_u32 v{VE}, s64, v{VE}")
    a("s_lshl_b32 s72, s68, 10"); a("s_movk_i32 s76, 128")
    a.label("KL_ED")
    a(f"s_add_u32 s72, s72, {EOFF}")
    a(f"s_add_u32 m0, s72, {b0}"); a("s_mov_b32 s77, 1")
    a(f"buffer_load_dwordx4 v{VE}, {q(RE)}, 0 offen lds")
    pad()
    def stage(s, lo=0, hi=11):
        base = slot_of(s)
        L = []
        for k in range(6):
            if k == 0: pre = [f"s_add_u32 m0, s71, {base}", "s_mul_i32 s50, s77, s73"]
            elif k == 3: pre = ["s_addk_i32 m0, 0x1000", "s_add_u32 s50, s50, s74"]
            elif k < 3: pre = ["s_addk_i32 m0, 0x2000", "s_add_u32 s50, s50, s75"]
            else: pre = ["s_addk_i32 m0, -0x2000", "s_sub_u32 s50, s50, s75"]
            L.append(pre + [f"buffer_load_dwordx4 v{VW}, {q(RW)}, s50 offen lds"])
        L.append([f"s_add_u32 m0, s72, {base}", "s_mul_i32 s50, s77, s76", f"buffer_load_dwordx4 v{VE}, {q(RE)}, s50 offen lds"])
        for m in range(4):
            pre = [f"s_add_u32 m0, s70, {base}", "s_lshl_b32 s50, s77, 7"] if m == 0 else ["s_addk_i32 m0, 0x400", "s_addk_i32 s50, 0x4000"]
            L.append(pre + [f"buffer_load_dwordx4 v{VX0 if m % 2 == 0 else VX1}, {q(RX)}, s50 offen lds"])
        if opt.get("win"): L[-1] += ["s_and_b32 s77, s78, 7", "s_lshr_b32 s78, s78, 4"]
        else: L[-1].append("s_add_u32 s77, s77, 1")
        assert lo in (0, 6, 7, 11) and hi in (6, 7, 11)
        for x in L[lo:hi]:
            for y in x: a(y)
    def bar(n, k):
        a(f"s_waitcnt vmcnt({n})"); a("s_barrier")
        if opt.get("lstamp") == 1: a(f"s_memtime s[{84+2*k}:{85+2*k}]")
    def st2(k):
        if opt.get("lstamp") == 2: a(f"s_memtime s[{84+2*k}:{85+2*k}]")
    if opt.get("lstamp"):
        opt = dict(opt); so = opt.copy(); opt["stamps"] = 0
    else: so = opt
    s1a = int(str(opt.get("split", "x7bbbbbb"))[1], 16)
    if opt.get("lstamp") == 3: a("s_memtime s[88:89]")
    stage(1, 0, s1a)
    a("s_branch K_CPRE_S"); opt["_cpre"](); a.label("K_CPRE_S")
    opt["_decode2"]()
    if opt.get("lstamp") == 3:
        a("s_memtime s[90:91]"); a(f"s_waitcnt vmcnt({10 + s1a})"); a("s_memtime s[92:93]"); a(f"s_waitcnt vmcnt({s1a})"); a("s_memtime s[94:95]")
    if opt.get("win"):
        assert s1a < 11
        wins = [int(c) for c in str(opt["win"])]
        assert sum(wins) == 6
        xm = opt.get("xm", 1)
        a("s_lshr_b32 s64, s2, 6"); a(f"s_mul_i32 s64, s64, {xm}"); a(f"s_and_b32 s65, {sB}, 7"); a("s_add_u32 s64, s64, s65")
        for r in range(8 + 3 * xm):
            t = 0; base = 2; k = 0
            for w_ in wins:
                for i in range(w_):
                    t |= (base + (i + r) % w_) << (4 * k); k += 1
                base += w_
            if r == 0: a(f"s_mov_b32 s78, 0x{t:x}")
            else: a(f"s_cmp_eq_u32 s64, {r}"); a(f"s_cselect_b32 s78, 0x{t:x}, s78")
    a(f"v_lshlrev_b32 v{VL16}, 4, v0"); a(f"v_mov_b32 v{VZ}, 0")
    srd(a, RWS, PWS, WS_USED)
    a("v_and_b32 v15, 1, v12"); a("v_lshlrev_b32 v15, 2, v15"); a("v_xor_b32 v15, v15, v11"); a("v_lshlrev_b32 v15, 4, v15")
    a(f"v_lshlrev_b32 v{VR}, 10, v10"); a(f"v_add_u32 v{VR}, v{VR}, v15")
    a(f"s_mul_i32 s100, {sW}, 19"); a("s_sub_u32 s100, s100, 3"); a(f"s_cmp_eq_u32 {sW}, 0"); a("s_cselect_b32 s100, 0, s100"); a("s_cselect_b32 s101, 16, 19")
    a(f"s_cmp_eq_u32 {sW}, 3"); a("s_cselect_b32 s101, 18, s101"); a("s_lshl_b32 s101, s101, 12")
    a(f"s_mul_i32 s64, {sU}, 72"); a("s_add_u32 s64, s64, s100"); a("s_lshl_b32 s64, s64, 12")
    srd(a, RA, PWS, "s101", "s64")
    a("s_sub_u32 s64, s100, 16"); a("s_lshl_b32 s64, s64, 15")
    a(f"s_cmp_eq_u32 {sW}, 0"); a("s_cselect_b32 s64, 0, s64")
    a(f"s_cselect_b32 s66, s{PWO}, s{PW2}"); a(f"s_cselect_b32 s67, s{PWO+1}, s{PW2+1}")
    a(f"s_lshl_b32 s65, {sCT}, 7"); a("s_add_u32 s64, s64, s65")
    a(f"s_add_u32 s{RB}, s66, s64"); a(f"s_addc_u32 s{RB+1}, s67, 0")
    a(f"s_lshl_b32 s{RB+2}, s101, 3"); a(f"s_sub_u32 s{RB+2}, s{RB+2}, s65"); a(f"s_mov_b32 s{RB+3}, 0x20000")
    a(f"s_lshl_b32 s79, {sW}, 12"); a(f"s_sub_u32 s79, {TOP-4096}, s79")
    a(f"s_cmp_eq_u32 {sW}, 0"); a(f"s_cselect_b32 s79, {TOP-4096-16384}, s79")
    a(f"v_mov_b32 v13, {TOP-4096}"); a(f"ds_write_b32 v13, v{VZ}"); a("s_waitcnt lgkmcnt(0)")
    a("v_lshrrev_b32 v13, 5, v0"); a("v_lshlrev_b32 v13, 10, v13"); a("v_bfe_u32 v14, v0, 2, 2"); a("v_lshlrev_b32 v14, 7, v14"); a("v_add_u32 v13, v13, v14")
    a("v_bfe_u32 v14, v0, 3, 1"); a("v_lshlrev_b32 v14, 6, v14"); a("v_add_u32 v13, v13, v14")
    a("v_bfe_u32 v14, v0, 4, 1"); a("v_lshlrev_b32 v14, 5, v14"); a("v_add_u32 v13, v13, v14")
    a("v_and_b32 v14, 3, v0"); a("v_lshlrev_b32 v14, 3, v14"); a("v_add_u32 v13, v13, v14")
    a(f"s_sub_u32 s64, s79, {3*16384}"); a("v_add_u32 v58, s64, v13"); a("v_xor_b32 v59, 64, v58")
    for k, dr in ((60, 4), (62, 6)):
        a(f"v_subrev_u32 v{k}, {dr*16384}, v58"); a(f"v_subrev_u32 v{k+1}, {dr*16384}, v59")
    a(f"v_mul_u32_u24 v57, {FSTR}, v0")
    sp = [int(c, 16) for c in str(opt.get("split", "x7bbbbbb"))[1:]]
    assert sp[0] == s1a
    vm = [("S", 0)] * 11 + [("S", 1)] * s1a
    EA = opt.get("ea", 0)
    sL = "s15"
    def skipA(t): return t[0] == "B" and 10 <= t[1] < 10 + EA
    def younger(tag, attn=False):
        idx = max(i for i, t in enumerate(vm) if t == tag)
        return sum(1 for t in vm[idx+1:] if not (attn and skipA(t)))
    def vwait(tag):
        nf, na = younger(tag), younger(tag, True)
        if nf == na: a(f"s_waitcnt vmcnt({nf})"); return
        L1 = newlab("VW")
        a(f"s_waitcnt vmcnt({nf})"); a(f"s_cmp_lg_u32 {sL}, 0"); a(f"s_cbranch_scc1 {L1}"); a(f"s_waitcnt vmcnt({na})"); a.label(L1)
    class ffn_only:
        def __init__(self, on): self.on = on
        def __enter__(self):
            if self.on: self.L = newlab("FO"); a(f"s_cmp_eq_u32 {sL}, 0"); a(f"s_cbranch_scc1 {self.L}")
        def __exit__(self, *x):
            if self.on: a.label(self.L)
    def bar2(tag, k):
        vwait(tag); a("s_barrier")
        if opt.get("lstamp") == 1: a(f"s_memtime s[{84+2*k}:{85+2*k}]")
    def stage_t(s_, lo=0, hi=11): stage(s_, lo, hi); vm.extend([("S", s_)] * (hi - lo))
    br = opt.get("brot", 2)
    mp = opt.get("map", "Y")
    if br == 0: a("s_mov_b32 s14, 0")
    elif br == 2: a(f"s_and_b32 s14, {sB}, 1"); a("s_lshl_b32 s14, s14, 15")
    elif br == 4: a(f"s_and_b32 s14, {sB}, 3"); a("s_lshl_b32 s14, s14, 14")
    elif br == 7: a("s_lshr_b32 s14, s2, 7"); a("s_lshl_b32 s14, s14, 15")
    elif br == 8: a("s_lshr_b32 s14, s2, 6"); a("s_lshl_b32 s14, s14, 14")
    elif br == 9: a("s_lshr_b32 s14, s2, 6"); a("s_lshl_b32 s14, s14, 12")
    elif br == 10: a("s_lshr_b32 s14, s2, 7"); a("s_lshl_b32 s14, s14, 13")
    elif br == 5: a(f"s_and_b32 s14, {sB}, 6"); a("s_lshl_b32 s14, s14, 13")
    elif br == 6: a(f"s_and_b32 s14, {sB}, 2"); a("s_lshl_b32 s14, s14, 14")
    elif mp == "Z" and opt.get("p2map", 0) == 0: a(f"s_and_b32 s14, {sB}, 3"); a("s_lshl_b32 s14, s14, 14")
    elif mp == "Z": a(f"s_and_b32 s14, {sU}, 7"); a("s_lshl_b32 s14, s14, 13")
    elif mp == "Y" and not opt.get("p2alt", 0): a(f"s_and_b32 s14, {sB}, 7"); a("s_lshl_b32 s14, s14, 13")
    else: a(f"s_and_b32 s14, {sU}, 3"); a("s_lshl_b32 s14, s14, 14")
    a("s_lshl_b32 s8, s14, 3"); a("s_lshl_b32 s9, s101, 3")
    ACC = 8; BR = 72
    def bdma(tag, j, certain=True):
        for k in range(4):
            a(f"s_sub_u32 m0, s79, {16384*j - 1024*k}") if 16384*j - 1024*k >= 0 else a(f"s_add_u32 m0, s79, {1024*k - 16384*j}")
            a("s_nop 0")
            a(f"buffer_load_dwordx4 v{VR}, {q(RB)}, s8 offen lds")
            a("s_add_u32 s8, s8, 8192")
        a("s_cmp_ge_u32 s8, s9"); a("s_cselect_b32 s8, 0, s8")
        if certain: vm.extend([("B", tag)] * 4)
    def stg(i, j):
        r = 3 if j < 4 else (7 if j < 8 else 9)
        va = {3: 58, 7: 60, 9: 62}[r]
        for f in range(4):
            for e in range(2):
                a(f"ds_read_b64_tr_b16 {vr(BR+16*i+4*f+2*e,2)}, v{va+(f&1)} offset:{(r-j)*16384 + (f>>1)*2048 + e*512}")
    if "ebi" in opt: ebi = [int(c) for c in str(opt["ebi"])[1:]]
    elif "eb" in opt: ebi = list(range(5 - opt["eb"], 5))
    else: ebi = [0, 1, 2]
    E = len(ebi)
    ne = 0
    def swapback():
        a(f"s_cmp_eq_u32 {sL}, 0"); a("s_cselect_b32 s13, s8, s13"); a("s_cselect_b32 s8, s12, s8")
    if EA:
        assert E == 0 and EA <= 4
        lg = opt.get("lg", "T")
        if lg == "T": a(f"s_mov_b32 {sL}, {sT}")
        elif lg == "G": a(f"s_and_b32 {sL}, {sG}, 1"); a(f"s_xor_b32 {sL}, {sL}, 1")
        else: a(f"s_and_b32 {sL}, {sB}, {1 << opt.get('lgbit', 0)}")
        a(f"s_cmp_lg_u32 {sL}, 0"); a("s_cbranch_scc1 KL_NOEA")
        for t in range(EA): bdma(t, t, False)
        a("s_mov_b32 s12, s8"); a(f"s_cmp_eq_u32 {sW}, 0"); a(f"s_cselect_b32 s13, {9-EA}, {10-EA}"); a("s_lshl_b32 s13, s13, 15"); a("s_add_u32 s8, s8, s13")
        a("s_cmp_ge_u32 s8, s9"); a("s_cselect_b32 s13, s9, 0"); a("s_sub_u32 s8, s8, s13")
        for t in range(EA):
            a(f"s_waitcnt vmcnt({4*(EA-1-t)})"); stg(t, t)
        a("s_waitcnt lgkmcnt(0)")
        a.label("KL_NOEA")
    stg_map = str(opt.get("stag", "x0000"))[1:]
    if len(set(stg_map)) > 1:
        assert not EA
        a("s_bfe_u32 s64, s2, 0x20003"); a("s_lshl_b32 s64, s64, 2"); a(f"s_lshr_b32 s15, 0x{stg_map[::-1]}, s64"); a("s_and_b32 s15, s15, 15")
    def cbar0(pos):
        if str(pos) not in stg_map: return
        if len(set(stg_map)) == 1: bar(younger(("S", 0)), 0); return
        L_ = newlab("CB"); a(f"s_cmp_lg_u32 s15, {pos}"); a(f"s_cbranch_scc1 {L_}"); bar(younger(("S", 0)), 0); a.label(L_)
    for s_ in range(6):
        if s_ == 0:
            cbar0(0)
            stamp(a, opt, 0)
            if not opt.get("pearly", 0): a("s_setprio 2")
        else: bar(younger(("S", s_)), s_)
        if sp[s_] < 11: stage_t(s_ + 1, sp[s_], 11)
        if s_ == 0: cbar0(1)
        nb = ebi.count(s_) + (s_ == 5)
        mid = opt.get("mid", 11)
        if nb and ne > 0 and mid < sp[s_ + 1] and s_ >= opt.get("midfrom", 0):
            stage_t(s_ + 2, 0, mid)
            a(f"s_waitcnt vmcnt({younger(('B', ne - 1))})"); stg(ne - 1, 0)
            stage_t(s_ + 2, mid, sp[s_ + 1])
            a("s_waitcnt lgkmcnt(0)")
            bdma(ne, 0); ne += 1; nb -= 1
        else:
            if s_ == 0 and "4" in stg_map:
                stage_t(2, 0, 6); cbar0(4); stage_t(2, 6, sp[1])
            else: stage_t(s_ + 2, 0, sp[s_ + 1])
        if s_ == 0: cbar0(2)
        for _ in range(nb):
            if ne > 0:
                a(f"s_waitcnt vmcnt({younger(('B', ne - 1))})"); stg(ne - 1, 0); a("s_waitcnt lgkmcnt(0)")
            bdma(ne, 0)
            if EA == 1: swapback()
            ne += 1
        if s_ == 0: cbar0(3)
    assert sp[6] == 11 and ne == E + 1
    a("s_mov_b32 s77, s14")
    srd(a, RAUX, POUT, 2048 * 1024)
    a(f"s_lshr_b32 s68, {sU}, 1"); a(f"s_mul_i32 s68, s68, {16*FSTR}"); a(f"s_add_u32 s68, s68, {FA_OFF}")
    def fm(g0, g1): return sum(0x100 << g for g in range(g0, g1 + 1))
    a(f"s_mov_b32 s{RR}, 0x{fm(0,2):x}"); a(f"s_cmp_eq_u32 {sW}, 2"); a(f"s_cselect_b32 s{RR}, 0x{fm(2,5):x}, s{RR}")
    a(f"s_cmp_eq_u32 {sW}, 3"); a(f"s_cselect_b32 s{RR}, 0x{fm(5,7):x}, s{RR}")
    a(f"s_cmp_eq_u32 {sW}, 0"); a(f"s_cselect_b32 s{RR}, 0xff, s{RR}"); a(f"s_mov_b32 s{RR+1}, 0")
    a(f"s_lshl_b32 s69, {sU}, 9"); a(f"s_lshl_b32 s64, {sW}, 7"); a("s_add_u32 s69, s69, s64"); a(f"s_add_u32 s69, s69, {G_OFF}")
    bar2(("S", 6), 6)
    stamp(a, opt, 1)
    for t in range(1, 4):
        bdma(E + t, t)
        if EA and t == EA - 1: swapback()
    bar2(("S", 7), 7)
    for t in range(4, 7): bdma(E + t, t)
    NSG = 9 - E
    staged = 0
    def stage_upto(t_end):
        nonlocal staged
        t_end = min(t_end, NSG)
        if staged >= t_end: return
        vwait(('B', E + t_end - 1))
        with ffn_only(staged < EA):
            for t in range(staged, min(t_end, EA)): stg(E + t, t)
        for t in range(max(staged, EA), t_end): stg(E + t, t)
        staged = t_end
    if opt.get("early", 1): stage_upto(3)
    a("s_barrier")
    stamp(a, opt, 2); st2(0)
    ref = [9]
    def btr(j, regs):
        r = 3 if j < 4 else (7 if j < 8 else 9)
        out = []
        if r != ref[0]:
            d = ((ref[0] - r) * 16384) & 0xffffffff
            out.append("\n".join(f"v_add_u32 v{2+nt}, 0x{d:x}, v{2+nt}" for nt in range(2))); ref[0] = r
        for f in range(4):
            out.append("\n".join(f"ds_read_b64_tr_b16 {vr(regs[f]+2*e,2)}, v{2+(f&1)} offset:{(r-j)*16384 + (f>>1)*2048 + e*512}" for e in range(2)))
        return out
    gq = opt.get("gq", 2)
    if opt.get("lp", 2) != 2: a(f"s_setprio {opt.get('lp')}")
    a(f"global_load_dwordx2 v[10:11], v{VZ}, s[{PDBG}:{PDBG+1}] sc1"); vm.append(("T", 0))
    bdma(E + 7, 7)
    stage_upto(5); st2(1)
    vwait(("T", 0))
    tag_check(a, 10, VZ)
    a("v_mov_b32 v2, v62"); a("v_mov_b32 v3, v63"); a("v_lshrrev_b32 v7, 4, v0"); a("v_lshlrev_b32 v7, 4, v7")
    def fpause():
        if opt.get("sb", 2): a(f"s_cmp_eq_u32 {sT}, 0"); a("s_cbranch_scc1 KL_NOSB"); a("s_barrier"); a.label("KL_NOSB")
    if opt.get("sbn", 1) == 1: fpause()
    st2(2)
    bdma(E + 8, 8)
    if opt.get("sbn", 1) == 2: fpause()
    a(f"s_cmp_eq_u32 {sW}, 0"); a("s_cbranch_scc1 KL_SK9")
    bdma(E + 9, 9, False)
    a.label("KL_SK9"); st2(3)
    def apause(t):
        if opt.get("sb", 2) == 3 and opt.get("sb2", 10) == t:
            a(f"s_cmp_eq_u32 {sT}, 0"); a("s_cbranch_scc1 KL_NOSB2"); a("s_barrier"); a.label("KL_NOSB2")
        if opt.get("sba", 11) == t:
            a(f"s_cmp_lg_u32 {sT}, 0"); a("s_cbranch_scc1 KL_NOSA"); a("s_barrier"); a.label("KL_NOSA")
    apause(9)
    tl = list(range(10, 19 - E))
    assert len(tl) >= 2
    freed = 0
    did_misc = False
    def misc():
        if gq == 1:
            a(f"s_cmp_lg_u32 {sT}, 0"); a("s_cbranch_scc1 KL_NOG1"); gate_loads(a, VL16); a.label("KL_NOG1")
    for t in tl[:-2]:
        if t - 10 >= freed:
            a("s_waitcnt lgkmcnt(0)"); freed = staged
            stage_upto(staged + 2)
        if t == tl[max(0, len(tl) - 4)]: misc(); did_misc = True
        with ffn_only(10 <= t < 10 + EA): bdma(E + t, t - 10)
        if EA and t == 10 + EA - 1: a(f"s_cmp_eq_u32 {sL}, 0"); a("s_cselect_b32 s8, s13, s8")
        apause(t)
        if t in (12, 14, 16): st2(4 + (t - 12) // 2)
    stage_upto(9)
    if not did_misc: misc()
    a(f"s_mov_b64 exec, s[{RR}:{RR+1}]")
    a(f"buffer_load_dwordx2 v[8:9], v57, {q(RWS)}, s68 offen sc1")
    a("s_mov_b64 exec, -1")
    a("s_waitcnt lgkmcnt(0)")
    assert gq == 2
    def okcheck(n, target):
        a(f"s_waitcnt vmcnt({n})")
        stamp(a, opt, 3); st2(7)
        a(f"v_cmp_eq_u64 vcc, s[{TAG}:{TAG+1}], v[8:9]"); a("s_nop 0")
        a(f"s_andn2_b64 s[64:65], s[{RR}:{RR+1}], vcc"); a(f"s_cbranch_scc0 {target}")
    a(f"s_cmp_eq_u32 {sW}, 0"); a("s_cbranch_scc1 KL_W0")
    bdma(0, tl[-2] - 10, False)
    a(f"s_cmp_eq_u32 {sW}, 3"); a("s_cbranch_scc1 KL_W1")
    bdma(0, tl[-1] - 10, False)
    okcheck(8, "KL_V19"); a("s_branch KL_SLOW")
    a.label("KL_W0"); okcheck(0, "KL_V16"); a("s_branch KL_SLOW")
    a.label("KL_W1"); okcheck(4, "KL_V18")
    a.label("KL_SLOW")
    a(f"s_mov_b64 exec, s[{RR}:{RR+1}]")
    poll(a, 8, 57, "s68", f"s[{RR}:{RR+1}]")
    a("s_mov_b64 exec, -1")
    ref0 = ref[0]
    a(f"s_cmp_eq_u32 {sW}, 0"); a("s_cbranch_scc1 KL_V16")
    a(f"s_cmp_eq_u32 {sW}, 3"); a("s_cbranch_scc1 KL_V18")
    def acc(tp, np_): return ACC + 16 * (2 * tp + np_)
    DM = opt.get("dmax", 10)
    WA = 80; RA_ = 88; OV = 92
    fill = [
        f"s_lshr_b32 s64, {sU}, 1", "s_lshl_b32 s64, s64, 7", f"s_lshl_b32 s65, {sW}, 5", "s_add_u32 s64, s64, s65", f"s_and_b32 s65, {sU}, 1", "s_add_u32 s64, s64, s65",
        "s_lshl_b32 s64, s64, 10", f"s_lshl_b32 s65, {sCT}, 7", "s_add_u32 s70, s64, s65", "s_add_u32 s71, s70, 16384",
        f"s_sub_u32 s72, s79, {2*16384}", f"s_lshl_b32 s73, {sW}, 14", f"s_sub_u32 s73, {TOP-32768}, s73",
        "v_and_b32 v93, 15, v0", "v_lshrrev_b32 v94, 5, v0", "v_xor_b32 v94, v94, v93", "v_lshlrev_b32 v94, 4, v94",
        "v_lshlrev_b32 v95, 8, v93", "v_add_u32 v94, v94, v95", "v_bfe_u32 v95, v0, 4, 1", "v_lshlrev_b32 v95, 14, v95", "v_sub_u32 v94, v94, v95",
        f"v_add_u32 v{WA}, s72, v94"] + [f"v_xor_b32 v{WA+k}, {32*k}, v{WA}" for k in range(1, 8)] + [
        "v_lshrrev_b32 v93, 3, v0", "v_and_b32 v94, 7, v0", f"v_lshlrev_b32 v{OV}, 11, v93", "v_lshlrev_b32 v95, 4, v94", f"v_add_u32 v{OV}, v{OV}, v95",
        "v_lshlrev_b32 v95, 1, v94", "v_xor_b32 v95, v95, v93", "v_lshlrev_b32 v95, 4, v95", "v_lshlrev_b32 v93, 8, v93", "v_add_u32 v95, v95, v93",
        f"v_add_u32 v{RA_}, s73, v95", f"v_xor_b32 v{RA_+1}, 16, v{RA_}", f"v_xor_b32 v{RA_+2}, 128, v{RA_}", f"v_xor_b32 v{RA_+3}, 144, v{RA_}",
        "v_and_b32 v93, 8, v0", "v_cmp_ne_u32 s[74:75], 0, v93",
        f"s_lshl_b32 s72, {sW}, 9", f"s_add_u32 s72, s72, {TOP-4096+1024}", "v_lshlrev_b32 v103, 3, v0", "v_add_u32 v103, s72, v103"]
    for nst, lab in ((19, "KL_V19"), (18, "KL_V18"), (16, "KL_V16")):
        a(".p2align 3")
        if lab: a.label(lab)
        stamp(a, opt, 4)
        free = list(range(BR + 16 * NBR, 256, 4)); ref[0] = ref0
        if "dmv" in opt: DM = int(str(opt["dmv"])[1:][(19, 18, 16).index(nst)], 16)
        pend = [("A", i, b) for i in range(nst) for b in range(4)]
        gi = 4 * opt.get("gstep", 13)
        pend[gi:gi] = [("G", 0, 0), ("G", 1, 0)]
        loc = {}; issued = []; cur_soff = [None]
        done_loads = [0]
        fl = list(fill)
        def issue():
            if not pend: return False
            if len(issued) - done_loads[0] >= DM: return False
            if pend[0][0] == "A" and not free: return False
            k = pend.pop(0); issued.append(k)
            if k[0] == "A":
                r = free.pop(0); loc[k] = r
                if cur_soff[0] != k[1] and k[1]:
                    a("s_add_u32 s77, s77, 4096"); a("s_cmp_ge_u32 s77, s101"); a("s_cselect_b32 s77, 0, s77"); cur_soff[0] = k[1]
                a(f"buffer_load_dwordx4 {vr(r,4)}, v{VL16}, {q(RA)}, s77 offen offset:{k[2]*1024} {opt.get('ald', 'sc1')}")
            else:
                a(f"buffer_load_dwordx4 {vr(72+4*k[1],4)}, v7, {q(RWS)}, s69 offen offset:{k[1]*64} sc1")
            return True
        while issue(): pass
        bl = {}
        ldsq = []
        for i in range(nst):
            Bv = [BR + 16 * i + 4 * n for n in range(4)] if i < NBR else bl[i]
            needb = NBR <= i + 2 < nst
            if needb:
                tt = i + 2 - E; md = 10 if nst > 16 else 9
                tr = btr(tt if tt < md else tt - md, Bv)
                if len(tr) == 5: a(tr.pop(0))
                bl[i + 2] = Bv
            if i == nst - 1:
                assert not pend and not fl
                a("s_waitcnt vmcnt(0) lgkmcnt(0)"); a("s_nop 0")
                L_ = []
                for tp in range(2):
                    for np_ in range(2):
                        for half in range(2):
                            L_.append(f"v_mfma_f32_32x32x16_bf16 {vr(acc(tp,np_),16)}, {vr(Bv[2*half+np_],4)}, {vr(loc[('A', i, 2*half+tp)],4)}, {vr(acc(tp,np_),16)}")
                L_ += ["v_cndmask_b32 v96, v72, v73, s[74:75]", "v_cndmask_b32 v98, v76, v77, s[74:75]", "v_sub_f32 v100, 1.0, v96", "v_sub_f32 v101, 1.0, v98",
                       "v_cvt_pk_bf16_f32 v100, v100, v101", "v_and_b32 v102, 0xffff0000, v100", "v_lshlrev_b32 v100, 16, v100",
                       f"v_cmp_eq_u64 vcc, s[{TAG}:{TAG+1}], v[74:75]", f"v_cmp_eq_u64 s[64:65], s[{TAG}:{TAG+1}], v[78:79]"]
                for tp in range(2):
                    for np_ in range(2):
                        for j in range(4):
                            L_.append(f"ds_write_b128 v{WA+4*np_+j}, {vr(acc(tp,np_)+4*j,4)} offset:{(1-tp)*32768}")
                M_ = L_[:8]; V_ = L_[8:17]; W_ = L_[17:]
                seq = [M_[0], M_[1], M_[2]] + V_[:5] + [M_[3]] + V_[5:] + [M_[4]] + W_[0:4] + [M_[5], "s_nop 1"] + W_[4:6] + [M_[6]] + W_[6:8] + [M_[7], "s_nop 3"] + W_[8:12] + ["s_nop 3"] + W_[12:]
                for x in seq: a(x)
                break
            for half in range(2):
                for tp in range(2):
                    blk = 2 * half + tp
                    idx = issued.index(("A", i, blk)); done_loads[0] = idx + 1
                    w = f"s_waitcnt vmcnt({len(issued) - idx - 1})"
                    if i >= NBR and tp == 0:
                        li = ldsq.index((i, 2 * half + 1))
                        w += f" lgkmcnt({min(15, 2 * (len(ldsq) - li - 1))})"
                    a(w); a("s_nop 0")
                    A = loc[("A", i, blk)]
                    for np_ in range(2):
                        c = vr(acc(tp, np_), 16) if (i > 0 or half > 0) else "0"
                        f = 2 * half + np_
                        a(f"v_mfma_f32_32x32x16_bf16 {vr(acc(tp,np_),16)}, {vr(Bv[f],4)}, {vr(A,4)}, {c}")
                        if np_ == 1: free.append(A)
                        if tp == 1:
                            if needb: a(tr[f]); ldsq.append((i + 2, f))
                            elif i >= 2: free.append(Bv[f])
                        got = issue()
                        if i >= 2 and fl and not got:
                            for _ in range(min(3, len(fl))): a(fl.pop(0))
                            a(".p2align 3")
        if nst != 16: a("s_branch KL_FIN")
    a.label("KL_FIN")
    stamp(a, opt, 5)
    L = newlab("GL"); D = newlab("GD")
    a("s_and_b64 s[64:65], s[64:65], vcc"); a("s_andn2_b64 s[64:65], exec, s[64:65]"); a(f"s_cbranch_scc0 {D}")
    a("s_mov_b32 s66, 0x40000")
    a.label(L)
    a("s_sleep 1")
    a(f"buffer_load_dwordx4 v[72:75], v7, {q(RWS)}, s69 offen sc1"); a(f"buffer_load_dwordx4 v[76:79], v7, {q(RWS)}, s69 offen offset:64 sc1")
    a("s_waitcnt vmcnt(0)")
    for x in ["v_cndmask_b32 v96, v72, v73, s[74:75]", "v_cndmask_b32 v98, v76, v77, s[74:75]", "v_sub_f32 v100, 1.0, v96", "v_sub_f32 v101, 1.0, v98",
              "v_cvt_pk_bf16_f32 v100, v100, v101", "v_and_b32 v102, 0xffff0000, v100", "v_lshlrev_b32 v100, 16, v100",
              f"v_cmp_eq_u64 vcc, s[{TAG}:{TAG+1}], v[74:75]", f"v_cmp_eq_u64 s[64:65], s[{TAG}:{TAG+1}], v[78:79]", "s_nop 0"]: a(x)
    a("s_and_b64 s[64:65], s[64:65], vcc"); a("s_andn2_b64 s[64:65], exec, s[64:65]"); a(f"s_cbranch_scc0 {D}")
    a("s_sub_u32 s66, s66, 1"); a("s_cmp_lg_u32 s66, 0"); a(f"s_cbranch_scc1 {L}")
    a.label(D)
    if opt.get("f8", 1):
        a("v_mov_b32 v99, v102")
        a("ds_write_b64 v103, v[98:99]")
        a("s_waitcnt lgkmcnt(0)"); a("s_barrier"); stamp(a, opt, 6, True)
        final_half(a, opt, RA_, OV, "s70", False)
    else:
        a("s_waitcnt lgkmcnt(0)"); a("s_barrier"); stamp(a, opt, 6, True)
        T = 104
        def P(h, src): return T + 32 * h + 8 * src
        for h in range(2):
            for src in (0, 1, 2, 3):
                for e in range(2):
                    off = (3 - src) * 4096 + h * 2048 + (16384 if src else 0)
                    a(f"ds_read_b128 {vr(P(h,src)+4*e,4)}, v{RA_+2*h+e} offset:{off}")
        for h in range(2):
            a(f"s_waitcnt lgkmcnt({8*(1-h)+6})")
            for i in range(0, 8, 2): a(f"v_pk_mul_f32 {vr(P(h,0)+i,2)}, {vr(P(h,0)+i,2)}, {vr(96+2*h,2)} op_sel_hi:[1,0]")
            a(f"s_waitcnt lgkmcnt({8*(1-h)+2})")
            for i in range(0, 8, 2): a(f"v_pk_add_f32 {vr(P(h,1)+i,2)}, {vr(P(h,1)+i,2)}, {vr(P(h,2)+i,2)}")
            a(f"s_waitcnt lgkmcnt({8*(1-h)})")
            for i in range(0, 8, 2): a(f"v_pk_add_f32 {vr(P(h,1)+i,2)}, {vr(P(h,1)+i,2)}, {vr(P(h,3)+i,2)}")
            for i in range(0, 8, 2): a(f"v_pk_fma_f32 {vr(P(h,0)+i,2)}, {vr(P(h,1)+i,2)}, {vr(100+2*h,2)}, {vr(P(h,0)+i,2)} op_sel_hi:[1,0,1]")
            for i in range(4): a(f"v_cvt_pk_bf16_f32 v{P(h,2)+i}, v{P(h,0)+2*i}, v{P(h,0)+2*i+1}")
            a(f"buffer_store_dwordx4 {vr(P(h,2),4)}, v{OV}, {q(RAUX)}, s{70+h} offen {opt.get('ost', 'sc1')}")
    stamp(a, opt, 7)
    if so.get("stamps"): a(f"s_add_u32 s100, {sW}, 40")
    if so.get("stamps"): a(f"s_lshl_b32 s64, {sT}, 2"); a("s_add_u32 s100, s100, s64")
    stamp_end(a, so, "s100")

HEADER = """; gated mix of (sliding dilated attention -> Wo) and (ReLU MLP); one fused persistent launch, 256 workgroups (1 per CU).
; kernarg: x, wqkv, wo, (unused), w1, w2, gate_w, out, debug, ws
; hand-off: per-workgroup flag lines in ws carrying a per-launch tag (published through the zeroed debug buffer).
"""

def generate(opt):
    a = Asm()
    for l in HEADER.strip().split("\n"): a.lines.append(l)
    post = opt.get("post")
    if post is None:
        a(f"; @launch grid=(256,1,1) block=(512,1,1) lds={LDS_BYTES}")
    else:
        if opt.get("k0"): a(f"; @launch kernel=k0_kernel grid=(1,1,1) block=(64,1,1) lds=0")
        a(f"; @launch kernel={NAME}_kernel grid=(256,1,1) block=(512,1,1) lds={LDS_BYTES}")
        a(f"; @launch kernel=k3_kernel grid=(1,1,1) block=(64,1,1) lds=0")
    a('.amdgcn_target "amdgcn-amd-amdhsa--gfx950"'); a(".text")
    gen(a, opt)
    if opt.get("k0"):
        a(".globl k0_kernel"); a(".p2align 8"); a(".type k0_kernel,@function"); a.label("k0_kernel")
        a("s_memrealtime s[4:5]"); a("s_load_dwordx2 s[8:9], s[0:1], 72"); a("s_cmp_lg_u32 s2, 0"); a("s_cbranch_scc1 K0_E"); a("s_waitcnt lgkmcnt(0)")
        a(f"s_add_u32 s8, s8, {STAMP_OFF + 0x40000}"); a("s_addc_u32 s9, s9, 0"); a("v_mov_b32 v1, 0"); a("v_mov_b32 v2, s4")
        a("global_store_dword v1, v2, s[8:9]"); a.label("K0_E"); a("s_endpgm")
    if post in ("pre0", "pred", "main0"):
        a(".globl k3_kernel"); a(".p2align 8"); a(".type k3_kernel,@function"); a.label("k3_kernel")
        a("s_load_dwordx2 s[8:9], s[0:1], 72"); a("s_waitcnt lgkmcnt(0)")
        a(f"s_add_u32 s8, s8, {STAMP_OFF}"); a("s_addc_u32 s9, s9, 0")
        a(f"s_load_dword s4, s[8:9], {0x40000 if post != 'main0' else 256}"); a("s_load_dword s12, s[8:9], 256"); a("s_memrealtime s[10:11]"); a("s_waitcnt lgkmcnt(0)")
        a("s_sub_u32 s12, s12, s4"); a("s_lshl_b32 s12, s12, 3")
        if post != "pred": a("s_mov_b32 s12, 0")
        a("s_min_u32 s12, s12, 20000"); a("s_add_u32 s12, s12, 6000")
        a.label("K3_L"); a("s_memrealtime s[6:7]"); a("s_waitcnt lgkmcnt(0)")
        a("s_sub_u32 s7, s6, s10"); a("s_cmp_gt_u32 s7, 30000"); a("s_cbranch_scc1 K3_E")
        a("s_sub_u32 s6, s6, s4"); a("s_cmp_lt_u32 s6, s12"); a("s_cbranch_scc1 K3_L")
        a.label("K3_E"); a("s_endpgm")
    elif post == "span":
        a(".globl k3_kernel"); a(".p2align 8"); a(".type k3_kernel,@function"); a.label("k3_kernel")
        a("s_load_dwordx2 s[8:9], s[0:1], 72"); a("s_waitcnt lgkmcnt(0)")
        a(f"s_add_u32 s8, s8, {STAMP_OFF}"); a("s_addc_u32 s9, s9, 0")
        a("s_load_dword s4, s[8:9], 256"); a("s_memrealtime s[10:11]")
        a("v_lshlrev_b32 v1, 9, v0")
        for k in range(4):
            a(f"global_load_dword v{2+k}, v1, s[8:9] offset:{5*64+4}"); a("v_add_u32 v1, 32768, v1")
        a("s_waitcnt vmcnt(0) lgkmcnt(0)")
        for k in range(4): a(f"v_subrev_u32 v{2+k}, s4, v{2+k}")
        a("v_max_u32 v2, v2, v3"); a("v_max3_u32 v2, v2, v4, v5"); a("s_mov_b32 s12, 0"); a("s_nop 1")
        for l in range(64): a(f"v_readlane_b32 s13, v2, {l}"); a("s_nop 0"); a("s_max_u32 s12, s12, s13")
        a("s_lshl_b32 s12, s12, 3")
        a("s_min_u32 s12, s12, 24000"); a("s_add_u32 s12, s12, 4000")
        a.label("K3_L"); a("s_memrealtime s[6:7]"); a("s_waitcnt lgkmcnt(0)")
        a("s_sub_u32 s7, s6, s10"); a("s_cmp_gt_u32 s7, 30000"); a("s_cbranch_scc1 K3_E")
        a("s_sub_u32 s6, s6, s4"); a("s_cmp_lt_u32 s6, s12"); a("s_cbranch_scc1 K3_L")
        a.label("K3_E"); a("s_endpgm")
    elif post is not None:
        wg, wv, idx, rf, sh = [int(x) for x in post.split(",")]
        a(".globl k3_kernel"); a(".p2align 8"); a(".type k3_kernel,@function"); a.label("k3_kernel")
        a("s_load_dwordx2 s[8:9], s[0:1], 72"); a("s_waitcnt lgkmcnt(0)")
        a(f"s_add_u32 s8, s8, {STAMP_OFF}"); a("s_addc_u32 s9, s9, 0")
        off = (wg * 8 + wv) * 64
        a("s_load_dword s4, s[8:9], 0"); a(f"s_load_dword s12, s[8:9], {off + 4*idx}"); a(f"s_load_dword s13, s[8:9], {off + 4*rf}"); a("s_memrealtime s[10:11]"); a("s_waitcnt lgkmcnt(0)")
        a("s_sub_u32 s12, s12, s13")
        a(f"s_lshr_b32 s12, s12, {sh}") if sh >= 0 else a(f"s_lshl_b32 s12, s12, {-sh}")
        a("s_min_u32 s12, s12, 20000"); a("s_add_u32 s12, s12, 6000")
        a.label("K3_L"); a("s_memrealtime s[6:7]"); a("s_waitcnt lgkmcnt(0)")
        a("s_sub_u32 s7, s6, s10"); a("s_cmp_gt_u32 s7, 30000"); a("s_cbranch_scc1 K3_E")
        a("s_sub_u32 s6, s6, s4"); a("s_cmp_lt_u32 s6, s12"); a("s_cbranch_scc1 K3_L")
        a.label("K3_E"); a("s_endpgm")
    a('.section .rodata,"a"'); a(".p2align 6")
    a(f".amdhsa_kernel {NAME}_kernel")
    a("  .amdhsa_next_free_vgpr 256"); a("  .amdhsa_next_free_sgpr 102"); a("  .amdhsa_accum_offset 256")
    a("  .amdhsa_group_segment_fixed_size 0"); a("  .amdhsa_kernarg_size 80"); a("  .amdhsa_user_sgpr_count 2")
    a("  .amdhsa_user_sgpr_kernarg_segment_ptr 1"); a("  .amdhsa_system_sgpr_workgroup_id_x 1"); a(".end_amdhsa_kernel")
    if opt.get("k0"):
        a(".p2align 6"); a(".amdhsa_kernel k0_kernel")
        a("  .amdhsa_next_free_vgpr 8"); a("  .amdhsa_next_free_sgpr 102"); a("  .amdhsa_accum_offset 8")
        a("  .amdhsa_group_segment_fixed_size 0"); a("  .amdhsa_kernarg_size 80"); a("  .amdhsa_user_sgpr_count 2")
        a("  .amdhsa_user_sgpr_kernarg_segment_ptr 1"); a("  .amdhsa_system_sgpr_workgroup_id_x 1"); a(".end_amdhsa_kernel")
    if post is not None:
        a(".p2align 6"); a(".amdhsa_kernel k3_kernel")
        a("  .amdhsa_next_free_vgpr 8"); a("  .amdhsa_next_free_sgpr 102"); a("  .amdhsa_accum_offset 8")
        a("  .amdhsa_group_segment_fixed_size 0"); a("  .amdhsa_kernarg_size 80"); a("  .amdhsa_user_sgpr_count 2")
        a("  .amdhsa_user_sgpr_kernarg_segment_ptr 1"); a("  .amdhsa_system_sgpr_workgroup_id_x 1"); a(".end_amdhsa_kernel")
    errs = check(a.lines)
    for e in errs: print(e, file=sys.stderr)
    assert not errs
    return a.text()

if __name__ == "__main__":
    opt = {}
    for kv in sys.argv[2:]:
        k, v = kv.split("=")
        try: v = int(v)
        except: pass
        opt[k] = v
    open(sys.argv[1], "w").write(generate(opt))
```
